```python
import torch

def _softmax(x, axis=-1):
    return torch.softmax(x, dim=axis)
def _gelu(x):
    return torch.nn.functional.gelu(x, approximate="tanh")
def _silu(x):
    return torch.nn.functional.silu(x)
def _sigmoid(x):
    return torch.sigmoid(x)
def _layernorm(x, axis=-1, eps=1e-5):
    m = x.mean(dim=axis, keepdim=True)
    v = x.var(dim=axis, keepdim=True, unbiased=False)
    return (x - m) / torch.sqrt(v + eps)
def _scatter_add(tgt, idx, src, axis=0):
    return tgt.clone().index_add_(axis, idx, src)
def _segment_sum(src, seg, n):
    out = torch.zeros((n,) + src.shape[1:], dtype=src.dtype)
    return out.index_add_(0, seg, src)
def _pad(x, pw):
    flat = tuple(v for pair in reversed(pw) for v in pair)
    return torch.nn.functional.pad(x, flat)

kernel_name = 'gated_mix__ssm_conv_s4__geglu_ffn__prompt'

def setup_inputs():

    _w = (lambda a: (lambda t: t.to(torch.bfloat16) if t.is_floating_point() else t)(torch.as_tensor(a)))
    def _A_setup():
        B, L, D, N = 1, 2048, 512, 128
        A_re = -(lambda _x: torch.exp(torch.as_tensor(_x)))((lambda *s: torch.randn(*s, dtype=torch.bfloat16) * 3.2)(D, N))
        A_im = torch.pi * (lambda *s: torch.randn(*s, dtype=torch.bfloat16) * 0.05)(D, N)
        B_re = (lambda *s: torch.randn(*s, dtype=torch.bfloat16) * 0.1)(D, N)
        B_im = (lambda *s: torch.randn(*s, dtype=torch.bfloat16) * 0.1)(D, N)
        C_re = (lambda *s: torch.randn(*s, dtype=torch.bfloat16) * 0.1)(D, N)
        C_im = (lambda *s: torch.randn(*s, dtype=torch.bfloat16) * 0.1)(D, N)
        log_dt = (lambda *s: torch.randn(*s, dtype=torch.bfloat16) * 0.05)(D) * 0.5 - 4.0
        Dskip = (lambda *s: torch.randn(*s, dtype=torch.bfloat16) * 0.05)(D)
        return {
            "u": _w((lambda *s: torch.randn(*s, dtype=torch.bfloat16) * 0.05)(B, L, D)),
            "A_re": _w(A_re),
            "A_im": _w(A_im),
            "B_re": _w(B_re),
            "B_im": _w(B_im),
            "C_re": _w(C_re),
            "C_im": _w(C_im),
            "log_dt": _w(log_dt),
            "Dskip": _w(Dskip),
        }
    _A_in = _A_setup()

    def _B_setup():
        B, S, D, F = 1, 2048, 512, 1792
        return {
            "x": _w((lambda *s: torch.randn(*s, dtype=torch.bfloat16) * 0.05)(B, S, D)),
            "w_gate": _w((lambda *s: torch.randn(*s, dtype=torch.bfloat16) * 0.05)(D, F)),
            "w_up": _w((lambda *s: torch.randn(*s, dtype=torch.bfloat16) * 0.05)(D, F)),
            "w_down": _w((lambda *s: torch.randn(*s, dtype=torch.bfloat16) * 0.05)(F, D)),
        }
    _B_in = _B_setup()

    return {
        "A_u": _A_in["u"],
        "A_A_re": _A_in["A_re"],
        "A_A_im": _A_in["A_im"],
        "A_B_re": _A_in["B_re"],
        "A_B_im": _A_in["B_im"],
        "A_C_re": _A_in["C_re"],
        "A_C_im": _A_in["C_im"],
        "A_log_dt": _A_in["log_dt"],
        "A_Dskip": _A_in["Dskip"],
        "B_x": _B_in["x"],
        "B_w_gate": _B_in["w_gate"],
        "B_w_up": _B_in["w_up"],
        "B_w_down": _B_in["w_down"],
        "gate_w": _w((lambda *s: torch.randn(*s, dtype=torch.bfloat16) * 0.05)(512) * 16.0),
    }

def reference(A_u, A_A_re, A_A_im, A_B_re, A_B_im, A_C_re, A_C_im, A_log_dt, A_Dskip, B_x, B_w_gate, B_w_up, B_w_down, gate_w):
    def _A_ref(u, A_re, A_im, B_re, B_im, C_re, C_im, log_dt, Dskip):
        Bsz, L, D = u.shape
        dt = torch.exp(log_dt)[:, None]
        A = A_re + 1j * A_im
        Bc = B_re + 1j * B_im
        Cc = C_re + 1j * C_im
        logdA = dt * A
        dB = dt * Bc
        l = (lambda x, dt: x.to(dt))(torch.arange(L), A_re.dtype)
        P = torch.exp(logdA[:, :, None] * l[None, None, :])
        K = torch.einsum("dn,dnl,dn->dl", Cc, P, dB).real
        L2 = 2 * L
        Kp = _pad(K, ((0, 0), (0, L)))
        up = (lambda x, *d: x.permute(*d))(u, 0, 2, 1)
        up = _pad(up, ((0, 0), (0, 0), (0, L)))
        Kf = (lambda x, axes=(-2,-1): torch.fft.rfft2(x.float(), dim=axes))(Kp[:, None, :], axes=(-2, -1))
        Uf = (lambda x, axes=(-2,-1): torch.fft.rfft2(x.float(), dim=axes))(up[:, :, None, :], axes=(-2, -1))
        Yf = Uf * Kf[None, :, :, :]
        y = (lambda x, s, axes=(-2,-1): torch.fft.irfft2(x, s=s, dim=axes).to(torch.bfloat16))(Yf, (1, L2), axes=(-2, -1))[:, :, 0, :L]
        y = (lambda x, *d: x.permute(*d))(y, 0, 2, 1) + u * Dskip[None, None, :]
        return y

    def _B_ref(x, w_gate, w_up, w_down):
        return (_gelu(x @ w_gate) * (x @ w_up)) @ w_down

    x = A_u
    g = _sigmoid((x * gate_w).sum(-1, keepdims=True))
    a = _A_ref(x, A_A_re, A_A_im, A_B_re, A_B_im, A_C_re, A_C_im, A_log_dt, A_Dskip)
    b = _B_ref(x, B_w_gate, B_w_up, B_w_down)
    return g * a + (1 - g) * b
```

```python
HEADER_COMMENT = open("gated_mix__ssm_conv_s4__geglu_ffn__prompt.s.ref").read().split("; Override launch")[0]
KN = "gated_mix__ssm_conv_s4__geglu_ffn__prompt_kernel"
class Asm:
    def __init__(self):
        self.lines = []
        self.nlab = 0
    def __call__(self, s):
        for l in s.split("\n"):
            l = l.strip()
            if l:
                self.lines.append(("    " + l) if not l.endswith(":") else l)
    def lab(self, p="L"):
        self.nlab += 1
        return "%s_%d" % (p, self.nlab)
    def srd(self, r, base, nbytes):
        self("s_mov_b32 s%d, s%d" % (r, base))
        self("s_and_b32 s%d, s%d, 0xffff" % (r+1, base+1))
        self("s_mov_b32 s%d, 0x%x" % (r+2, nbytes))
        self("s_mov_b32 s%d, 0x20000" % (r+3))
    def text(self):
        return "\n".join(self.lines) + "\n"

def kernel_begin(name):
    return ".globl %s\n.p2align 8\n.type %s,@function\n%s:\n" % (name, name, name)
def kernel_desc(name, vgpr, sgpr, accum):
    return (".amdhsa_kernel %s\n  .amdhsa_next_free_vgpr %d\n  .amdhsa_next_free_sgpr %d\n  .amdhsa_accum_offset %d\n"
            "  .amdhsa_group_segment_fixed_size 0\n  .amdhsa_kernarg_size 136\n  .amdhsa_user_sgpr_count 2\n"
            "  .amdhsa_user_sgpr_kernarg_segment_ptr 1\n  .amdhsa_system_sgpr_workgroup_id_x 1\n"
            "  .amdhsa_float_denorm_mode_32 3\n"
            ".end_amdhsa_kernel\n") % (name, vgpr, sgpr, accum)
def build_file(kernels, single=False):
    s = HEADER_COMMENT
    if single:
        n, g, b, l = kernels[0][:4]
        s += "; @launch grid=(%d,1,1) block=(%d,1,1) lds=%d\n" % (g, b, l)
    else:
        for k in kernels:
            n, g, b, l = k[:4]
            s += "; @launch kernel=%s grid=(%d,1,1) block=(%d,1,1) lds=%d\n" % (n, g, b, l)
    s += '.amdgcn_target "amdgcn-amd-amdhsa--gfx950"\n.text\n'
    seen = []
    for k in kernels:
        if k[0] in seen: continue
        seen.append(k[0])
        s += kernel_begin(k[0]) + k[4]
    s += '.section .rodata,"a"\n'
    seen = []
    for k in kernels:
        if k[0] in seen: continue
        seen.append(k[0])
        s += ".p2align 6\n" + kernel_desc(k[0], k[5], k[6], k[7])
    return s
```

```python
import re
from asmgen import HEADER_COMMENT, KN, build_file

REG_RE = re.compile(r"\b([vas])(\d+)\b|\b([vas])\[(\d+):(\d+)\]|\b(vcc|exec|m0|scc)\b")
TRANS = ("v_exp_f32","v_log_f32","v_rcp_f32","v_rsq_f32","v_sqrt_f32","v_sin_f32","v_cos_f32")

def regs_of(tok):
    out = []
    for m in REG_RE.finditer(tok):
        if m.group(1): out.append(m.group(1) + m.group(2))
        elif m.group(3): out += [m.group(3) + str(i) for i in range(int(m.group(4)), int(m.group(5)) + 1)]
        else: out.append(m.group(6))
    return out

def split_ops(s):
    ops, depth, cur = [], 0, ""
    for ch in s:
        if ch == "[": depth += 1
        if ch == "]": depth -= 1
        if ch == "," and depth == 0:
            ops.append(cur.strip()); cur = ""
        else: cur += ch
    if cur.strip(): ops.append(cur.strip())
    return ops

class Op:
    pass

class G:
    def __init__(self):
        self.lines = []
        self.n = 0
        self.lg_seq = 0; self.lg_done = 0
        self.vm_seq = 0; self.vm_done = 0
        self.pend = {}
        self.valu_w = {}
        self.trans_w = {}
        self.mfma_w = {}
        self.mfma_c = {}
        self.sgpr_valu_w = {}
        self.m0_w = -100
        self.store_data = {}
        self.nlab = 0
        self.smem_pending = False
    def lab(self, p="L"):
        self.nlab += 1
        return "%s_%d" % (p, self.nlab)
    def raw(self, s):
        self.lines.append("    " + s); self.n += 1
    def comment(self, s):
        self.lines.append("    ; " + s)
    def nop(self, k):
        while k > 0:
            c = min(k, 16)
            self.lines.append("    s_nop %d" % (c - 1)); self.n += c; k -= c
    def wait(self, vm=None, lg=None):
        parts = []
        if vm is not None:
            vm = min(vm, 63)
            if self.vm_seq - vm > self.vm_done:
                parts.append("vmcnt(%d)" % vm); self.vm_done = self.vm_seq - vm
        if lg is not None:
            lg = min(lg, 15)
            if self.lg_seq - lg > self.lg_done or (lg == 0 and self.smem_pending):
                parts.append("lgkmcnt(%d)" % lg); self.lg_done = max(self.lg_done, self.lg_seq - lg)
                if lg == 0: self.smem_pending = False
        if parts: self.raw("s_waitcnt " + " ".join(parts))
    def wait_op(self, op):
        ctr, seq = op
        if ctr == "vm": self.wait(vm=self.vm_seq - seq)
        else: self.wait(lg=self.lg_seq - seq)
    def label(self, l, flush=True):
        self.lines.append(l + ":")
    def flush(self):
        self.raw("s_waitcnt vmcnt(0) lgkmcnt(0)"); self.vm_done = self.vm_seq; self.lg_done = self.lg_seq; self.smem_pending = False
        self.nop(16)
    def need(self, slot, k):
        gap = self.n - slot - 1
        if gap < k: self.nop(k - gap)
    def __call__(self, text):
        r = None
        for l in text.split("\n"):
            l = l.strip()
            if not l or l.startswith(";"): continue
            r = self.ins(l)
        return r
    def ins(self, l):
        if l.endswith(":"):
            self.label(l[:-1]); return None
        mn, _, rest = l.partition(" ")
        ops = split_ops(rest)
        is_mfma = mn.startswith("v_mfma")
        is_valu = mn.startswith("v_") and not is_mfma
        is_ds = mn.startswith("ds_")
        is_vm = mn.startswith("buffer_") or mn.startswith("global_")
        is_salu = mn.startswith("s_")
        is_smem = mn.startswith("s_load") or mn.startswith("s_memtime") or mn.startswith("s_memrealtime") or mn.startswith("s_buffer_load")
        lds_dma = is_vm and (re.search(r"\blds\b", rest) is not None or "load_lds" in mn)
        dst, src = [], []
        if is_vm:
            if mn.startswith("buffer_inv") or mn.startswith("buffer_wbl2"):
                pass
            elif lds_dma:
                src = regs_of(rest) + ["m0"]
            elif "load" in mn:
                dst = regs_of(ops[0]); src = regs_of(",".join(ops[1:]))
                if "d16" in mn: src += dst
            elif "atomic" in mn:
                src = regs_of(rest)
                if mn.startswith("buffer") and re.search(r"\bsc0\b", rest): dst = regs_of(ops[0])
                if mn.startswith("global") and re.search(r"\bsc0\b", rest): dst = regs_of(ops[0]); src = regs_of(",".join(ops[1:]))
            else:
                src = regs_of(rest)
        elif is_ds:
            if mn.startswith("ds_read") or mn.startswith("ds_bpermute") or mn.startswith("ds_permute") or mn.startswith("ds_swizzle"):
                dst = regs_of(ops[0]); src = regs_of(",".join(ops[1:]))
                if "d16" in mn: src += dst
            else:
                src = regs_of(rest)
        elif is_salu:
            if mn in ("s_barrier","s_endpgm","s_nop","s_waitcnt","s_sleep","s_setprio") or mn.startswith("s_cbranch") or mn == "s_branch":
                pass
            elif mn.startswith("s_cmp") or mn.startswith("s_bitcmp"):
                src = regs_of(rest)
            else:
                dst = regs_of(ops[0]); src = regs_of(",".join(ops[1:]))
        else:
            dst = regs_of(ops[0]); src = regs_of(",".join(ops[1:]))
            if mn.startswith("v_add_co") or mn.startswith("v_sub_co") or mn.startswith("v_addc_co"):
                dst += regs_of(ops[1]); src = regs_of(",".join(ops[2:]))
            if mn.startswith("v_fmac") or mn.startswith("v_dot2c") or mn.startswith("v_writelane") or "dpp" in l or "sdwa" in l: src += dst
            if mn.startswith("v_permlane") and "swap" in mn:
                dst = regs_of(rest); src = dst[:]
            if mn.startswith("v_cndmask") and len(ops) == 3: src.append("vcc")
        vmw, lgw = None, None
        for r in src + dst:
            if r in self.pend:
                ctr, seq = self.pend[r]
                if "d16" in mn and r in dst and ((ctr == "lg" and is_ds) or (ctr == "vm" and is_vm)):
                    continue
                if ctr == "vm":
                    k = self.vm_seq - seq; vmw = k if vmw is None else min(vmw, k)
                elif ctr == "lg":
                    k = self.lg_seq - seq; lgw = k if lgw is None else min(lgw, k)
                else:
                    lgw = 0
        if self.smem_pending and lgw is not None: lgw = 0
        self.wait(vm=vmw, lg=lgw)
        for r in src + dst:
            if r in self.pend:
                ctr, seq = self.pend[r]
                if (ctr == "vm" and seq <= self.vm_done) or (ctr == "lg" and seq <= self.lg_done) or (ctr == "sm" and not self.smem_pending):
                    del self.pend[r]
        if is_mfma:
            passes = 8 if "32x32" in mn else 4
            d = regs_of(ops[0]); A = regs_of(ops[1]); B = regs_of(ops[2]); C = regs_of(ops[3])
            for r in A + B + C:
                if r in self.valu_w: self.need(self.valu_w[r], 2)
            for r in A + B:
                if r in self.mfma_w:
                    s, p, _, _ = self.mfma_w[r]; self.need(s, {4: 8, 8: 12}[p])
            for r in C + d:
                if r in self.mfma_w:
                    s, p, d0, dl = self.mfma_w[r]
                    if not (C and d0 == C[0] and dl == len(C) and p == passes and (r in C)):
                        self.need(s, {4: 6, 8: 10}[p])
        else:
            if is_valu or is_vm or is_ds:
                for r in src + dst:
                    if r in self.mfma_w:
                        s, p, _, _ = self.mfma_w[r]; self.need(s, {4: 8, 8: 12}[p])
            if is_valu:
                for r in dst:
                    if r in self.mfma_c:
                        s, p = self.mfma_c[r]; self.need(s, {4: 3, 8: 7}[p])
                    if r in self.store_data: self.need(self.store_data[r], 2)
                if mn not in TRANS:
                    for r in src:
                        if r in self.trans_w: self.need(self.trans_w[r], 1)
                for r in src:
                    if r in self.sgpr_valu_w:
                        self.need(self.sgpr_valu_w[r], 4 if (mn.startswith("v_readlane") or mn.startswith("v_writelane")) else 2)
                if mn.startswith("v_readfirstlane") or mn.startswith("v_readlane"):
                    for r in src:
                        if r in self.valu_w: self.need(self.valu_w[r], 1)
                if "dpp" in l or mn.startswith("v_permlane"):
                    for r in src:
                        if r in self.valu_w: self.need(self.valu_w[r], 2)
            if is_vm or is_ds:
                for r in src:
                    if r in self.sgpr_valu_w: self.need(self.sgpr_valu_w[r], 5)
                    if r in self.trans_w: self.need(self.trans_w[r], 1)
                for r in dst:
                    if r in self.store_data: self.need(self.store_data[r], 1)
            if is_salu:
                for r in src:
                    if r in self.sgpr_valu_w: self.need(self.sgpr_valu_w[r], 2)
            if lds_dma: self.need(self.m0_w, 1)
        slot = self.n
        self.raw(l)
        if mn == "s_nop":
            self.n += int(ops[0], 0)
        ret = None
        if is_mfma:
            for r in d: self.mfma_w[r] = (slot, passes, d[0], len(d)); self.valu_w.pop(r, None)
            for r in C: self.mfma_c[r] = (slot, passes)
        elif is_valu:
            for r in dst:
                if r[0] in "va" and r != "vcc":
                    self.valu_w[r] = slot; self.mfma_w.pop(r, None)
                    if mn in TRANS: self.trans_w[r] = slot
                    else: self.trans_w.pop(r, None)
                else:
                    self.sgpr_valu_w[r] = slot
        elif is_vm:
            self.vm_seq += 1; ret = ("vm", self.vm_seq)
            for r in dst: self.pend[r] = ret; self.mfma_w.pop(r, None); self.valu_w.pop(r, None); self.trans_w.pop(r, None)
            if "store" in mn and ("x4" in mn or "x3" in mn):
                for r in regs_of(ops[0] if mn.startswith("buffer") else ops[1]): self.store_data[r] = slot
        elif is_ds:
            self.lg_seq += 1; ret = ("lg", self.lg_seq)
            for r in dst: self.pend[r] = ret; self.mfma_w.pop(r, None); self.valu_w.pop(r, None); self.trans_w.pop(r, None)
        elif is_smem:
            self.smem_pending = True
            for r in dst: self.pend[r] = ("sm", 0)
        elif is_salu:
            for r in dst:
                self.sgpr_valu_w.pop(r, None)
                if r == "m0": self.m0_w = slot
            if mn == "s_waitcnt":
                m = re.search(r"vmcnt\((\d+)\)", rest)
                if m: self.vm_done = max(self.vm_done, self.vm_seq - int(m.group(1)))
                m = re.search(r"lgkmcnt\((\d+)\)", rest)
                if m:
                    self.lg_done = max(self.lg_done, self.lg_seq - int(m.group(1)))
                    if int(m.group(1)) == 0: self.smem_pending = False
        return ret
    def srd(self, r, base, nbytes):
        self("s_mov_b32 s%d, s%d" % (r, base))
        self("s_and_b32 s%d, s%d, 0xffff" % (r+1, base+1))
        self("s_mov_b32 s%d, 0x%x" % (r+2, nbytes))
        self("s_mov_b32 s%d, 0x20000" % (r+3))
    def text(self):
        return "\n".join(self.lines) + "\n"

def vr(b, n=1, k="v"):
    return "%s%d" % (k, b) if n == 1 else "%s[%d:%d]" % (k, b, b + n - 1)
def ar(b, n=1): return vr(b, n, "a")
```

```python
import sys, struct, math
from gen import *

def f2u(x): return struct.unpack("<I", struct.pack("<f", x))[0]
UT_OFF = 0; UT_STRIDE = 4224
H_OFF = 0x400000
AT_OFF = 0xC00000
G_OFF = 0xE00000
DBG_OFF = 0x1000000
WS_BYTES = 268435456
BUF = [0, 49152, 98304]; SPARE = 147456
KT = 98304; KT_CH = 28672; KT_IM = 14336
KC = 155648; KC_CH = 1536
KF = 98304; KF_CH = 4608; KF_PL = 2304
UE = [0, 49152]
XCH = 110592
S_X, S_WG, S_WU, S_WD, S_WS, S_OUT = 52, 56, 60, 64, 68, 72
S_XCD, S_IDX, S_W = 76, 77, 78
LOG2E = 1.4426950408889634

def prologue(g, nwg):
    g("s_cmp_ge_u32 s2, %d" % nwg)
    g("s_cbranch_scc1 %s" % g.endlab)
    g("s_load_dwordx16 s[16:31], s[0:1], 0")
    g("s_load_dwordx16 s[32:47], s[0:1], 64")
    g("s_load_dwordx2 s[48:49], s[0:1], 128")
    g("v_lshrrev_b32 v1, 6, v0")
    g("v_and_b32 v0, 63, v0")
    g("s_and_b32 s%d, s2, 7" % S_XCD)
    g("s_lshr_b32 s%d, s2, 3" % S_IDX)
    g("v_readfirstlane_b32 s%d, v1" % S_W)
    g("s_waitcnt lgkmcnt(0)")
    g.srd(S_X, 16, 2048*512*2)
    g.srd(S_WG, 36, 512*1792*2)
    g.srd(S_WU, 38, 512*1792*2)
    g.srd(S_WD, 40, 512*1792*2)
    g.srd(S_WS, 48, WS_BYTES)
    g.srd(S_OUT, 44, 2048*512*2)

def srd(r): return "s[%d:%d]" % (r, r+3)

def phase_T(g):
    g("v_lshrrev_b32 v2, 3, v0\nv_and_b32 v3, 7, v0")
    g("v_lshlrev_b32 v2, 10, v2\nv_lshlrev_b32 v3, 4, v3\nv_add_u32 v2, v2, v3")
    g("s_lshl_b32 s80, s%d, 16" % S_IDX)
    g("s_lshl_b32 s81, s%d, 14" % S_W)
    g("s_add_u32 s80, s80, s81")
    g("s_lshl_b32 s81, s%d, 7" % S_XCD)
    g("s_add_u32 s80, s80, s81")
    g("s_lshl_b32 s82, s%d, 11" % S_W)
    g("s_add_u32 m0, s82, %d" % SPARE)
    g("buffer_load_dwordx4 v2, %s, s80 offen lds" % srd(S_X))
    g("s_add_u32 m0, s82, %d" % (SPARE + 1024))
    g("s_add_u32 s80, s80, 8192")
    last = g("buffer_load_dwordx4 v2, %s, s80 offen lds" % srd(S_X))
    g("v_and_b32 v4, 3, v0\nv_lshlrev_b32 v4, 3, v4")
    g("v_bfe_u32 v5, v0, 4, 1\nv_lshlrev_b32 v5, 5, v5\nv_add_u32 v4, v4, v5")
    g("v_bfe_u32 v5, v0, 2, 2\nv_add_u32 v4, v4, v5\nv_lshlrev_b32 v4, 7, v4")
    g("v_lshrrev_b32 v5, 5, v0\nv_lshlrev_b32 v5, 3, v5\nv_add_u32 v4, v4, v5")
    g("s_lshl_b32 s82, s%d, 5" % S_W)
    g("s_add_u32 s82, s82, %d" % SPARE)
    g("v_add_u32 v4, s82, v4")
    g("v_lshrrev_b32 v5, 5, v0\nv_lshlrev_b32 v5, 2, v5\nv_and_b32 v6, 3, v0\nv_add_u32 v5, v5, v6")
    g("s_mov_b32 s83, %d\nv_mul_lo_u32 v5, v5, s83" % UT_STRIDE)
    g("v_bfe_u32 v6, v0, 2, 2\nv_lshlrev_b32 v6, 4, v6\nv_add_u32 v5, v5, v6")
    g("v_bfe_u32 v6, v0, 4, 1\nv_lshlrev_b32 v6, 6, v6\nv_add_u32 v5, v5, v6")
    g("s_lshl_b32 s80, s%d, 2\ns_add_u32 s80, s80, s%d\ns_mul_i32 s80, s80, %d" % (S_XCD, S_W, 16*UT_STRIDE))
    g("s_mov_b32 s84, s80")
    g("s_lshl_b32 s81, s%d, 7\ns_add_u32 s80, s80, s81\ns_add_u32 s80, s80, %d" % (S_IDX, UT_OFF + 128))
    g("s_add_u32 s81, s80, %d" % (8*UT_STRIDE))
    g.wait_op(last)
    g("s_barrier")
    g("ds_read_b64_tr_b16 v[8:9], v4")
    g("ds_read_b64_tr_b16 v[10:11], v4 offset:512")
    g("ds_read_b64_tr_b16 v[12:13], v4 offset:16")
    g("ds_read_b64_tr_b16 v[14:15], v4 offset:528")
    g("buffer_store_dwordx4 v[8:11], v5, %s, s80 offen sc1" % srd(S_WS))
    g("buffer_store_dwordx4 v[12:15], v5, %s, s81 offen sc1" % srd(S_WS))
    L = g.lab("Lnz")
    g("s_cmp_lg_u32 s%d, 0" % S_IDX)
    g("s_cbranch_scc1 %s" % L)
    g("v_lshrrev_b32 v6, 2, v0\nv_mul_lo_u32 v6, v6, s83\nv_and_b32 v7, 3, v0\nv_lshlrev_b32 v7, 4, v7\nv_add_u32 v6, v6, v7")
    g("v_mov_b32 v16, 0\nv_mov_b32 v17, 0\nv_mov_b32 v18, 0\nv_mov_b32 v19, 0")
    g("s_add_u32 s84, s84, %d" % (UT_OFF + 64))
    g("buffer_store_dwordx4 v[16:19], v6, %s, s84 offen sc1" % srd(S_WS))
    g(L + ":")

TW_RE, TW_IM, TE_RE, TE_IM = 64, 76, 88, 104
def kgen_loads(g):
    g("s_lshl_b32 s80, s%d, 6\ns_lshl_b32 s81, s%d, 1\ns_add_u32 s80, s80, s81\ns_lshr_b32 s81, s%d, 1\ns_add_u32 s79, s80, s81" % (S_XCD, S_IDX, S_W))
    g("s_lshl_b32 s80, s79, 8\ns_and_b32 s81, s%d, 1\ns_lshl_b32 s81, s81, 7\ns_add_u32 s80, s80, s81" % S_W)
    g("v_lshlrev_b32 v32, 1, v0\nv_add_u32 v32, s80, v32")
    for i in range(6):
        g("global_load_ushort v%d, v32, s[%d:%d]" % (33 + i, 18 + 2*i, 19 + 2*i))
    g("s_lshl_b32 s80, s79, 1\nv_mov_b32 v32, s80")
    g("global_load_ushort v39, v32, s[30:31]")
    g("global_load_ushort v127, v32, s[32:33]")

def kgen_math():
    q = []
    A = q.append
    for r in range(33, 40): A("v_lshlrev_b32 v%d, 16, v%d" % (r, r))
    A("v_lshlrev_b32 v127, 16, v127")
    A("v_mul_f32 v39, 0x%x, v39" % f2u(LOG2E))
    A("v_exp_f32 v39, v39")
    A("v_cvt_pk_bf16_f32 v39, v39, v39")
    A("v_lshlrev_b32 v39, 16, v39")
    A("v_mul_f32 v33, v39, v33\nv_mul_f32 v34, v39, v34\nv_mul_f32 v35, v39, v35\nv_mul_f32 v36, v39, v36")
    A("v_mul_f32 v33, 0x%x, v33" % f2u(LOG2E))
    A("v_mul_f32 v34, 0x%x, v34" % f2u(1/(2*math.pi)))
    A("v_mul_f32 v40, v37, v35\nv_mul_f32 v41, v37, v36\nv_fma_f32 v40, -v38, v36, v40\nv_fma_f32 v41, v38, v35, v41")
    def power(e, d):
        if e == 1:
            A("v_exp_f32 v35, v33\nv_fract_f32 v36, v34")
        else:
            A("v_mul_f32 v35, 0x%x, v33\nv_mul_f32 v36, 0x%x, v34" % (f2u(e), f2u(e)))
            A("v_exp_f32 v35, v35\nv_fract_f32 v36, v36")
        A("v_cos_f32 v%d, v36\nv_sin_f32 v%d, v36" % (d, d+1))
        A("v_mul_f32 v%d, v35, v%d\nv_mul_f32 v%d, v35, v%d" % (d, d, d+1, d+1))
    power(1, 42); power(8, 44); power(256, 46)
    def cmul(d, x, y):
        A("v_mul_f32 v%d, v%d, v%d" % (d, x, y))
        A("v_mul_f32 v%d, v%d, v%d" % (d+1, x, y+1))
        A("v_fma_f32 v%d, -v%d, v%d, v%d" % (d, x+1, y+1, d))
        A("v_fma_f32 v%d, v%d, v%d, v%d" % (d+1, x+1, y, d+1))
    def packW(i, x, y):
        A("v_cvt_pk_bf16_f32 v%d, v%d, v%d" % (TW_RE + i, x, y))
        A("v_cvt_pk_bf16_f32 v%d, -v%d, -v%d" % (TW_IM + i, x+1, y+1))
    def packE(i, x, y):
        A("v_cvt_pk_bf16_f32 v%d, v%d, v%d" % (TE_RE + i, x, y))
        A("v_cvt_pk_bf16_f32 v%d, v%d, v%d" % (TE_IM + i, x+1, y+1))
    Z1, Z8, Z256 = 42, 44, 46
    cmul(48, 40, Z1); packW(0, 40, 48)
    cmul(50, 48, Z1); cmul(48, 50, Z1); packW(1, 50, 48)
    cmul(52, 48, Z1); cmul(48, 52, Z1); packW(2, 52, 48)
    cmul(54, 48, Z1); cmul(48, 54, Z1); packW(3, 54, 48)
    cmul(56, 40, Z256); cmul(48, 50, Z256); packW(4, 56, 48)
    cmul(58, 52, Z256); cmul(48, 54, Z256); packW(5, 58, 48)
    cmul(50, 56, Z256); cmul(52, 58, Z256); packW(6, 50, 52)
    cmul(56, 50, Z256); cmul(58, 52, Z256); packW(7, 56, 58)
    cmul(50, 56, Z256); cmul(52, 50, Z256); packW(8, 50, 52)
    cmul(50, 52, Z256); cmul(52, 50, Z256); packW(9, 50, 52)
    cmul(50, 52, Z256); packW(10, 50, 50)
    A("v_mov_b32 v48, 1.0\nv_mov_b32 v49, 0")
    packE(0, 48, Z8)
    prev = Z8
    for i in range(1, 16):
        x, y = (48, 50) if i % 2 else (52, 54)
        cmul(x, prev, Z8); cmul(y, x, Z8); packE(i, x, y); prev = y
    out = []
    for s in q: out += s.split("\n")
    return out

def kgen_addr(g):
    g("s_lshr_b32 s80, s%d, 1\ns_mul_i32 s80, s80, %d\ns_and_b32 s81, s%d, 1\ns_mul_i32 s81, s81, %d\ns_add_u32 s80, s80, s81\ns_add_u32 s80, s80, %d" % (S_W, KT_CH, S_W, 64*112, KT))
    g("v_mul_u32_u24 v20, 112, v0\nv_add_u32 v20, s80, v20")
    g("s_lshr_b32 s80, s%d, 1\ns_mul_i32 s80, s80, %d\ns_add_u32 s80, s80, %d" % (S_W, KT_CH, KT))
    g("v_lshrrev_b32 v21, 2, v0\nv_mul_u32_u24 v21, 112, v21\nv_and_b32 v22, 3, v0\nv_lshlrev_b32 v22, 3, v22\nv_add_u32 v21, v21, v22\nv_add_u32 v21, s80, v21")
    g("s_and_b32 s81, s%d, 1\ns_lshl_b32 s81, s81, 5\ns_add_u32 s81, s81, 48\nv_add_u32 v22, s81, v21" % S_W)

def kgen_tabwrite():
    q = []
    for i in range(3):
        q.append("ds_write_b128 v20, v[%d:%d] offset:%d" % (TW_RE + 4*i, TW_RE + 4*i + 3, 16*i))
        q.append("ds_write_b128 v20, v[%d:%d] offset:%d" % (TW_IM + 4*i, TW_IM + 4*i + 3, KT_IM + 16*i))
    for i in range(4):
        q.append("ds_write_b128 v20, v[%d:%d] offset:%d" % (TE_RE + 4*i, TE_RE + 4*i + 3, 48 + 16*i))
        q.append("ds_write_b128 v20, v[%d:%d] offset:%d" % (TE_IM + 4*i, TE_IM + 4*i + 3, KT_IM + 48 + 16*i))
    return q

def kgen_mfma():
    q = []
    for ks in range(8):
        off = (ks >> 2) * KT_IM + (ks & 3) * 32 * 112
        b = 64 + 12 * ks
        for h in range(2):
            q.append("ds_read_b64_tr_b16 a[%d:%d], v21 offset:%d" % (b + 2*h, b + 2*h + 1, off + h*16*112))
            q.append("ds_read_b64_tr_b16 a[%d:%d], v21 offset:%d" % (b + 4 + 2*h, b + 4 + 2*h + 1, off + h*16*112 + 32))
            q.append("ds_read_b64_tr_b16 a[%d:%d], v22 offset:%d" % (b + 8 + 2*h, b + 8 + 2*h + 1, off + h*16*112))
    for ks in range(8):
        b = 64 + 12 * ks
        c0 = "0" if ks == 0 else "v[32:35]"; c1 = "0" if ks == 0 else "v[36:39]"
        q.append("v_mfma_f32_16x16x32_bf16 v[32:35], a[%d:%d], a[%d:%d], %s" % (b, b+3, b+8, b+11, c0))
        q.append("v_mfma_f32_16x16x32_bf16 v[36:39], a[%d:%d], a[%d:%d], %s" % (b+4, b+7, b+8, b+11, c1))
    return q

def kgen_compact_addr(g):
    g("s_and_b32 s81, s%d, 1\ns_lshl_b32 s81, s81, 4" % S_W)
    g("v_and_b32 v40, 15, v0\nv_add_u32 v40, s81, v40")
    g("v_lshrrev_b32 v41, 4, v0")
    g("v_lshlrev_b32 v42, 3, v40\nv_lshlrev_b32 v43, 2, v41\nv_add_u32 v42, v42, v43")
    g("v_lshlrev_b32 v43, 2, v40\nv_add_u32 v43, 0x100, v43")
    g("v_lshlrev_b32 v44, 1, v40\nv_add_u32 v44, 0x180, v44")
    g("v_cmp_eq_u32 vcc, 2, v41\nv_cndmask_b32 v42, v42, v43, vcc")
    g("v_cmp_eq_u32 vcc, 3, v41\nv_cndmask_b32 v42, v42, v44, vcc")
    g("v_mov_b32 v43, 2\nv_mov_b32 v44, 64\nv_cndmask_b32 v43, v43, v44, vcc\nv_add_u32 v43, v42, v43")
    g("s_lshr_b32 s80, s%d, 1\ns_mul_i32 s80, s80, %d\ns_add_u32 s80, s80, %d" % (S_W, KC_CH, KC))
    g("v_lshlrev_b32 v42, 1, v42\nv_add_u32 v23, s80, v42")
    g("v_lshlrev_b32 v43, 1, v43\nv_add_u32 v24, s80, v43")
    g("v_min_u32 v44, 1, v41\nv_lshlrev_b32 v44, 7, v44\nv_add_u32 v44, v44, v40\nv_add_u32 v44, 0x200, v44")
    g("v_lshlrev_b32 v44, 1, v44\nv_add_u32 v25, s80, v44")

def kgen_compact():
    q = []
    q += "v_cvt_pk_bf16_f32 v32, v32, v33\nv_cvt_pk_bf16_f32 v33, v34, v35\nv_cvt_pk_bf16_f32 v34, v36, v37\nv_cvt_pk_bf16_f32 v35, v38, v39".split("\n")
    q += ["ds_write_b32 v23, v32", "ds_write_b32 v24, v33"]
    q.append("s_mov_b32 exec_hi, 0\nds_write_b16 v25, v34\nds_write_b16_d16_hi v25, v34 offset:64\nds_write_b16 v25, v35 offset:128\nds_write_b16_d16_hi v25, v35 offset:192\ns_mov_b32 exec_hi, -1")
    return q

def kfull_addr():
    q = []
    A = q.append
    A("s_lshl_b32 s80, s%d, 9" % S_W)
    A("v_lshlrev_b32 v48, 3, v0")
    A("v_add_u32 v48, s80, v48")
    for e in range(8):
        A("v_add_u32 v49, %d, v48" % (7 - e))
        A("v_cvt_f32_u32 v50, v49")
        A("v_cvt_pk_bf16_f32 v50, v50, v50")
        A("v_and_b32 v50, 0xffff, v50")
        A("v_subrev_u32 v50, 0x%x, v50" % (0x4300 - 128))
        A("v_cmp_gt_u32 vcc, 0x80, v49")
        A("v_cndmask_b32 v50, v50, v49, vcc")
        A("v_lshlrev_b32 v50, 1, v50")
        A("v_add_u32 v%d, 0x%x, v50" % (40 + e, KC))
    A("v_lshrrev_b32 v49, 4, v48\nv_lshlrev_b32 v49, 4, v49")
    A("v_and_b32 v50, 1, v0\nv_mul_u32_u24 v50, %d, v50" % KF_PL)
    A("v_add_u32 v49, v49, v50\nv_add_u32 v26, 0x%x, v49" % (KF + 256))
    A("v_lshrrev_b32 v49, 4, v0\nv_mul_u32_u24 v49, %d, v49\nv_and_b32 v50, 15, v0\nv_lshlrev_b32 v50, 4, v50\nv_add_u32 v49, v49, v50\nv_add_u32 v27, 0x%x, v49" % (KF_PL, KF))
    out = []
    for s in q: out += s.split("\n")
    return out

def kfull_build(g):
    for ch in range(2):
        for e in range(8):
            g("ds_read_u16 v%d, v%d offset:%d" % (64 + 8*ch + e, 40 + e, ch*KC_CH))
    g("v_mov_b32 v60, 0\nv_mov_b32 v61, 0\nv_mov_b32 v62, 0\nv_mov_b32 v63, 0")
    g("ds_write_b128 v27, v[60:63]")
    for ch in range(2):
        for e in range(4):
            g("v_lshl_or_b32 v%d, v%d, 16, v%d" % (52 + 4*ch + e, 64 + 8*ch + 2*e + 1, 64 + 8*ch + 2*e))
        g("ds_write_b128 v26, v[%d:%d] offset:%d" % (52 + 4*ch, 55 + 4*ch, ch*KF_CH))

def uexp_dma(ch):
    q = []
    for j in range(9):
        if j == 8:
            q.append(("w0", "s_add_u32 m0, s86, %d\ns_add_u32 s87, s85, %d\nbuffer_load_dwordx4 v28, %s, s87 offen sc1 lds" % (UE[ch] + j*4096, ch*UT_STRIDE + j*512, srd(S_WS))))
        else:
            q.append("s_add_u32 m0, s86, %d\ns_add_u32 s87, s85, %d\nbuffer_load_dwordx4 v28, %s, s87 offen sc1 lds" % (UE[ch] + j*4096, ch*UT_STRIDE + j*512, srd(S_WS)))
    return q
def uexp_addr(g):
    g("v_lshlrev_b32 v28, 1, v0")
    g("s_lshl_b32 s85, s%d, 6\ns_lshl_b32 s86, s%d, 1\ns_add_u32 s85, s85, s86\ns_mul_i32 s85, s85, %d" % (S_XCD, S_IDX, UT_STRIDE))
    g("s_lshl_b32 s86, s%d, 7\ns_add_u32 s85, s85, s86\ns_add_u32 s85, s85, %d" % (S_W, UT_OFF + 128 - 32))
    g("s_lshl_b32 s86, s%d, 10" % S_W)
def emit_uexp(g, item):
    if isinstance(item, tuple):
        L = g.lab("Lw0")
        g("s_cmp_lg_u32 s%d, 0\ns_cbranch_scc1 %s" % (S_W, L))
        for l in item[1].split("\n"): g.raw(l)
        g(L + ":")
    else:
        g(item)

S_MT, S_FT = 88, 89
def gemm1_setup(g):
    g("s_mul_i32 s80, s%d, 37\ns_lshr_b32 s80, s80, 8" % S_IDX)
    g("s_mul_i32 s81, s80, 7\ns_sub_u32 s81, s%d, s81" % S_IDX)
    g("s_lshr_b32 s%d, s%d, 1\ns_lshl_b32 s%d, s%d, 2\ns_add_u32 s%d, s%d, s80" % (S_MT, S_XCD, S_MT, S_MT, S_MT, S_MT))
    g("s_and_b32 s%d, s%d, 1\ns_mul_i32 s%d, s%d, 7\ns_add_u32 s%d, s%d, s81" % (S_FT, S_XCD, S_FT, S_FT, S_FT, S_FT))
    g("v_lshrrev_b32 v4, 3, v0\nv_lshlrev_b32 v4, 10, v4\nv_and_b32 v5, 7, v0\nv_lshrrev_b32 v6, 4, v0\nv_xor_b32 v5, v5, v6")
    g("v_lshlrev_b32 v6, 4, v5\nv_add_u32 v2, v4, v6\nv_xor_b32 v3, 64, v2")
    g("s_lshl_b32 s90, s%d, 17\ns_lshl_b32 s80, s%d, 15\ns_add_u32 s90, s90, s80" % (S_MT, S_W))
    g("v_lshrrev_b32 v5, 4, v0\nv_and_b32 v6, 15, v0\nv_lshlrev_b32 v7, 2, v5\nv_xor_b32 v6, v6, v7\nv_lshlrev_b32 v6, 4, v6")
    g("v_mul_u32_u24 v5, 3584, v5\nv_add_u32 v4, v5, v6")
    g("s_lshl_b32 s91, s%d, 8\ns_mul_i32 s80, s%d, %d\ns_add_u32 s91, s91, s80" % (S_FT, S_W, 16*3584))
    g("s_lshl_b32 s92, s%d, 12" % S_W)

def gemm1_raddr(g):
    g("v_and_b32 v5, 31, v0\nv_lshrrev_b32 v6, 5, v0\nv_bfe_u32 v7, v0, 1, 3\nv_xor_b32 v6, v6, v7\nv_lshlrev_b32 v6, 4, v6\nv_lshlrev_b32 v5, 7, v5\nv_add_u32 v5, v5, v6")
    g("s_and_b32 s80, s%d, 1\ns_lshl_b32 s80, s80, 13\nv_add_u32 v8, s80, v5" % S_W)
    for s in range(1, 4): g("v_xor_b32 v%d, %d, v8" % (8 + s, 32*s))
    g("v_lshrrev_b32 v5, 5, v0\nv_lshlrev_b32 v5, 3, v5\nv_bfe_u32 v6, v0, 2, 2\nv_add_u32 v5, v5, v6\nv_lshlrev_b32 v5, 8, v5")
    g("s_lshr_b32 s80, s%d, 1\ns_lshl_b32 s80, s80, 1\nv_xor_b32 v6, s80, v6\nv_lshlrev_b32 v6, 6, v6\nv_add_u32 v5, v5, v6" % S_W)
    g("v_bfe_u32 v6, v0, 4, 1\nv_lshlrev_b32 v6, 5, v6\nv_add_u32 v5, v5, v6\nv_and_b32 v6, 3, v0\nv_lshlrev_b32 v6, 3, v6\nv_add_u32 v5, v5, v6")
    g("v_add_u32 v12, 0x4000, v5\nv_xor_b32 v13, 64, v12")
    for i in range(6):
        g("v_add_u32 v%d, 0x%x, v%d" % (14 + i, BUF[1], 8 + i))
        g("v_add_u32 v%d, 0x%x, v%d" % (120 + i, BUF[2], 8 + i))
RADDR = [8, 14, 120]

def gemm1_dma(st):
    q = []
    b = BUF[st % 3]
    for i in range(4):
        q.append("s_add_u32 m0, s92, %d\ns_add_u32 s93, s90, %d\nbuffer_load_dwordx4 v%d, %s, s93 offen lds" % (b + i*1024, st*128 + i*8192, 2 + (i & 1), srd(S_X)))
        q.append("s_add_u32 m0, s92, %d\ns_add_u32 s93, s91, %d\nbuffer_load_dwordx4 v4, %s, s93 offen lds" % (b + 16384 + i*1024, (st*64 + i*4)*3584, srd(S_WG)))
        q.append("s_add_u32 m0, s92, %d\nbuffer_load_dwordx4 v4, %s, s93 offen lds" % (b + 32768 + i*1024, srd(S_WU)))
    return q
def frag(p, kind, i):
    return 24*p + {"x": 0, "g": 8, "u": 16}[kind] + 4*i
def gemm1_reads(kk):
    st, s = divmod(kk, 4); p = kk & 1; ra = RADDR[st % 3]
    q = []
    def W(kind, fi):
        for h in range(2):
            b = frag(p, kind, fi) + 2*h
            q.append("ds_read_b64_tr_b16 a[%d:%d], v%d offset:%d" % (b, b+1, ra + 4 + fi, s*4096 + h*1024 + (16384 if kind == "u" else 0)))
    def X(ti):
        b = frag(p, "x", ti)
        q.append("ds_read_b128 a[%d:%d], v%d offset:%d" % (b, b+3, ra + s, ti*4096))
    X(0); W("g", 0); W("u", 0); X(1); W("g", 1); W("u", 1)
    return q
def acc1(kind, fi, ti): return 128 + {"g": 0, "u": 64}[kind] + 32*fi + 16*ti
def gemm1_mfmas(kk):
    p = kk & 1
    q = []
    for fi, ti in ((0,0),(0,1),(1,0),(1,1)):
        for kind in "gu":
            a = acc1(kind, fi, ti); w = frag(p, kind, fi); x = frag(p, "x", ti)
            c = "0" if kk == 0 else "v[%d:%d]" % (a, a+15)
            q.append("v_mfma_f32_32x32x16_bf16 v[%d:%d], a[%d:%d], a[%d:%d], %s" % (a, a+15, w, w+3, x, x+3, c))
    return q

def gemm1_main(g, dma_ops, side, hooks):
    g.wait_op(dma_ops[0]); g("s_barrier")
    for r in gemm1_reads(0): g(r)
    dq = []
    for kk in range(32):
        st, s = divmod(kk, 4)
        mf = gemm1_mfmas(kk)
        fill = []
        pre = 0
        if s == 3:
            g(mf[0]); g(mf[1]); pre = 2
            g.wait(lg=0)
            if st + 1 < 8: g.wait_op(dma_ops[st + 1])
            g("s_barrier")
            if st + 3 < 8: dq = [(st + 3, x) for x in gemm1_dma(st + 3)]
        if kk + 1 < 32: fill += gemm1_reads(kk + 1)
        nd = 3
        dm = dq[:nd]; dq = dq[nd:]
        extra = list(side.get(kk, []))
        slots = [[] for _ in range(8 - pre)]
        n = len(slots)
        for i, r in enumerate(fill): slots[min(i // 2, n - 1)].append(r)
        rest = [("dma", d) for d in dm]
        for i, d in enumerate(rest): slots[min(n - 1, n - 3 + i)].append(d)
        per = -(-len(extra) // n) if extra else 0
        for i, e in enumerate(extra): slots[min(i // per, n - 1)].append(e)
        for i in range(n):
            g(mf[pre + i])
            for it in slots[i]:
                if isinstance(it, tuple) and it[0] == "dma":
                    stn, txt = it[1]; dma_ops[stn] = g(txt)
                elif isinstance(it, tuple): emit_uexp(g, it)
                else: g(it)

def gemm1_epilogue(g, side):
    k1 = -2*0.7978845608028654*LOG2E; k2 = k1*0.044715
    g("s_mov_b32 s94, 0x%x\ns_mov_b32 s95, 0x%x" % (f2u(k2), f2u(k2)))
    g("v_mov_b32 v2, 0x%x\nv_mov_b32 v3, 0x%x" % (f2u(k1), f2u(k1)))
    g("v_lshlrev_b32 v4, 4, v0")
    g("s_lshl_b32 s80, s%d, 2\ns_and_b32 s81, s%d, 1\ns_lshl_b32 s81, s81, 1\ns_add_u32 s80, s80, s81\ns_mul_i32 s80, s80, 112" % (S_MT, S_W))
    g("s_lshl_b32 s81, s%d, 3\ns_add_u32 s80, s80, s81\ns_lshr_b32 s81, s%d, 1\ns_lshl_b32 s81, s81, 2\ns_add_u32 s80, s80, s81" % (S_FT, S_W))
    g("s_lshl_b32 s80, s80, 10\ns_add_u32 s80, s80, 0x%x\ns_add_u32 s81, s80, %d" % (H_OFF, 112*1024))
    side = list(side)
    cnt = 0
    for fi in range(2):
        for ti in range(2):
            for half in range(2):
                G0 = acc1("g", fi, ti) + 8*half; U0 = acc1("u", fi, ti) + 8*half
                T = 8 + 8*(cnt & 1)
                T = 104 + 8*(cnt & 1)
                D = 96 + 4*(cnt & 1)
                P = [(G0 + 2*j, U0 + 2*j, T + 2*j) for j in range(4)]
                for (x, u, t) in P: g("v_pk_mul_f32 v[%d:%d], v[%d:%d], v[%d:%d]" % (t, t+1, x, x+1, x, x+1))
                for (x, u, t) in P: g("v_pk_fma_f32 v[%d:%d], v[%d:%d], s[94:95], v[2:3]" % (t, t+1, t, t+1))
                for (x, u, t) in P: g("v_pk_mul_f32 v[%d:%d], v[%d:%d], v[%d:%d]" % (t, t+1, t, t+1, x, x+1))
                for j in range(8): g("v_exp_f32 v%d, v%d" % (T + j, T + j))
                for (x, u, t) in P: g("v_pk_mul_f32 v[%d:%d], v[%d:%d], v[%d:%d]" % (x, x+1, x, x+1, u, u+1))
                for (x, u, t) in P: g("v_pk_add_f32 v[%d:%d], v[%d:%d], 1.0 op_sel_hi:[1,0]" % (t, t+1, t, t+1))
                for j in range(8): g("v_rcp_f32 v%d, v%d" % (T + j, T + j))
                for (x, u, t) in P: g("v_pk_mul_f32 v[%d:%d], v[%d:%d], v[%d:%d]" % (x, x+1, x, x+1, t, t+1))
                for j, (x, u, t) in enumerate(P): g("v_cvt_pk_bf16_f32 v%d, v%d, v%d" % (D + j, x, x+1))
                g("buffer_store_dwordx4 v[%d:%d], v4, %s, s%d offen offset:%d sc1" % (D, D+3, srd(S_WS), 80 + ti, (2*fi + half)*1024))
                cnt += 1
                if side: side.pop(0)(g)
    for f in side: f(g)

def g_phase(g):
    L = g.lab("Lng")
    g("s_cmp_ge_u32 s%d, 8\ns_cbranch_scc1 %s" % (S_FT, L))
    g("s_lshl_b32 s80, s%d, 7\ns_lshl_b32 s81, s%d, 4\ns_add_u32 s80, s80, s81\ns_lshl_b32 s81, s%d, 2\ns_add_u32 s80, s80, s81" % (S_MT, S_FT, S_W))
    g("s_lshl_b32 s81, s80, 10")
    g("v_lshlrev_b32 v5, 4, v0")
    g("global_load_dwordx4 v[64:67], v5, s[42:43]")
    for j in range(4):
        g("buffer_load_dwordx4 v[%d:%d], v5, %s, s81 offen offset:%d" % (68 + 4*j, 71 + 4*j, srd(S_X), j*1024))
    for j in range(4): g("v_mov_b32 v%d, 0" % (84 + j))
    for i in range(4):
        for j in range(4): g("v_dot2_f32_bf16 v%d, v%d, v%d, v%d" % (84 + j, 68 + 4*j + i, 64 + i, 84 + j))
        g("s_nop 0")
    g.nop(3)
    for mod in ("row_shr:1 row_mask:0xf bank_mask:0xf bound_ctrl:0", "row_shr:2 row_mask:0xf bank_mask:0xf bound_ctrl:0",
                "row_shr:4 row_mask:0xf bank_mask:0xf bound_ctrl:0", "row_shr:8 row_mask:0xf bank_mask:0xf bound_ctrl:0",
                "row_bcast:15 row_mask:0xa bank_mask:0xf", "row_bcast:31 row_mask:0xc bank_mask:0xf"):
        for j in range(4): g("v_add_f32_dpp v%d, v%d, v%d %s" % (84 + j, 84 + j, 84 + j, mod))
    for j in range(4): g("v_cvt_pk_bf16_f32 v%d, v%d, v%d" % (84+j, 84+j, 84+j))
    for j in range(4): g("v_lshlrev_b32 v%d, 16, v%d" % (84+j, 84+j))
    for j in range(4): g("v_mul_f32 v%d, 0x%x, v%d" % (84+j, f2u(-LOG2E), 84+j))
    for j in range(4): g("v_exp_f32 v%d, v%d" % (84+j, 84+j))
    for j in range(4): g("v_add_f32 v%d, 1.0, v%d" % (84+j, 84+j))
    for j in range(4): g("v_rcp_f32 v%d, v%d" % (84+j, 84+j))
    for j in range(4): g("v_cvt_pk_bf16_f32 v%d, v%d, v%d" % (84+j, 84+j, 84+j))
    for j in range(4): g("v_lshlrev_b32 v%d, 16, v%d" % (84+j, 84+j))
    g("s_lshl_b32 s80, s80, 2\ns_add_u32 s80, s80, 0x%x" % G_OFF)
    g("v_mov_b32 v5, 0")
    g("s_mov_b32 exec_lo, 0\ns_mov_b32 exec_hi, 0x80000000")
    g("buffer_store_dwordx4 v[84:87], v5, %s, s80 offen sc1" % srd(S_WS))
    g("s_mov_b64 exec, -1")
    g("s_waitcnt vmcnt(0)")
    g(L + ":")
    g.flush()

def conv_phase(g):
    g("v_bfe_u32 v5, v0, 4, 1\nv_lshlrev_b32 v5, 1, v5\nv_lshrrev_b32 v6, 5, v0\nv_add_u32 v5, v5, v6")
    g("v_and_b32 v6, 15, v0\nv_lshlrev_b32 v7, 3, v5\nv_sub_u32 v7, v6, v7\nv_add_u32 v7, %d, v7\nv_lshlrev_b32 v7, 4, v7" % (9 + 16))
    g("s_lshr_b32 s80, s%d, 1\ns_mul_i32 s81, s80, %d\ns_and_b32 s82, s%d, 1\ns_lshl_b32 s83, s82, 11\ns_add_u32 s81, s81, s83" % (S_W, UE[1], S_W))
    g("v_add_u32 v8, s81, v7")
    g("v_lshrrev_b32 v7, 5, v0\nv_mul_u32_u24 v7, %d, v7\nv_bfe_u32 v9, v0, 4, 1\nv_add_u32 v9, v9, v6\nv_lshlrev_b32 v9, 4, v9\nv_add_u32 v7, v7, v9" % KF_PL)
    g("s_mul_i32 s81, s80, %d\ns_lshl_b32 s83, s82, 7\ns_sub_u32 s81, s81, s83\ns_add_u32 s81, s81, %d" % (KF_CH, KF + 16*(16 - 7)))
    g("v_add_u32 v9, s81, v7")
    def reads(i):
        p = i & 1; q = []
        for a in range(8):
            q.append("ds_read_b128 a[%d:%d], v8 offset:%d" % (64*p + 4*a, 64*p + 4*a + 3, a*4096 + i*512))
            q.append("ds_read_b128 a[%d:%d], v9 offset:%d" % (64*p + 32 + 4*a, 64*p + 32 + 4*a + 3, a*256 + (3 - i)*32))
        return q
    for r in reads(0): g(r)
    first = set()
    for i in range(4):
        p = i & 1
        nxt = reads(i + 1) if i < 3 else []
        pairs = sorted([(a, d) for a in range(8) for d in range(8) if a + d <= 7], key=lambda x: (max(x), x))
        for n, (a, d) in enumerate(pairs):
            c = a + d
            C = "v[%d:%d]" % (32 + 4*c, 35 + 4*c) if c in first else "0"
            first.add(c)
            g("v_mfma_f32_16x16x32_bf16 v[%d:%d], a[%d:%d], a[%d:%d], %s" % (32 + 4*c, 35 + 4*c, 64*p + 4*a, 64*p + 4*a + 3, 64*p + 32 + 4*d, 64*p + 35 + 4*d, C))
            if n >= 12 and nxt: g(nxt.pop(0))
        assert not nxt
    g("v_lshlrev_b32 v10, 4, v0")
    g("s_lshl_b32 s81, s%d, 12\ns_add_u32 s81, s81, %d\nv_add_u32 v11, s81, v10" % (S_W, XCH))
    g("s_xor_b32 s81, s%d, 1\ns_lshl_b32 s81, s81, 12\ns_add_u32 s81, s81, %d\nv_add_u32 v12, s81, v10" % (S_W, XCH))
    g("v_and_b32 v13, 15, v0\nv_lshlrev_b32 v13, 8, v13\nv_lshrrev_b32 v14, 4, v0\nv_lshlrev_b32 v14, 6, v14\nv_add_u32 v13, v13, v14")
    g("s_mul_i32 s81, s80, %d\ns_lshl_b32 s83, s82, 14\ns_add_u32 s81, s81, s83\ns_add_u32 s81, s81, 256\nv_add_u32 v13, s81, v13" % UE[1])
    for cc in range(4): g("ds_read_b64 v[%d:%d], v13 offset:%d" % (64 + 2*cc, 65 + 2*cc, cc*4096))
    L1, L2 = g.lab("Lx"), g.lab("Lx")
    g.nop(8)
    g("s_cmp_lg_u32 s82, 0\ns_cbranch_scc1 %s" % L1)
    for cc in range(4): g.raw("ds_write_b128 v11, v[%d:%d] offset:%d" % (48 + 4*cc, 51 + 4*cc, cc*1024))
    g("s_branch %s" % L2)
    g(L1 + ":")
    for cc in range(4): g.raw("ds_write_b128 v11, v[%d:%d] offset:%d" % (32 + 4*cc, 35 + 4*cc, cc*1024))
    g.nop(2)
    for r in range(16): g.raw("v_mov_b32 v%d, v%d" % (32 + r, 48 + r))
    g(L2 + ":")
    g("s_waitcnt lgkmcnt(0)")
    g("s_barrier")
    for cc in range(4): g("ds_read_b128 v[%d:%d], v12 offset:%d" % (48 + 4*cc, 51 + 4*cc, cc*1024))
    for cc in range(4):
        for h in range(2):
            u = 64 + 2*cc + h; t = 72 + 4*cc + 2*h
            g("v_lshlrev_b32 v%d, 16, v%d\nv_and_b32 v%d, 0xffff0000, v%d" % (t, u, t+1, u))
            g("v_mul_f32 v%d, v127, v%d\nv_mul_f32 v%d, v127, v%d" % (t, t, t+1, t+1))
            g("v_cvt_pk_bf16_f32 v%d, v%d, v%d" % (u, t, t+1))
            g("v_lshlrev_b32 v%d, 16, v%d\nv_and_b32 v%d, 0xffff0000, v%d" % (t, u, t+1, u))
    for r in range(16): g("v_add_f32 v%d, v%d, v%d" % (32 + r, 32 + r, 48 + r))
    for r in range(8):
        g("v_cvt_pk_bf16_f32 v%d, v%d, v%d" % (48 + r, 32 + 2*r, 33 + 2*r))
    for r in range(8):
        g("v_lshlrev_b32 v%d, 16, v%d\nv_and_b32 v%d, 0xffff0000, v%d" % (32 + 2*r, 48 + r, 33 + 2*r, 48 + r))
    for r in range(16): g("v_add_f32 v%d, v%d, v%d" % (32 + r, 32 + r, 72 + r))
    for r in range(8):
        g("v_cvt_pk_bf16_f32 v%d, v%d, v%d" % (48 + r, 32 + 2*r, 33 + 2*r))
    for pr in range(2):
        g("v_permlane16_swap_b32 v%d, v%d" % (48 + 4*pr, 50 + 4*pr))
        g("v_permlane16_swap_b32 v%d, v%d" % (49 + 4*pr, 51 + 4*pr))
    g("v_and_b32 v13, 15, v0\nv_lshlrev_b32 v13, 5, v13\nv_bfe_u32 v14, v0, 4, 1\nv_lshlrev_b32 v14, 9, v14\nv_add_u32 v13, v13, v14\nv_lshrrev_b32 v14, 5, v0\nv_lshlrev_b32 v14, 4, v14\nv_add_u32 v13, v13, v14")
    g("s_lshl_b32 s81, s79, 12\ns_lshl_b32 s83, s82, 11\ns_add_u32 s81, s81, s83\ns_add_u32 s81, s81, 0x%x" % AT_OFF)
    for pr in range(2):
        g("buffer_store_dwordx4 v[%d:%d], v13, %s, s81 offen offset:%d sc1" % (48 + 4*pr, 51 + 4*pr, srd(S_WS), pr*1024))

def spread(lst, ks):
    d = {}
    per = -(-len(lst) // len(ks))
    for i, e in enumerate(lst): d.setdefault(ks[min(i // per, len(ks)-1)], []).append(e)
    return d

def build_k1():
    g = G(); g.endlab = "Lend1"
    prologue(g, 256)
    Lno, Lconv = "Lnog1", "Lconv"
    gemm1_setup(g)
    kgen_loads(g)
    g("s_cmp_ge_u32 s%d, 28\ns_cbranch_scc1 %s" % (S_IDX, Lno))
    save = (g.vm_seq, g.vm_done, dict(g.pend))
    dma_ops = {}
    for st in range(3):
        for t in gemm1_dma(st): dma_ops[st] = g(t)
    gemm1_raddr(g); kgen_addr(g); kgen_compact_addr(g); uexp_addr(g)
    side = spread(kgen_math(), list(range(0, 22)))
    def add(kk, l): side.setdefault(kk, []).extend(l)
    tw = kgen_tabwrite()
    add(23, tw[:4]); add(24, tw[4:9]); add(25, tw[9:])
    kfa = kfull_addr()
    add(25, kfa[:20]); add(26, kfa[20:50]); add(27, kfa[50:])
    km = kgen_mfma()
    add(27, km[:12]); add(28, km[12:36]); add(29, km[36:56]); add(30, km[56:] + kgen_compact())
    u0 = uexp_dma(0)
    add(28, u0[:3]); add(29, u0[3:6]); add(30, u0[6:8])
    add(31, [u0[8]] + uexp_dma(1))
    gemm1_main(g, dma_ops, side, None)
    gemm1_epilogue(g, [kfull_build])
    g_phase(g)
    g("s_branch %s" % Lconv)
    g(Lno + ":")
    g.flush()
    kgen_addr(g); kgen_compact_addr(g); uexp_addr(g)
    for it in uexp_dma(0) + uexp_dma(1): emit_uexp(g, it)
    for l in kgen_math() + kgen_tabwrite(): g(l)
    g("s_waitcnt lgkmcnt(0)\ns_barrier")
    for l in kfull_addr() + kgen_mfma() + kgen_compact(): g(l)
    g("s_waitcnt lgkmcnt(0)\ns_barrier")
    kfull_build(g)
    g(Lconv + ":")
    g.flush()
    g("s_barrier")
    conv_phase(g)
    g(g.endlab + ":")
    g("s_endpgm")
    return g.text()

def build_kT():
    g = G(); g.endlab = "LendT"
    prologue(g, 256)
    phase_T(g)
    g(g.endlab + ":")
    g("s_endpgm")
    return g.text()

def build_k2():
    g = G(); g.endlab = "Lend2"
    prologue(g, 256)
    g("s_lshl_b32 s88, s%d, 2\ns_lshr_b32 s80, s%d, 3\ns_add_u32 s88, s88, s80\ns_and_b32 s89, s%d, 7" % (S_XCD, S_IDX, S_IDX))
    g("v_lshrrev_b32 v4, 3, v0\nv_lshlrev_b32 v4, 10, v4\nv_bfe_u32 v5, v0, 4, 1\nv_lshlrev_b32 v5, 2, v5\nv_and_b32 v6, 7, v0\nv_xor_b32 v5, v5, v6\nv_lshlrev_b32 v5, 4, v5\nv_add_u32 v2, v4, v5")
    g("s_mul_i32 s90, s%d, %d\ns_lshl_b32 s80, s89, 7\ns_add_u32 s90, s90, s80" % (S_W, 448*1024))
    g("s_mul_i32 s92, s%d, 40960" % S_W)
    g("v_lshlrev_b32 v3, 4, v0\nv_add_u32 v4, 0x%x, v3" % (112*1024))
    g("s_mul_i32 s91, s88, %d\ns_mul_i32 s80, s%d, %d\ns_add_u32 s91, s91, s80\ns_add_u32 s91, s91, 0x%x" % (2*112*1024, S_W, 28*1024, H_OFF))
    wd_op = {}
    def load_wd(ch):
        q = []
        for i in range(8):
            q.append(("wd", ch, "s_add_u32 m0, s92, %d\ns_add_u32 s93, s90, %d\nbuffer_load_dwordx4 v2, %s, s93 offen lds" % ((ch % 5)*8192 + i*1024, (64*ch + 8*i)*1024, srd(S_WD))))
        return q
    def load_h(ch):
        q = [("s", "s_add_u32 s94, s91, %d" % (ch*4096))]
        for s in range(4):
            for ti in range(2):
                b = 8*(4*ch + s) + 4*ti
                q.append(("s", "buffer_load_dwordx4 a[%d:%d], v%d, %s, s94 offen offset:%d sc1" % (b, b+3, 3 + ti, srd(S_WS), s*1024)))
        return q
    def emit(it):
        if it[0] == "wd": wd_op[it[1]] = g(it[2])
        else: g(it[1])
    for ch in range(3):
        for it in load_wd(ch) + load_h(ch): emit(it)
    g("v_lshrrev_b32 v7, 5, v0\nv_lshlrev_b32 v7, 2, v7\nv_bfe_u32 v8, v0, 2, 2\nv_add_u32 v7, v7, v8\nv_lshlrev_b32 v7, 7, v7")
    g("v_bfe_u32 v8, v0, 3, 1\nv_lshlrev_b32 v8, 6, v8\nv_add_u32 v7, v7, v8\nv_bfe_u32 v8, v0, 4, 1\nv_lshlrev_b32 v8, 5, v8\nv_add_u32 v7, v7, v8")
    g("v_and_b32 v8, 3, v0\nv_lshlrev_b32 v8, 3, v8\nv_add_u32 v7, v7, v8\nv_add_u32 v5, s92, v7\nv_xor_b32 v6, 64, v5")
    def reads(kk):
        ch, s = divmod(kk, 4); p = kk & 1; q = []
        for di in range(2):
            for h in range(2):
                b = 224 + 8*p + 4*di + 2*h
                q.append("ds_read_b64_tr_b16 a[%d:%d], v%d offset:%d" % (b, b+1, 5 + di, (ch % 5)*8192 + s*2048 + h*1024))
        return q
    g.wait_op(wd_op[0])
    for r in reads(0): g(r)
    lq = []
    for kk in range(28):
        ch, s = divmod(kk, 4); p = kk & 1
        if s == 0 and ch + 3 < 7: lq += load_wd(ch + 3) + load_h(ch + 3)
        nx = []
        if kk + 1 < 28:
            nx = reads(kk + 1)
        n = 0
        for di in range(2):
            for ti in range(2):
                a = 64 + 32*di + 16*ti; w = 224 + 8*p + 4*di; h = 8*kk + 4*ti
                c = "0" if kk == 0 else "v[%d:%d]" % (a, a+15)
                g("v_mfma_f32_32x32x16_bf16 v[%d:%d], a[%d:%d], a[%d:%d], %s" % (a, a+15, w, w+3, h, h+3, c))
                if n == 0 and nx:
                    if s == 3: g.wait_op(wd_op[ch + 1])
                    for r in nx: g(r)
                else:
                    for _ in range(2):
                        if lq: emit(lq.pop(0))
                n += 1
    assert not lq
    g("v_lshrrev_b32 v7, 3, v0\nv_lshlrev_b32 v8, 12, v7\nv_and_b32 v9, 7, v0\nv_lshlrev_b32 v9, 4, v9\nv_add_u32 v8, v8, v9")
    g("s_lshl_b32 s80, s89, 18\ns_lshl_b32 s81, s%d, 16\ns_add_u32 s80, s80, s81\ns_lshl_b32 s81, s88, 7\ns_add_u32 s80, s80, s81\ns_add_u32 s80, s80, 0x%x\ns_add_u32 s81, s80, 0x8000" % (S_W, AT_OFF))
    g("buffer_load_dwordx4 v[12:15], v8, %s, s80 offen sc1" % srd(S_WS))
    g("buffer_load_dwordx4 v[16:19], v8, %s, s81 offen sc1" % srd(S_WS))
    g("v_and_b32 v9, 31, v0\nv_lshlrev_b32 v9, 2, v9")
    g("s_lshl_b32 s80, s88, 8\ns_and_b32 s81, s%d, 1\ns_lshl_b32 s81, s81, 7\ns_add_u32 s80, s80, s81\ns_add_u32 s80, s80, 0x%x" % (S_W, G_OFF))
    g("buffer_load_dword v20, v9, %s, s80 offen sc1" % srd(S_WS))
    g("s_waitcnt lgkmcnt(0)\ns_barrier")
    g("v_lshlrev_b32 v10, 4, v0\ns_lshl_b32 s80, s%d, 12\nv_add_u32 v11, s80, v10" % S_W)
    for q in range(4):
        for j in range(4):
            g("ds_write_b128 v11, v[%d:%d] offset:%d" % (64 + 16*q + 4*j, 64 + 16*q + 4*j + 3, q*16384 + j*1024))
    g("s_lshl_b32 s80, s%d, 11\ns_add_u32 s80, s80, 65536\nv_add_u32 v21, s80, v10" % S_W)
    g("ds_write_b128 v21, v[12:15]")
    g("ds_write_b128 v21, v[16:19] offset:1024")
    g("s_lshl_b32 s80, s%d, 14\nv_add_u32 v11, s80, v10" % S_W)
    g("v_lshrrev_b32 v7, 5, v0\nv_lshlrev_b32 v7, 2, v7\nv_bfe_u32 v8, v0, 2, 2\nv_add_u32 v7, v7, v8\nv_lshlrev_b32 v7, 7, v7")
    g("v_bfe_u32 v8, v0, 4, 1\nv_lshlrev_b32 v8, 5, v8\nv_add_u32 v7, v7, v8\nv_and_b32 v8, 3, v0\nv_lshlrev_b32 v8, 3, v8\nv_add_u32 v7, v7, v8")
    g("s_lshr_b32 s80, s%d, 1\ns_lshl_b32 s80, s80, 12\ns_and_b32 s81, s%d, 1\ns_lshl_b32 s81, s81, 6\ns_add_u32 s80, s80, s81\ns_add_u32 s80, s80, 65536\nv_add_u32 v7, s80, v7" % (S_W, S_W))
    g("s_waitcnt lgkmcnt(0)\ns_barrier")
    for sw in range(4):
        for j in range(4):
            g("ds_read_b128 v[%d:%d], v11 offset:%d" % (128 + 16*sw + 4*j, 128 + 16*sw + 4*j + 3, sw*4096 + j*1024))
    for q in range(4): g("ds_read_b64_tr_b16 v[%d:%d], v7 offset:%d" % (24 + 2*q, 25 + 2*q, q*1024))
    for r in range(16):
        g("v_add_f32 v%d, v%d, v%d" % (128 + r, 128 + r, 144 + r))
        g("v_add_f32 v%d, v%d, v%d" % (160 + r, 160 + r, 176 + r))
    for r in range(16): g("v_add_f32 v%d, v%d, v%d" % (128 + r, 128 + r, 160 + r))
    g("v_sub_f32 v21, 1.0, v20\nv_cvt_pk_bf16_f32 v21, v21, v21\nv_lshlrev_b32 v21, 16, v21")
    def rnd2(d, a, b, o0, o1):
        g("v_cvt_pk_bf16_f32 v%d, v%d, v%d" % (d, a, b))
        g("v_lshlrev_b32 v%d, 16, v%d\nv_and_b32 v%d, 0xffff0000, v%d" % (o0, d, o1, d))
    for r in range(8):
        x = 128 + 2*r; y = 144 + 2*r
        rnd2(40, x, x+1, x, x+1)
        g("v_mul_f32 v%d, v21, v%d\nv_mul_f32 v%d, v21, v%d" % (x, x, x+1, x+1))
        rnd2(41, x, x+1, x, x+1)
        g("v_lshlrev_b32 v%d, 16, v%d\nv_and_b32 v%d, 0xffff0000, v%d" % (y, 24 + r, y+1, 24 + r))
        g("v_mul_f32 v%d, v20, v%d\nv_mul_f32 v%d, v20, v%d" % (y, y, y+1, y+1))
        rnd2(42, y, y+1, y, y+1)
        g("v_add_f32 v%d, v%d, v%d\nv_add_f32 v%d, v%d, v%d" % (x, x, y, x+1, x+1, y+1))
        g("v_cvt_pk_bf16_f32 v%d, v%d, v%d" % (32 + r, x, x+1))
    for pr in range(2):
        g("v_permlane32_swap_b32 v%d, v%d" % (32 + 4*pr, 34 + 4*pr))
        g("v_permlane32_swap_b32 v%d, v%d" % (33 + 4*pr, 35 + 4*pr))
    g("v_and_b32 v8, 31, v0\nv_lshlrev_b32 v8, 10, v8\nv_lshrrev_b32 v9, 5, v0\nv_lshlrev_b32 v9, 4, v9\nv_add_u32 v8, v8, v9")
    g("s_lshl_b32 s80, s88, 16\ns_and_b32 s81, s%d, 1\ns_lshl_b32 s81, s81, 15\ns_add_u32 s80, s80, s81\ns_lshl_b32 s81, s89, 7\ns_add_u32 s80, s80, s81\ns_lshr_b32 s81, s%d, 1\ns_lshl_b32 s81, s81, 6\ns_add_u32 s80, s80, s81" % (S_W, S_W))
    for pr in range(2):
        g("buffer_store_dwordx4 v[%d:%d], v8, %s, s80 offen offset:%d" % (32 + 4*pr, 35 + 4*pr, srd(S_OUT), 32*pr))
    g(g.endlab + ":")
    g("s_endpgm")
    return g.text()

if __name__ == "__main__":
    ks = [("kt_kernel", 256, 256, 163840, build_kT(), 32, 100, 32),
          ("k1_kernel", 256, 256, 163840, build_k1(), 512, 100, 256),
          ("k2_kernel", 256, 256, 163840, build_k2(), 512, 100, 256)]
    open(sys.argv[1] if len(sys.argv) > 1 else "v1.s", "w").write(build_file(ks))
```

```python
import sys, struct, math
from gen import *

def f2u(x): return struct.unpack("<I", struct.pack("<f", x))[0]
UT_OFF = 0x1400000; UT_ROW = 4224; UT_STRIDE = 8448
H_OFF = 0x400000
AT_OFF = 0xC00000
G_OFF = 0xE00000
FT_OFF = 0xE20000
FH_OFF = 0xE40000
FA_OFF = 0xE60000
EP_OFF = 0xE10000
FW_OFF = 0xE80000
WDT_OFF = 0x1A00000
DBG_OFF = 0x1000000
WS_BYTES = 268435456
BUF = [0, 49152, 98304]
TBLK = 147456
KT = 98304; KT_CH = 28672; KT_IM = 14336
KC = 160768; KC_CH = 1536
KF = 154624; KF_CH = 4608; KF_PL = 2304
UEE = [98304, 131840]; UEO = [115072, 128]
XCH = [16640, 20736, 24832, 148480]
WDA = 32768; WDB1 = 98304
RED_AT = 49152; RED_G = 57344
S_X, S_WG, S_WU, S_WD, S_WS, S_OUT = 52, 56, 60, 64, 68, 72
S_X1 = 36
S_XCD, S_IDX, S_W, S_CH = 76, 77, 78, 79
S_MT, S_FT = 88, 89
S_TAG, S_TB2, S_NB, S_SPIN = 96, 97, 98, 99
LOG2E = 1.4426950408889634
STAMPS = False
OPT = dict(hprio=0, cprio_epi=3, rot=1, pk=1, seq=1, pre=6, pfirst=0, psleep=1, b11first=0, l2t=0, wsleep=0, a5=0, wpos=1, spoll=1, nr7=8, cprio2=0)
def srd(r): return "s[%d:%d]" % (r, r+3)
class St:
    names = {}
def stamp(g, name):
    if not STAMPS: return
    g.raw("%s s[6:7]" % STAMPS); g.smem_pending = True; g.wait(lg=0)
    g.raw("v_writelane_b32 v31, s6, %d" % g.nst)
    St.names[g.role*48 + g.nst] = name
    g.nst += 1
    assert g.nst <= 48
def stamp_store(g):
    if not STAMPS: return
    L = g.lab("Lst")
    g("s_cmp_lg_u32 s%d, 0\ns_cbranch_scc1 %s" % (S_W, L))
    g.raw("v_writelane_b32 v31, s4, 0")
    g.raw("s_getreg_b32 s6, hwreg(HW_REG_XCC_ID)"); g.raw("v_writelane_b32 v31, s6, 47")
    g.raw("s_mul_i32 s3, s2, 384"); g.raw("s_add_u32 s3, s3, 0x%x" % (DBG_OFF + g.role*192)); g.raw("v_lshlrev_b32 v1, 2, v0")
    g.raw("s_mov_b32 exec_hi, 0xffff")
    g.raw("buffer_store_dword v31, v1, %s, s3 offen" % srd(S_WS))
    g.raw("s_mov_b64 exec, -1")
    g(L + ":")

def tag_compute(g):
    g("s_mul_i32 s%d, s%d, 0x9E3779B1\ns_add_u32 s%d, s%d, 0x7F4A7C15" % (S_TAG, S_TAG, S_TAG, S_TAG))
def poll(g, vaddr, soff, vtmp, width=1):
    L, D = g.lab("Lp"), g.lab("Lpd")
    g("s_mov_b32 s%d, 0x40000" % S_SPIN)
    g(L + ":")
    if width == 1: g.raw("buffer_load_dword v%d, v%d, %s, s%d offen sc1" % (vtmp, vaddr, srd(S_WS), soff))
    else: g.raw("buffer_load_dwordx2 v[%d:%d], v%d, %s, s%d offen sc1" % (vtmp, vtmp+1, vaddr, srd(S_WS), soff))
    g.raw("s_waitcnt vmcnt(0)"); g.vm_done = g.vm_seq
    g.raw("v_cmp_ne_u32 vcc, s%d, v%d" % (S_TAG, vtmp + width - 1))
    g.raw("s_nop 4")
    g.raw("s_cmp_eq_u64 vcc, 0")
    g.raw("s_cbranch_scc1 %s" % D)
    g.raw("s_sleep %d" % OPT["psleep"])
    g.raw("s_sub_u32 s%d, s%d, 1" % (S_SPIN, S_SPIN))
    g.raw("s_cmp_lg_u32 s%d, 0" % S_SPIN)
    g.raw("s_cbranch_scc1 %s" % L)
    g(D + ":")
def spoll(g, n, off=0):
    L, D = g.lab("Ls"), g.lab("Lsd")
    g("s_mov_b32 s%d, 0x40000" % S_SPIN)
    g(L + ":")
    g.raw("s_load_dwordx8 s[8:15], s[50:51], %d glc" % off)
    g.raw("s_waitcnt lgkmcnt(0)"); g.lg_done = g.lg_seq
    for i in range(n): g.raw("s_xor_b32 s%d, s%d, s%d" % (8 + i, 8 + i, S_TAG))
    for i in range(1, n): g.raw("s_or_b32 s8, s8, s%d" % (8 + i))
    g.raw("s_cbranch_scc0 %s" % D)
    g.raw("s_sleep %d" % OPT["psleep"])
    g.raw("s_sub_u32 s%d, s%d, 1" % (S_SPIN, S_SPIN))
    g.raw("s_cbranch_scc0 %s" % L)
    g(D + ":")
def spoll4(g):
    L, D = g.lab("Ls"), g.lab("Lsd")
    R = [8, 32, 40, 56]
    g("s_mov_b32 s%d, 0x40000" % S_SPIN)
    g(L + ":")
    for j, r in enumerate(R): g.raw("s_load_dwordx8 s[%d:%d], s[50:51], %d glc" % (r, r + 7, 128*j))
    g.raw("s_mov_b32 s16, s%d" % S_TAG); g.raw("s_mov_b32 s17, s%d" % S_TAG)
    g.raw("s_waitcnt lgkmcnt(0)"); g.lg_done = g.lg_seq
    P = [r + 2*i for r in R for i in range(4)]
    for p in P: g.raw("s_xor_b64 s[%d:%d], s[%d:%d], s[16:17]" % (p, p+1, p, p+1))
    for p in P[1:]: g.raw("s_or_b64 s[8:9], s[8:9], s[%d:%d]" % (p, p+1))
    g.raw("s_cbranch_scc0 %s" % D)
    g.raw("s_sleep %d" % OPT["psleep"])
    g.raw("s_sub_u32 s%d, s%d, 1" % (S_SPIN, S_SPIN))
    g.raw("s_cbranch_scc0 %s" % L)
    g(D + ":")
def flag_store(g, soff, vt):
    g("v_mov_b32 v%d, s%d\nv_mov_b32 v%d, 0" % (vt, S_TAG, vt+1))
    g("s_mov_b64 exec, 1")
    g("buffer_store_dword v%d, v%d, %s, s%d offen sc1" % (vt, vt+1, srd(S_WS), soff))
    g("s_mov_b64 exec, -1")
class Rec:
    def __init__(self): self.q = []
    def __call__(self, t): self.q += [l for l in t.split("\n") if l.strip()]
def rec(f, *a):
    r = Rec(); f(r, *a); return r.q
def emit(g, f):
    return f(g) if callable(f) else g(f)
def weave(g, dmas, work):
    op = None; n = len(dmas); work = list(work)
    per = -(-len(work) // n) if n else 0
    for d in dmas:
        op = emit(g, d)
        for _ in range(per):
            if work: emit(g, work.pop(0))
    for w in work: emit(g, w)
    return op

def prologue(g):
    g("s_cmp_ge_u32 s2, 256")
    g("s_cbranch_scc1 Lend")
    if STAMPS: g.raw("%s s[4:5]" % STAMPS)
    g("s_load_dwordx16 s[16:31], s[0:1], 0")
    g("s_load_dwordx16 s[32:47], s[0:1], 64")
    g("s_load_dwordx2 s[48:49], s[0:1], 128")
    g("v_lshrrev_b32 v1, 6, v0")
    g("v_and_b32 v0, 63, v0")
    g("s_and_b32 s%d, s2, 7" % S_XCD)
    g("s_lshr_b32 s%d, s2, 3" % S_IDX)
    g("v_readfirstlane_b32 s3, v1")
    g("s_mul_i32 s80, s%d, 37\ns_lshr_b32 s80, s80, 8" % S_IDX)
    g("s_mul_i32 s81, s80, 7\ns_sub_u32 s81, s%d, s81" % S_IDX)
    g("s_lshr_b32 s%d, s%d, 1\ns_lshl_b32 s%d, s%d, 2\ns_add_u32 s%d, s%d, s80" % (S_MT, S_XCD, S_MT, S_MT, S_MT, S_MT))
    g("s_and_b32 s%d, s%d, 1\ns_mul_i32 s%d, s%d, 7\ns_add_u32 s%d, s%d, s81" % (S_FT, S_XCD, S_FT, S_FT, S_FT, S_FT))
    g("s_lshl_b32 s%d, s%d, 2\ns_lshr_b32 s80, s%d, 3\ns_add_u32 s%d, s%d, s80\ns_and_b32 s%d, s%d, 7" % (S_TB2, S_XCD, S_IDX, S_TB2, S_TB2, S_NB, S_IDX))
    g("s_and_b32 s%d, s3, 3" % S_W)
    g("s_lshl_b32 s80, s%d, 6\ns_lshl_b32 s81, s%d, 1\ns_add_u32 s80, s80, s81\ns_lshr_b32 s81, s%d, 1\ns_add_u32 s%d, s80, s81" % (S_XCD, S_IDX, S_W, S_CH))
    g("s_lshl_b32 s80, s%d, 8\ns_and_b32 s81, s%d, 1\ns_lshl_b32 s81, s81, 7\ns_add_u32 s80, s80, s81" % (S_CH, S_W))
    g("v_lshlrev_b32 v32, 1, v0\nv_add_u32 v32, s80, v32")
    g("s_lshl_b32 s80, s%d, 1\nv_mov_b32 v63, s80" % S_CH)
    g("s_lshr_b32 s80, s%d, 1\ns_mul_i32 s80, s80, %d\ns_and_b32 s81, s%d, 1\ns_mul_i32 s81, s81, %d\ns_add_u32 s80, s80, s81\ns_add_u32 s80, s80, %d" % (S_W, KT_CH, S_W, 64*112, KT))
    g("v_mul_u32_u24 v62, 112, v0\nv_add_u32 v62, s80, v62")
    g("s_cmp_lt_u32 s3, 4")
    g("s_cbranch_scc1 Lcompute")
def epoch_load(g):
    g("s_add_u32 s50, s48, 0x%x\ns_addc_u32 s51, s49, 0" % EP_OFF)
    g("s_load_dword s%d, s[50:51], 0" % S_TAG)
def srds2(g):
    g.srd(S_X, 16, 2048*512*2)
    g.srd(S_WD, 40, 512*1792*2)
    g.srd(S_WS, 48, WS_BYTES)
    g.srd(S_OUT, 44, 2048*512*2)
def h_dma_addr(g):
    g("v_lshrrev_b32 v4, 3, v0\nv_lshlrev_b32 v4, 10, v4\nv_and_b32 v5, 7, v0\nv_lshrrev_b32 v6, 4, v0\nv_xor_b32 v7, v5, v6")
    g("v_lshlrev_b32 v7, 4, v7\nv_add_u32 v2, v4, v7\nv_xor_b32 v3, 64, v2")
    g("v_lshlrev_b32 v5, 4, v5\nv_add_u32 v29, v4, v5")
    g("s_lshl_b32 s90, s%d, 17\ns_lshl_b32 s80, s%d, 15\ns_add_u32 s90, s90, s80" % (S_MT, S_W))
    g("v_and_b32 v5, 15, v0\nv_lshlrev_b32 v7, 2, v6\nv_xor_b32 v5, v5, v7\nv_lshlrev_b32 v5, 4, v5")
    g("v_mul_u32_u24 v6, 3584, v6\nv_add_u32 v4, v6, v5")
    g("s_lshl_b32 s91, s%d, 8\ns_mul_i32 s80, s%d, %d\ns_add_u32 s91, s91, s80" % (S_FT, S_W, 16*3584))
    g("s_lshl_b32 s92, s%d, 12" % S_W)

def kbase(A):
    A("v_lshlrev_b32 v39, 16, v39\nv_mul_f32 v39, 0x%x, v39\nv_exp_f32 v39, v39\nv_lshlrev_b32 v33, 16, v33\nv_lshlrev_b32 v34, 16, v34" % f2u(LOG2E))
    A("v_cvt_pk_bf16_f32 v39, v39, v39\nv_lshlrev_b32 v39, 16, v39")
    A("v_mul_f32 v33, v39, v33\nv_mul_f32 v34, v39, v34")
    A("v_mul_f32 v33, 0x%x, v33\nv_mul_f32 v34, 0x%x, v34" % (f2u(LOG2E), f2u(1/(2*math.pi))))
def kpower(A, e, d, t):
    if e == 1: A("v_exp_f32 v%d, v33\nv_fract_f32 v%d, v34" % (t, t+1))
    else:
        A("v_mul_f32 v%d, 0x%x, v33\nv_mul_f32 v%d, 0x%x, v34" % (t, f2u(e), t+1, f2u(e)))
        A("v_exp_f32 v%d, v%d\nv_fract_f32 v%d, v%d" % (t, t, t+1, t+1))
    A("v_cos_f32 v%d, v%d\nv_sin_f32 v%d, v%d" % (d, t+1, d+1, t+1))
    A("v_mul_f32 v%d, v%d, v%d\nv_mul_f32 v%d, v%d, v%d" % (d, t, d, d+1, t, d+1))
def cm1(d, x, y): return "v_pk_mul_f32 v[%d:%d], v[%d:%d], v[%d:%d] op_sel:[0,0] op_sel_hi:[0,1]" % (d, d+1, x, x+1, y, y+1)
def cm2(d, x, y): return "v_pk_fma_f32 v[%d:%d], v[%d:%d], v[%d:%d], v[%d:%d] op_sel:[1,1,0] op_sel_hi:[1,0,1] neg_lo:[1,0,0]" % (d, d+1, x, x+1, y, y+1, d, d+1)
def cmul2(A, a, b):
    A(cm1(*a)); A(cm1(*b)); A(cm2(*a)); A(cm2(*b))
def kgen_W(A):
    kbase(A)
    for r in range(35, 39): A("v_lshlrev_b32 v%d, 16, v%d" % (r, r))
    A("v_mul_f32 v35, v39, v35\nv_mul_f32 v36, v39, v36")
    R = lambda i: 88 + 2*i
    A("v_mul_f32 v88, v37, v35\nv_mul_f32 v89, v37, v36\nv_fma_f32 v88, -v38, v36, v88\nv_fma_f32 v89, v38, v35, v89")
    Z1, Z2, ZB = 40, 42, 44
    kpower(A, 1, Z1, 46); kpower(A, 2, Z2, 48); kpower(A, 256, ZB, 50)
    def pack(i):
        x, y = R(2*i), R(min(2*i+1, 20))
        A("v_cvt_pk_bf16_f32 v%d, v%d, v%d" % (64 + i, x, y)); A("v_cvt_pk_bf16_f32 v%d, -v%d, -v%d" % (76 + i, x+1, y+1))
    cmul2(A, (R(1), R(0), Z1), (R(2), R(0), Z2))
    cmul2(A, (R(8), R(0), ZB), (R(3), R(1), Z2)); pack(0)
    cmul2(A, (R(4), R(2), Z2), (R(12), R(8), ZB)); pack(1)
    cmul2(A, (R(5), R(3), Z2), (R(9), R(2), ZB))
    cmul2(A, (R(6), R(4), Z2), (R(14), R(12), ZB)); pack(2); pack(4)
    cmul2(A, (R(7), R(5), Z2), (R(10), R(4), ZB))
    cmul2(A, (R(16), R(14), ZB), (R(11), R(6), ZB)); pack(3)
    cmul2(A, (R(13), R(10), ZB), (R(17), R(16), ZB)); pack(5)
    cmul2(A, (R(15), R(13), ZB), (R(18), R(17), ZB)); pack(6); pack(8)
    A(cm1(R(19), R(18), ZB)); pack(7); A(cm2(R(19), R(18), ZB))
    A("ds_write_b128 v62, v[64:67]\nds_write_b128 v62, v[76:79] offset:%d" % KT_IM)
    A(cm1(R(20), R(19), ZB)); pack(9); A(cm2(R(20), R(19), ZB))
    A("ds_write_b128 v62, v[68:71] offset:16\nds_write_b128 v62, v[80:83] offset:%d" % (KT_IM + 16))
    pack(10)
    A("ds_write_b128 v62, v[72:75] offset:32\nds_write_b128 v62, v[84:87] offset:%d" % (KT_IM + 32))
def kgen_E(A):
    kbase(A)
    Z8, Z16 = 40, 42
    kpower(A, 8, Z8, 46); kpower(A, 16, Z16, 48)
    A("v_cvt_pk_bf16_f32 v64, 1.0, v%d\nv_cvt_pk_bf16_f32 v80, 0, v%d" % (Z8, Z8 + 1))
    ev, od = Z16, Z8
    A(cm1(50, od, Z16)); A(cm2(50, od, Z16)); od = 50
    for i in range(1, 16):
        ne, no = (52, 54) if i % 2 else (56, 58)
        if i < 15: A(cm1(ne, ev, Z16)); A(cm1(no, od, Z16))
        A("v_cvt_pk_bf16_f32 v%d, v%d, v%d" % (64 + i, ev, od)); A("v_cvt_pk_bf16_f32 v%d, v%d, v%d" % (80 + i, ev + 1, od + 1))
        if i < 15: A(cm2(ne, ev, Z16)); A(cm2(no, od, Z16))
        ev, od = ne, no
        if i % 4 == 3:
            j = i // 4
            A("ds_write_b128 v62, v[%d:%d] offset:%d" % (64 + 4*j, 67 + 4*j, 48 + 16*j))
            A("ds_write_b128 v62, v[%d:%d] offset:%d" % (80 + 4*j, 83 + 4*j, KT_IM + 48 + 16*j))
def kgen_addr(g):
    g("s_lshr_b32 s80, s%d, 1\ns_mul_i32 s80, s80, %d\ns_add_u32 s80, s80, %d" % (S_W, KT_CH, KT))
    g("v_lshrrev_b32 v140, 2, v0\nv_mul_u32_u24 v140, 112, v140\nv_and_b32 v141, 3, v0\nv_lshlrev_b32 v141, 3, v141\nv_add_u32 v140, v140, v141\nv_add_u32 v140, s80, v140")
    g("s_and_b32 s81, s%d, 1\ns_lshl_b32 s81, s81, 5\ns_add_u32 s81, s81, 48\nv_add_u32 v141, s81, v140" % S_W)
def kgen_mfma(g):
    def kmf(ks):
        b = 12 * ks
        c0 = "0" if ks == 0 else "v[32:35]"; c1 = "0" if ks == 0 else "v[36:39]"
        g("v_mfma_f32_16x16x32_bf16 v[32:35], a[%d:%d], a[%d:%d], %s" % (b, b+3, b+8, b+11, c0))
        g("v_mfma_f32_16x16x32_bf16 v[36:39], a[%d:%d], a[%d:%d], %s" % (b+4, b+7, b+8, b+11, c1))
    for ks in range(8):
        off = (ks >> 2) * KT_IM + (ks & 3) * 32 * 112
        b = 12 * ks
        for h in range(2):
            g("ds_read_b64_tr_b16 a[%d:%d], v140 offset:%d" % (b + 2*h, b + 2*h + 1, off + h*16*112))
            g("ds_read_b64_tr_b16 a[%d:%d], v140 offset:%d" % (b + 4 + 2*h, b + 4 + 2*h + 1, off + h*16*112 + 32))
            g("ds_read_b64_tr_b16 a[%d:%d], v141 offset:%d" % (b + 8 + 2*h, b + 8 + 2*h + 1, off + h*16*112))
        if ks >= 2: kmf(ks - 2)
    kmf(6); kmf(7)
def kgen_compact_addr(g):
    g("s_and_b32 s81, s%d, 1\ns_lshl_b32 s81, s81, 4" % S_W)
    g("v_and_b32 v152, 15, v0\nv_add_u32 v152, s81, v152")
    g("v_lshrrev_b32 v153, 4, v0")
    g("v_lshlrev_b32 v154, 3, v152\nv_lshlrev_b32 v155, 2, v153\nv_add_u32 v154, v154, v155")
    g("v_lshlrev_b32 v155, 2, v152\nv_add_u32 v155, 0x100, v155")
    g("v_lshlrev_b32 v156, 1, v152\nv_add_u32 v156, 0x180, v156")
    g("v_cmp_eq_u32 vcc, 2, v153\nv_cndmask_b32 v154, v154, v155, vcc")
    g("v_cmp_eq_u32 vcc, 3, v153\nv_cndmask_b32 v154, v154, v156, vcc")
    g("v_mov_b32 v155, 2\nv_mov_b32 v156, 64\nv_cndmask_b32 v155, v155, v156, vcc\nv_add_u32 v155, v154, v155")
    g("s_lshr_b32 s80, s%d, 1\ns_mul_i32 s80, s80, %d\ns_add_u32 s80, s80, %d" % (S_W, KC_CH, KC))
    g("v_lshlrev_b32 v154, 1, v154\nv_add_u32 v142, s80, v154")
    g("v_lshlrev_b32 v155, 1, v155\nv_add_u32 v143, s80, v155")
    g("v_min_u32 v156, 1, v153\nv_lshlrev_b32 v156, 7, v156\nv_add_u32 v156, v156, v152\nv_add_u32 v156, 0x200, v156")
    g("v_lshlrev_b32 v156, 1, v156\nv_add_u32 v144, s80, v156")
def kgen_compact(g):
    g("v_cvt_pk_bf16_f32 v32, v32, v33\nv_cvt_pk_bf16_f32 v33, v34, v35\nv_cvt_pk_bf16_f32 v34, v36, v37\nv_cvt_pk_bf16_f32 v35, v38, v39")
    g("ds_write_b32 v142, v32\nds_write_b32 v143, v33")
    g("s_mov_b32 exec_hi, 0\nds_write_b16 v144, v34\nds_write_b16_d16_hi v144, v34 offset:64\nds_write_b16 v144, v35 offset:128\nds_write_b16_d16_hi v144, v35 offset:192\ns_mov_b32 exec_hi, -1")
def kfull_addr(g):
    g("s_lshl_b32 s80, s%d, 9\nv_lshlrev_b32 v152, 3, v0\nv_add_u32 v152, s80, v152" % S_W)
    for e in range(8):
        g("v_add_u32 v153, %d, v152" % (7 - e))
        g("v_cvt_f32_u32 v154, v153\nv_cvt_pk_bf16_f32 v154, v154, v154\nv_and_b32 v154, 0xffff, v154")
        g("v_subrev_u32 v154, 0x%x, v154" % (0x4300 - 128))
        g("v_cmp_gt_u32 vcc, 0x80, v153\nv_cndmask_b32 v154, v154, v153, vcc\nv_lshlrev_b32 v154, 1, v154")
        g("v_add_u32 v%d, 0x%x, v154" % (144 + e, KC))
    g("v_lshrrev_b32 v153, 4, v152\nv_lshlrev_b32 v153, 4, v153")
    g("v_and_b32 v154, 1, v0\nv_mul_u32_u24 v154, %d, v154" % KF_PL)
    g("v_add_u32 v153, v153, v154\nv_add_u32 v26, 0x%x, v153" % (KF + 256))
    g("v_lshrrev_b32 v153, 4, v0\nv_mul_u32_u24 v153, %d, v153\nv_and_b32 v154, 15, v0\nv_lshlrev_b32 v154, 4, v154\nv_add_u32 v153, v153, v154\nv_add_u32 v27, 0x%x, v153" % (KF_PL, KF))
def kfull_read(g):
    for ch in range(2):
        for e in range(8):
            g("ds_read_u16 v%d, v%d offset:%d" % (64 + 8*ch + e, 144 + e, ch*KC_CH))
    for ch in range(2):
        for e in range(4):
            g("v_lshl_or_b32 v%d, v%d, 16, v%d" % (52 + 4*ch + e, 64 + 8*ch + 2*e + 1, 64 + 8*ch + 2*e))
    g("v_mov_b32 v64, 0\nv_mov_b32 v65, 0\nv_mov_b32 v66, 0\nv_mov_b32 v67, 0")
def kfull_write(g):
    g("ds_write_b128 v27, v[64:67]")
    for ch in range(2): g("ds_write_b128 v26, v[%d:%d] offset:%d" % (52 + 4*ch, 55 + 4*ch, ch*KF_CH))

def T_load(g):
    g("s_lshl_b32 s80, s%d, 16\ns_lshl_b32 s81, s%d, 14\ns_add_u32 s80, s80, s81\ns_lshl_b32 s81, s%d, 7\ns_add_u32 s80, s80, s81" % (S_IDX, S_W, S_XCD))
    g("s_mul_i32 s82, s%d, 2112" % S_W)
    L = g.lab("Lt0")
    g("s_cmp_lg_u32 s%d, 0\ns_cbranch_scc1 %s" % (S_W, L))
    g.raw("s_mov_b32 m0, %d" % TBLK); g.raw("s_sub_u32 s81, s80, 8192")
    g.raw("buffer_load_dwordx4 v29, %s, s81 offen lds" % srd(S_X))
    g(L + ":")
    g("s_add_u32 m0, s82, %d" % (TBLK + 1056))
    g("buffer_load_dwordx4 v29, %s, s80 offen lds" % srd(S_X))
    g("s_add_u32 m0, s82, %d\ns_add_u32 s80, s80, 8192" % (TBLK + 2112))
    return g("buffer_load_dwordx4 v29, %s, s80 offen lds" % srd(S_X))
def T_addr(g):
    g("v_and_b32 v16, 3, v0\nv_lshrrev_b32 v5, 5, v0\nv_lshlrev_b32 v5, 2, v5\nv_add_u32 v16, v16, v5\nv_mul_u32_u24 v16, 1056, v16")
    g("v_bfe_u32 v5, v0, 2, 2\nv_lshlrev_b32 v6, 7, v5\nv_add_u32 v16, v16, v6")
    g("v_bfe_u32 v6, v0, 4, 1\nv_lshlrev_b32 v6, 3, v6\nv_add_u32 v16, v16, v6")
    g("s_lshl_b32 s10, s%d, 5\ns_add_u32 s10, s10, %d\nv_add_u32 v16, s10, v16" % (S_W, TBLK + 1056 - 128))
    g("v_subrev_u32 v19, 32, v16\nv_cmp_eq_u32 vcc, 0, v5\nv_cndmask_b32 v19, v16, v19, vcc")
    g("v_bfe_u32 v5, v0, 4, 1\nv_lshlrev_b32 v5, 2, v5\nv_and_b32 v6, 3, v0\nv_add_u32 v5, v5, v6")
    g("v_mul_u32_u24 v5, 160, v5")
    g("v_bfe_u32 v6, v0, 2, 2\nv_lshlrev_b32 v6, 4, v6\nv_add_u32 v5, v5, v6")
    g("v_lshrrev_b32 v6, 5, v0\nv_lshlrev_b32 v6, 6, v6\nv_add_u32 v20, v5, v6")
    g("s_mul_i32 s10, s%d, 1280\ns_add_u32 s10, s10, %d\nv_add_u32 v20, s10, v20" % (S_W, TSCR))
    g("v_lshrrev_b32 v5, 3, v0\nv_and_b32 v6, 7, v0\nv_lshlrev_b32 v6, 4, v6\nv_mul_u32_u24 v17, 160, v5\nv_add_u32 v17, v17, v6\nv_add_u32 v17, s10, v17")
    g("v_mul_u32_u24 v5, %d, v5\nv_add_u32 v61, v5, v6" % UT_STRIDE)
    g("s_lshl_b32 s80, s%d, 2\ns_add_u32 s80, s80, s%d\ns_mul_i32 s10, s80, %d" % (S_XCD, S_W, 16*UT_STRIDE))
    g("s_add_u32 s11, s10, %d" % (UT_OFF + 96))
    g("s_lshl_b32 s81, s%d, 7\ns_add_u32 s10, s10, s81\ns_add_u32 s10, s10, %d" % (S_IDX, UT_OFF + 128))
    g("s_lshl_b32 s80, s80, 5\ns_add_u32 s80, s80, s%d\ns_lshl_b32 s80, s80, 5\ns_add_u32 s12, s80, 0x%x" % (S_IDX, FT_OFF))
    g("v_lshrrev_b32 v6, 1, v0\nv_mul_u32_u24 v6, %d, v6\nv_and_b32 v7, 1, v0\nv_lshlrev_b32 v7, 4, v7\nv_add_u32 v18, v6, v7" % UT_ROW)
def T_pad(g):
    for i in range(4): g("v_accvgpr_write_b32 a%d, 0" % (64 + i))
    L = g.lab("Lnz")
    g("s_cmp_lg_u32 s%d, 0\ns_cbranch_scc1 %s" % (S_IDX, L))
    g.raw("buffer_store_dwordx4 a[64:67], v18, %s, s11 offen sc1" % srd(S_WS))
    g(L + ":")
def T_reads():
    q = []
    for i in range(2):
        for cp in range(2):
            b = 48 + 8*i + 4*cp
            q.append("ds_read_b64_tr_b16 a[%d:%d], v%d offset:%d" % (b, b+1, 19 if cp else 16, 16*i + (1-cp)*128))
            q.append("ds_read_b64_tr_b16 a[%d:%d], v16 offset:%d" % (b+2, b+3, 16*i + (1-cp)*128 + 512))
    return q
TSCR = 157696
def T_relayout():
    q = []
    for k in range(4):
        b = 48 + 4*k
        q.append("ds_write_b128 v20, a[%d:%d]" % (b, b+3))
        q.append("ds_read_b128 a[%d:%d], v17" % (72 + 4*k, 75 + 4*k))
    return q
def T_stores():
    q = []
    for i in range(2):
        for cp in range(2):
            b = 72 + 8*i + 4*cp
            q.append("s_add_u32 s13, s10, %d\nbuffer_store_dwordx4 a[%d:%d], v61, %s, s13 offen sc1" % (i*8*UT_STRIDE + cp*UT_ROW, b, b+3, srd(S_WS)))
    return q
def T_flag_c(g):
    g("v_mov_b32 v16, s%d\nv_mov_b32 v17, 0\ns_mov_b64 exec, 1\nbuffer_store_dword v16, v17, %s, s12 offen sc1\ns_mov_b64 exec, -1" % (S_TAG, srd(S_WS)))

def g_load(g):
    g("s_lshl_b32 s83, s2, 3\ns_lshl_b32 s81, s%d, 1\ns_add_u32 s83, s83, s81\ns_lshl_b32 s81, s83, 10" % S_W)
    g("v_lshlrev_b32 v5, 4, v0")
    g("global_load_dwordx4 v[128:131], v5, s[42:43]")
    for j in range(2):
        g("buffer_load_dwordx4 v[%d:%d], v5, %s, s81 offen offset:%d" % (132 + 4*j, 135 + 4*j, srd(S_X), j*1024))
def g_compute(g):
    R = [140, 142]
    for r in R: g("v_mov_b32 v%d, 0" % r)
    for i in range(4):
        for j, r in enumerate(R): g("v_dot2_f32_bf16 v%d, v%d, v%d, v%d" % (r, 132 + 4*j + i, 128 + i, r))
        g("s_nop 0")
    g("s_nop 2")
    for mod in ("row_shr:1 row_mask:0xf bank_mask:0xf bound_ctrl:0", "row_shr:2 row_mask:0xf bank_mask:0xf bound_ctrl:0",
                "row_shr:4 row_mask:0xf bank_mask:0xf bound_ctrl:0", "row_shr:8 row_mask:0xf bank_mask:0xf bound_ctrl:0",
                "row_bcast:15 row_mask:0xa bank_mask:0xf", "row_bcast:31 row_mask:0xc bank_mask:0xf"):
        for r in R: g("v_add_f32_dpp v%d, v%d, v%d %s" % (r, r, r, mod))
    for t in ("v_cvt_pk_bf16_f32 v%d, v%d, v%d", "v_lshlrev_b32 v%d, 16, v%d", "v_mul_f32 v%%d, 0x%x, v%%d" % f2u(-LOG2E), "v_exp_f32 v%d, v%d",
              "v_add_f32 v%d, 1.0, v%d", "v_rcp_f32 v%d, v%d", "v_cvt_pk_bf16_f32 v%d, v%d, v%d", "v_lshlrev_b32 v%d, 16, v%d"):
        for r in R: g(t % ((r,) * t.count("%d")))
    g("v_mov_b32 v141, s%d\nv_mov_b32 v143, s%d\nv_mov_b32 v5, 0" % (S_TAG, S_TAG))
    g("s_lshl_b32 s80, s2, 3\ns_lshl_b32 s81, s%d, 1\ns_add_u32 s80, s80, s81\ns_lshl_b32 s80, s80, 3\ns_add_u32 s80, s80, 0x%x" % (S_W, G_OFF))
def g_store(g):
    g("s_mov_b32 exec_lo, 0\ns_mov_b32 exec_hi, 0x80000000")
    g("buffer_store_dwordx4 v[140:143], v5, %s, s80 offen sc1" % srd(S_WS))
    g("s_mov_b64 exec, -1")

def epoch_bump(g):
    L, P, D = g.lab("Leb"), g.lab("Lep"), g.lab("Led")
    g("s_cmp_lg_u32 s2, 255\ns_cbranch_scc1 %s" % L)
    g("s_cmp_lg_u32 s%d, 0\ns_cbranch_scc1 %s" % (S_W, L))
    for l in ("v_lshrrev_b32 v8, 5, v0", "v_lshlrev_b32 v8, 12, v8", "v_and_b32 v9, 31, v0", "v_lshlrev_b32 v9, 5, v9", "v_add_u32 v8, v8, v9", "v_add_u32 v9, 0x2000, v8", "v_add_u32 v10, 0x4000, v8", "v_add_u32 v11, 0x6000, v8",
              "s_mov_b32 s80, 0x%x" % FT_OFF, "s_mov_b32 s%d, 0x40000" % S_SPIN): g.raw(l)
    g(P + ":")
    for l in (*["buffer_load_dword v%d, v%d, %s, s80 offen sc1" % (12 + j, 8 + j, srd(S_WS)) for j in range(4)], "s_waitcnt vmcnt(0)",
              "v_xor_b32 v12, s%d, v12" % S_TAG, "v_xor_b32 v13, s%d, v13" % S_TAG, "v_xor_b32 v14, s%d, v14" % S_TAG, "v_xor_b32 v15, s%d, v15" % S_TAG,
              "v_or_b32 v12, v12, v13", "v_or_b32 v14, v14, v15", "v_or_b32 v12, v12, v14", "v_cmp_ne_u32 vcc, 0, v12", "s_nop 4",
              "s_cmp_eq_u64 vcc, 0", "s_cbranch_scc1 %s" % D, "s_sleep 4", "s_sub_u32 s%d, s%d, 1" % (S_SPIN, S_SPIN), "s_cmp_lg_u32 s%d, 0" % S_SPIN,
              "s_cbranch_scc1 %s" % P): g.raw(l)
    g(D + ":")
    g.raw("s_mov_b32 s80, 0x%x" % EP_OFF)
    g.raw("v_mov_b32 v8, s%d" % S_TAG); g.raw("v_mov_b32 v9, 0"); g.raw("s_mov_b64 exec, 1")
    g.raw("buffer_store_dword v8, v9, %s, s80 offen sc1" % srd(S_WS))
    g.raw("s_mov_b64 exec, -1")
    g(L + ":")

def uexp_addr(g):
    g("v_lshlrev_b32 v28, 2, v0")
    g("s_lshl_b32 s85, s%d, 6\ns_lshl_b32 s86, s%d, 1\ns_add_u32 s85, s85, s86\ns_mul_i32 s85, s85, %d" % (S_XCD, S_IDX, UT_STRIDE))
    g("s_lshl_b32 s86, s%d, 8\ns_add_u32 s85, s85, s86\ns_add_u32 s85, s85, %d" % (S_W, UT_OFF + 128 - 32))
    g("s_lshl_b32 s86, s%d, 10" % S_W)
def uexp_plane(ch, odd):
    lds = (UEO if odd else UEE)[ch]; src = ch*UT_STRIDE + (0 if odd else UT_ROW)
    q = ["s_add_u32 m0, s86, %d\ns_add_u32 s87, s85, %d\nbuffer_load_dwordx4 v28, %s, s87 offen sc1 lds" % (lds + j*4096, src + j*1024, srd(S_WS)) for j in range(4)]
    def tail(g):
        L = g.lab("Lw0")
        g("s_cmp_lg_u32 s%d, 0\ns_cbranch_scc1 %s" % (S_W, L))
        for l in ("s_mov_b64 exec, 0xff", "s_mov_b32 m0, %d" % (lds + 16384), "s_add_u32 s87, s85, %d" % (src + 4096),
                  "buffer_load_dwordx4 v28, %s, s87 offen sc1 lds" % srd(S_WS), "s_mov_b64 exec, -1"): g.raw(l)
        g(L + ":")
    return [tail] + q

def gemm1_dma(st):
    b = BUF[st % 3]; q = []
    pre = "s_add_u32 s9, s14, %d\ns_and_b32 s9, s9, 7\ns_lshl_b32 s35, s9, 7\ns_add_u32 s35, s35, s90\ns_mul_i32 s8, s9, %d\ns_add_u32 s8, s8, s91\n" % (st, 64*3584)
    for i in range(4):
        q.append((pre if i == 0 else "") + "s_add_u32 m0, s92, %d\ns_add_u32 s93, s35, %d\nbuffer_load_dwordx4 v%d, %s, s93 offen lds" % (b + i*1024, i*8192, 2 + (i & 1), srd(S_X)))
        q.append("s_add_u32 m0, s92, %d\ns_add_u32 s93, s8, %d\nbuffer_load_dwordx4 v4, %s, s93 offen lds" % (b + 16384 + i*1024, i*4*3584, srd(S_WG)))
        q.append("s_add_u32 m0, s92, %d\nbuffer_load_dwordx4 v4, %s, s93 offen lds" % (b + 32768 + i*1024, srd(S_WU)))
    return q

def cf(p, kind, i):
    if p == 0: return "a[%d:%d]" % ((0 if kind == "A" else 32) + 4*i, (0 if kind == "A" else 32) + 4*i + 3)
    return ("a[%d:%d]" % (64 + 4*i, 67 + 4*i)) if kind == "A" else ("v[%d:%d]" % (128 + 4*i, 131 + 4*i))
def sel(g, dst, c0, c1):
    g("s_cselect_b32 s%d, %d, %d" % (dst, c1, c0) if False else "s_mov_b32 s%d, %d" % (dst, c0))
def conv_addr(g):
    g("s_lshr_b32 s80, s%d, 1\ns_and_b32 s82, s%d, 1" % (S_W, S_W))
    g("s_mul_i32 s81, s80, %d\ns_add_u32 s81, s81, %d" % (UEE[1] - UEE[0], UEE[0]))
    g("s_mul_i32 s83, s80, %d\ns_sub_u32 s83, %d, s83" % (UEO[0] - UEO[1], UEO[0]))
    g("v_bfe_u32 v5, v0, 4, 1\nv_lshlrev_b32 v5, 1, v5\nv_lshrrev_b32 v6, 5, v0\nv_add_u32 v5, v5, v6")
    g("v_bfe_u32 v6, v0, 1, 3\nv_lshlrev_b32 v7, 2, v5\nv_sub_u32 v7, v6, v7\nv_add_u32 v7, 13, v7\nv_lshlrev_b32 v7, 4, v7")
    g("v_mov_b32 v8, s81\nv_mov_b32 v9, s83\nv_and_b32 v6, 1, v0\nv_cmp_eq_u32 vcc, 1, v6\nv_cndmask_b32 v8, v8, v9, vcc\nv_add_u32 v8, v8, v7")
    g("s_lshl_b32 s81, s82, 10\nv_add_u32 v8, s81, v8")
    g("v_and_b32 v13, 15, v0\nv_lshlrev_b32 v13, 7, v13\nv_lshrrev_b32 v14, 4, v0\nv_lshlrev_b32 v14, 5, v14\nv_add_u32 v13, v13, v14")
    g("s_lshl_b32 s81, s82, 13\ns_add_u32 s81, s81, s83\ns_add_u32 s81, s81, 128\nv_add_u32 v13, s81, v13")
    g("v_and_b32 v6, 15, v0\nv_lshrrev_b32 v7, 5, v0\nv_mul_u32_u24 v7, %d, v7\nv_bfe_u32 v9, v0, 4, 1\nv_add_u32 v9, v9, v6\nv_lshlrev_b32 v9, 4, v9\nv_add_u32 v7, v7, v9" % KF_PL)
    g("s_mul_i32 s81, s80, %d\ns_lshl_b32 s83, s82, 7\ns_sub_u32 s83, s81, s83\ns_add_u32 s83, s83, %d" % (KF_CH, KF + 16*(16 - 7)))
    g("v_add_u32 v9, s83, v7")
    g("v_lshlrev_b32 v10, 4, v0")
    g("s_lshl_b32 s81, s%d, 12\ns_add_u32 s81, s81, %d\ns_cmp_eq_u32 s%d, 3\ns_cselect_b32 s81, %d, s81\nv_add_u32 v12, s81, v10" % (S_W, XCH[0], S_W, XCH[3]))
    g("s_xor_b32 s83, s%d, 1\ns_lshl_b32 s81, s83, 12\ns_add_u32 s81, s81, %d\ns_cmp_eq_u32 s83, 3\ns_cselect_b32 s81, %d, s81\nv_add_u32 v11, s81, v10" % (S_W, XCH[0], XCH[3]))
    g("v_and_b32 v15, 15, v0\nv_lshlrev_b32 v15, 5, v15\nv_lshrrev_b32 v14, 4, v0\nv_lshlrev_b32 v14, 3, v14\nv_add_u32 v15, v15, v14")
    g("s_lshl_b32 s81, s%d, 12\ns_add_u32 s81, s81, %d\nv_add_u32 v15, s81, v15\nv_add_u32 v14, s81, v10" % (S_W, STG))
def conv_main(g, side):
    side = list(side)
    def reads(i):
        p = i & 1; q = []
        for a in range(8):
            q.append("ds_read_b128 %s, v8 offset:%d" % (cf(p, "A", a), a*2048 + i*256))
            q.append("ds_read_b128 %s, v9 offset:%d" % (cf(p, "B", a), a*256 + (3 - i)*32))
        return q
    for r in reads(0): g(r)
    first = set(); cnt = 0; last = None
    for i in range(4):
        p = i & 1
        nxt = reads(i + 1) if i < 3 else ["ds_read_b64 a[%d:%d], v13 offset:%d" % (2*cc, 1 + 2*cc, cc*2048) for cc in range(4)]
        pairs = sorted([(a, d) for a in range(8) for d in range(8) if a + d <= 7], key=lambda x: (max(x), x))
        for n, (a, d) in enumerate(pairs):
            c = a + d
            C = "v[%d:%d]" % (32 + 4*c, 35 + 4*c) if c in first else "0"
            first.add(c)
            g("v_mfma_f32_16x16x32_bf16 v[%d:%d], %s, %s, %s" % (32 + 4*c, 35 + 4*c, cf(p, "A", a), cf(p, "B", d), C))
            if n >= 12 and nxt: g(nxt.pop(0))
            elif n in (1, 3, 5, 7, 9, 11, 30, 33) and side: last = g(side.pop(0))
        assert not nxt
    assert not side
    for cc in range(4):
        for h in range(2):
            u = 128 + 2*cc + h; t = 136 + 4*cc + 2*h
            g("v_accvgpr_read_b32 v%d, a%d" % (u, 2*cc + h))
            g("v_lshlrev_b32 v%d, 16, v%d\nv_and_b32 v%d, 0xffff0000, v%d" % (t, u, t+1, u))
            g("v_mul_f32 v%d, v29, v%d\nv_mul_f32 v%d, v29, v%d" % (t, t, t+1, t+1))
            if cc == 0 and h == 1:
                L1, L2 = g.lab("Lx"), g.lab("Lx")
                g("s_and_b32 s82, s%d, 1\ns_cmp_lg_u32 s82, 0\ns_cbranch_scc1 %s" % (S_W, L1))
                for k in range(4): g.raw("ds_write_b128 v11, v[%d:%d] offset:%d" % (48 + 4*k, 51 + 4*k, k*1024))
                g("s_branch %s" % L2)
                g(L1 + ":")
                for k in range(4): g.raw("ds_write_b128 v11, v[%d:%d] offset:%d" % (32 + 4*k, 35 + 4*k, k*1024))
                g.nop(2)
                for r in range(16): g.raw("v_mov_b32 v%d, v%d" % (32 + r, 48 + r))
                g(L2 + ":")
                g.lg_seq += 4
            g("v_cvt_pk_bf16_f32 v%d, v%d, v%d" % (u, t, t+1))
            g("v_lshlrev_b32 v%d, 16, v%d\nv_and_b32 v%d, 0xffff0000, v%d" % (t, u, t+1, u))
    g.wait(lg=0)
    return last
def conv_fin(g):
    for r in range(16): g("v_add_f32 v%d, v%d, v%d" % (32 + r, 32 + r, 48 + r))
    for r in range(8): g("v_cvt_pk_bf16_f32 v%d, v%d, v%d" % (48 + r, 32 + 2*r, 33 + 2*r))
    for r in range(8): g("v_lshlrev_b32 v%d, 16, v%d\nv_and_b32 v%d, 0xffff0000, v%d" % (32 + 2*r, 48 + r, 33 + 2*r, 48 + r))
    for r in range(16): g("v_add_f32 v%d, v%d, v%d" % (32 + r, 32 + r, 136 + r))
    for r in range(8): g("v_cvt_pk_bf16_f32 v%d, v%d, v%d" % (48 + r, 32 + 2*r, 33 + 2*r))
    for cc in range(4): g("ds_write_b64 v15, v[%d:%d] offset:%d" % (48 + 2*cc, 49 + 2*cc, cc*512))
    for pr in range(2): g("ds_read_b128 v[%d:%d], v14 offset:%d" % (56 + 4*pr, 59 + 4*pr, pr*1024))
    g("s_and_b32 s82, s%d, 1\ns_lshl_b32 s81, s%d, 12\ns_lshl_b32 s83, s82, 11\ns_add_u32 s81, s81, s83\ns_add_u32 s81, s81, 0x%x" % (S_W, S_CH, AT_OFF))
    for pr in range(2):
        g("buffer_store_dwordx4 v[%d:%d], v10, %s, s81 offen offset:%d sc1" % (56 + 4*pr, 59 + 4*pr, srd(S_WS), pr*1024))

def chunk_ids(g):
    for c in range(7):
        g("s_add_u32 s%d, s%d, %d\ns_cmp_ge_u32 s%d, 7\ns_cselect_b32 s80, 7, 0\ns_sub_u32 s%d, s%d, s80" % (18 + c, S_NB, c, 18 + c, 18 + c, 18 + c))
    g("s_lshl_b32 s95, s%d, 14\ns_add_u32 s95, s95, %d\ns_lshl_b32 s25, s%d, 13" % (S_W, WDA, S_W))
def wd_setup(g, vreg):
    g("v_lshrrev_b32 v5, 3, v0\nv_lshlrev_b32 v5, 10, v5\nv_bfe_u32 v6, v0, 4, 1\nv_lshlrev_b32 v6, 2, v6\nv_and_b32 v7, 7, v0\nv_xor_b32 v6, v6, v7\nv_lshlrev_b32 v6, 4, v6\nv_add_u32 v%d, v5, v6" % vreg)
    g("s_mul_i32 s94, s%d, %d\ns_lshl_b32 s80, s%d, 7\ns_add_u32 s94, s94, s80" % (S_W, 448*1024, S_NB))
WSLOT = {2: (95, 0), 3: (95, 8192), 6: (95, 0)}
def wd_dma(c, vreg):
    sb, off = WSLOT[c]
    q = []
    for i in range(8):
        pre = "s_lshl_b32 s93, s%d, 16\ns_add_u32 s93, s93, s94\n" % (18 + c) if i == 0 else "s_add_u32 s93, s93, 8192\n"
        q.append("s_add_u32 m0, s%d, %d\n%sbuffer_load_dwordx4 v%d, %s, s93 offen lds" % (sb, off + i*1024, pre, vreg, srd(S_WD)))
    return q

def l2t_addr(g):
    g("s_lshl_b32 s80, s%d, 2\ns_add_u32 s80, s80, s%d\ns_lshl_b32 s26, s80, 12\ns_add_u32 s26, s26, 0x%x" % (S_IDX, S_W, WDT_OFF))
    g("s_lshr_b32 s27, s80, 5\ns_mul_i32 s27, s27, %d\ns_and_b32 s80, s80, 31\ns_lshl_b32 s80, s80, 11\ns_add_u32 s27, s27, s80" % (448*1024))
    g("v_and_b32 v24, 7, v0\nv_bfe_u32 v25, v0, 3, 1\nv_lshlrev_b32 v25, 10, v25\nv_lshlrev_b32 v23, 7, v24\nv_add_u32 v25, v25, v23")
    g("v_lshrrev_b32 v21, 4, v0\nv_add_u32 v21, v21, v24\nv_add_u32 v21, 2, v21\nv_subrev_u32 v23, 7, v21\nv_min_u32 v21, v21, v23\nv_lshlrev_b32 v21, 16, v21\nv_add_u32 v21, v21, v25")
    g("v_add_u32 v22, 6, v24\nv_subrev_u32 v23, 7, v22\nv_min_u32 v22, v22, v23\nv_lshlrev_b32 v22, 16, v22\nv_add_u32 v22, v22, v25")
    g("v_lshlrev_b32 v23, 7, v0")
def l2t(g):
    g("s_mov_b32 exec_hi, 0\nbuffer_load_dword v24, v23, %s, s26 offen sc1\ns_mov_b32 exec_hi, -1" % srd(S_WS))
    g("buffer_load_dword v25, v21, %s, s27 offen" % srd(S_WD))
    g("s_mov_b64 exec, 0xffff\nbuffer_load_dword v21, v22, %s, s27 offen\ns_mov_b64 exec, -1" % srd(S_WD))
def wd_reg(c):
    q = []
    for i in range(8):
        pre = "s_lshl_b32 s93, s%d, 16\ns_add_u32 s93, s93, s94\n" % (18 + c) if i == 0 else "s_add_u32 s93, s93, 8192\n"
        b = 64 + 32*(c - 4) + 4*i
        q.append("%sbuffer_load_dwordx4 v[%d:%d], v30, %s, s93 offen" % (pre, b, b+3, srd(S_WD)))
    return q
def dose(g, k):
    if OPT["l2t"] != 3: return
    if k < 4: g("%s\nbuffer_load_dword v%d, v21, %s, s27 offen\ns_mov_b64 exec, -1" % (lanes(16*k, 16*k + 16), 96 + k, srd(S_WD)))
    elif k == 4: g("%s\nbuffer_load_dword v100, v22, %s, s27 offen\ns_mov_b64 exec, -1" % (lanes(0, 16), srd(S_WD)))
    else: g("%s\nbuffer_load_dword v%d, v23, %s, s26 offen sc1\ns_mov_b64 exec, -1" % (lanes(16*(k-5), 16*(k-5) + 16), 96 + k, srd(S_WS)))
def H_part1(g, idle):
    D = (lambda st: []) if idle else gemm1_dma
    st_ = (lambda g, n: None) if idle else stamp
    def W(op):
        if op is not None: g.wait_op(op)
    g("global_load_ushort v39, v63, s[30:31]")
    g("global_load_ushort v33, v32, s[18:19]")
    g("global_load_ushort v34, v32, s[20:21]")
    g("global_load_ushort v126, v63, s[32:33]")
    if not idle:
        g.srd(S_WG, 36, 512*1792*2); g.srd(S_WU, 38, 512*1792*2)
    g.srd(S_X, 16, 2048*512*2)
    d = {}
    d[0] = weave(g, D(0), [])
    epoch_load(g)
    g.srd(S_WS, 48, WS_BYTES); g.srd(S_WD, 40, 512*1792*2); g.srd(S_OUT, 44, 2048*512*2)
    st_(g, "H:d0 issued")
    tag_compute(g)
    g("v_lshlrev_b32 v126, 16, v126")
    st_(g, "H:par")
    kgen_E(g)
    g.wait(lg=0)
    st_(g, "H:E done")
    g("s_barrier")
    d[1] = weave(g, D(1), rec(kfull_addr) + rec(T_addr))
    st_(g, "H:i0")
    W(d[0])
    g("s_barrier")
    tl = T_load(g)
    g("v_mov_b32 v29, v126")
    d[2] = weave(g, D(2), rec(kfull_read) + rec(l2t_addr))
    st_(g, "H:i1")
    g.wait(lg=0); g.wait_op(tl)
    g("s_barrier")
    for t in T_reads(): g(t)
    d[3] = weave(g, D(3), T_relayout())
    T_pad(g)
    for t in T_stores(): ts = g(t)
    st_(g, "H:i2")
    W(d[2])
    g("s_barrier")
    d[4] = weave(g, D(4), rec(kfull_write) + rec(uexp_addr))
    dose(g, 0)
    st_(g, "H:i3")
    g.wait(lg=0); g.wait_op(ts)
    T_flag_c(g)
    st_(g, "H:a3")
    g("s_barrier")
    d[5] = weave(g, D(5), [])
    dose(g, 1)
    conv_addr(g)
    st_(g, "H:i4")
    W(d[4])
    g("s_barrier")
    d[6] = weave(g, D(6), [])
    dose(g, 2); dose(g, 5)
    wd_setup(g, 30); chunk_ids(g)
    g("s_lshl_b32 s83, s%d, 2\ns_lshr_b32 s81, s%d, 3\ns_add_u32 s83, s83, s81\ns_lshl_b32 s83, s83, 10\ns_add_u32 s83, s83, 0x%x" % (S_XCD, S_IDX, FT_OFF))
    g("s_lshl_b32 s81, s%d, 9\ns_add_u32 s81, s81, 0x%x" % (S_NB, FW_OFF))
    g("v_lshlrev_b32 v5, 5, v0\nv_add_u32 v5, s83, v5\nv_and_b32 v6, 15, v0\nv_lshlrev_b32 v6, 5, v6\nv_add_u32 v6, s81, v6\nv_cmp_lt_u32 vcc, 31, v0\nv_cndmask_b32 v5, v5, v6, vcc\ns_mov_b32 s83, 0")
    st_(g, "H:i5")
    W(d[5])
    g("s_barrier")
    L0 = g.lab("Lq")
    g("s_cmp_lg_u32 s%d, 0\ns_cbranch_scc1 %s" % (S_W, L0))
    g.raw("buffer_load_dword v6, v5, %s, s83 offen sc1" % srd(S_WS))
    g(L0 + ":")
    d[7] = weave(g, D(7), [])
    nv = 0 if idle else 12
    if OPT["l2t"] == 1: l2t(g); nv += 3
    if OPT["l2t"] == 3: dose(g, 3); dose(g, 6); nv += 2
    st_(g, "H:i6")
    g.raw("s_waitcnt vmcnt(%d)" % nv); g.vm_done = max(g.vm_done, g.vm_seq - nv)
    Lok = g.lab("Lok")
    g("s_cmp_lg_u32 s%d, 0\ns_cbranch_scc1 %s" % (S_W, Lok))
    g("v_cmp_ne_u32 vcc, s%d, v6" % S_TAG)
    g.nop(4)
    g("s_cmp_eq_u64 vcc, 0\ns_cbranch_scc1 %s" % Lok)
    sv = g.vm_done
    poll(g, 5, 83, 6)
    g.vm_done = sv
    g(Lok + ":")
    st_(g, "H:a6")
    g("s_barrier")
    for t in uexp_plane(0, 0) + uexp_plane(0, 1) + uexp_plane(1, 0): emit(g, t)
    dose(g, 4)
    if OPT["l2t"] == 4: l2t(g)
    W(d[7])
    st_(g, "H:a7")
    g("s_barrier")
    for t in uexp_plane(1, 1): g.ue = emit(g, t)
    if OPT["seq"]: g_load(g)
    for t in (wd_reg(4) + wd_reg(5))[:OPT["nr7"]]: g(t)
    g("v_mov_b32 v16, %d\nv_lshlrev_b32 v17, 2, v0\nv_add_u32 v17, v16, v17\nv_mov_b32 v18, 0\nv_mov_b32 v19, 1" % SYW)
    g("ds_write_b32 v17, v18")
    g.wait(lg=0)
    if not OPT["seq"]: g.wait_op(g.ue)
    st_(g, "H:a8")

SYW = 28928
STG = 0
def hsync(g, target):
    L, D = g.lab("Lh"), g.lab("Lhd")
    g("s_mov_b64 exec, 1\nds_add_u32 v16, v19\ns_mov_b64 exec, -1")
    g("s_mov_b32 s%d, 0x100000" % S_SPIN)
    g(L + ":")
    for l in ("ds_read_b32 v18, v16", "s_waitcnt lgkmcnt(0)", "v_readfirstlane_b32 s80, v18", "s_sub_u32 s%d, s%d, 1" % (S_SPIN, S_SPIN), "s_cbranch_scc1 %s" % D,
              "s_cmp_lt_u32 s80, %d" % target, "s_cbranch_scc1 %s" % L): g.raw(l)
    g(D + ":")
    g.lg_done = g.lg_seq
def fin_addr(g, b, half):
    g("s_add_u32 s80, s95, %d\nv_add_u32 v%d, s80, v10" % (WDB1 - WDA + 12288, b))
    for q in (1, 2, 3):
        g("s_xor_b32 s80, s%d, %d\ns_lshl_b32 s80, s80, 14\ns_add_u32 s80, s80, %d\nv_add_u32 v%d, s80, v10" % (S_W, q, WDB1 + (q-1)*4096 + half*2048, b + q))
    g("v_and_b32 v%d, 31, v0\nv_lshlrev_b32 v%d, 10, v%d\nv_lshrrev_b32 v1, 5, v0\nv_lshlrev_b32 v1, 4, v1\nv_add_u32 v%d, v%d, v1" % (b+4, b+4, b+4, b+4, b+4))
    g("s_lshl_b32 s87, s%d, 16\ns_and_b32 s81, s%d, 1\ns_lshl_b32 s81, s81, 15\ns_add_u32 s87, s87, s81\ns_lshl_b32 s81, s%d, 7\ns_add_u32 s87, s87, s81\ns_lshr_b32 s81, s%d, 1\ns_lshl_b32 s81, s81, 6\ns_add_u32 s87, s87, s81\ns_add_u32 s87, s87, %d" % (S_TB2, S_W, S_NB, S_W, half*32))
def fin_math(g, P, GA, OMG, VO):
    for r in range(4):
        x = P + 2*r
        g("v_pk_add_f32 v[%d:%d], v[%d:%d], v[%d:%d]" % (x, x+1, x, x+1, x+8, x+9))
        g("v_pk_add_f32 v[%d:%d], v[%d:%d], v[%d:%d]" % (x+16, x+17, x+16, x+17, x+24, x+25))
    for r in range(4):
        x = P + 2*r
        g("v_pk_add_f32 v[%d:%d], v[%d:%d], v[%d:%d]" % (x, x+1, x, x+1, x+16, x+17))
    for r in range(4): g("v_cvt_pk_bf16_f32 v%d, v%d, v%d" % (P + 8 + r, P + 2*r, P + 2*r + 1))
    for r in range(4): g("v_lshlrev_b32 v%d, 16, v%d\nv_and_b32 v%d, 0xffff0000, v%d" % (P + 2*r, P + 8 + r, P + 2*r + 1, P + 8 + r))
    for r in range(8): g("v_mul_f32 v%d, v%d, v%d" % (P + r, OMG, P + r))
    for r in range(4): g("v_cvt_pk_bf16_f32 v%d, v%d, v%d" % (P + 8 + r, P + 2*r, P + 2*r + 1))
    for r in range(4): g("v_lshlrev_b32 v%d, 16, v%d\nv_and_b32 v%d, 0xffff0000, v%d" % (P + 16 + 2*r, GA + r, P + 17 + 2*r, GA + r))
    for r in range(4): g("v_lshlrev_b32 v%d, 16, v%d\nv_and_b32 v%d, 0xffff0000, v%d" % (P + 2*r, P + 8 + r, P + 2*r + 1, P + 8 + r))
    for r in range(4):
        x = P + 2*r
        g("v_pk_add_f32 v[%d:%d], v[%d:%d], v[%d:%d]" % (x, x+1, x, x+1, x+16, x+17))
    for r in range(4): g("v_cvt_pk_bf16_f32 v%d, v%d, v%d" % (GA + r, P + 2*r, P + 2*r + 1))
    g("v_permlane32_swap_b32 v%d, v%d" % (GA, GA + 2))
    g("v_permlane32_swap_b32 v%d, v%d" % (GA + 1, GA + 3))
    g("buffer_store_dwordx4 v[%d:%d], v%d, %s, s87 offen" % (GA, GA + 3, VO, srd(S_OUT)))

def build_H():
    g = G(); g.nlab = 1000; g.role = 1; g.nst = 1; St.names[48] = "H:start"
    prologue(g)
    g("s_setprio %d" % OPT["hprio"])
    h_dma_addr(g)
    if OPT["rot"] == 1: g("s_add_u32 s14, s%d, s%d\ns_and_b32 s14, s14, 3\ns_lshl_b32 s14, s14, 1" % (S_MT, S_FT))
    elif OPT["rot"] == 2: g("s_add_u32 s14, s%d, s%d\ns_and_b32 s14, s14, 1\ns_lshl_b32 s14, s14, 2" % (S_MT, S_FT))
    else: g("s_mov_b32 s14, 0")
    g("s_waitcnt lgkmcnt(0)")
    g("s_cmp_ge_u32 s%d, 28\ns_cbranch_scc1 Lhidle" % S_IDX)
    H_part1(g, False)
    g("Lh8:")
    g("s_barrier")
    g("s_setprio 0")
    rest = (wd_reg(4) + wd_reg(5))[OPT["nr7"]:]
    if OPT["seq"]:
        for t in rest + wd_dma(2, 30) + wd_dma(3, 30): last = g(t); g("s_sleep %d" % OPT["wsleep"])
        g_compute(g); g_store(g)
        g.wait_op(last)
        stamp(g, "H:a9")
        g("s_barrier")
        conv_main(g, [])
    else:
        stamp(g, "H:a9")
        last = conv_main(g, rest + wd_dma(2, 30) + wd_dma(3, 30))
    stamp(g, "H:convend")
    g("s_setprio 3")
    hsync(g, 4)
    for cc in range(4): g("ds_read_b128 v[%d:%d], v12 offset:%d" % (48 + 4*cc, 51 + 4*cc, cc*1024))
    conv_fin(g)
    aop = ("vm", g.vm_seq)
    stamp(g, "H:aiss")
    g("s_add_u32 s80, s95, %d\nv_add_u32 v11, s80, v10" % (WDB1 - WDA))
    for i in range(16): g("ds_write_b128 v11, v[%d:%d] offset:%d" % (64 + 4*i, 67 + 4*i, i*1024))
    g("s_and_b32 s82, s%d, 1\ns_lshl_b32 s80, s%d, 1\ns_add_u32 s80, s80, s82\ns_lshl_b32 s80, s80, 10\ns_and_b32 s81, s%d, 56\ns_lshl_b32 s81, s81, 4\ns_add_u32 s80, s80, s81\ns_and_b32 s81, s%d, 7\ns_lshl_b32 s81, s81, 2\ns_add_u32 s80, s80, s81\ns_add_u32 s80, s80, 0x%x" % (S_W, S_XCD, S_CH, S_CH, FA_OFF))
    g("s_lshl_b32 s81, s%d, 2\nv_add_u32 v17, s81, v16" % S_W)
    g.wait_op(last)
    g("ds_write_b32 v17, v19 offset:16")
    stamp(g, "H:wdland")
    g.wait_op(aop)
    flag_store(g, 80, 8)
    stamp(g, "H:aflag")
    if not OPT["seq"]: g_load(g); g_compute(g); g_store(g)
    g("v_and_b32 v5, 31, v0\nv_lshlrev_b32 v20, 3, v5")
    g("s_lshl_b32 s82, s%d, 1\ns_lshr_b32 s81, s%d, 4\ns_add_u32 s82, s82, s81\ns_lshl_b32 s82, s82, 10\ns_lshr_b32 s81, s%d, 1\ns_lshl_b32 s81, s81, 9\ns_add_u32 s82, s82, s81\ns_add_u32 s82, s82, 0x%x\ns_add_u32 s50, s48, s82\ns_addc_u32 s51, s49, 0" % (S_NB, S_TB2, S_W, FA_OFF))
    g("v_lshrrev_b32 v7, 2, v0\nv_lshlrev_b32 v8, 12, v7\nv_and_b32 v9, 3, v0\nv_lshlrev_b32 v9, 4, v9\nv_add_u32 v8, v8, v9")
    g("s_lshl_b32 s83, s%d, 18\ns_lshr_b32 s81, s%d, 1\ns_lshl_b32 s81, s81, 17\ns_add_u32 s83, s83, s81\ns_lshl_b32 s81, s%d, 7\ns_add_u32 s83, s83, s81\ns_and_b32 s81, s%d, 1\ns_lshl_b32 s81, s81, 6\ns_add_u32 s83, s83, s81\ns_add_u32 s83, s83, 0x%x\ns_add_u32 s84, s83, 0x10000" % (S_NB, S_W, S_TB2, S_W, AT_OFF))
    g("s_lshl_b32 s85, s%d, 9\ns_and_b32 s81, s%d, 1\ns_lshl_b32 s81, s81, 8\ns_add_u32 s85, s85, s81\ns_add_u32 s85, s85, 0x%x" % (S_TB2, S_W, G_OFF))
    g("s_lshl_b32 s86, s%d, 12\ns_add_u32 s86, s86, %d\nv_add_u32 v21, s86, v10" % (S_W, STG))
    g("v_lshrrev_b32 v22, 5, v0\nv_lshlrev_b32 v22, 2, v22\nv_bfe_u32 v23, v0, 2, 2\nv_add_u32 v22, v22, v23\nv_lshlrev_b32 v22, 6, v22")
    g("v_bfe_u32 v23, v0, 4, 1\nv_lshlrev_b32 v23, 5, v23\nv_add_u32 v22, v22, v23\nv_and_b32 v23, 3, v0\nv_lshlrev_b32 v23, 3, v23\nv_add_u32 v22, v22, v23\nv_add_u32 v22, s86, v22")
    fin_addr(g, 24, 1)
    spoll4(g)
    stamp(g, "H:apolled")
    g("buffer_load_dwordx4 v[12:15], v8, %s, s83 offen sc1" % srd(S_WS))
    g("buffer_load_dwordx4 v[16:19], v8, %s, s84 offen sc1" % srd(S_WS))
    poll(g, 20, 85, 2, width=2)
    g("v_sub_f32 v3, 1.0, v2\nv_cvt_pk_bf16_f32 v3, v3, v3\nv_lshlrev_b32 v3, 16, v3")
    g("ds_write_b128 v21, v[12:15]")
    g("ds_write_b128 v21, v[16:19] offset:1024")
    for q in range(4): g("ds_read_b64_tr_b16 v[%d:%d], v22 offset:%d" % (32 + 2*q, 33 + 2*q, q*512))
    for r in range(8):
        y = 48 + 2*r
        g("v_lshlrev_b32 v%d, 16, v%d\nv_and_b32 v%d, 0xffff0000, v%d" % (y, 32 + r, y+1, 32 + r))
        g("v_mul_f32 v%d, v2, v%d\nv_mul_f32 v%d, v2, v%d" % (y, y, y+1, y+1))
        g("v_cvt_pk_bf16_f32 v%d, v%d, v%d" % (40 + r, y, y+1))
    g("ds_write_b128 v21, v[40:43]")
    g("ds_write_b32 v21, v3 offset:1024")
    g.wait(lg=0)
    stamp(g, "H:aTready")
    g("s_barrier")
    for j in range(2):
        for sw in range(4): g("ds_read_b128 v[%d:%d], v%d offset:%d" % (64 + 8*sw + 4*j, 67 + 8*sw + 4*j, 24 + sw, j*1024))
    fin_math(g, 64, 44, 3, 28)
    stamp(g, "H:end")
    stamp_store(g)
    g("s_endpgm")
    g2 = G(); g2.nlab = 3000; g2.role = 1; g2.nst = 40
    g2("Lhidle:")
    H_part1(g2, True)
    g2("s_branch Lh8")
    return g.text(), g2.text()

RADDR = [8, 14, 20]
def gemm1_raddr(g):
    g("v_and_b32 v5, 31, v0\nv_lshrrev_b32 v6, 5, v0\nv_bfe_u32 v7, v0, 1, 3\nv_xor_b32 v6, v6, v7\nv_lshlrev_b32 v6, 4, v6\nv_lshlrev_b32 v5, 7, v5\nv_add_u32 v5, v5, v6")
    g("s_and_b32 s80, s%d, 1\ns_lshl_b32 s80, s80, 13\nv_add_u32 v8, s80, v5" % S_W)
    for s in range(1, 4): g("v_xor_b32 v%d, %d, v8" % (8 + s, 32*s))
    g("v_lshrrev_b32 v5, 5, v0\nv_lshlrev_b32 v5, 3, v5\nv_bfe_u32 v6, v0, 2, 2\nv_add_u32 v5, v5, v6\nv_lshlrev_b32 v5, 8, v5")
    g("s_lshr_b32 s80, s%d, 1\ns_lshl_b32 s80, s80, 1\nv_xor_b32 v6, s80, v6\nv_lshlrev_b32 v6, 6, v6\nv_add_u32 v5, v5, v6" % S_W)
    g("v_bfe_u32 v6, v0, 4, 1\nv_lshlrev_b32 v6, 5, v6\nv_add_u32 v5, v5, v6\nv_and_b32 v6, 3, v0\nv_lshlrev_b32 v6, 3, v6\nv_add_u32 v5, v5, v6")
    g("v_add_u32 v12, 0x4000, v5\nv_xor_b32 v13, 64, v12")
    for i in range(6):
        g("v_add_u32 v%d, 0x%x, v%d" % (14 + i, BUF[1], 8 + i))
        g("v_add_u32 v%d, 0x%x, v%d" % (20 + i, BUF[2], 8 + i))
def frag(p, kind, i): return 24*p + {"x": 0, "g": 8, "u": 16}[kind] + 4*i
def gemm1_reads(kk):
    st, s = divmod(kk, 4); p = kk & 1; ra = RADDR[st % 3]
    q = []
    def W(kind, fi):
        for h in range(2):
            b = frag(p, kind, fi) + 2*h
            q.append("ds_read_b64_tr_b16 a[%d:%d], v%d offset:%d" % (b, b+1, ra + 4 + fi, s*4096 + h*1024 + (16384 if kind == "u" else 0)))
    def X(ti):
        b = frag(p, "x", ti)
        q.append("ds_read_b128 a[%d:%d], v%d offset:%d" % (b, b+3, ra + s, ti*4096))
    X(0); W("g", 0); W("u", 0); X(1); W("g", 1); W("u", 1)
    return q
def acc1(kind, fi, ti): return 32 + {"g": 0, "u": 64}[kind] + 32*fi + 16*ti
def gemm1_mfmas(kk):
    p = kk & 1; q = []
    for fi, ti in ((0,0),(0,1),(1,0),(1,1)):
        for kind in "gu":
            a = acc1(kind, fi, ti); w = frag(p, kind, fi); x = frag(p, "x", ti)
            c = "0" if kk == 0 else "v[%d:%d]" % (a, a+15)
            q.append("v_mfma_f32_32x32x16_bf16 v[%d:%d], a[%d:%d], a[%d:%d], %s" % (a, a+15, w, w+3, x, x+3, c))
    return q
def gemm1_main(g, side):
    g("s_barrier")
    stamp(g, "C:B0")
    for r in gemm1_reads(0): g(r)
    for kk in range(32):
        st, s = divmod(kk, 4)
        mf = gemm1_mfmas(kk); pre = 0
        if s == 3:
            g(mf[0]); g(mf[1]); pre = 2
            for t in side.get("pre%d" % (st + 1), []): g(t)
            g.wait(lg=0)
            stamp(g, "C:a%d" % (st + 1))
            g("s_barrier")
            stamp(g, "C:B%d" % (st + 1))
        fill = gemm1_reads(kk + 1) if kk + 1 < 32 else []
        fill += side.get(kk, [])
        for i in range(pre, 8):
            g(mf[i])
            for _ in range(2 if i < 7 else 99):
                if fill: emit(g, fill.pop(0))
def gemm1_epilogue(g, load_w):
    k1 = -2*0.7978845608028654*LOG2E; k2 = k1*0.044715
    g("s_mov_b32 s84, 0x%x\ns_mov_b32 s85, 0x%x" % (f2u(k2), f2u(k2)))
    g("v_mov_b32 v2, 0x%x\nv_mov_b32 v3, 0x%x" % (f2u(k1), f2u(k1)))
    g("v_lshlrev_b32 v4, 4, v0")
    g("s_lshl_b32 s80, s%d, 2\ns_and_b32 s81, s%d, 1\ns_lshl_b32 s81, s81, 1\ns_add_u32 s80, s80, s81\ns_mul_i32 s80, s80, 112" % (S_MT, S_W))
    g("s_lshl_b32 s81, s%d, 3\ns_add_u32 s80, s80, s81\ns_lshr_b32 s81, s%d, 1\ns_lshl_b32 s81, s81, 2\ns_add_u32 s80, s80, s81" % (S_FT, S_W))
    g("s_lshl_b32 s80, s80, 10\ns_add_u32 s80, s80, 0x%x\ns_add_u32 s81, s80, %d" % (H_OFF, 112*1024))
    cnt = 0
    for fi in range(2):
        for ti in range(2):
            for half in range(2):
                G0 = acc1("g", fi, ti) + 8*half; U0 = acc1("u", fi, ti) + 8*half
                T = 8; D = 16 + 4*(cnt & 1)
                P = [(G0 + 2*j, U0 + 2*j, T + 2*j) for j in range(4)]
                if OPT["wpos"] == 0:
                    for t in load_w(cnt): g(t)
                if OPT["pk"]:
                    for (x, u, t) in P: g("v_pk_mul_f32 v[%d:%d], v[%d:%d], v[%d:%d]" % (t, t+1, x, x+1, x, x+1))
                    for (x, u, t) in P: g("v_pk_fma_f32 v[%d:%d], v[%d:%d], s[84:85], v[2:3]" % (t, t+1, t, t+1))
                    for (x, u, t) in P: g("v_pk_mul_f32 v[%d:%d], v[%d:%d], v[%d:%d]" % (t, t+1, t, t+1, x, x+1))
                    for j in range(8): g("v_exp_f32 v%d, v%d" % (T + j, T + j))
                    for (x, u, t) in P: g("v_pk_mul_f32 v[%d:%d], v[%d:%d], v[%d:%d]" % (x, x+1, x, x+1, u, u+1))
                    for (x, u, t) in P: g("v_pk_add_f32 v[%d:%d], v[%d:%d], 1.0 op_sel_hi:[1,0]" % (t, t+1, t, t+1))
                    for j in range(8): g("v_rcp_f32 v%d, v%d" % (T + j, T + j))
                    for (x, u, t) in P: g("v_pk_mul_f32 v[%d:%d], v[%d:%d], v[%d:%d]" % (x, x+1, x, x+1, t, t+1))
                else:
                    E = [(G0 + j, U0 + j, T + j) for j in range(8)]
                    for (x, u, t) in E: g("v_mul_f32 v%d, v%d, v%d" % (t, x, x))
                    for (x, u, t) in E: g("v_fma_f32 v%d, v%d, s84, v2" % (t, t))
                    for (x, u, t) in E: g("v_mul_f32 v%d, v%d, v%d" % (t, t, x))
                    for (x, u, t) in E: g("v_exp_f32 v%d, v%d\nv_mul_f32 v%d, v%d, v%d" % (t, t, x, x, u))
                    for (x, u, t) in E: g("v_add_f32 v%d, 1.0, v%d" % (t, t))
                    for (x, u, t) in E: g("v_rcp_f32 v%d, v%d" % (t, t))
                    for (x, u, t) in E: g("v_mul_f32 v%d, v%d, v%d" % (x, x, t))
                for j, (x, u, t) in enumerate(P): g("v_cvt_pk_bf16_f32 v%d, v%d, v%d" % (D + j, x, x+1))
                op = g("buffer_store_dwordx4 v[%d:%d], v4, %s, s%d offen offset:%d sc1" % (D, D+3, srd(S_WS), 80 + ti, (2*fi + half)*1024))
                cnt += 1
    return op

def touch_addr(g):
    g("s_lshl_b32 s80, s%d, 2\ns_add_u32 s80, s80, s%d" % (S_IDX, S_W))
    g("s_lshr_b32 s90, s%d, 1\ns_lshl_b32 s90, s90, 19\ns_lshl_b32 s81, s80, 12\ns_add_u32 s90, s90, s81" % S_XCD)
    g("v_lshlrev_b32 v30, 7, v0")
    g("v_mul_u32_u24 v5, 37, v0\nv_lshrrev_b32 v5, 8, v5\nv_mul_u32_u24 v6, 7, v5\nv_sub_u32 v6, v0, v6\nv_lshlrev_b32 v6, 7, v6")
    g("s_mov_b32 s81, %d\nv_mul_lo_u32 v5, v5, s81\nv_add_u32 v26, v5, v6" % (64*3584))
    g("s_lshr_b32 s91, s80, 1\ns_mul_i32 s91, s91, 3584\ns_and_b32 s81, s80, 1\ns_mul_i32 s81, s81, 896\ns_add_u32 s91, s91, s81\ns_and_b32 s81, s%d, 1\ns_mul_i32 s81, s81, 1792\ns_add_u32 s91, s91, s81" % S_XCD)
    g("s_mul_i32 s93, s80, %d\ns_lshl_b32 s92, s2, 2\ns_add_u32 s92, s92, s%d\ns_mul_i32 s92, s92, %d" % (112*128, S_W, 14*128))
def lanes(lo, hi):
    m = ((1 << hi) - 1) & ~((1 << lo) - 1)
    return "s_mov_b32 exec_lo, 0x%x\ns_mov_b32 exec_hi, 0x%x" % (m & 0xffffffff, m >> 32)
def touch_w(s0, s1, r):
    return "%s\nbuffer_load_dword a%d, v26, %s, s91 offen\nbuffer_load_dword a%d, v26, %s, s91 offen\ns_mov_b64 exec, -1" % (lanes(7*s0, 7*s1), r, srd(S_WG), r+1, srd(S_WU))
def touch_glob():
    return "%s\nbuffer_load_dword a74, v30, %s, s92 offen\nbuffer_load_dword a75, v30, %s, s92 offen\ns_lshl_b32 s80, s2, 2\ns_add_u32 s80, s80, s%d\ns_lshl_b32 s80, s80, 11\n%s\nbuffer_load_dword a70, v30, %s, s80 offen\ns_mov_b64 exec, -1" % (lanes(0, 14), srd(S_WG), srd(S_WU), S_W, lanes(0, 16), srd(S_X))
def touch_x(): return "%s\nbuffer_load_dword a70, v30, %s, s90 offen\ns_mov_b64 exec, -1" % (lanes(0, 32), srd(S_X))
def touch_wd_global(): return "%s\nbuffer_load_dword a71, v30, %s, s92 offen\ns_mov_b64 exec, -1" % (lanes(0, 14), srd(S_WD))
def touch_wd_xcd(): return "%s\nbuffer_load_dword a72, v30, %s, s93 offen\ns_add_u32 s93, s93, %d\nbuffer_load_dword a73, v30, %s, s93 offen\ns_mov_b64 exec, -1" % (lanes(0, 56), srd(S_WD), 56*128, srd(S_WD))

def build_C():
    g = G(); g.nlab = 2000; g.role = 0; g.nst = 1; St.names[0] = "C:start"
    g("Lcompute:")
    g("s_waitcnt lgkmcnt(0)")
    g("global_load_ushort v39, v63, s[30:31]")
    for i in range(6): g("global_load_ushort v%d, v32, s[%d:%d]" % (33 + i, 18 + 2*i, 19 + 2*i))
    epoch_load(g)
    srds2(g)
    kgen_addr(g); kgen_compact_addr(g); gemm1_raddr(g)
    tag_compute(g)
    kgen_W(g)
    g.wait(lg=0)
    stamp(g, "C:W done")
    g("s_barrier")
    stamp(g, 'C:Bk')
    kgen_mfma(g); kgen_compact(g)
    g.wait(lg=0)
    stamp(g, "C:K done")
    g("v_lshlrev_b32 v26, 4, v0\ns_lshr_b32 s80, s%d, 1\ns_lshl_b32 s80, s80, 10\nv_add_u32 v26, s80, v26\nv_xor_b32 v27, 0x400, v26" % S_W)
    g("s_lshl_b32 s94, s%d, 2\ns_add_u32 s94, s94, s%d\ns_lshl_b32 s94, s94, 14\ns_add_u32 s94, s94, 0x%x" % (S_NB, S_W, WDT_OFF))
    def wpre(kk, di): return (48 + 8*kk + 4*di) if kk < 6 else (8*(kk - 6) + 4*di)
    def load_w(kk):
        q = []
        pre = "s_add_u32 s93, s94, %d\n" % (kk*2048)
        for di in range(2):
            q.append(pre + "buffer_load_dwordx4 a[%d:%d], v%d, %s, s93 offen sc1" % (wpre(kk, di), wpre(kk, di) + 3, 26 + di, srd(S_WS))); pre = ""
        return q
    g("s_cmp_ge_u32 s%d, 28\ns_cbranch_scc1 Lnog1" % S_IDX)
    side = {}
    gemm1_main(g, side)
    stamp(g, "C:main1end")
    g("s_setprio %d" % OPT["cprio_epi"])
    hop = gemm1_epilogue(g, load_w)
    stamp(g, "C:epiend")
    if OPT["seq"]: g("s_barrier")
    if OPT["spoll"]:
        g("s_lshl_b32 s80, s%d, 1\ns_and_b32 s81, s%d, 1\ns_add_u32 s80, s80, s81\ns_lshl_b32 s80, s80, 9" % (S_MT, S_W))
        g("s_lshl_b32 s81, s%d, 1\ns_lshr_b32 s82, s%d, 1\ns_add_u32 s81, s81, s82\ns_mul_i32 s82, s81, 37\ns_lshr_b32 s82, s82, 8\ns_mul_i32 s82, s82, 100\ns_lshl_b32 s81, s81, 2\ns_add_u32 s80, s80, s81\ns_add_u32 s80, s80, s82\ns_add_u32 s87, s80, 0x%x" % (S_FT, S_W, FH_OFF))
    else:
        g("s_lshl_b32 s80, s%d, 1\ns_and_b32 s81, s%d, 1\ns_add_u32 s80, s80, s81\ns_lshl_b32 s80, s80, 5\ns_lshl_b32 s81, s%d, 1\ns_add_u32 s80, s80, s81\ns_lshr_b32 s81, s%d, 1\ns_add_u32 s80, s80, s81\ns_lshl_b32 s80, s80, 7\ns_add_u32 s87, s80, 0x%x" % (S_MT, S_W, S_FT, S_W, FH_OFF))
    g("s_branch Lg2")
    g("Lnog1:")
    g("v_lshrrev_b32 v5, 3, v0\nv_lshlrev_b32 v5, 10, v5\nv_bfe_u32 v6, v0, 4, 1\nv_lshlrev_b32 v6, 2, v6\nv_and_b32 v7, 7, v0\nv_xor_b32 v6, v6, v7\nv_lshlrev_b32 v6, 4, v6\nv_add_u32 v8, v5, v6")
    g("s_sub_u32 s82, s%d, 28" % S_IDX)
    g("s_lshr_b32 s83, s%d, 1\ns_add_u32 s83, s83, s%d\ns_cmp_ge_u32 s83, 7\ns_cselect_b32 s80, 7, 0\ns_sub_u32 s83, s83, s80" % (S_W, S_XCD))
    g("s_lshl_b32 s83, s83, 16\ns_and_b32 s80, s%d, 1\ns_lshl_b32 s80, s80, 15\ns_add_u32 s83, s83, s80\ns_mul_i32 s85, s82, %d\ns_add_u32 s83, s83, s85\ns_lshl_b32 s80, s%d, 7\ns_add_u32 s83, s83, s80\ns_lshl_b32 s84, s%d, 12" % (S_W, 448*1024, S_XCD, S_W))
    for i in range(4):
        g("s_add_u32 m0, s84, %d\ns_add_u32 s93, s83, %d\nbuffer_load_dwordx4 v8, %s, s93 offen lds" % (i*1024, i*8192, srd(S_WD)))
    g.raw("s_barrier"); g.raw("s_barrier")
    g("v_lshrrev_b32 v7, 5, v0\nv_lshlrev_b32 v7, 2, v7\nv_bfe_u32 v9, v0, 2, 2\nv_add_u32 v7, v7, v9\nv_lshlrev_b32 v7, 7, v7")
    g("v_bfe_u32 v9, v0, 3, 1\nv_lshlrev_b32 v9, 6, v9\nv_add_u32 v7, v7, v9\nv_bfe_u32 v9, v0, 4, 1\nv_lshlrev_b32 v9, 5, v9\nv_add_u32 v7, v7, v9")
    g("v_and_b32 v9, 3, v0\nv_lshlrev_b32 v9, 3, v9\nv_add_u32 v7, v7, v9\nv_add_u32 v5, s84, v7\nv_xor_b32 v6, 64, v5\nv_lshlrev_b32 v9, 4, v0")
    g("s_lshl_b32 s86, s%d, 2\ns_add_u32 s86, s86, s82\ns_lshl_b32 s86, s86, 2\ns_add_u32 s86, s86, s%d" % (S_XCD, S_W))
    g("s_lshl_b32 s83, s86, 12\ns_add_u32 s83, s83, 0x%x" % WDT_OFF)
    g.wait(vm=0)
    for k in range(2):
        for di in range(2):
            for h in range(2):
                b = 32 + 8*k + 4*di + 2*h
                g("ds_read_b64_tr_b16 v[%d:%d], v%d offset:%d" % (b, b+1, 5 + di, k*2048 + h*1024))
    for k in range(4):
        g("buffer_store_dwordx4 v[%d:%d], v9, %s, s83 offen offset:%d sc1" % (32 + 4*k, 35 + 4*k, srd(S_WS), k*1024))
    g("s_lshl_b32 s80, s86, 5\ns_add_u32 s80, s80, 0x%x" % FW_OFF)
    g.raw("s_barrier")
    g.wait(vm=0)
    flag_store(g, 80, 10)
    g.raw("s_barrier")
    g("s_sub_u32 s80, s2, 224\ns_lshl_b32 s80, s80, 2\ns_add_u32 s80, s80, s%d\ns_mul_i32 s93, s80, %d\nv_lshlrev_b32 v30, 7, v0" % (S_W, 112*128))
    g(touch_wd_xcd())
    for _ in range(5): g.raw("s_barrier")
    if OPT["wpos"] == 0:
        for kk in range(8):
            for t in load_w(kk): g(t)
    if OPT["seq"]: g.raw("s_barrier")
    g("s_mov_b32 s87, 0x%x" % (EP_OFF + 256))
    g("Lg2:")
    chunk_ids(g)
    g("v_lshrrev_b32 v7, 5, v0\nv_lshlrev_b32 v7, 2, v7\nv_bfe_u32 v8, v0, 2, 2\nv_add_u32 v7, v7, v8\nv_lshlrev_b32 v7, 7, v7")
    g("v_bfe_u32 v8, v0, 3, 1\ns_lshr_b32 s80, s%d, 1\nv_xor_b32 v8, s80, v8\nv_lshlrev_b32 v8, 6, v8\nv_add_u32 v7, v7, v8\nv_bfe_u32 v8, v0, 4, 1\nv_lshlrev_b32 v8, 5, v8\nv_add_u32 v7, v7, v8" % S_W)
    g("v_and_b32 v8, 3, v0\nv_lshlrev_b32 v8, 3, v8\nv_add_u32 v7, v7, v8\nv_add_u32 v5, s95, v7\nv_xor_b32 v6, 64, v5")
    g("v_add_u32 v28, 0x%x, v5\nv_add_u32 v29, 0x%x, v6" % (WDB1 - WDA, WDB1 - WDA))
    g("v_lshlrev_b32 v3, 4, v0\ns_and_b32 s80, s%d, 1\ns_mul_i32 s81, s80, %d\ns_xor_b32 s80, s80, 1\ns_mul_i32 s80, s80, %d\nv_add_u32 v4, s80, v3\nv_add_u32 v3, s81, v3" % (S_W, 112*1024, 112*1024))
    g("s_mul_i32 s91, s%d, %d\ns_mul_i32 s80, s%d, %d\ns_add_u32 s91, s91, s80\ns_add_u32 s91, s91, 0x%x" % (S_TB2, 2*112*1024, S_W, 28*1024, H_OFF))
    g.raw("s_waitcnt vmcnt(0)"); g.vm_done = g.vm_seq
    flag_store(g, 87, 8)
    g("s_setprio %d" % OPT["cprio2"])
    stamp(g, "C:flag0")
    if OPT["wpos"] == 1:
        for kk in range(8):
            for t in load_w(kk): g(t)
    epoch_bump(g)
    stamp(g, "C:flag")
    if OPT["spoll"]:
        g("s_lshl_b32 s80, s%d, 9\ns_lshl_b32 s81, s%d, 7\ns_add_u32 s80, s80, s81\ns_add_u32 s80, s80, 0x%x\ns_add_u32 s50, s48, s80\ns_addc_u32 s51, s49, 0" % (S_TB2, S_W, FH_OFF))
        spoll(g, 7)
    else:
        g("v_min_u32 v8, 6, v0\nv_lshlrev_b32 v8, 7, v8")
        g("s_lshl_b32 s80, s%d, 12\ns_mul_i32 s81, s%d, 896\ns_add_u32 s80, s80, s81\ns_add_u32 s80, s80, 0x%x" % (S_TB2, S_W, FH_OFF))
        poll(g, 8, 80, 9)
    stamp(g, "C:polled")
    RING = 12
    def hreg(kk, ti):
        i = kk % RING
        return ("v[%d:%d]" % (32 + 8*i + 4*ti, 32 + 8*i + 4*ti + 3)) if i < 8 else ("a[%d:%d]" % (16 + 8*(i-8) + 4*ti, 16 + 8*(i-8) + 4*ti + 3))
    def load_h(kk):
        q = []
        pre = "s_lshl_b32 s90, s%d, 12\ns_add_u32 s90, s90, s91\n" % (18 + kk//4) if kk % 4 == 0 else ""
        for ti in range(2):
            q.append(pre + "buffer_load_dwordx4 %s, v%d, %s, s90 offen offset:%d sc1" % (hreg(kk, ti), 3 + ti, srd(S_WS), (kk % 4)*1024)); pre = ""
        return q
    PRE = OPT["pre"]
    for kk in range(PRE):
        for t in load_h(kk): g(t)
    g("s_add_u32 s80, s95, %d\nv_lshlrev_b32 v2, 4, v0\nv_add_u32 v2, s80, v2" % (WDB1 - WDA))
    g("v_mov_b32 v8, v5\nv_mov_b32 v9, v6"); wd_setup(g, 30); g("v_mov_b32 v5, v8\nv_mov_b32 v6, v9")
    g("s_lshl_b32 s80, s%d, 2\ns_add_u32 s80, s80, %d\nv_mov_b32 v7, s80" % (S_W, SYW + 16))
    def wreg(kk, di):
        return ("a[%d:%d]" % (wpre(kk, di), wpre(kk, di) + 3)) if kk < 8 else ("v[%d:%d]" % (10 + 8*(kk & 1) + 4*di, 13 + 8*(kk & 1) + 4*di))
    def reads(kk):
        c, s = divmod(kk, 4); q = []
        for di in range(2):
            va, off = {2: ((5, 6), 0), 3: ((5, 6), 8192), 4: ((28, 29), 0), 5: ((28, 29), 8192), 6: ((5, 6), 0)}[c]
            for h in range(2):
                b = 10 + 8*(kk & 1) + 4*di + 2*h
                q.append("ds_read_b64_tr_b16 v[%d:%d], v%d offset:%d" % (b, b+1, va[di], off + s*2048 + h*1024))
        return q
    nh = PRE
    for kk in range(28):
        if kk in (1, 4, 8, 12, 16, 20, 24): stamp(g, "C:k%d" % kk)
        nx = reads(kk + 1) if 8 <= kk + 1 < 28 else []
        lq = []
        for _ in range(2):
            if nh < 28 and nh < kk + RING: lq += load_h(nh); nh += 1
        if 12 <= kk < 16: lq += [(t,) for t in wd_dma(6, 30)[2*(kk-12):2*(kk-12)+2]]
        n = 0
        for di, ti in (((0,0),(0,1),(1,0),(1,1)) if kk < 27 else ((0,1),(1,0),(1,1),(0,0))):
            if True:
                a = 96 + 32*di + 16*ti
                c = "0" if kk == 0 else "v[%d:%d]" % (a, a+15)
                g("v_mfma_f32_32x32x16_bf16 v[%d:%d], %s, %s, %s" % (a, a+15, wreg(kk, di), hreg(kk, ti), c))
                if n == 0:
                    KR = 16 if OPT["seq"] else 8
                    if kk + 2 == KR: g("ds_read_b32 v8, v7")
                    if kk + 1 == KR:
                        L, D = g.lab("Lr"), g.lab("Lrd")
                        g("v_readfirstlane_b32 s80, v8")
                        g("s_mov_b32 s%d, 0x100000\ns_cmp_lg_u32 s80, 0\ns_cbranch_scc1 %s" % (S_SPIN, D))
                        g(L + ":")
                        for l in ("ds_read_b32 v8, v7", "s_waitcnt lgkmcnt(0)", "v_readfirstlane_b32 s80, v8", "s_sub_u32 s%d, s%d, 1" % (S_SPIN, S_SPIN), "s_cbranch_scc1 %s" % D,
                                  "s_cmp_eq_u32 s80, 0", "s_cbranch_scc1 %s" % L): g.raw(l)
                        g(D + ":")
                    if kk + 1 == 24: g.wait_op(w6)
                    for r in nx: g(r)
                else:
                    for _ in range(2 if n < 3 else 9):
                        if lq:
                            t = lq.pop(0)
                            if isinstance(t, tuple): w6 = g(t[0])
                            else: g(t)
                n += 1
    assert nh == 28
    stamp(g, "C:main2end")
    g("v_lshlrev_b32 v10, 4, v0")
    fin_addr(g, 24, 0)
    g("s_lshl_b32 s80, s%d, 12\ns_add_u32 s80, s80, %d\nv_add_u32 v9, s80, v10" % (S_W, STG))
    for q in (1, 2, 3):
        for j in range(4):
            g("ds_write_b128 v2, v[%d:%d] offset:%d" % (96 + 16*q + 4*j, 96 + 16*q + 4*j + 3, (q-1)*4096 + j*1024))
    for j in range(2): g("ds_write_b128 v2, v[%d:%d] offset:%d" % (104 + 4*j, 107 + 4*j, 12288 + j*1024))
    g.wait(lg=0)
    stamp(g, "C:a13")
    g("s_barrier")
    stamp(g, "C:B13")
    for j in range(2):
        for sw in (1, 2, 3): g("ds_read_b128 v[%d:%d], v%d offset:%d" % (96 + 8*sw + 4*j, 99 + 8*sw + 4*j, 24 + sw, j*1024))
    g("ds_read_b128 v[44:47], v9")
    g("ds_read_b32 v3, v9 offset:1024")
    fin_math(g, 96, 44, 3, 28)
    stamp(g, "C:stores")
    if STAMPS:
        g.wait(vm=0); stamp(g, "C:drained")
    stamp_store(g)
    g("Lend:")
    g("s_endpgm")
    return g.text()

if __name__ == "__main__":
    if len(sys.argv) > 2 and sys.argv[2] != "-": STAMPS = sys.argv[2]
    for a in sys.argv[3:]:
        k, v = a.split("="); OPT[k] = int(v)
    h1, h2 = build_H(); body = h1 + build_C() + h2
    open(sys.argv[1], "w").write(build_file([(KN, 256, 512, 163840, body, 256, 100, 160)], single=True))
    if STAMPS:
        import json; json.dump(St.names, open("stnames.json", "w"))
```

```python
import sys, struct, math
from gen import *

def f2u(x): return struct.unpack("<I", struct.pack("<f", x))[0]
UT_OFF = 0x1400000; UT_ROW = 4224; UT_STRIDE = 8448
H_OFF = 0x400000
AT_OFF = 0xC00000
G_OFF = 0xE00000
FT_OFF = 0xE20000
FH_OFF = 0xE40000
FA_OFF = 0xE60000
EP_OFF = 0xE10000
FW_OFF = 0xE80000
WDT_OFF = 0x1A00000
DBG_OFF = 0x1000000
WS_BYTES = 268435456
BUF = [0, 49152, 98304]
TBLK = 147456
KT = 98304; KT_CH = 28672; KT_IM = 14336
KC = 160768; KC_CH = 1536
KF = 154624; KF_CH = 4608; KF_PL = 2304
UEE = [98304, 131840]; UEO = [115072, 128]
XCH = [16640, 20736, 24832, 148480]
WDA = 32768; WDB1 = 98304
RED_AT = 49152; RED_G = 57344
S_X, S_WG, S_WU, S_WD, S_WS, S_OUT = 52, 56, 60, 64, 68, 72
S_X1 = 36
S_XCD, S_IDX, S_W, S_CH = 76, 77, 78, 79
S_MT, S_FT = 88, 89
S_TAG, S_TB2, S_NB, S_SPIN = 96, 97, 98, 99
LOG2E = 1.4426950408889634
STAMPS = False
OPT = dict(hprio=0, cprio_epi=3, rot=1, pk=1, seq=1, pre=6, pfirst=0, psleep=1, b11first=0, l2t=0, wsleep=0, a5=0, wpos=1, spoll=1)
def srd(r): return "s[%d:%d]" % (r, r+3)
class St:
    names = {}
def stamp(g, name):
    if not STAMPS: return
    g.raw("%s s[6:7]" % STAMPS); g.smem_pending = True; g.wait(lg=0)
    g.raw("v_writelane_b32 v31, s6, %d" % g.nst)
    St.names[g.role*48 + g.nst] = name
    g.nst += 1
    assert g.nst <= 48
def stamp_store(g):
    if not STAMPS: return
    L = g.lab("Lst")
    g("s_cmp_lg_u32 s%d, 0\ns_cbranch_scc1 %s" % (S_W, L))
    g.raw("v_writelane_b32 v31, s4, 0")
    g.raw("s_getreg_b32 s6, hwreg(HW_REG_XCC_ID)"); g.raw("v_writelane_b32 v31, s6, 47")
    g.raw("s_mul_i32 s3, s2, 384"); g.raw("s_add_u32 s3, s3, 0x%x" % (DBG_OFF + g.role*192)); g.raw("v_lshlrev_b32 v1, 2, v0")
    g.raw("s_mov_b32 exec_hi, 0xffff")
    g.raw("buffer_store_dword v31, v1, %s, s3 offen" % srd(S_WS))
    g.raw("s_mov_b64 exec, -1")
    g(L + ":")

def tag_compute(g):
    g("s_mul_i32 s%d, s%d, 0x9E3779B1\ns_add_u32 s%d, s%d, 0x7F4A7C15" % (S_TAG, S_TAG, S_TAG, S_TAG))
def poll(g, vaddr, soff, vtmp, width=1):
    L, D = g.lab("Lp"), g.lab("Lpd")
    g("s_mov_b32 s%d, 0x40000" % S_SPIN)
    g(L + ":")
    if width == 1: g.raw("buffer_load_dword v%d, v%d, %s, s%d offen sc1" % (vtmp, vaddr, srd(S_WS), soff))
    else: g.raw("buffer_load_dwordx2 v[%d:%d], v%d, %s, s%d offen sc1" % (vtmp, vtmp+1, vaddr, srd(S_WS), soff))
    g.raw("s_waitcnt vmcnt(0)"); g.vm_done = g.vm_seq
    g.raw("v_cmp_ne_u32 vcc, s%d, v%d" % (S_TAG, vtmp + width - 1))
    g.raw("s_nop 4")
    g.raw("s_cmp_eq_u64 vcc, 0")
    g.raw("s_cbranch_scc1 %s" % D)
    g.raw("s_sleep %d" % OPT["psleep"])
    g.raw("s_sub_u32 s%d, s%d, 1" % (S_SPIN, S_SPIN))
    g.raw("s_cmp_lg_u32 s%d, 0" % S_SPIN)
    g.raw("s_cbranch_scc1 %s" % L)
    g(D + ":")
def spoll(g, n):
    L, D = g.lab("Ls"), g.lab("Lsd")
    g("s_mov_b32 s%d, 0x40000" % S_SPIN)
    g(L + ":")
    g.raw("s_load_dwordx8 s[8:15], s[50:51], 0 glc")
    g.raw("s_waitcnt lgkmcnt(0)"); g.lg_done = g.lg_seq
    for i in range(n): g.raw("s_xor_b32 s%d, s%d, s%d" % (8 + i, 8 + i, S_TAG))
    for i in range(1, n): g.raw("s_or_b32 s8, s8, s%d" % (8 + i))
    g.raw("s_cbranch_scc0 %s" % D)
    g.raw("s_sleep %d" % OPT["psleep"])
    g.raw("s_sub_u32 s%d, s%d, 1" % (S_SPIN, S_SPIN))
    g.raw("s_cbranch_scc0 %s" % L)
    g(D + ":")
def flag_store(g, soff, vt):
    g("v_mov_b32 v%d, s%d\nv_mov_b32 v%d, 0" % (vt, S_TAG, vt+1))
    g("s_mov_b64 exec, 1")
    g("buffer_store_dword v%d, v%d, %s, s%d offen sc1" % (vt, vt+1, srd(S_WS), soff))
    g("s_mov_b64 exec, -1")
class Rec:
    def __init__(self): self.q = []
    def __call__(self, t): self.q += [l for l in t.split("\n") if l.strip()]
def rec(f, *a):
    r = Rec(); f(r, *a); return r.q
def emit(g, f):
    return f(g) if callable(f) else g(f)
def weave(g, dmas, work):
    op = None; n = len(dmas); work = list(work)
    per = -(-len(work) // n) if n else 0
    for d in dmas:
        op = emit(g, d)
        for _ in range(per):
            if work: emit(g, work.pop(0))
    for w in work: emit(g, w)
    return op

def prologue(g):
    g("s_cmp_ge_u32 s2, 256")
    g("s_cbranch_scc1 Lend")
    if STAMPS: g.raw("%s s[4:5]" % STAMPS)
    g("s_load_dwordx16 s[16:31], s[0:1], 0")
    g("s_load_dwordx16 s[32:47], s[0:1], 64")
    g("s_load_dwordx2 s[48:49], s[0:1], 128")
    g("v_lshrrev_b32 v1, 6, v0")
    g("v_and_b32 v0, 63, v0")
    g("s_and_b32 s%d, s2, 7" % S_XCD)
    g("s_lshr_b32 s%d, s2, 3" % S_IDX)
    g("v_readfirstlane_b32 s3, v1")
    g("s_mul_i32 s80, s%d, 37\ns_lshr_b32 s80, s80, 8" % S_IDX)
    g("s_mul_i32 s81, s80, 7\ns_sub_u32 s81, s%d, s81" % S_IDX)
    g("s_lshr_b32 s%d, s%d, 1\ns_lshl_b32 s%d, s%d, 2\ns_add_u32 s%d, s%d, s80" % (S_MT, S_XCD, S_MT, S_MT, S_MT, S_MT))
    g("s_and_b32 s%d, s%d, 1\ns_mul_i32 s%d, s%d, 7\ns_add_u32 s%d, s%d, s81" % (S_FT, S_XCD, S_FT, S_FT, S_FT, S_FT))
    g("s_lshl_b32 s%d, s%d, 2\ns_lshr_b32 s80, s%d, 3\ns_add_u32 s%d, s%d, s80\ns_and_b32 s%d, s%d, 7" % (S_TB2, S_XCD, S_IDX, S_TB2, S_TB2, S_NB, S_IDX))
    g("s_and_b32 s%d, s3, 3" % S_W)
    g("s_lshl_b32 s80, s%d, 6\ns_lshl_b32 s81, s%d, 1\ns_add_u32 s80, s80, s81\ns_lshr_b32 s81, s%d, 1\ns_add_u32 s%d, s80, s81" % (S_XCD, S_IDX, S_W, S_CH))
    g("s_lshl_b32 s80, s%d, 8\ns_and_b32 s81, s%d, 1\ns_lshl_b32 s81, s81, 7\ns_add_u32 s80, s80, s81" % (S_CH, S_W))
    g("v_lshlrev_b32 v32, 1, v0\nv_add_u32 v32, s80, v32")
    g("s_lshl_b32 s80, s%d, 1\nv_mov_b32 v63, s80" % S_CH)
    g("s_lshr_b32 s80, s%d, 1\ns_mul_i32 s80, s80, %d\ns_and_b32 s81, s%d, 1\ns_mul_i32 s81, s81, %d\ns_add_u32 s80, s80, s81\ns_add_u32 s80, s80, %d" % (S_W, KT_CH, S_W, 64*112, KT))
    g("v_mul_u32_u24 v62, 112, v0\nv_add_u32 v62, s80, v62")
    g("s_cmp_lt_u32 s3, 4")
    g("s_cbranch_scc1 Lcompute")
def epoch_load(g):
    g("s_add_u32 s50, s48, 0x%x\ns_addc_u32 s51, s49, 0" % EP_OFF)
    g("s_load_dword s%d, s[50:51], 0" % S_TAG)
def srds2(g):
    g.srd(S_X, 16, 2048*512*2)
    g.srd(S_WD, 40, 512*1792*2)
    g.srd(S_WS, 48, WS_BYTES)
    g.srd(S_OUT, 44, 2048*512*2)
def h_dma_addr(g):
    g("v_lshrrev_b32 v4, 3, v0\nv_lshlrev_b32 v4, 10, v4\nv_and_b32 v5, 7, v0\nv_lshrrev_b32 v6, 4, v0\nv_xor_b32 v7, v5, v6")
    g("v_lshlrev_b32 v7, 4, v7\nv_add_u32 v2, v4, v7\nv_xor_b32 v3, 64, v2")
    g("v_lshlrev_b32 v5, 4, v5\nv_add_u32 v29, v4, v5")
    g("s_lshl_b32 s90, s%d, 17\ns_lshl_b32 s80, s%d, 15\ns_add_u32 s90, s90, s80" % (S_MT, S_W))
    g("v_and_b32 v5, 15, v0\nv_lshlrev_b32 v7, 2, v6\nv_xor_b32 v5, v5, v7\nv_lshlrev_b32 v5, 4, v5")
    g("v_mul_u32_u24 v6, 3584, v6\nv_add_u32 v4, v6, v5")
    g("s_lshl_b32 s91, s%d, 8\ns_mul_i32 s80, s%d, %d\ns_add_u32 s91, s91, s80" % (S_FT, S_W, 16*3584))
    g("s_lshl_b32 s92, s%d, 12" % S_W)

def kbase(A):
    A("v_lshlrev_b32 v39, 16, v39\nv_mul_f32 v39, 0x%x, v39\nv_exp_f32 v39, v39\nv_lshlrev_b32 v33, 16, v33\nv_lshlrev_b32 v34, 16, v34" % f2u(LOG2E))
    A("v_cvt_pk_bf16_f32 v39, v39, v39\nv_lshlrev_b32 v39, 16, v39")
    A("v_mul_f32 v33, v39, v33\nv_mul_f32 v34, v39, v34")
    A("v_mul_f32 v33, 0x%x, v33\nv_mul_f32 v34, 0x%x, v34" % (f2u(LOG2E), f2u(1/(2*math.pi))))
def kpower(A, e, d, t):
    if e == 1: A("v_exp_f32 v%d, v33\nv_fract_f32 v%d, v34" % (t, t+1))
    else:
        A("v_mul_f32 v%d, 0x%x, v33\nv_mul_f32 v%d, 0x%x, v34" % (t, f2u(e), t+1, f2u(e)))
        A("v_exp_f32 v%d, v%d\nv_fract_f32 v%d, v%d" % (t, t, t+1, t+1))
    A("v_cos_f32 v%d, v%d\nv_sin_f32 v%d, v%d" % (d, t+1, d+1, t+1))
    A("v_mul_f32 v%d, v%d, v%d\nv_mul_f32 v%d, v%d, v%d" % (d, t, d, d+1, t, d+1))
def cm1(d, x, y): return "v_pk_mul_f32 v[%d:%d], v[%d:%d], v[%d:%d] op_sel:[0,0] op_sel_hi:[0,1]" % (d, d+1, x, x+1, y, y+1)
def cm2(d, x, y): return "v_pk_fma_f32 v[%d:%d], v[%d:%d], v[%d:%d], v[%d:%d] op_sel:[1,1,0] op_sel_hi:[1,0,1] neg_lo:[1,0,0]" % (d, d+1, x, x+1, y, y+1, d, d+1)
def cmul2(A, a, b):
    A(cm1(*a)); A(cm1(*b)); A(cm2(*a)); A(cm2(*b))
def kgen_W(A):
    kbase(A)
    for r in range(35, 39): A("v_lshlrev_b32 v%d, 16, v%d" % (r, r))
    A("v_mul_f32 v35, v39, v35\nv_mul_f32 v36, v39, v36")
    R = lambda i: 88 + 2*i
    A("v_mul_f32 v88, v37, v35\nv_mul_f32 v89, v37, v36\nv_fma_f32 v88, -v38, v36, v88\nv_fma_f32 v89, v38, v35, v89")
    Z1, Z2, ZB = 40, 42, 44
    kpower(A, 1, Z1, 46); kpower(A, 2, Z2, 48); kpower(A, 256, ZB, 50)
    def pack(i):
        x, y = R(2*i), R(min(2*i+1, 20))
        A("v_cvt_pk_bf16_f32 v%d, v%d, v%d" % (64 + i, x, y)); A("v_cvt_pk_bf16_f32 v%d, -v%d, -v%d" % (76 + i, x+1, y+1))
    cmul2(A, (R(1), R(0), Z1), (R(2), R(0), Z2))
    cmul2(A, (R(8), R(0), ZB), (R(3), R(1), Z2)); pack(0)
    cmul2(A, (R(4), R(2), Z2), (R(12), R(8), ZB)); pack(1)
    cmul2(A, (R(5), R(3), Z2), (R(9), R(2), ZB))
    cmul2(A, (R(6), R(4), Z2), (R(14), R(12), ZB)); pack(2); pack(4)
    cmul2(A, (R(7), R(5), Z2), (R(10), R(4), ZB))
    cmul2(A, (R(16), R(14), ZB), (R(11), R(6), ZB)); pack(3)
    cmul2(A, (R(13), R(10), ZB), (R(17), R(16), ZB)); pack(5)
    cmul2(A, (R(15), R(13), ZB), (R(18), R(17), ZB)); pack(6); pack(8)
    A(cm1(R(19), R(18), ZB)); pack(7); A(cm2(R(19), R(18), ZB))
    A("ds_write_b128 v62, v[64:67]\nds_write_b128 v62, v[76:79] offset:%d" % KT_IM)
    A(cm1(R(20), R(19), ZB)); pack(9); A(cm2(R(20), R(19), ZB))
    A("ds_write_b128 v62, v[68:71] offset:16\nds_write_b128 v62, v[80:83] offset:%d" % (KT_IM + 16))
    pack(10)
    A("ds_write_b128 v62, v[72:75] offset:32\nds_write_b128 v62, v[84:87] offset:%d" % (KT_IM + 32))
def kgen_E(A):
    kbase(A)
    Z8, Z16 = 40, 42
    kpower(A, 8, Z8, 46); kpower(A, 16, Z16, 48)
    A("v_cvt_pk_bf16_f32 v64, 1.0, v%d\nv_cvt_pk_bf16_f32 v80, 0, v%d" % (Z8, Z8 + 1))
    ev, od = Z16, Z8
    A(cm1(50, od, Z16)); A(cm2(50, od, Z16)); od = 50
    for i in range(1, 16):
        ne, no = (52, 54) if i % 2 else (56, 58)
        if i < 15: A(cm1(ne, ev, Z16)); A(cm1(no, od, Z16))
        A("v_cvt_pk_bf16_f32 v%d, v%d, v%d" % (64 + i, ev, od)); A("v_cvt_pk_bf16_f32 v%d, v%d, v%d" % (80 + i, ev + 1, od + 1))
        if i < 15: A(cm2(ne, ev, Z16)); A(cm2(no, od, Z16))
        ev, od = ne, no
        if i % 4 == 3:
            j = i // 4
            A("ds_write_b128 v62, v[%d:%d] offset:%d" % (64 + 4*j, 67 + 4*j, 48 + 16*j))
            A("ds_write_b128 v62, v[%d:%d] offset:%d" % (80 + 4*j, 83 + 4*j, KT_IM + 48 + 16*j))
def kgen_addr(g):
    g("s_lshr_b32 s80, s%d, 1\ns_mul_i32 s80, s80, %d\ns_add_u32 s80, s80, %d" % (S_W, KT_CH, KT))
    g("v_lshrrev_b32 v140, 2, v0\nv_mul_u32_u24 v140, 112, v140\nv_and_b32 v141, 3, v0\nv_lshlrev_b32 v141, 3, v141\nv_add_u32 v140, v140, v141\nv_add_u32 v140, s80, v140")
    g("s_and_b32 s81, s%d, 1\ns_lshl_b32 s81, s81, 5\ns_add_u32 s81, s81, 48\nv_add_u32 v141, s81, v140" % S_W)
def kgen_mfma(g):
    def kmf(ks):
        b = 12 * ks
        c0 = "0" if ks == 0 else "v[32:35]"; c1 = "0" if ks == 0 else "v[36:39]"
        g("v_mfma_f32_16x16x32_bf16 v[32:35], a[%d:%d], a[%d:%d], %s" % (b, b+3, b+8, b+11, c0))
        g("v_mfma_f32_16x16x32_bf16 v[36:39], a[%d:%d], a[%d:%d], %s" % (b+4, b+7, b+8, b+11, c1))
    for ks in range(8):
        off = (ks >> 2) * KT_IM + (ks & 3) * 32 * 112
        b = 12 * ks
        for h in range(2):
            g("ds_read_b64_tr_b16 a[%d:%d], v140 offset:%d" % (b + 2*h, b + 2*h + 1, off + h*16*112))
            g("ds_read_b64_tr_b16 a[%d:%d], v140 offset:%d" % (b + 4 + 2*h, b + 4 + 2*h + 1, off + h*16*112 + 32))
            g("ds_read_b64_tr_b16 a[%d:%d], v141 offset:%d" % (b + 8 + 2*h, b + 8 + 2*h + 1, off + h*16*112))
        if ks >= 2: kmf(ks - 2)
    kmf(6); kmf(7)
def kgen_compact_addr(g):
    g("s_and_b32 s81, s%d, 1\ns_lshl_b32 s81, s81, 4" % S_W)
    g("v_and_b32 v152, 15, v0\nv_add_u32 v152, s81, v152")
    g("v_lshrrev_b32 v153, 4, v0")
    g("v_lshlrev_b32 v154, 3, v152\nv_lshlrev_b32 v155, 2, v153\nv_add_u32 v154, v154, v155")
    g("v_lshlrev_b32 v155, 2, v152\nv_add_u32 v155, 0x100, v155")
    g("v_lshlrev_b32 v156, 1, v152\nv_add_u32 v156, 0x180, v156")
    g("v_cmp_eq_u32 vcc, 2, v153\nv_cndmask_b32 v154, v154, v155, vcc")
    g("v_cmp_eq_u32 vcc, 3, v153\nv_cndmask_b32 v154, v154, v156, vcc")
    g("v_mov_b32 v155, 2\nv_mov_b32 v156, 64\nv_cndmask_b32 v155, v155, v156, vcc\nv_add_u32 v155, v154, v155")
    g("s_lshr_b32 s80, s%d, 1\ns_mul_i32 s80, s80, %d\ns_add_u32 s80, s80, %d" % (S_W, KC_CH, KC))
    g("v_lshlrev_b32 v154, 1, v154\nv_add_u32 v142, s80, v154")
    g("v_lshlrev_b32 v155, 1, v155\nv_add_u32 v143, s80, v155")
    g("v_min_u32 v156, 1, v153\nv_lshlrev_b32 v156, 7, v156\nv_add_u32 v156, v156, v152\nv_add_u32 v156, 0x200, v156")
    g("v_lshlrev_b32 v156, 1, v156\nv_add_u32 v144, s80, v156")
def kgen_compact(g):
    g("v_cvt_pk_bf16_f32 v32, v32, v33\nv_cvt_pk_bf16_f32 v33, v34, v35\nv_cvt_pk_bf16_f32 v34, v36, v37\nv_cvt_pk_bf16_f32 v35, v38, v39")
    g("ds_write_b32 v142, v32\nds_write_b32 v143, v33")
    g("s_mov_b32 exec_hi, 0\nds_write_b16 v144, v34\nds_write_b16_d16_hi v144, v34 offset:64\nds_write_b16 v144, v35 offset:128\nds_write_b16_d16_hi v144, v35 offset:192\ns_mov_b32 exec_hi, -1")
def kfull_addr(g):
    g("s_lshl_b32 s80, s%d, 9\nv_lshlrev_b32 v152, 3, v0\nv_add_u32 v152, s80, v152" % S_W)
    for e in range(8):
        g("v_add_u32 v153, %d, v152" % (7 - e))
        g("v_cvt_f32_u32 v154, v153\nv_cvt_pk_bf16_f32 v154, v154, v154\nv_and_b32 v154, 0xffff, v154")
        g("v_subrev_u32 v154, 0x%x, v154" % (0x4300 - 128))
        g("v_cmp_gt_u32 vcc, 0x80, v153\nv_cndmask_b32 v154, v154, v153, vcc\nv_lshlrev_b32 v154, 1, v154")
        g("v_add_u32 v%d, 0x%x, v154" % (144 + e, KC))
    g("v_lshrrev_b32 v153, 4, v152\nv_lshlrev_b32 v153, 4, v153")
    g("v_and_b32 v154, 1, v0\nv_mul_u32_u24 v154, %d, v154" % KF_PL)
    g("v_add_u32 v153, v153, v154\nv_add_u32 v26, 0x%x, v153" % (KF + 256))
    g("v_lshrrev_b32 v153, 4, v0\nv_mul_u32_u24 v153, %d, v153\nv_and_b32 v154, 15, v0\nv_lshlrev_b32 v154, 4, v154\nv_add_u32 v153, v153, v154\nv_add_u32 v27, 0x%x, v153" % (KF_PL, KF))
def kfull_read(g):
    for ch in range(2):
        for e in range(8):
            g("ds_read_u16 v%d, v%d offset:%d" % (64 + 8*ch + e, 144 + e, ch*KC_CH))
    for ch in range(2):
        for e in range(4):
            g("v_lshl_or_b32 v%d, v%d, 16, v%d" % (52 + 4*ch + e, 64 + 8*ch + 2*e + 1, 64 + 8*ch + 2*e))
    g("v_mov_b32 v64, 0\nv_mov_b32 v65, 0\nv_mov_b32 v66, 0\nv_mov_b32 v67, 0")
def kfull_write(g):
    g("ds_write_b128 v27, v[64:67]")
    for ch in range(2): g("ds_write_b128 v26, v[%d:%d] offset:%d" % (52 + 4*ch, 55 + 4*ch, ch*KF_CH))

def T_load(g):
    g("s_lshl_b32 s80, s%d, 16\ns_lshl_b32 s81, s%d, 14\ns_add_u32 s80, s80, s81\ns_lshl_b32 s81, s%d, 7\ns_add_u32 s80, s80, s81" % (S_IDX, S_W, S_XCD))
    g("s_mul_i32 s82, s%d, 2112" % S_W)
    L = g.lab("Lt0")
    g("s_cmp_lg_u32 s%d, 0\ns_cbranch_scc1 %s" % (S_W, L))
    g.raw("s_mov_b32 m0, %d" % TBLK); g.raw("s_sub_u32 s81, s80, 8192")
    g.raw("buffer_load_dwordx4 v29, %s, s81 offen lds" % srd(S_X))
    g(L + ":")
    g("s_add_u32 m0, s82, %d" % (TBLK + 1056))
    g("buffer_load_dwordx4 v29, %s, s80 offen lds" % srd(S_X))
    g("s_add_u32 m0, s82, %d\ns_add_u32 s80, s80, 8192" % (TBLK + 2112))
    return g("buffer_load_dwordx4 v29, %s, s80 offen lds" % srd(S_X))
def T_addr(g):
    g("v_and_b32 v16, 3, v0\nv_lshrrev_b32 v5, 5, v0\nv_lshlrev_b32 v5, 2, v5\nv_add_u32 v16, v16, v5\nv_mul_u32_u24 v16, 1056, v16")
    g("v_bfe_u32 v5, v0, 2, 2\nv_lshlrev_b32 v6, 7, v5\nv_add_u32 v16, v16, v6")
    g("v_bfe_u32 v6, v0, 4, 1\nv_lshlrev_b32 v6, 3, v6\nv_add_u32 v16, v16, v6")
    g("s_lshl_b32 s10, s%d, 5\ns_add_u32 s10, s10, %d\nv_add_u32 v16, s10, v16" % (S_W, TBLK + 1056 - 128))
    g("v_subrev_u32 v19, 32, v16\nv_cmp_eq_u32 vcc, 0, v5\nv_cndmask_b32 v19, v16, v19, vcc")
    g("v_bfe_u32 v5, v0, 4, 1\nv_lshlrev_b32 v5, 2, v5\nv_and_b32 v6, 3, v0\nv_add_u32 v5, v5, v6")
    g("v_mul_u32_u24 v5, 160, v5")
    g("v_bfe_u32 v6, v0, 2, 2\nv_lshlrev_b32 v6, 4, v6\nv_add_u32 v5, v5, v6")
    g("v_lshrrev_b32 v6, 5, v0\nv_lshlrev_b32 v6, 6, v6\nv_add_u32 v20, v5, v6")
    g("s_mul_i32 s10, s%d, 1280\ns_add_u32 s10, s10, %d\nv_add_u32 v20, s10, v20" % (S_W, TSCR))
    g("v_lshrrev_b32 v5, 3, v0\nv_and_b32 v6, 7, v0\nv_lshlrev_b32 v6, 4, v6\nv_mul_u32_u24 v17, 160, v5\nv_add_u32 v17, v17, v6\nv_add_u32 v17, s10, v17")
    g("v_mul_u32_u24 v5, %d, v5\nv_add_u32 v61, v5, v6" % UT_STRIDE)
    g("s_lshl_b32 s80, s%d, 2\ns_add_u32 s80, s80, s%d\ns_mul_i32 s10, s80, %d" % (S_XCD, S_W, 16*UT_STRIDE))
    g("s_add_u32 s11, s10, %d" % (UT_OFF + 96))
    g("s_lshl_b32 s81, s%d, 7\ns_add_u32 s10, s10, s81\ns_add_u32 s10, s10, %d" % (S_IDX, UT_OFF + 128))
    g("s_lshl_b32 s80, s80, 5\ns_add_u32 s80, s80, s%d\ns_lshl_b32 s80, s80, 5\ns_add_u32 s12, s80, 0x%x" % (S_IDX, FT_OFF))
    g("v_lshrrev_b32 v6, 1, v0\nv_mul_u32_u24 v6, %d, v6\nv_and_b32 v7, 1, v0\nv_lshlrev_b32 v7, 4, v7\nv_add_u32 v18, v6, v7" % UT_ROW)
def T_pad(g):
    for i in range(4): g("v_accvgpr_write_b32 a%d, 0" % (64 + i))
    L = g.lab("Lnz")
    g("s_cmp_lg_u32 s%d, 0\ns_cbranch_scc1 %s" % (S_IDX, L))
    g.raw("buffer_store_dwordx4 a[64:67], v18, %s, s11 offen sc1" % srd(S_WS))
    g(L + ":")
def T_reads():
    q = []
    for i in range(2):
        for cp in range(2):
            b = 48 + 8*i + 4*cp
            q.append("ds_read_b64_tr_b16 a[%d:%d], v%d offset:%d" % (b, b+1, 19 if cp else 16, 16*i + (1-cp)*128))
            q.append("ds_read_b64_tr_b16 a[%d:%d], v16 offset:%d" % (b+2, b+3, 16*i + (1-cp)*128 + 512))
    return q
TSCR = 157696
def T_relayout():
    q = []
    for k in range(4):
        b = 48 + 4*k
        q.append("ds_write_b128 v20, a[%d:%d]" % (b, b+3))
        q.append("ds_read_b128 a[%d:%d], v17" % (72 + 4*k, 75 + 4*k))
    return q
def T_stores():
    q = []
    for i in range(2):
        for cp in range(2):
            b = 72 + 8*i + 4*cp
            q.append("s_add_u32 s13, s10, %d\nbuffer_store_dwordx4 a[%d:%d], v61, %s, s13 offen sc1" % (i*8*UT_STRIDE + cp*UT_ROW, b, b+3, srd(S_WS)))
    return q
def T_flag_c(g):
    g("v_mov_b32 v16, s%d\nv_mov_b32 v17, 0\ns_mov_b64 exec, 1\nbuffer_store_dword v16, v17, %s, s12 offen sc1\ns_mov_b64 exec, -1" % (S_TAG, srd(S_WS)))

def g_load(g):
    g("s_lshl_b32 s83, s2, 3\ns_lshl_b32 s81, s%d, 1\ns_add_u32 s83, s83, s81\ns_lshl_b32 s81, s83, 10" % S_W)
    g("v_lshlrev_b32 v5, 4, v0")
    g("global_load_dwordx4 v[128:131], v5, s[42:43]")
    for j in range(2):
        g("buffer_load_dwordx4 v[%d:%d], v5, %s, s81 offen offset:%d" % (132 + 4*j, 135 + 4*j, srd(S_X), j*1024))
def g_compute(g):
    R = [140, 142]
    for r in R: g("v_mov_b32 v%d, 0" % r)
    for i in range(4):
        for j, r in enumerate(R): g("v_dot2_f32_bf16 v%d, v%d, v%d, v%d" % (r, 132 + 4*j + i, 128 + i, r))
        g("s_nop 0")
    g("s_nop 2")
    for mod in ("row_shr:1 row_mask:0xf bank_mask:0xf bound_ctrl:0", "row_shr:2 row_mask:0xf bank_mask:0xf bound_ctrl:0",
                "row_shr:4 row_mask:0xf bank_mask:0xf bound_ctrl:0", "row_shr:8 row_mask:0xf bank_mask:0xf bound_ctrl:0",
                "row_bcast:15 row_mask:0xa bank_mask:0xf", "row_bcast:31 row_mask:0xc bank_mask:0xf"):
        for r in R: g("v_add_f32_dpp v%d, v%d, v%d %s" % (r, r, r, mod))
    for t in ("v_cvt_pk_bf16_f32 v%d, v%d, v%d", "v_lshlrev_b32 v%d, 16, v%d", "v_mul_f32 v%%d, 0x%x, v%%d" % f2u(-LOG2E), "v_exp_f32 v%d, v%d",
              "v_add_f32 v%d, 1.0, v%d", "v_rcp_f32 v%d, v%d", "v_cvt_pk_bf16_f32 v%d, v%d, v%d", "v_lshlrev_b32 v%d, 16, v%d"):
        for r in R: g(t % ((r,) * t.count("%d")))
    g("v_mov_b32 v141, s%d\nv_mov_b32 v143, s%d\nv_mov_b32 v5, 0" % (S_TAG, S_TAG))
    g("s_lshl_b32 s80, s2, 3\ns_lshl_b32 s81, s%d, 1\ns_add_u32 s80, s80, s81\ns_lshl_b32 s80, s80, 3\ns_add_u32 s80, s80, 0x%x" % (S_W, G_OFF))
def g_store(g):
    g("s_mov_b32 exec_lo, 0\ns_mov_b32 exec_hi, 0x80000000")
    g("buffer_store_dwordx4 v[140:143], v5, %s, s80 offen sc1" % srd(S_WS))
    g("s_mov_b64 exec, -1")

def epoch_bump(g):
    L, P, D = g.lab("Leb"), g.lab("Lep"), g.lab("Led")
    g("s_cmp_lg_u32 s2, 255\ns_cbranch_scc1 %s" % L)
    g("s_cmp_lg_u32 s%d, 0\ns_cbranch_scc1 %s" % (S_W, L))
    for l in ("v_lshrrev_b32 v8, 5, v0", "v_lshlrev_b32 v8, 12, v8", "v_and_b32 v9, 31, v0", "v_lshlrev_b32 v9, 5, v9", "v_add_u32 v8, v8, v9", "v_add_u32 v9, 0x2000, v8", "v_add_u32 v10, 0x4000, v8", "v_add_u32 v11, 0x6000, v8",
              "s_mov_b32 s80, 0x%x" % FT_OFF, "s_mov_b32 s%d, 0x40000" % S_SPIN): g.raw(l)
    g(P + ":")
    for l in (*["buffer_load_dword v%d, v%d, %s, s80 offen sc1" % (12 + j, 8 + j, srd(S_WS)) for j in range(4)], "s_waitcnt vmcnt(0)",
              "v_xor_b32 v12, s%d, v12" % S_TAG, "v_xor_b32 v13, s%d, v13" % S_TAG, "v_xor_b32 v14, s%d, v14" % S_TAG, "v_xor_b32 v15, s%d, v15" % S_TAG,
              "v_or_b32 v12, v12, v13", "v_or_b32 v14, v14, v15", "v_or_b32 v12, v12, v14", "v_cmp_ne_u32 vcc, 0, v12", "s_nop 4",
              "s_cmp_eq_u64 vcc, 0", "s_cbranch_scc1 %s" % D, "s_sleep 4", "s_sub_u32 s%d, s%d, 1" % (S_SPIN, S_SPIN), "s_cmp_lg_u32 s%d, 0" % S_SPIN,
              "s_cbranch_scc1 %s" % P): g.raw(l)
    g(D + ":")
    g.raw("s_mov_b32 s80, 0x%x" % EP_OFF)
    g.raw("v_mov_b32 v8, s%d" % S_TAG); g.raw("v_mov_b32 v9, 0"); g.raw("s_mov_b64 exec, 1")
    g.raw("buffer_store_dword v8, v9, %s, s80 offen sc1" % srd(S_WS))
    g.raw("s_mov_b64 exec, -1")
    g(L + ":")

def uexp_addr(g):
    g("v_lshlrev_b32 v28, 2, v0")
    g("s_lshl_b32 s85, s%d, 6\ns_lshl_b32 s86, s%d, 1\ns_add_u32 s85, s85, s86\ns_mul_i32 s85, s85, %d" % (S_XCD, S_IDX, UT_STRIDE))
    g("s_lshl_b32 s86, s%d, 8\ns_add_u32 s85, s85, s86\ns_add_u32 s85, s85, %d" % (S_W, UT_OFF + 128 - 32))
    g("s_lshl_b32 s86, s%d, 10" % S_W)
def uexp_plane(ch, odd):
    lds = (UEO if odd else UEE)[ch]; src = ch*UT_STRIDE + (0 if odd else UT_ROW)
    q = ["s_add_u32 m0, s86, %d\ns_add_u32 s87, s85, %d\nbuffer_load_dwordx4 v28, %s, s87 offen sc1 lds" % (lds + j*4096, src + j*1024, srd(S_WS)) for j in range(4)]
    def tail(g):
        L = g.lab("Lw0")
        g("s_cmp_lg_u32 s%d, 0\ns_cbranch_scc1 %s" % (S_W, L))
        for l in ("s_mov_b64 exec, 0xff", "s_mov_b32 m0, %d" % (lds + 16384), "s_add_u32 s87, s85, %d" % (src + 4096),
                  "buffer_load_dwordx4 v28, %s, s87 offen sc1 lds" % srd(S_WS), "s_mov_b64 exec, -1"): g.raw(l)
        g(L + ":")
    return [tail] + q

def gemm1_dma(st):
    b = BUF[st % 3]; q = []
    pre = "s_add_u32 s9, s14, %d\ns_and_b32 s9, s9, 7\ns_lshl_b32 s35, s9, 7\ns_add_u32 s35, s35, s90\ns_mul_i32 s8, s9, %d\ns_add_u32 s8, s8, s91\n" % (st, 64*3584)
    for i in range(4):
        q.append((pre if i == 0 else "") + "s_add_u32 m0, s92, %d\ns_add_u32 s93, s35, %d\nbuffer_load_dwordx4 v%d, %s, s93 offen lds" % (b + i*1024, i*8192, 2 + (i & 1), srd(S_X)))
        q.append("s_add_u32 m0, s92, %d\ns_add_u32 s93, s8, %d\nbuffer_load_dwordx4 v4, %s, s93 offen lds" % (b + 16384 + i*1024, i*4*3584, srd(S_WG)))
        q.append("s_add_u32 m0, s92, %d\nbuffer_load_dwordx4 v4, %s, s93 offen lds" % (b + 32768 + i*1024, srd(S_WU)))
    return q

def cf(p, kind, i):
    if p == 0: return "a[%d:%d]" % ((0 if kind == "A" else 32) + 4*i, (0 if kind == "A" else 32) + 4*i + 3)
    return ("a[%d:%d]" % (64 + 4*i, 67 + 4*i)) if kind == "A" else ("v[%d:%d]" % (128 + 4*i, 131 + 4*i))
def sel(g, dst, c0, c1):
    g("s_cselect_b32 s%d, %d, %d" % (dst, c1, c0) if False else "s_mov_b32 s%d, %d" % (dst, c0))
def conv_addr(g):
    g("s_lshr_b32 s80, s%d, 1\ns_and_b32 s82, s%d, 1" % (S_W, S_W))
    g("s_mul_i32 s81, s80, %d\ns_add_u32 s81, s81, %d" % (UEE[1] - UEE[0], UEE[0]))
    g("s_mul_i32 s83, s80, %d\ns_sub_u32 s83, %d, s83" % (UEO[0] - UEO[1], UEO[0]))
    g("v_bfe_u32 v5, v0, 4, 1\nv_lshlrev_b32 v5, 1, v5\nv_lshrrev_b32 v6, 5, v0\nv_add_u32 v5, v5, v6")
    g("v_bfe_u32 v6, v0, 1, 3\nv_lshlrev_b32 v7, 2, v5\nv_sub_u32 v7, v6, v7\nv_add_u32 v7, 13, v7\nv_lshlrev_b32 v7, 4, v7")
    g("v_mov_b32 v8, s81\nv_mov_b32 v9, s83\nv_and_b32 v6, 1, v0\nv_cmp_eq_u32 vcc, 1, v6\nv_cndmask_b32 v8, v8, v9, vcc\nv_add_u32 v8, v8, v7")
    g("s_lshl_b32 s81, s82, 10\nv_add_u32 v8, s81, v8")
    g("v_and_b32 v13, 15, v0\nv_lshlrev_b32 v13, 7, v13\nv_lshrrev_b32 v14, 4, v0\nv_lshlrev_b32 v14, 5, v14\nv_add_u32 v13, v13, v14")
    g("s_lshl_b32 s81, s82, 13\ns_add_u32 s81, s81, s83\ns_add_u32 s81, s81, 128\nv_add_u32 v13, s81, v13")
    g("v_and_b32 v6, 15, v0\nv_lshrrev_b32 v7, 5, v0\nv_mul_u32_u24 v7, %d, v7\nv_bfe_u32 v9, v0, 4, 1\nv_add_u32 v9, v9, v6\nv_lshlrev_b32 v9, 4, v9\nv_add_u32 v7, v7, v9" % KF_PL)
    g("s_mul_i32 s81, s80, %d\ns_lshl_b32 s83, s82, 7\ns_sub_u32 s83, s81, s83\ns_add_u32 s83, s83, %d" % (KF_CH, KF + 16*(16 - 7)))
    g("v_add_u32 v9, s83, v7")
    g("v_lshlrev_b32 v10, 4, v0")
    g("s_lshl_b32 s81, s%d, 12\ns_add_u32 s81, s81, %d\ns_cmp_eq_u32 s%d, 3\ns_cselect_b32 s81, %d, s81\nv_add_u32 v12, s81, v10" % (S_W, XCH[0], S_W, XCH[3]))
    g("s_xor_b32 s83, s%d, 1\ns_lshl_b32 s81, s83, 12\ns_add_u32 s81, s81, %d\ns_cmp_eq_u32 s83, 3\ns_cselect_b32 s81, %d, s81\nv_add_u32 v11, s81, v10" % (S_W, XCH[0], XCH[3]))
    g("v_and_b32 v15, 15, v0\nv_lshlrev_b32 v15, 5, v15\nv_lshrrev_b32 v14, 4, v0\nv_lshlrev_b32 v14, 3, v14\nv_add_u32 v15, v15, v14")
    g("s_lshl_b32 s81, s%d, 14\ns_add_u32 s81, s81, %d\nv_add_u32 v15, s81, v15\nv_add_u32 v14, s81, v10" % (S_W, WDB1 + 8192))
def conv_main(g, side):
    side = list(side)
    def reads(i):
        p = i & 1; q = []
        for a in range(8):
            q.append("ds_read_b128 %s, v8 offset:%d" % (cf(p, "A", a), a*2048 + i*256))
            q.append("ds_read_b128 %s, v9 offset:%d" % (cf(p, "B", a), a*256 + (3 - i)*32))
        return q
    for r in reads(0): g(r)
    first = set(); cnt = 0; last = None
    for i in range(4):
        p = i & 1
        nxt = reads(i + 1) if i < 3 else ["ds_read_b64 v[%d:%d], v13 offset:%d" % (64 + 2*cc, 65 + 2*cc, cc*2048) for cc in range(4)]
        pairs = sorted([(a, d) for a in range(8) for d in range(8) if a + d <= 7], key=lambda x: (max(x), x))
        for n, (a, d) in enumerate(pairs):
            c = a + d
            C = "v[%d:%d]" % (32 + 4*c, 35 + 4*c) if c in first else "0"
            first.add(c)
            g("v_mfma_f32_16x16x32_bf16 v[%d:%d], %s, %s, %s" % (32 + 4*c, 35 + 4*c, cf(p, "A", a), cf(p, "B", d), C))
            if n >= 12 and nxt: g(nxt.pop(0))
            elif n in (1, 4, 7, 10, 30, 33) and side: last = g(side.pop(0))
        assert not nxt
    assert not side
    for cc in range(4):
        for h in range(2):
            u = 64 + 2*cc + h; t = 72 + 4*cc + 2*h
            g("v_lshlrev_b32 v%d, 16, v%d\nv_and_b32 v%d, 0xffff0000, v%d" % (t, u, t+1, u))
            g("v_mul_f32 v%d, v127, v%d\nv_mul_f32 v%d, v127, v%d" % (t, t, t+1, t+1))
            if cc == 0 and h == 1:
                L1, L2 = g.lab("Lx"), g.lab("Lx")
                g("s_and_b32 s82, s%d, 1\ns_cmp_lg_u32 s82, 0\ns_cbranch_scc1 %s" % (S_W, L1))
                for k in range(4): g.raw("ds_write_b128 v11, v[%d:%d] offset:%d" % (48 + 4*k, 51 + 4*k, k*1024))
                g("s_branch %s" % L2)
                g(L1 + ":")
                for k in range(4): g.raw("ds_write_b128 v11, v[%d:%d] offset:%d" % (32 + 4*k, 35 + 4*k, k*1024))
                g.nop(2)
                for r in range(16): g.raw("v_mov_b32 v%d, v%d" % (32 + r, 48 + r))
                g(L2 + ":")
                g.lg_seq += 4
            g("v_cvt_pk_bf16_f32 v%d, v%d, v%d" % (u, t, t+1))
            g("v_lshlrev_b32 v%d, 16, v%d\nv_and_b32 v%d, 0xffff0000, v%d" % (t, u, t+1, u))
    g.wait(lg=0)
    return last
def conv_fin(g):
    for r in range(16): g("v_add_f32 v%d, v%d, v%d" % (32 + r, 32 + r, 48 + r))
    for r in range(8): g("v_cvt_pk_bf16_f32 v%d, v%d, v%d" % (48 + r, 32 + 2*r, 33 + 2*r))
    for r in range(8): g("v_lshlrev_b32 v%d, 16, v%d\nv_and_b32 v%d, 0xffff0000, v%d" % (32 + 2*r, 48 + r, 33 + 2*r, 48 + r))
    for r in range(16): g("v_add_f32 v%d, v%d, v%d" % (32 + r, 32 + r, 72 + r))
    for r in range(8): g("v_cvt_pk_bf16_f32 v%d, v%d, v%d" % (48 + r, 32 + 2*r, 33 + 2*r))
    for cc in range(4): g("ds_write_b64 v15, v[%d:%d] offset:%d" % (48 + 2*cc, 49 + 2*cc, cc*512))
    for pr in range(2): g("ds_read_b128 v[%d:%d], v14 offset:%d" % (56 + 4*pr, 59 + 4*pr, pr*1024))
    g("s_and_b32 s82, s%d, 1\ns_lshl_b32 s81, s%d, 12\ns_lshl_b32 s83, s82, 11\ns_add_u32 s81, s81, s83\ns_add_u32 s81, s81, 0x%x" % (S_W, S_CH, AT_OFF))
    for pr in range(2):
        g("buffer_store_dwordx4 v[%d:%d], v10, %s, s81 offen offset:%d sc1" % (56 + 4*pr, 59 + 4*pr, srd(S_WS), pr*1024))

def chunk_ids(g):
    for c in range(7):
        g("s_add_u32 s%d, s%d, %d\ns_cmp_ge_u32 s%d, 7\ns_cselect_b32 s80, 7, 0\ns_sub_u32 s%d, s%d, s80" % (18 + c, S_NB, c, 18 + c, 18 + c, 18 + c))
    g("s_lshl_b32 s95, s%d, 14\ns_add_u32 s95, s95, %d\ns_lshl_b32 s25, s%d, 13" % (S_W, WDA, S_W))
def wd_setup(g, vreg):
    g("v_lshrrev_b32 v5, 3, v0\nv_lshlrev_b32 v5, 10, v5\nv_bfe_u32 v6, v0, 4, 1\nv_lshlrev_b32 v6, 2, v6\nv_and_b32 v7, 7, v0\nv_xor_b32 v6, v6, v7\nv_lshlrev_b32 v6, 4, v6\nv_add_u32 v%d, v5, v6" % vreg)
    g("s_mul_i32 s94, s%d, %d\ns_lshl_b32 s80, s%d, 7\ns_add_u32 s94, s94, s80" % (S_W, 448*1024, S_NB))
WSLOT = {2: (95, 0), 3: (95, 8192), 4: (25, 0), 5: (95, WDB1 - WDA), 6: (95, WDB1 - WDA + 8192)}
def wd_dma(c, vreg):
    sb, off = WSLOT[c]
    q = []
    for i in range(8):
        pre = "s_lshl_b32 s93, s%d, 16\ns_add_u32 s93, s93, s94\n" % (18 + c) if i == 0 else "s_add_u32 s93, s93, 8192\n"
        q.append("s_add_u32 m0, s%d, %d\n%sbuffer_load_dwordx4 v%d, %s, s93 offen lds" % (sb, off + i*1024, pre, vreg, srd(S_WD)))
    return q

def l2t_addr(g):
    g("s_lshl_b32 s80, s%d, 2\ns_add_u32 s80, s80, s%d\ns_lshl_b32 s26, s80, 12\ns_add_u32 s26, s26, 0x%x" % (S_IDX, S_W, WDT_OFF))
    g("s_lshr_b32 s27, s80, 5\ns_mul_i32 s27, s27, %d\ns_and_b32 s80, s80, 31\ns_lshl_b32 s80, s80, 11\ns_add_u32 s27, s27, s80" % (448*1024))
    g("v_and_b32 v24, 7, v0\nv_bfe_u32 v25, v0, 3, 1\nv_lshlrev_b32 v25, 10, v25\nv_lshlrev_b32 v23, 7, v24\nv_add_u32 v25, v25, v23")
    g("v_lshrrev_b32 v21, 4, v0\nv_add_u32 v21, v21, v24\nv_add_u32 v21, 2, v21\nv_subrev_u32 v23, 7, v21\nv_min_u32 v21, v21, v23\nv_lshlrev_b32 v21, 16, v21\nv_add_u32 v21, v21, v25")
    g("v_add_u32 v22, 6, v24\nv_subrev_u32 v23, 7, v22\nv_min_u32 v22, v22, v23\nv_lshlrev_b32 v22, 16, v22\nv_add_u32 v22, v22, v25")
    g("v_lshlrev_b32 v23, 7, v0")
def l2t(g):
    g("s_mov_b32 exec_hi, 0\nbuffer_load_dword v24, v23, %s, s26 offen sc1\ns_mov_b32 exec_hi, -1" % srd(S_WS))
    g("buffer_load_dword v25, v21, %s, s27 offen" % srd(S_WD))
    g("s_mov_b64 exec, 0xffff\nbuffer_load_dword v21, v22, %s, s27 offen\ns_mov_b64 exec, -1" % srd(S_WD))
def dose(g, k):
    if OPT["l2t"] != 3: return
    if k < 4: g("%s\nbuffer_load_dword v%d, v21, %s, s27 offen\ns_mov_b64 exec, -1" % (lanes(16*k, 16*k + 16), 96 + k, srd(S_WD)))
    elif k == 4: g("%s\nbuffer_load_dword v100, v22, %s, s27 offen\ns_mov_b64 exec, -1" % (lanes(0, 16), srd(S_WD)))
    else: g("%s\nbuffer_load_dword v%d, v23, %s, s26 offen sc1\ns_mov_b64 exec, -1" % (lanes(16*(k-5), 16*(k-5) + 16), 96 + k, srd(S_WS)))
def H_part1(g, idle):
    D = (lambda st: []) if idle else gemm1_dma
    st_ = (lambda g, n: None) if idle else stamp
    def W(op):
        if op is not None: g.wait_op(op)
    g("global_load_ushort v39, v63, s[30:31]")
    g("global_load_ushort v33, v32, s[18:19]")
    g("global_load_ushort v34, v32, s[20:21]")
    g("global_load_ushort v127, v63, s[32:33]")
    if not idle:
        g.srd(S_WG, 36, 512*1792*2); g.srd(S_WU, 38, 512*1792*2)
    g.srd(S_X, 16, 2048*512*2)
    d = {}
    d[0] = weave(g, D(0), [])
    epoch_load(g)
    g.srd(S_WS, 48, WS_BYTES); g.srd(S_WD, 40, 512*1792*2); g.srd(S_OUT, 44, 2048*512*2)
    st_(g, "H:d0 issued")
    tag_compute(g)
    g("v_lshlrev_b32 v127, 16, v127")
    st_(g, "H:par")
    kgen_E(g)
    g.wait(lg=0)
    st_(g, "H:E done")
    g("s_barrier")
    d[1] = weave(g, D(1), rec(kfull_addr) + rec(T_addr))
    st_(g, "H:i0")
    W(d[0])
    g("s_barrier")
    tl = T_load(g)
    d[2] = weave(g, D(2), rec(kfull_read) + rec(l2t_addr))
    st_(g, "H:i1")
    g.wait(lg=0); g.wait_op(tl)
    g("s_barrier")
    for t in T_reads(): g(t)
    d[3] = weave(g, D(3), T_relayout())
    T_pad(g)
    for t in T_stores(): ts = g(t)
    st_(g, "H:i2")
    W(d[2])
    g("s_barrier")
    d[4] = weave(g, D(4), rec(kfull_write) + rec(uexp_addr))
    dose(g, 0)
    st_(g, "H:i3")
    g.wait(lg=0); g.wait_op(ts)
    T_flag_c(g)
    st_(g, "H:a3")
    g("s_barrier")
    d[5] = weave(g, D(5), [])
    dose(g, 1)
    conv_addr(g)
    st_(g, "H:i4")
    W(d[4])
    g("s_barrier")
    d[6] = weave(g, D(6), [])
    dose(g, 2); dose(g, 5)
    wd_setup(g, 30); chunk_ids(g)
    g("s_lshl_b32 s83, s%d, 2\ns_lshr_b32 s81, s%d, 3\ns_add_u32 s83, s83, s81\ns_lshl_b32 s83, s83, 10\ns_add_u32 s83, s83, 0x%x" % (S_XCD, S_IDX, FT_OFF))
    g("s_lshl_b32 s81, s%d, 9\ns_add_u32 s81, s81, 0x%x" % (S_NB, FW_OFF))
    g("v_lshlrev_b32 v5, 5, v0\nv_add_u32 v5, s83, v5\nv_and_b32 v6, 15, v0\nv_lshlrev_b32 v6, 5, v6\nv_add_u32 v6, s81, v6\nv_cmp_lt_u32 vcc, 31, v0\nv_cndmask_b32 v5, v5, v6, vcc\ns_mov_b32 s83, 0")
    st_(g, "H:i5")
    W(d[5])
    g("s_barrier")
    L0 = g.lab("Lq")
    g("s_cmp_lg_u32 s%d, 0\ns_cbranch_scc1 %s" % (S_W, L0))
    g.raw("buffer_load_dword v6, v5, %s, s83 offen sc1" % srd(S_WS))
    g(L0 + ":")
    d[7] = weave(g, D(7), [])
    nv = 0 if idle else 12
    if OPT["l2t"] == 1: l2t(g); nv += 3
    if OPT["l2t"] == 3: dose(g, 3); dose(g, 6); nv += 2
    st_(g, "H:i6")
    g.raw("s_waitcnt vmcnt(%d)" % nv); g.vm_done = max(g.vm_done, g.vm_seq - nv)
    Lok = g.lab("Lok")
    g("s_cmp_lg_u32 s%d, 0\ns_cbranch_scc1 %s" % (S_W, Lok))
    g("v_cmp_ne_u32 vcc, s%d, v6" % S_TAG)
    g.nop(4)
    g("s_cmp_eq_u64 vcc, 0\ns_cbranch_scc1 %s" % Lok)
    sv = g.vm_done
    poll(g, 5, 83, 6)
    g.vm_done = sv
    g(Lok + ":")
    st_(g, "H:a6")
    g("s_barrier")
    for t in uexp_plane(0, 0) + uexp_plane(0, 1) + uexp_plane(1, 0): emit(g, t)
    dose(g, 4)
    if OPT["l2t"] == 4: l2t(g)
    W(d[7])
    st_(g, "H:a7")
    g("s_barrier")
    for t in uexp_plane(1, 1): g.ue = emit(g, t)
    if OPT["seq"]: g_load(g)
    g("v_mov_b32 v16, %d" % SYW[0])
    for i in (1, 2, 3): g("s_mov_b32 s80, %d\nv_writelane_b32 v16, s80, %d" % (SYW[i], i))
    g("v_readlane_b32 s80, v16, s%d" % S_W)
    g("v_mov_b32 v17, s80\nv_mov_b32 v18, 0\nv_mov_b32 v19, 1")
    g("ds_write_b32 v17, v18")
    g.wait(lg=0)
    if not OPT["seq"]: g.wait_op(g.ue)
    st_(g, "H:a8")

SYW = [0, 114816, 131584, 28928]
def hsync(g, target):
    L, D = g.lab("Lh"), g.lab("Lhd")
    g("s_mov_b64 exec, 15\nds_add_u32 v16, v19\ns_mov_b64 exec, -1")
    g("s_mov_b32 s%d, 0x100000" % S_SPIN)
    g(L + ":")
    for l in ("ds_read_b32 v18, v17", "s_waitcnt lgkmcnt(0)", "v_readfirstlane_b32 s80, v18", "s_sub_u32 s%d, s%d, 1" % (S_SPIN, S_SPIN), "s_cbranch_scc1 %s" % D,
              "s_cmp_lt_u32 s80, %d" % target, "s_cbranch_scc1 %s" % L): g.raw(l)
    g(D + ":")
    g.lg_done = g.lg_seq
def fin_addr(g, b, half):
    g("s_add_u32 s80, s95, 12288\nv_add_u32 v%d, s80, v10" % b)
    for q in (1, 2, 3):
        g("s_xor_b32 s80, s%d, %d\ns_lshl_b32 s80, s80, 14\ns_add_u32 s80, s80, %d\nv_add_u32 v%d, s80, v10" % (S_W, q, WDA + (q-1)*4096 + half*2048, b + q))
    g("v_and_b32 v%d, 31, v0\nv_lshlrev_b32 v%d, 10, v%d\nv_lshrrev_b32 v1, 5, v0\nv_lshlrev_b32 v1, 4, v1\nv_add_u32 v%d, v%d, v1" % (b+4, b+4, b+4, b+4, b+4))
    g("s_lshl_b32 s87, s%d, 16\ns_and_b32 s81, s%d, 1\ns_lshl_b32 s81, s81, 15\ns_add_u32 s87, s87, s81\ns_lshl_b32 s81, s%d, 7\ns_add_u32 s87, s87, s81\ns_lshr_b32 s81, s%d, 1\ns_lshl_b32 s81, s81, 6\ns_add_u32 s87, s87, s81\ns_add_u32 s87, s87, %d" % (S_TB2, S_W, S_NB, S_W, half*32))
def fin_math(g, P, GA, OMG, VO):
    for r in range(4):
        x = P + 2*r
        g("v_pk_add_f32 v[%d:%d], v[%d:%d], v[%d:%d]" % (x, x+1, x, x+1, x+8, x+9))
        g("v_pk_add_f32 v[%d:%d], v[%d:%d], v[%d:%d]" % (x+16, x+17, x+16, x+17, x+24, x+25))
    for r in range(4):
        x = P + 2*r
        g("v_pk_add_f32 v[%d:%d], v[%d:%d], v[%d:%d]" % (x, x+1, x, x+1, x+16, x+17))
    for r in range(4): g("v_cvt_pk_bf16_f32 v%d, v%d, v%d" % (P + 8 + r, P + 2*r, P + 2*r + 1))
    for r in range(4): g("v_lshlrev_b32 v%d, 16, v%d\nv_and_b32 v%d, 0xffff0000, v%d" % (P + 2*r, P + 8 + r, P + 2*r + 1, P + 8 + r))
    for r in range(8): g("v_mul_f32 v%d, v%d, v%d" % (P + r, OMG, P + r))
    for r in range(4): g("v_cvt_pk_bf16_f32 v%d, v%d, v%d" % (P + 8 + r, P + 2*r, P + 2*r + 1))
    for r in range(4): g("v_lshlrev_b32 v%d, 16, v%d\nv_and_b32 v%d, 0xffff0000, v%d" % (P + 16 + 2*r, GA + r, P + 17 + 2*r, GA + r))
    for r in range(4): g("v_lshlrev_b32 v%d, 16, v%d\nv_and_b32 v%d, 0xffff0000, v%d" % (P + 2*r, P + 8 + r, P + 2*r + 1, P + 8 + r))
    for r in range(4):
        x = P + 2*r
        g("v_pk_add_f32 v[%d:%d], v[%d:%d], v[%d:%d]" % (x, x+1, x, x+1, x+16, x+17))
    for r in range(4): g("v_cvt_pk_bf16_f32 v%d, v%d, v%d" % (GA + r, P + 2*r, P + 2*r + 1))
    g("v_permlane32_swap_b32 v%d, v%d" % (GA, GA + 2))
    g("v_permlane32_swap_b32 v%d, v%d" % (GA + 1, GA + 3))
    g("buffer_store_dwordx4 v[%d:%d], v%d, %s, s87 offen" % (GA, GA + 3, VO, srd(S_OUT)))

def build_H():
    g = G(); g.nlab = 1000; g.role = 1; g.nst = 1; St.names[48] = "H:start"
    prologue(g)
    g("s_setprio %d" % OPT["hprio"])
    h_dma_addr(g)
    if OPT["rot"] == 1: g("s_add_u32 s14, s%d, s%d\ns_and_b32 s14, s14, 3\ns_lshl_b32 s14, s14, 1" % (S_MT, S_FT))
    elif OPT["rot"] == 2: g("s_add_u32 s14, s%d, s%d\ns_and_b32 s14, s14, 1\ns_lshl_b32 s14, s14, 2" % (S_MT, S_FT))
    else: g("s_mov_b32 s14, 0")
    g("s_waitcnt lgkmcnt(0)")
    g("s_cmp_ge_u32 s%d, 28\ns_cbranch_scc1 Lhidle" % S_IDX)
    H_part1(g, False)
    g("Lh8:")
    g("s_barrier")
    g("s_setprio 0")
    if OPT["seq"]:
        for t in wd_dma(2, 30) + wd_dma(3, 30): last = g(t); g("s_sleep %d" % OPT["wsleep"])
        g_compute(g); g_store(g)
        g.wait_op(last)
        stamp(g, "H:a9")
        g("s_barrier")
        conv_main(g, [])
    else:
        stamp(g, "H:a9")
        conv_main(g, wd_dma(2, 30) + wd_dma(3, 30))
    stamp(g, "H:convend")
    hsync(g, 4)
    for cc in range(4): g("ds_read_b128 v[%d:%d], v12 offset:%d" % (48 + 4*cc, 51 + 4*cc, cc*1024))
    g.wait(lg=0)
    hsync(g, 8)
    stamp(g, "H:B10b")
    for t in wd_dma(4, 30): g(t)
    conv_fin(g)
    aop = ("vm", g.vm_seq)
    stamp(g, "H:aiss")
    for t in wd_dma(5, 30)[:OPT["a5"]]: g(t)
    g("s_and_b32 s82, s%d, 1\ns_lshl_b32 s80, s%d, 1\ns_add_u32 s80, s80, s82\ns_lshl_b32 s80, s80, 6\ns_and_b32 s81, s%d, 63\ns_add_u32 s80, s80, s81\ns_lshl_b32 s80, s80, 5\ns_add_u32 s80, s80, 0x%x" % (S_W, S_XCD, S_CH, FA_OFF))
    g.wait_op(aop)
    flag_store(g, 80, 8)
    stamp(g, "H:aflag")
    for t in wd_dma(5, 30)[OPT["a5"]:] + wd_dma(6, 30): last = g(t)
    g("v_and_b32 v5, 31, v0\nv_lshlrev_b32 v20, 3, v5\nv_lshlrev_b32 v5, 5, v5")
    g("s_lshl_b32 s82, s%d, 1\ns_lshr_b32 s81, s%d, 4\ns_add_u32 s82, s82, s81\ns_lshl_b32 s82, s82, 11\ns_lshr_b32 s81, s%d, 1\ns_lshl_b32 s81, s81, 10\ns_add_u32 s82, s82, s81\ns_add_u32 s82, s82, 0x%x" % (S_NB, S_TB2, S_W, FA_OFF))
    g("v_lshrrev_b32 v7, 2, v0\nv_lshlrev_b32 v8, 12, v7\nv_and_b32 v9, 3, v0\nv_lshlrev_b32 v9, 4, v9\nv_add_u32 v8, v8, v9")
    g("s_lshl_b32 s83, s%d, 18\ns_lshr_b32 s81, s%d, 1\ns_lshl_b32 s81, s81, 17\ns_add_u32 s83, s83, s81\ns_lshl_b32 s81, s%d, 7\ns_add_u32 s83, s83, s81\ns_and_b32 s81, s%d, 1\ns_lshl_b32 s81, s81, 6\ns_add_u32 s83, s83, s81\ns_add_u32 s83, s83, 0x%x\ns_add_u32 s84, s83, 0x10000" % (S_NB, S_W, S_TB2, S_W, AT_OFF))
    g("s_lshl_b32 s85, s%d, 9\ns_and_b32 s81, s%d, 1\ns_lshl_b32 s81, s81, 8\ns_add_u32 s85, s85, s81\ns_add_u32 s85, s85, 0x%x" % (S_TB2, S_W, G_OFF))
    g("s_add_u32 s86, s95, 14336\nv_add_u32 v21, s86, v10")
    g("v_lshrrev_b32 v22, 5, v0\nv_lshlrev_b32 v22, 2, v22\nv_bfe_u32 v23, v0, 2, 2\nv_add_u32 v22, v22, v23\nv_lshlrev_b32 v22, 6, v22")
    g("v_bfe_u32 v23, v0, 4, 1\nv_lshlrev_b32 v23, 5, v23\nv_add_u32 v22, v22, v23\nv_and_b32 v23, 3, v0\nv_lshlrev_b32 v23, 3, v23\nv_add_u32 v22, v22, v23\nv_add_u32 v22, s86, v22")
    fin_addr(g, 24, 1)
    if not OPT["seq"]:
        g("v_mov_b32 v144, v5\ns_mov_b32 s26, s83"); g_load(g)
    g.wait_op(last)
    stamp(g, "H:wdland")
    g("s_barrier")
    if not OPT["seq"]:
        g_compute(g); g_store(g); g("v_mov_b32 v5, v144\ns_mov_b32 s83, s26")
        g("s_barrier")
    poll(g, 5, 82, 6)
    g("buffer_load_dwordx4 v[12:15], v8, %s, s83 offen sc1" % srd(S_WS))
    g("buffer_load_dwordx4 v[16:19], v8, %s, s84 offen sc1" % srd(S_WS))
    poll(g, 20, 85, 2, width=2)
    g("v_sub_f32 v3, 1.0, v2\nv_cvt_pk_bf16_f32 v3, v3, v3\nv_lshlrev_b32 v3, 16, v3")
    g("ds_write_b128 v21, v[12:15]")
    g("ds_write_b128 v21, v[16:19] offset:1024")
    for q in range(4): g("ds_read_b64_tr_b16 v[%d:%d], v22 offset:%d" % (32 + 2*q, 33 + 2*q, q*512))
    for r in range(8):
        y = 48 + 2*r
        g("v_lshlrev_b32 v%d, 16, v%d\nv_and_b32 v%d, 0xffff0000, v%d" % (y, 32 + r, y+1, 32 + r))
        g("v_mul_f32 v%d, v2, v%d\nv_mul_f32 v%d, v2, v%d" % (y, y, y+1, y+1))
        g("v_cvt_pk_bf16_f32 v%d, v%d, v%d" % (40 + r, y, y+1))
    g("ds_write_b128 v21, v[40:43]")
    g("ds_write_b32 v21, v3 offset:1024")
    g.wait(lg=0)
    stamp(g, "H:aTready")
    g("s_barrier")
    for j in range(2):
        for sw in range(4): g("ds_read_b128 v[%d:%d], v%d offset:%d" % (64 + 8*sw + 4*j, 67 + 8*sw + 4*j, 24 + sw, j*1024))
    fin_math(g, 64, 44, 3, 28)
    stamp(g, "H:end")
    stamp_store(g)
    g("s_endpgm")
    g2 = G(); g2.nlab = 3000; g2.role = 1; g2.nst = 40
    g2("Lhidle:")
    H_part1(g2, True)
    g2("s_branch Lh8")
    return g.text(), g2.text()

RADDR = [8, 14, 20]
def gemm1_raddr(g):
    g("v_and_b32 v5, 31, v0\nv_lshrrev_b32 v6, 5, v0\nv_bfe_u32 v7, v0, 1, 3\nv_xor_b32 v6, v6, v7\nv_lshlrev_b32 v6, 4, v6\nv_lshlrev_b32 v5, 7, v5\nv_add_u32 v5, v5, v6")
    g("s_and_b32 s80, s%d, 1\ns_lshl_b32 s80, s80, 13\nv_add_u32 v8, s80, v5" % S_W)
    for s in range(1, 4): g("v_xor_b32 v%d, %d, v8" % (8 + s, 32*s))
    g("v_lshrrev_b32 v5, 5, v0\nv_lshlrev_b32 v5, 3, v5\nv_bfe_u32 v6, v0, 2, 2\nv_add_u32 v5, v5, v6\nv_lshlrev_b32 v5, 8, v5")
    g("s_lshr_b32 s80, s%d, 1\ns_lshl_b32 s80, s80, 1\nv_xor_b32 v6, s80, v6\nv_lshlrev_b32 v6, 6, v6\nv_add_u32 v5, v5, v6" % S_W)
    g("v_bfe_u32 v6, v0, 4, 1\nv_lshlrev_b32 v6, 5, v6\nv_add_u32 v5, v5, v6\nv_and_b32 v6, 3, v0\nv_lshlrev_b32 v6, 3, v6\nv_add_u32 v5, v5, v6")
    g("v_add_u32 v12, 0x4000, v5\nv_xor_b32 v13, 64, v12")
    for i in range(6):
        g("v_add_u32 v%d, 0x%x, v%d" % (14 + i, BUF[1], 8 + i))
        g("v_add_u32 v%d, 0x%x, v%d" % (20 + i, BUF[2], 8 + i))
def frag(p, kind, i): return 24*p + {"x": 0, "g": 8, "u": 16}[kind] + 4*i
def gemm1_reads(kk):
    st, s = divmod(kk, 4); p = kk & 1; ra = RADDR[st % 3]
    q = []
    def W(kind, fi):
        for h in range(2):
            b = frag(p, kind, fi) + 2*h
            q.append("ds_read_b64_tr_b16 a[%d:%d], v%d offset:%d" % (b, b+1, ra + 4 + fi, s*4096 + h*1024 + (16384 if kind == "u" else 0)))
    def X(ti):
        b = frag(p, "x", ti)
        q.append("ds_read_b128 a[%d:%d], v%d offset:%d" % (b, b+3, ra + s, ti*4096))
    X(0); W("g", 0); W("u", 0); X(1); W("g", 1); W("u", 1)
    return q
def acc1(kind, fi, ti): return 32 + {"g": 0, "u": 64}[kind] + 32*fi + 16*ti
def gemm1_mfmas(kk):
    p = kk & 1; q = []
    for fi, ti in ((0,0),(0,1),(1,0),(1,1)):
        for kind in "gu":
            a = acc1(kind, fi, ti); w = frag(p, kind, fi); x = frag(p, "x", ti)
            c = "0" if kk == 0 else "v[%d:%d]" % (a, a+15)
            q.append("v_mfma_f32_32x32x16_bf16 v[%d:%d], a[%d:%d], a[%d:%d], %s" % (a, a+15, w, w+3, x, x+3, c))
    return q
def gemm1_main(g, side):
    g("s_barrier")
    stamp(g, "C:B0")
    for r in gemm1_reads(0): g(r)
    for kk in range(32):
        st, s = divmod(kk, 4)
        mf = gemm1_mfmas(kk); pre = 0
        if s == 3:
            g(mf[0]); g(mf[1]); pre = 2
            for t in side.get("pre%d" % (st + 1), []): g(t)
            g.wait(lg=0)
            stamp(g, "C:a%d" % (st + 1))
            g("s_barrier")
            stamp(g, "C:B%d" % (st + 1))
        fill = gemm1_reads(kk + 1) if kk + 1 < 32 else []
        fill += side.get(kk, [])
        for i in range(pre, 8):
            g(mf[i])
            for _ in range(2 if i < 7 else 99):
                if fill: emit(g, fill.pop(0))
def gemm1_epilogue(g, load_w):
    k1 = -2*0.7978845608028654*LOG2E; k2 = k1*0.044715
    g("s_mov_b32 s84, 0x%x\ns_mov_b32 s85, 0x%x" % (f2u(k2), f2u(k2)))
    g("v_mov_b32 v2, 0x%x\nv_mov_b32 v3, 0x%x" % (f2u(k1), f2u(k1)))
    g("v_lshlrev_b32 v4, 4, v0")
    g("s_lshl_b32 s80, s%d, 2\ns_and_b32 s81, s%d, 1\ns_lshl_b32 s81, s81, 1\ns_add_u32 s80, s80, s81\ns_mul_i32 s80, s80, 112" % (S_MT, S_W))
    g("s_lshl_b32 s81, s%d, 3\ns_add_u32 s80, s80, s81\ns_lshr_b32 s81, s%d, 1\ns_lshl_b32 s81, s81, 2\ns_add_u32 s80, s80, s81" % (S_FT, S_W))
    g("s_lshl_b32 s80, s80, 10\ns_add_u32 s80, s80, 0x%x\ns_add_u32 s81, s80, %d" % (H_OFF, 112*1024))
    cnt = 0
    for fi in range(2):
        for ti in range(2):
            for half in range(2):
                G0 = acc1("g", fi, ti) + 8*half; U0 = acc1("u", fi, ti) + 8*half
                T = 8; D = 16 + 4*(cnt & 1)
                P = [(G0 + 2*j, U0 + 2*j, T + 2*j) for j in range(4)]
                if OPT["wpos"] == 0:
                    for t in load_w(cnt): g(t)
                if OPT["pk"]:
                    for (x, u, t) in P: g("v_pk_mul_f32 v[%d:%d], v[%d:%d], v[%d:%d]" % (t, t+1, x, x+1, x, x+1))
                    for (x, u, t) in P: g("v_pk_fma_f32 v[%d:%d], v[%d:%d], s[84:85], v[2:3]" % (t, t+1, t, t+1))
                    for (x, u, t) in P: g("v_pk_mul_f32 v[%d:%d], v[%d:%d], v[%d:%d]" % (t, t+1, t, t+1, x, x+1))
                    for j in range(8): g("v_exp_f32 v%d, v%d" % (T + j, T + j))
                    for (x, u, t) in P: g("v_pk_mul_f32 v[%d:%d], v[%d:%d], v[%d:%d]" % (x, x+1, x, x+1, u, u+1))
                    for (x, u, t) in P: g("v_pk_add_f32 v[%d:%d], v[%d:%d], 1.0 op_sel_hi:[1,0]" % (t, t+1, t, t+1))
                    for j in range(8): g("v_rcp_f32 v%d, v%d" % (T + j, T + j))
                    for (x, u, t) in P: g("v_pk_mul_f32 v[%d:%d], v[%d:%d], v[%d:%d]" % (x, x+1, x, x+1, t, t+1))
                else:
                    E = [(G0 + j, U0 + j, T + j) for j in range(8)]
                    for (x, u, t) in E: g("v_mul_f32 v%d, v%d, v%d" % (t, x, x))
                    for (x, u, t) in E: g("v_fma_f32 v%d, v%d, s84, v2" % (t, t))
                    for (x, u, t) in E: g("v_mul_f32 v%d, v%d, v%d" % (t, t, x))
                    for (x, u, t) in E: g("v_exp_f32 v%d, v%d\nv_mul_f32 v%d, v%d, v%d" % (t, t, x, x, u))
                    for (x, u, t) in E: g("v_add_f32 v%d, 1.0, v%d" % (t, t))
                    for (x, u, t) in E: g("v_rcp_f32 v%d, v%d" % (t, t))
                    for (x, u, t) in E: g("v_mul_f32 v%d, v%d, v%d" % (x, x, t))
                for j, (x, u, t) in enumerate(P): g("v_cvt_pk_bf16_f32 v%d, v%d, v%d" % (D + j, x, x+1))
                op = g("buffer_store_dwordx4 v[%d:%d], v4, %s, s%d offen offset:%d sc1" % (D, D+3, srd(S_WS), 80 + ti, (2*fi + half)*1024))
                cnt += 1
    return op

def touch_addr(g):
    g("s_lshl_b32 s80, s%d, 2\ns_add_u32 s80, s80, s%d" % (S_IDX, S_W))
    g("s_lshr_b32 s90, s%d, 1\ns_lshl_b32 s90, s90, 19\ns_lshl_b32 s81, s80, 12\ns_add_u32 s90, s90, s81" % S_XCD)
    g("v_lshlrev_b32 v30, 7, v0")
    g("v_mul_u32_u24 v5, 37, v0\nv_lshrrev_b32 v5, 8, v5\nv_mul_u32_u24 v6, 7, v5\nv_sub_u32 v6, v0, v6\nv_lshlrev_b32 v6, 7, v6")
    g("s_mov_b32 s81, %d\nv_mul_lo_u32 v5, v5, s81\nv_add_u32 v26, v5, v6" % (64*3584))
    g("s_lshr_b32 s91, s80, 1\ns_mul_i32 s91, s91, 3584\ns_and_b32 s81, s80, 1\ns_mul_i32 s81, s81, 896\ns_add_u32 s91, s91, s81\ns_and_b32 s81, s%d, 1\ns_mul_i32 s81, s81, 1792\ns_add_u32 s91, s91, s81" % S_XCD)
    g("s_mul_i32 s93, s80, %d\ns_lshl_b32 s92, s2, 2\ns_add_u32 s92, s92, s%d\ns_mul_i32 s92, s92, %d" % (112*128, S_W, 14*128))
def lanes(lo, hi):
    m = ((1 << hi) - 1) & ~((1 << lo) - 1)
    return "s_mov_b32 exec_lo, 0x%x\ns_mov_b32 exec_hi, 0x%x" % (m & 0xffffffff, m >> 32)
def touch_w(s0, s1, r):
    return "%s\nbuffer_load_dword a%d, v26, %s, s91 offen\nbuffer_load_dword a%d, v26, %s, s91 offen\ns_mov_b64 exec, -1" % (lanes(7*s0, 7*s1), r, srd(S_WG), r+1, srd(S_WU))
def touch_glob():
    return "%s\nbuffer_load_dword a74, v30, %s, s92 offen\nbuffer_load_dword a75, v30, %s, s92 offen\ns_lshl_b32 s80, s2, 2\ns_add_u32 s80, s80, s%d\ns_lshl_b32 s80, s80, 11\n%s\nbuffer_load_dword a70, v30, %s, s80 offen\ns_mov_b64 exec, -1" % (lanes(0, 14), srd(S_WG), srd(S_WU), S_W, lanes(0, 16), srd(S_X))
def touch_x(): return "%s\nbuffer_load_dword a70, v30, %s, s90 offen\ns_mov_b64 exec, -1" % (lanes(0, 32), srd(S_X))
def touch_wd_global(): return "%s\nbuffer_load_dword a71, v30, %s, s92 offen\ns_mov_b64 exec, -1" % (lanes(0, 14), srd(S_WD))
def touch_wd_xcd(): return "%s\nbuffer_load_dword a72, v30, %s, s93 offen\ns_add_u32 s93, s93, %d\nbuffer_load_dword a73, v30, %s, s93 offen\ns_mov_b64 exec, -1" % (lanes(0, 56), srd(S_WD), 56*128, srd(S_WD))

def build_C():
    g = G(); g.nlab = 2000; g.role = 0; g.nst = 1; St.names[0] = "C:start"
    g("Lcompute:")
    g("s_waitcnt lgkmcnt(0)")
    g("global_load_ushort v39, v63, s[30:31]")
    for i in range(6): g("global_load_ushort v%d, v32, s[%d:%d]" % (33 + i, 18 + 2*i, 19 + 2*i))
    epoch_load(g)
    srds2(g)
    kgen_addr(g); kgen_compact_addr(g); gemm1_raddr(g)
    tag_compute(g)
    kgen_W(g)
    g.wait(lg=0)
    stamp(g, "C:W done")
    g("s_barrier")
    stamp(g, 'C:Bk')
    kgen_mfma(g); kgen_compact(g)
    g.wait(lg=0)
    stamp(g, "C:K done")
    g("v_lshlrev_b32 v26, 4, v0\ns_lshr_b32 s80, s%d, 1\ns_lshl_b32 s80, s80, 10\nv_add_u32 v26, s80, v26\nv_xor_b32 v27, 0x400, v26" % S_W)
    g("s_lshl_b32 s94, s%d, 2\ns_add_u32 s94, s94, s%d\ns_lshl_b32 s94, s94, 14\ns_add_u32 s94, s94, 0x%x" % (S_NB, S_W, WDT_OFF))
    def wpre(kk, di): return (48 + 8*kk + 4*di) if kk < 6 else (8*(kk - 6) + 4*di)
    def load_w(kk):
        q = []
        pre = "s_add_u32 s93, s94, %d\n" % (kk*2048)
        for di in range(2):
            q.append(pre + "buffer_load_dwordx4 a[%d:%d], v%d, %s, s93 offen sc1" % (wpre(kk, di), wpre(kk, di) + 3, 26 + di, srd(S_WS))); pre = ""
        return q
    g("s_cmp_ge_u32 s%d, 28\ns_cbranch_scc1 Lnog1" % S_IDX)
    side = {}
    gemm1_main(g, side)
    stamp(g, "C:main1end")
    g("s_setprio %d" % OPT["cprio_epi"])
    hop = gemm1_epilogue(g, load_w)
    stamp(g, "C:epiend")
    if OPT["seq"]: g("s_barrier")
    if OPT["spoll"]:
        g("s_lshl_b32 s80, s%d, 1\ns_and_b32 s81, s%d, 1\ns_add_u32 s80, s80, s81\ns_lshl_b32 s80, s80, 9" % (S_MT, S_W))
        g("s_lshl_b32 s81, s%d, 1\ns_lshr_b32 s82, s%d, 1\ns_add_u32 s81, s81, s82\ns_mul_i32 s82, s81, 37\ns_lshr_b32 s82, s82, 8\ns_mul_i32 s82, s82, 100\ns_lshl_b32 s81, s81, 2\ns_add_u32 s80, s80, s81\ns_add_u32 s80, s80, s82\ns_add_u32 s87, s80, 0x%x" % (S_FT, S_W, FH_OFF))
    else:
        g("s_lshl_b32 s80, s%d, 1\ns_and_b32 s81, s%d, 1\ns_add_u32 s80, s80, s81\ns_lshl_b32 s80, s80, 5\ns_lshl_b32 s81, s%d, 1\ns_add_u32 s80, s80, s81\ns_lshr_b32 s81, s%d, 1\ns_add_u32 s80, s80, s81\ns_lshl_b32 s80, s80, 7\ns_add_u32 s87, s80, 0x%x" % (S_MT, S_W, S_FT, S_W, FH_OFF))
    g("s_branch Lg2")
    g("Lnog1:")
    g("v_lshrrev_b32 v5, 3, v0\nv_lshlrev_b32 v5, 10, v5\nv_bfe_u32 v6, v0, 4, 1\nv_lshlrev_b32 v6, 2, v6\nv_and_b32 v7, 7, v0\nv_xor_b32 v6, v6, v7\nv_lshlrev_b32 v6, 4, v6\nv_add_u32 v8, v5, v6")
    g("s_sub_u32 s82, s%d, 28" % S_IDX)
    g("s_lshr_b32 s83, s%d, 1\ns_add_u32 s83, s83, s%d\ns_cmp_ge_u32 s83, 7\ns_cselect_b32 s80, 7, 0\ns_sub_u32 s83, s83, s80" % (S_W, S_XCD))
    g("s_lshl_b32 s83, s83, 16\ns_and_b32 s80, s%d, 1\ns_lshl_b32 s80, s80, 15\ns_add_u32 s83, s83, s80\ns_mul_i32 s85, s82, %d\ns_add_u32 s83, s83, s85\ns_lshl_b32 s80, s%d, 7\ns_add_u32 s83, s83, s80\ns_lshl_b32 s84, s%d, 12" % (S_W, 448*1024, S_XCD, S_W))
    for i in range(4):
        g("s_add_u32 m0, s84, %d\ns_add_u32 s93, s83, %d\nbuffer_load_dwordx4 v8, %s, s93 offen lds" % (i*1024, i*8192, srd(S_WD)))
    g.raw("s_barrier"); g.raw("s_barrier")
    g("v_lshrrev_b32 v7, 5, v0\nv_lshlrev_b32 v7, 2, v7\nv_bfe_u32 v9, v0, 2, 2\nv_add_u32 v7, v7, v9\nv_lshlrev_b32 v7, 7, v7")
    g("v_bfe_u32 v9, v0, 3, 1\nv_lshlrev_b32 v9, 6, v9\nv_add_u32 v7, v7, v9\nv_bfe_u32 v9, v0, 4, 1\nv_lshlrev_b32 v9, 5, v9\nv_add_u32 v7, v7, v9")
    g("v_and_b32 v9, 3, v0\nv_lshlrev_b32 v9, 3, v9\nv_add_u32 v7, v7, v9\nv_add_u32 v5, s84, v7\nv_xor_b32 v6, 64, v5\nv_lshlrev_b32 v9, 4, v0")
    g("s_lshl_b32 s86, s%d, 2\ns_add_u32 s86, s86, s82\ns_lshl_b32 s86, s86, 2\ns_add_u32 s86, s86, s%d" % (S_XCD, S_W))
    g("s_lshl_b32 s83, s86, 12\ns_add_u32 s83, s83, 0x%x" % WDT_OFF)
    g.wait(vm=0)
    for k in range(2):
        for di in range(2):
            for h in range(2):
                b = 32 + 8*k + 4*di + 2*h
                g("ds_read_b64_tr_b16 v[%d:%d], v%d offset:%d" % (b, b+1, 5 + di, k*2048 + h*1024))
    for k in range(4):
        g("buffer_store_dwordx4 v[%d:%d], v9, %s, s83 offen offset:%d sc1" % (32 + 4*k, 35 + 4*k, srd(S_WS), k*1024))
    g("s_lshl_b32 s80, s86, 5\ns_add_u32 s80, s80, 0x%x" % FW_OFF)
    g.raw("s_barrier")
    g.wait(vm=0)
    flag_store(g, 80, 10)
    g.raw("s_barrier")
    g("s_sub_u32 s80, s2, 224\ns_lshl_b32 s80, s80, 2\ns_add_u32 s80, s80, s%d\ns_mul_i32 s93, s80, %d\nv_lshlrev_b32 v30, 7, v0" % (S_W, 112*128))
    g(touch_wd_xcd())
    for _ in range(5): g.raw("s_barrier")
    if OPT["wpos"] == 0:
        for kk in range(8):
            for t in load_w(kk): g(t)
    if OPT["seq"]: g.raw("s_barrier")
    g("s_mov_b32 s87, 0x%x" % (EP_OFF + 256))
    g("Lg2:")
    chunk_ids(g)
    g("v_lshrrev_b32 v7, 5, v0\nv_lshlrev_b32 v7, 2, v7\nv_bfe_u32 v8, v0, 2, 2\nv_add_u32 v7, v7, v8\nv_lshlrev_b32 v7, 7, v7")
    g("v_bfe_u32 v8, v0, 3, 1\ns_lshr_b32 s80, s%d, 1\nv_xor_b32 v8, s80, v8\nv_lshlrev_b32 v8, 6, v8\nv_add_u32 v7, v7, v8\nv_bfe_u32 v8, v0, 4, 1\nv_lshlrev_b32 v8, 5, v8\nv_add_u32 v7, v7, v8" % S_W)
    g("v_and_b32 v8, 3, v0\nv_lshlrev_b32 v8, 3, v8\nv_add_u32 v7, v7, v8\nv_add_u32 v5, s95, v7\nv_xor_b32 v6, 64, v5")
    g("v_add_u32 v28, 0x%x, v5\nv_add_u32 v29, 0x%x, v6" % (WDB1 - WDA, WDB1 - WDA))
    g("v_add_u32 v7, s25, v7\nv_xor_b32 v30, 64, v7")
    g("v_lshlrev_b32 v3, 4, v0\ns_and_b32 s80, s%d, 1\ns_mul_i32 s81, s80, %d\ns_xor_b32 s80, s80, 1\ns_mul_i32 s80, s80, %d\nv_add_u32 v4, s80, v3\nv_add_u32 v3, s81, v3" % (S_W, 112*1024, 112*1024))
    g("s_mul_i32 s91, s%d, %d\ns_mul_i32 s80, s%d, %d\ns_add_u32 s91, s91, s80\ns_add_u32 s91, s91, 0x%x" % (S_TB2, 2*112*1024, S_W, 28*1024, H_OFF))
    g.raw("s_waitcnt vmcnt(0)"); g.vm_done = g.vm_seq
    flag_store(g, 87, 8)
    stamp(g, "C:flag0")
    if OPT["wpos"] == 1:
        for kk in range(8):
            for t in load_w(kk): g(t)
    epoch_bump(g)
    stamp(g, "C:flag")
    if OPT["spoll"]:
        g("s_lshl_b32 s80, s%d, 9\ns_lshl_b32 s81, s%d, 7\ns_add_u32 s80, s80, s81\ns_add_u32 s80, s80, 0x%x\ns_add_u32 s50, s48, s80\ns_addc_u32 s51, s49, 0" % (S_TB2, S_W, FH_OFF))
        spoll(g, 7)
    else:
        g("v_min_u32 v8, 6, v0\nv_lshlrev_b32 v8, 7, v8")
        g("s_lshl_b32 s80, s%d, 12\ns_mul_i32 s81, s%d, 896\ns_add_u32 s80, s80, s81\ns_add_u32 s80, s80, 0x%x" % (S_TB2, S_W, FH_OFF))
        poll(g, 8, 80, 9)
    stamp(g, "C:polled")
    RING = 12
    def hreg(kk, ti):
        i = kk % RING
        return ("v[%d:%d]" % (32 + 8*i + 4*ti, 32 + 8*i + 4*ti + 3)) if i < 8 else ("a[%d:%d]" % (16 + 8*(i-8) + 4*ti, 16 + 8*(i-8) + 4*ti + 3))
    def load_h(kk):
        q = []
        pre = "s_lshl_b32 s90, s%d, 12\ns_add_u32 s90, s90, s91\n" % (18 + kk//4) if kk % 4 == 0 else ""
        for ti in range(2):
            q.append(pre + "buffer_load_dwordx4 %s, v%d, %s, s90 offen offset:%d sc1" % (hreg(kk, ti), 3 + ti, srd(S_WS), (kk % 4)*1024)); pre = ""
        return q
    PRE = OPT["pre"]
    for kk in range(PRE):
        for t in load_h(kk): g(t)
    g("v_lshlrev_b32 v2, 4, v0\nv_add_u32 v2, s95, v2")
    def wreg(kk, di):
        return ("a[%d:%d]" % (wpre(kk, di), wpre(kk, di) + 3)) if kk < 8 else ("v[%d:%d]" % (10 + 8*(kk & 1) + 4*di, 13 + 8*(kk & 1) + 4*di))
    def reads(kk):
        c, s = divmod(kk, 4); q = []
        for di in range(2):
            va, off = {2: ((5, 6), 0), 3: ((5, 6), 8192), 4: ((7, 30), 0), 5: ((28, 29), 0), 6: ((28, 29), 8192)}[c]
            for h in range(2):
                b = 10 + 8*(kk & 1) + 4*di + 2*h
                q.append("ds_read_b64_tr_b16 v[%d:%d], v%d offset:%d" % (b, b+1, va[di], off + s*2048 + h*1024))
        return q
    nh = PRE
    for kk in range(28):
        if kk in (1, 4, 8, 12, 16, 20, 24): stamp(g, "C:k%d" % kk)
        nx = reads(kk + 1) if 8 <= kk + 1 < 28 else []
        lq = []
        if nh < 28 and nh < kk + RING: lq = load_h(nh); nh += 1
        n = 0
        for di, ti in (((0,0),(0,1),(1,0),(1,1)) if kk < 27 else ((0,1),(1,0),(1,1),(0,0))):
            if True:
                a = 96 + 32*di + 16*ti
                c = "0" if kk == 0 else "v[%d:%d]" % (a, a+15)
                g("v_mfma_f32_32x32x16_bf16 v[%d:%d], %s, %s, %s" % (a, a+15, wreg(kk, di), hreg(kk, ti), c))
                if n == 0:
                    if kk + 1 == 16 or (kk + 1 == 8 and not OPT["seq"]): g("s_barrier")
                    for r in nx: g(r)
                elif lq: g(lq.pop(0))
                n += 1
    assert nh == 28
    stamp(g, "C:main2end")
    g("v_lshlrev_b32 v10, 4, v0")
    fin_addr(g, 24, 0)
    for q in (1, 2, 3):
        for j in range(4):
            g("ds_write_b128 v2, v[%d:%d] offset:%d" % (96 + 16*q + 4*j, 96 + 16*q + 4*j + 3, (q-1)*4096 + j*1024))
    for j in range(2): g("ds_write_b128 v2, v[%d:%d] offset:%d" % (104 + 4*j, 107 + 4*j, 12288 + j*1024))
    g.wait(lg=0)
    stamp(g, "C:a13")
    g("s_barrier")
    stamp(g, "C:B13")
    for j in range(2):
        for sw in (1, 2, 3): g("ds_read_b128 v[%d:%d], v%d offset:%d" % (96 + 8*sw + 4*j, 99 + 8*sw + 4*j, 24 + sw, j*1024))
    g("ds_read_b128 v[44:47], v2 offset:14336")
    g("ds_read_b32 v3, v2 offset:15360")
    fin_math(g, 96, 44, 3, 28)
    stamp(g, "C:stores")
    if STAMPS:
        g.wait(vm=0); stamp(g, "C:drained")
    stamp_store(g)
    g("Lend:")
    g("s_endpgm")
    return g.text()

if __name__ == "__main__":
    if len(sys.argv) > 2 and sys.argv[2] != "-": STAMPS = sys.argv[2]
    for a in sys.argv[3:]:
        k, v = a.split("="); OPT[k] = int(v)
    h1, h2 = build_H(); body = h1 + build_C() + h2
    open(sys.argv[1], "w").write(build_file([(KN, 256, 512, 163840, body, 256, 100, 160)], single=True))
    if STAMPS:
        import json; json.dump(St.names, open("stnames.json", "w"))
```

```python
import sys, struct, math
from gen import *

def f2u(x): return struct.unpack("<I", struct.pack("<f", x))[0]
UT_OFF = 0x1400000; UT_ROW = 4224; UT_STRIDE = 8448
H_OFF = 0x400000
AT_OFF = 0xC00000
G_OFF = 0xE00000
FT_OFF = 0xE20000
FH_OFF = 0xE40000
FA_OFF = 0xE60000
EP_OFF = 0xE10000
FW_OFF = 0xE80000
WDT_OFF = 0x1A00000
DBG_OFF = 0x1000000
WS_BYTES = 268435456
BUF = [0, 49152, 98304]
TBLK = 147456
KT = 98304; KT_CH = 28672; KT_IM = 14336
KC = 160768; KC_CH = 1536
KF = 154624; KF_CH = 4608; KF_PL = 2304
UEE = [98304, 131840]; UEO = [115072, 128]
XCH = [16640, 20736, 24832, 148480]
WDA = 32768; WDB1 = 98304
RED_AT = 49152; RED_G = 57344
S_X, S_WG, S_WU, S_WD, S_WS, S_OUT = 52, 56, 60, 64, 68, 72
S_X1 = 36
S_XCD, S_IDX, S_W, S_CH = 76, 77, 78, 79
S_MT, S_FT = 88, 89
S_TAG, S_TB2, S_NB, S_SPIN = 96, 97, 98, 99
LOG2E = 1.4426950408889634
STAMPS = False
OPT = dict(hprio=0, cprio_epi=3, rot=1, pk=1, seq=1, pre=6, pfirst=0, psleep=1, b11first=0, l2t=0, wsleep=0, a5=0, wpos=1, spoll=1, nr7=8, cprio2=0)
def srd(r): return "s[%d:%d]" % (r, r+3)
class St:
    names = {}
def stamp(g, name):
    if not STAMPS: return
    g.raw("%s s[6:7]" % STAMPS); g.smem_pending = True; g.wait(lg=0)
    g.raw("v_writelane_b32 v31, s6, %d" % g.nst)
    St.names[g.role*48 + g.nst] = name
    g.nst += 1
    assert g.nst <= 48
def stamp_store(g):
    if not STAMPS: return
    L = g.lab("Lst")
    g("s_cmp_lg_u32 s%d, 0\ns_cbranch_scc1 %s" % (S_W, L))
    g.raw("v_writelane_b32 v31, s4, 0")
    g.raw("s_getreg_b32 s6, hwreg(HW_REG_XCC_ID)"); g.raw("v_writelane_b32 v31, s6, 47")
    g.raw("s_mul_i32 s3, s2, 384"); g.raw("s_add_u32 s3, s3, 0x%x" % (DBG_OFF + g.role*192)); g.raw("v_lshlrev_b32 v1, 2, v0")
    g.raw("s_mov_b32 exec_hi, 0xffff")
    g.raw("buffer_store_dword v31, v1, %s, s3 offen" % srd(S_WS))
    if OPT.get("dbg") and g.role == 0:
        inv = {v: k for k, v in St.names.items()}
        sel = ["C:start", "C:Bk", "C:B0", "C:B1", "C:B2", "C:B4", "C:B6", "C:main1end", "C:epiend", "C:flag0", "C:polled", "C:k16", "C:main2end", "C:B13", "C:drained"]
        g.raw("s_cmp_ge_u32 s2, 224"); g.raw("s_cbranch_scc1 %s" % L)
        g.raw("s_not_b32 s6, s4"); g.raw("v_writelane_b32 v30, s6, 0")
        for i, n in enumerate(sel):
            g.raw("v_readlane_b32 s6, v31, %d" % inv[n]); g.raw("s_nop 3"); g.raw("v_writelane_b32 v30, s6, %d" % (i + 1))
        g.raw("s_mov_b64 exec, 0xffff")
        g.raw("global_atomic_umax v1, v30, s[46:47]")
    g.raw("s_mov_b64 exec, -1")
    g(L + ":")

def tag_compute(g):
    g("s_mul_i32 s%d, s%d, 0x9E3779B1\ns_add_u32 s%d, s%d, 0x7F4A7C15" % (S_TAG, S_TAG, S_TAG, S_TAG))
def poll(g, vaddr, soff, vtmp, width=1):
    L, D = g.lab("Lp"), g.lab("Lpd")
    g("s_mov_b32 s%d, 0x40000" % S_SPIN)
    g(L + ":")
    if width == 1: g.raw("buffer_load_dword v%d, v%d, %s, s%d offen sc1" % (vtmp, vaddr, srd(S_WS), soff))
    else: g.raw("buffer_load_dwordx2 v[%d:%d], v%d, %s, s%d offen sc1" % (vtmp, vtmp+1, vaddr, srd(S_WS), soff))
    g.raw("s_waitcnt vmcnt(0)"); g.vm_done = g.vm_seq
    g.raw("v_cmp_ne_u32 vcc, s%d, v%d" % (S_TAG, vtmp + width - 1))
    g.raw("s_nop 4")
    g.raw("s_cmp_eq_u64 vcc, 0")
    g.raw("s_cbranch_scc1 %s" % D)
    g.raw("s_sleep %d" % OPT["psleep"])
    g.raw("s_sub_u32 s%d, s%d, 1" % (S_SPIN, S_SPIN))
    g.raw("s_cmp_lg_u32 s%d, 0" % S_SPIN)
    g.raw("s_cbranch_scc1 %s" % L)
    g(D + ":")
def spoll(g, n, off=0):
    L, D = g.lab("Ls"), g.lab("Lsd")
    g("s_mov_b32 s%d, 0x40000" % S_SPIN)
    g(L + ":")
    g.raw("s_load_dwordx8 s[8:15], s[50:51], %d glc" % off)
    g.raw("s_waitcnt lgkmcnt(0)"); g.lg_done = g.lg_seq
    for i in range(n): g.raw("s_xor_b32 s%d, s%d, s%d" % (8 + i, 8 + i, S_TAG))
    for i in range(1, n): g.raw("s_or_b32 s8, s8, s%d" % (8 + i))
    g.raw("s_cbranch_scc0 %s" % D)
    g.raw("s_sleep %d" % OPT["psleep"])
    g.raw("s_sub_u32 s%d, s%d, 1" % (S_SPIN, S_SPIN))
    g.raw("s_cbranch_scc0 %s" % L)
    g(D + ":")
def spoll4(g):
    L, D = g.lab("Ls"), g.lab("Lsd")
    R = [8, 32, 40, 56]
    g("s_mov_b32 s%d, 0x40000" % S_SPIN)
    g(L + ":")
    for j, r in enumerate(R): g.raw("s_load_dwordx8 s[%d:%d], s[50:51], %d glc" % (r, r + 7, 128*j))
    g.raw("s_mov_b32 s16, s%d" % S_TAG); g.raw("s_mov_b32 s17, s%d" % S_TAG)
    g.raw("s_waitcnt lgkmcnt(0)"); g.lg_done = g.lg_seq
    P = [r + 2*i for r in R for i in range(4)]
    for p in P: g.raw("s_xor_b64 s[%d:%d], s[%d:%d], s[16:17]" % (p, p+1, p, p+1))
    for p in P[1:]: g.raw("s_or_b64 s[8:9], s[8:9], s[%d:%d]" % (p, p+1))
    g.raw("s_cbranch_scc0 %s" % D)
    g.raw("s_sleep %d" % OPT["psleep"])
    g.raw("s_sub_u32 s%d, s%d, 1" % (S_SPIN, S_SPIN))
    g.raw("s_cbranch_scc0 %s" % L)
    g(D + ":")
def flag_store(g, soff, vt):
    g("v_mov_b32 v%d, s%d\nv_mov_b32 v%d, 0" % (vt, S_TAG, vt+1))
    g("s_mov_b64 exec, 1")
    g("buffer_store_dword v%d, v%d, %s, s%d offen sc1" % (vt, vt+1, srd(S_WS), soff))
    g("s_mov_b64 exec, -1")
class Rec:
    def __init__(self): self.q = []
    def __call__(self, t): self.q += [l for l in t.split("\n") if l.strip()]
def rec(f, *a):
    r = Rec(); f(r, *a); return r.q
def emit(g, f):
    return f(g) if callable(f) else g(f)
def weave(g, dmas, work):
    op = None; n = len(dmas); work = list(work)
    per = -(-len(work) // n) if n else 0
    for d in dmas:
        op = emit(g, d)
        for _ in range(per):
            if work: emit(g, work.pop(0))
    for w in work: emit(g, w)
    return op

def prologue(g):
    g("s_cmp_ge_u32 s2, 256")
    g("s_cbranch_scc1 Lend")
    if STAMPS: g.raw("%s s[4:5]" % STAMPS)
    if OPT.get("badmap"): g("s_lshr_b32 s3, s2, 5\ns_and_b32 s2, s2, 31\ns_lshl_b32 s2, s2, 3\ns_or_b32 s2, s2, s3")
    g("s_load_dwordx16 s[16:31], s[0:1], 0")
    g("s_load_dwordx16 s[32:47], s[0:1], 64")
    g("s_load_dwordx2 s[48:49], s[0:1], 128")
    g("v_lshrrev_b32 v1, 6, v0")
    g("v_and_b32 v0, 63, v0")
    g("s_and_b32 s%d, s2, 7" % S_XCD)
    g("s_lshr_b32 s%d, s2, 3" % S_IDX)
    g("v_readfirstlane_b32 s3, v1")
    g("s_mul_i32 s80, s%d, 37\ns_lshr_b32 s80, s80, 8" % S_IDX)
    g("s_mul_i32 s81, s80, 7\ns_sub_u32 s81, s%d, s81" % S_IDX)
    g("s_lshr_b32 s%d, s%d, 1\ns_lshl_b32 s%d, s%d, 2\ns_add_u32 s%d, s%d, s80" % (S_MT, S_XCD, S_MT, S_MT, S_MT, S_MT))
    g("s_and_b32 s%d, s%d, 1\ns_mul_i32 s%d, s%d, 7\ns_add_u32 s%d, s%d, s81" % (S_FT, S_XCD, S_FT, S_FT, S_FT, S_FT))
    g("s_lshl_b32 s%d, s%d, 2\ns_lshr_b32 s80, s%d, 3\ns_add_u32 s%d, s%d, s80\ns_and_b32 s%d, s%d, 7" % (S_TB2, S_XCD, S_IDX, S_TB2, S_TB2, S_NB, S_IDX))
    g("s_and_b32 s%d, s3, 3" % S_W)
    g("s_lshl_b32 s80, s%d, 6\ns_lshl_b32 s81, s%d, 1\ns_add_u32 s80, s80, s81\ns_lshr_b32 s81, s%d, 1\ns_add_u32 s%d, s80, s81" % (S_XCD, S_IDX, S_W, S_CH))
    g("s_lshl_b32 s80, s%d, 8\ns_and_b32 s81, s%d, 1\ns_lshl_b32 s81, s81, 7\ns_add_u32 s80, s80, s81" % (S_CH, S_W))
    g("v_lshlrev_b32 v32, 1, v0\nv_add_u32 v32, s80, v32")
    g("s_lshl_b32 s80, s%d, 1\nv_mov_b32 v63, s80" % S_CH)
    g("s_lshr_b32 s80, s%d, 1\ns_mul_i32 s80, s80, %d\ns_and_b32 s81, s%d, 1\ns_mul_i32 s81, s81, %d\ns_add_u32 s80, s80, s81\ns_add_u32 s80, s80, %d" % (S_W, KT_CH, S_W, 64*112, KT))
    g("v_mul_u32_u24 v62, 112, v0\nv_add_u32 v62, s80, v62")
    g("s_cmp_lt_u32 s3, 4")
    g("s_cbranch_scc1 Lcompute")
def epoch_load(g):
    g("s_add_u32 s50, s48, 0x%x\ns_addc_u32 s51, s49, 0" % EP_OFF)
    g("s_load_dword s%d, s[50:51], 0" % S_TAG)
def srds2(g):
    g.srd(S_X, 16, 2048*512*2)
    g.srd(S_WD, 40, 512*1792*2)
    g.srd(S_WS, 48, WS_BYTES)
    g.srd(S_OUT, 44, 2048*512*2)
def h_dma_addr(g):
    g("v_lshrrev_b32 v4, 3, v0\nv_lshlrev_b32 v4, 10, v4\nv_and_b32 v5, 7, v0\nv_lshrrev_b32 v6, 4, v0\nv_xor_b32 v7, v5, v6")
    g("v_lshlrev_b32 v7, 4, v7\nv_add_u32 v2, v4, v7\nv_xor_b32 v3, 64, v2")
    g("v_lshlrev_b32 v5, 4, v5\nv_add_u32 v29, v4, v5")
    g("s_lshl_b32 s90, s%d, 17\ns_lshl_b32 s80, s%d, 15\ns_add_u32 s90, s90, s80" % (S_MT, S_W))
    g("v_and_b32 v5, 15, v0\nv_lshlrev_b32 v7, 2, v6\nv_xor_b32 v5, v5, v7\nv_lshlrev_b32 v5, 4, v5")
    g("v_mul_u32_u24 v6, 3584, v6\nv_add_u32 v4, v6, v5")
    g("s_lshl_b32 s91, s%d, 8\ns_mul_i32 s80, s%d, %d\ns_add_u32 s91, s91, s80" % (S_FT, S_W, 16*3584))
    g("s_lshl_b32 s92, s%d, 12" % S_W)

def kbase(A):
    A("v_lshlrev_b32 v39, 16, v39\nv_mul_f32 v39, 0x%x, v39\nv_exp_f32 v39, v39\nv_lshlrev_b32 v33, 16, v33\nv_lshlrev_b32 v34, 16, v34" % f2u(LOG2E))
    A("v_cvt_pk_bf16_f32 v39, v39, v39\nv_lshlrev_b32 v39, 16, v39")
    A("v_mul_f32 v33, v39, v33\nv_mul_f32 v34, v39, v34")
    A("v_mul_f32 v33, 0x%x, v33\nv_mul_f32 v34, 0x%x, v34" % (f2u(LOG2E), f2u(1/(2*math.pi))))
def kpower(A, e, d, t):
    if e == 1: A("v_exp_f32 v%d, v33\nv_fract_f32 v%d, v34" % (t, t+1))
    else:
        A("v_mul_f32 v%d, 0x%x, v33\nv_mul_f32 v%d, 0x%x, v34" % (t, f2u(e), t+1, f2u(e)))
        A("v_exp_f32 v%d, v%d\nv_fract_f32 v%d, v%d" % (t, t, t+1, t+1))
    A("v_cos_f32 v%d, v%d\nv_sin_f32 v%d, v%d" % (d, t+1, d+1, t+1))
    A("v_mul_f32 v%d, v%d, v%d\nv_mul_f32 v%d, v%d, v%d" % (d, t, d, d+1, t, d+1))
def cm1(d, x, y): return "v_pk_mul_f32 v[%d:%d], v[%d:%d], v[%d:%d] op_sel:[0,0] op_sel_hi:[0,1]" % (d, d+1, x, x+1, y, y+1)
def cm2(d, x, y): return "v_pk_fma_f32 v[%d:%d], v[%d:%d], v[%d:%d], v[%d:%d] op_sel:[1,1,0] op_sel_hi:[1,0,1] neg_lo:[1,0,0]" % (d, d+1, x, x+1, y, y+1, d, d+1)
def cmul2(A, a, b):
    A(cm1(*a)); A(cm1(*b)); A(cm2(*a)); A(cm2(*b))
def kgen_W(A):
    kbase(A)
    for r in range(35, 39): A("v_lshlrev_b32 v%d, 16, v%d" % (r, r))
    A("v_mul_f32 v35, v39, v35\nv_mul_f32 v36, v39, v36")
    R = lambda i: 88 + 2*i
    A("v_mul_f32 v88, v37, v35\nv_mul_f32 v89, v37, v36\nv_fma_f32 v88, -v38, v36, v88\nv_fma_f32 v89, v38, v35, v89")
    Z1, Z2, ZB = 40, 42, 44
    kpower(A, 1, Z1, 46); kpower(A, 2, Z2, 48); kpower(A, 256, ZB, 50)
    def pack(i):
        x, y = R(2*i), R(min(2*i+1, 20))
        A("v_cvt_pk_bf16_f32 v%d, v%d, v%d" % (64 + i, x, y)); A("v_cvt_pk_bf16_f32 v%d, -v%d, -v%d" % (76 + i, x+1, y+1))
    cmul2(A, (R(1), R(0), Z1), (R(2), R(0), Z2))
    cmul2(A, (R(8), R(0), ZB), (R(3), R(1), Z2)); pack(0)
    cmul2(A, (R(4), R(2), Z2), (R(12), R(8), ZB)); pack(1)
    cmul2(A, (R(5), R(3), Z2), (R(9), R(2), ZB))
    cmul2(A, (R(6), R(4), Z2), (R(14), R(12), ZB)); pack(2); pack(4)
    cmul2(A, (R(7), R(5), Z2), (R(10), R(4), ZB))
    cmul2(A, (R(16), R(14), ZB), (R(11), R(6), ZB)); pack(3)
    cmul2(A, (R(13), R(10), ZB), (R(17), R(16), ZB)); pack(5)
    cmul2(A, (R(15), R(13), ZB), (R(18), R(17), ZB)); pack(6); pack(8)
    A(cm1(R(19), R(18), ZB)); pack(7); A(cm2(R(19), R(18), ZB))
    A("ds_write_b128 v62, v[64:67]\nds_write_b128 v62, v[76:79] offset:%d" % KT_IM)
    A(cm1(R(20), R(19), ZB)); pack(9); A(cm2(R(20), R(19), ZB))
    A("ds_write_b128 v62, v[68:71] offset:16\nds_write_b128 v62, v[80:83] offset:%d" % (KT_IM + 16))
    pack(10)
    A("ds_write_b128 v62, v[72:75] offset:32\nds_write_b128 v62, v[84:87] offset:%d" % (KT_IM + 32))
def kgen_E(A):
    kbase(A)
    Z8, Z16 = 40, 42
    kpower(A, 8, Z8, 46); kpower(A, 16, Z16, 48)
    A("v_cvt_pk_bf16_f32 v64, 1.0, v%d\nv_cvt_pk_bf16_f32 v80, 0, v%d" % (Z8, Z8 + 1))
    ev, od = Z16, Z8
    A(cm1(50, od, Z16)); A(cm2(50, od, Z16)); od = 50
    for i in range(1, 16):
        ne, no = (52, 54) if i % 2 else (56, 58)
        if i < 15: A(cm1(ne, ev, Z16)); A(cm1(no, od, Z16))
        A("v_cvt_pk_bf16_f32 v%d, v%d, v%d" % (64 + i, ev, od)); A("v_cvt_pk_bf16_f32 v%d, v%d, v%d" % (80 + i, ev + 1, od + 1))
        if i < 15: A(cm2(ne, ev, Z16)); A(cm2(no, od, Z16))
        ev, od = ne, no
        if i % 4 == 3:
            j = i // 4
            A("ds_write_b128 v62, v[%d:%d] offset:%d" % (64 + 4*j, 67 + 4*j, 48 + 16*j))
            A("ds_write_b128 v62, v[%d:%d] offset:%d" % (80 + 4*j, 83 + 4*j, KT_IM + 48 + 16*j))
def kgen_addr(g):
    g("s_lshr_b32 s80, s%d, 1\ns_mul_i32 s80, s80, %d\ns_add_u32 s80, s80, %d" % (S_W, KT_CH, KT))
    g("v_lshrrev_b32 v140, 2, v0\nv_mul_u32_u24 v140, 112, v140\nv_and_b32 v141, 3, v0\nv_lshlrev_b32 v141, 3, v141\nv_add_u32 v140, v140, v141\nv_add_u32 v140, s80, v140")
    g("s_and_b32 s81, s%d, 1\ns_lshl_b32 s81, s81, 5\ns_add_u32 s81, s81, 48\nv_add_u32 v141, s81, v140" % S_W)
def kgen_mfma(g):
    def kmf(ks):
        b = 12 * ks
        c0 = "0" if ks == 0 else "v[32:35]"; c1 = "0" if ks == 0 else "v[36:39]"
        g("v_mfma_f32_16x16x32_bf16 v[32:35], a[%d:%d], a[%d:%d], %s" % (b, b+3, b+8, b+11, c0))
        g("v_mfma_f32_16x16x32_bf16 v[36:39], a[%d:%d], a[%d:%d], %s" % (b+4, b+7, b+8, b+11, c1))
    for ks in range(8):
        off = (ks >> 2) * KT_IM + (ks & 3) * 32 * 112
        b = 12 * ks
        for h in range(2):
            g("ds_read_b64_tr_b16 a[%d:%d], v140 offset:%d" % (b + 2*h, b + 2*h + 1, off + h*16*112))
            g("ds_read_b64_tr_b16 a[%d:%d], v140 offset:%d" % (b + 4 + 2*h, b + 4 + 2*h + 1, off + h*16*112 + 32))
            g("ds_read_b64_tr_b16 a[%d:%d], v141 offset:%d" % (b + 8 + 2*h, b + 8 + 2*h + 1, off + h*16*112))
        if ks >= 2: kmf(ks - 2)
    kmf(6); kmf(7)
def kgen_compact_addr(g):
    g("s_and_b32 s81, s%d, 1\ns_lshl_b32 s81, s81, 4" % S_W)
    g("v_and_b32 v152, 15, v0\nv_add_u32 v152, s81, v152")
    g("v_lshrrev_b32 v153, 4, v0")
    g("v_lshlrev_b32 v154, 3, v152\nv_lshlrev_b32 v155, 2, v153\nv_add_u32 v154, v154, v155")
    g("v_lshlrev_b32 v155, 2, v152\nv_add_u32 v155, 0x100, v155")
    g("v_lshlrev_b32 v156, 1, v152\nv_add_u32 v156, 0x180, v156")
    g("v_cmp_eq_u32 vcc, 2, v153\nv_cndmask_b32 v154, v154, v155, vcc")
    g("v_cmp_eq_u32 vcc, 3, v153\nv_cndmask_b32 v154, v154, v156, vcc")
    g("v_mov_b32 v155, 2\nv_mov_b32 v156, 64\nv_cndmask_b32 v155, v155, v156, vcc\nv_add_u32 v155, v154, v155")
    g("s_lshr_b32 s80, s%d, 1\ns_mul_i32 s80, s80, %d\ns_add_u32 s80, s80, %d" % (S_W, KC_CH, KC))
    g("v_lshlrev_b32 v154, 1, v154\nv_add_u32 v142, s80, v154")
    g("v_lshlrev_b32 v155, 1, v155\nv_add_u32 v143, s80, v155")
    g("v_min_u32 v156, 1, v153\nv_lshlrev_b32 v156, 7, v156\nv_add_u32 v156, v156, v152\nv_add_u32 v156, 0x200, v156")
    g("v_lshlrev_b32 v156, 1, v156\nv_add_u32 v144, s80, v156")
def kgen_compact(g):
    g("v_cvt_pk_bf16_f32 v32, v32, v33\nv_cvt_pk_bf16_f32 v33, v34, v35\nv_cvt_pk_bf16_f32 v34, v36, v37\nv_cvt_pk_bf16_f32 v35, v38, v39")
    g("ds_write_b32 v142, v32\nds_write_b32 v143, v33")
    g("s_mov_b32 exec_hi, 0\nds_write_b16 v144, v34\nds_write_b16_d16_hi v144, v34 offset:64\nds_write_b16 v144, v35 offset:128\nds_write_b16_d16_hi v144, v35 offset:192\ns_mov_b32 exec_hi, -1")
def kfull_addr(g):
    g("s_lshl_b32 s80, s%d, 9\nv_lshlrev_b32 v152, 3, v0\nv_add_u32 v152, s80, v152" % S_W)
    for e in range(8):
        g("v_add_u32 v153, %d, v152" % (7 - e))
        g("v_cvt_f32_u32 v154, v153\nv_cvt_pk_bf16_f32 v154, v154, v154\nv_and_b32 v154, 0xffff, v154")
        g("v_subrev_u32 v154, 0x%x, v154" % (0x4300 - 128))
        g("v_cmp_gt_u32 vcc, 0x80, v153\nv_cndmask_b32 v154, v154, v153, vcc\nv_lshlrev_b32 v154, 1, v154")
        g("v_add_u32 v%d, 0x%x, v154" % (144 + e, KC))
    g("v_lshrrev_b32 v153, 4, v152\nv_lshlrev_b32 v153, 4, v153")
    g("v_and_b32 v154, 1, v0\nv_mul_u32_u24 v154, %d, v154" % KF_PL)
    g("v_add_u32 v153, v153, v154\nv_add_u32 v26, 0x%x, v153" % (KF + 256))
    g("v_lshrrev_b32 v153, 4, v0\nv_mul_u32_u24 v153, %d, v153\nv_and_b32 v154, 15, v0\nv_lshlrev_b32 v154, 4, v154\nv_add_u32 v153, v153, v154\nv_add_u32 v27, 0x%x, v153" % (KF_PL, KF))
def kfull_read(g):
    for ch in range(2):
        for e in range(8):
            g("ds_read_u16 v%d, v%d offset:%d" % (64 + 8*ch + e, 144 + e, ch*KC_CH))
    for ch in range(2):
        for e in range(4):
            g("v_lshl_or_b32 v%d, v%d, 16, v%d" % (52 + 4*ch + e, 64 + 8*ch + 2*e + 1, 64 + 8*ch + 2*e))
    g("v_mov_b32 v64, 0\nv_mov_b32 v65, 0\nv_mov_b32 v66, 0\nv_mov_b32 v67, 0")
def kfull_write(g):
    g("ds_write_b128 v27, v[64:67]")
    for ch in range(2): g("ds_write_b128 v26, v[%d:%d] offset:%d" % (52 + 4*ch, 55 + 4*ch, ch*KF_CH))

def T_load(g):
    g("s_lshl_b32 s80, s%d, 16\ns_lshl_b32 s81, s%d, 14\ns_add_u32 s80, s80, s81\ns_lshl_b32 s81, s%d, 7\ns_add_u32 s80, s80, s81" % (S_IDX, S_W, S_XCD))
    g("s_mul_i32 s82, s%d, 2112" % S_W)
    L = g.lab("Lt0")
    g("s_cmp_lg_u32 s%d, 0\ns_cbranch_scc1 %s" % (S_W, L))
    g.raw("s_mov_b32 m0, %d" % TBLK); g.raw("s_sub_u32 s81, s80, 8192")
    g.raw("buffer_load_dwordx4 v29, %s, s81 offen lds" % srd(S_X))
    g(L + ":")
    g("s_add_u32 m0, s82, %d" % (TBLK + 1056))
    g("buffer_load_dwordx4 v29, %s, s80 offen lds" % srd(S_X))
    g("s_add_u32 m0, s82, %d\ns_add_u32 s80, s80, 8192" % (TBLK + 2112))
    return g("buffer_load_dwordx4 v29, %s, s80 offen lds" % srd(S_X))
def T_addr(g):
    g("v_and_b32 v16, 3, v0\nv_lshrrev_b32 v5, 5, v0\nv_lshlrev_b32 v5, 2, v5\nv_add_u32 v16, v16, v5\nv_mul_u32_u24 v16, 1056, v16")
    g("v_bfe_u32 v5, v0, 2, 2\nv_lshlrev_b32 v6, 7, v5\nv_add_u32 v16, v16, v6")
    g("v_bfe_u32 v6, v0, 4, 1\nv_lshlrev_b32 v6, 3, v6\nv_add_u32 v16, v16, v6")
    g("s_lshl_b32 s10, s%d, 5\ns_add_u32 s10, s10, %d\nv_add_u32 v16, s10, v16" % (S_W, TBLK + 1056 - 128))
    g("v_subrev_u32 v19, 32, v16\nv_cmp_eq_u32 vcc, 0, v5\nv_cndmask_b32 v19, v16, v19, vcc")
    g("v_bfe_u32 v5, v0, 4, 1\nv_lshlrev_b32 v5, 2, v5\nv_and_b32 v6, 3, v0\nv_add_u32 v5, v5, v6")
    g("v_mul_u32_u24 v5, 160, v5")
    g("v_bfe_u32 v6, v0, 2, 2\nv_lshlrev_b32 v6, 4, v6\nv_add_u32 v5, v5, v6")
    g("v_lshrrev_b32 v6, 5, v0\nv_lshlrev_b32 v6, 6, v6\nv_add_u32 v20, v5, v6")
    g("s_mul_i32 s10, s%d, 1280\ns_add_u32 s10, s10, %d\nv_add_u32 v20, s10, v20" % (S_W, TSCR))
    g("v_lshrrev_b32 v5, 3, v0\nv_and_b32 v6, 7, v0\nv_lshlrev_b32 v6, 4, v6\nv_mul_u32_u24 v17, 160, v5\nv_add_u32 v17, v17, v6\nv_add_u32 v17, s10, v17")
    g("v_mul_u32_u24 v5, %d, v5\nv_add_u32 v61, v5, v6" % UT_STRIDE)
    g("s_lshl_b32 s80, s%d, 2\ns_add_u32 s80, s80, s%d\ns_mul_i32 s10, s80, %d" % (S_XCD, S_W, 16*UT_STRIDE))
    g("s_add_u32 s11, s10, %d" % (UT_OFF + 96))
    g("s_lshl_b32 s81, s%d, 7\ns_add_u32 s10, s10, s81\ns_add_u32 s10, s10, %d" % (S_IDX, UT_OFF + 128))
    g("s_lshl_b32 s80, s80, 5\ns_add_u32 s80, s80, s%d\ns_lshl_b32 s80, s80, 5\ns_add_u32 s12, s80, 0x%x" % (S_IDX, FT_OFF))
    g("v_lshrrev_b32 v6, 1, v0\nv_mul_u32_u24 v6, %d, v6\nv_and_b32 v7, 1, v0\nv_lshlrev_b32 v7, 4, v7\nv_add_u32 v18, v6, v7" % UT_ROW)
def T_pad(g):
    for i in range(4): g("v_accvgpr_write_b32 a%d, 0" % (64 + i))
    L = g.lab("Lnz")
    g("s_cmp_lg_u32 s%d, 0\ns_cbranch_scc1 %s" % (S_IDX, L))
    g.raw("buffer_store_dwordx4 a[64:67], v18, %s, s11 offen sc1" % srd(S_WS))
    g(L + ":")
def T_reads():
    q = []
    for i in range(2):
        for cp in range(2):
            b = 48 + 8*i + 4*cp
            q.append("ds_read_b64_tr_b16 a[%d:%d], v%d offset:%d" % (b, b+1, 19 if cp else 16, 16*i + (1-cp)*128))
            q.append("ds_read_b64_tr_b16 a[%d:%d], v16 offset:%d" % (b+2, b+3, 16*i + (1-cp)*128 + 512))
    return q
TSCR = 157696
def T_relayout():
    q = []
    for k in range(4):
        b = 48 + 4*k
        q.append("ds_write_b128 v20, a[%d:%d]" % (b, b+3))
        q.append("ds_read_b128 a[%d:%d], v17" % (72 + 4*k, 75 + 4*k))
    return q
def T_stores():
    q = []
    for i in range(2):
        for cp in range(2):
            b = 72 + 8*i + 4*cp
            q.append("s_add_u32 s13, s10, %d\nbuffer_store_dwordx4 a[%d:%d], v61, %s, s13 offen sc1" % (i*8*UT_STRIDE + cp*UT_ROW, b, b+3, srd(S_WS)))
    return q
def T_flag_c(g):
    g("v_mov_b32 v16, s%d\nv_mov_b32 v17, 0\ns_mov_b64 exec, 1\nbuffer_store_dword v16, v17, %s, s12 offen sc1\ns_mov_b64 exec, -1" % (S_TAG, srd(S_WS)))

def g_load(g):
    g("s_lshl_b32 s83, s2, 3\ns_lshl_b32 s81, s%d, 1\ns_add_u32 s83, s83, s81\ns_lshl_b32 s81, s83, 10" % S_W)
    g("v_lshlrev_b32 v5, 4, v0")
    g("global_load_dwordx4 v[128:131], v5, s[42:43]")
    for j in range(2):
        g("buffer_load_dwordx4 v[%d:%d], v5, %s, s81 offen offset:%d" % (132 + 4*j, 135 + 4*j, srd(S_X), j*1024))
def g_compute(g):
    R = [140, 142]
    for r in R: g("v_mov_b32 v%d, 0" % r)
    for i in range(4):
        for j, r in enumerate(R): g("v_dot2_f32_bf16 v%d, v%d, v%d, v%d" % (r, 132 + 4*j + i, 128 + i, r))
        g("s_nop 0")
    g("s_nop 2")
    for mod in ("row_shr:1 row_mask:0xf bank_mask:0xf bound_ctrl:0", "row_shr:2 row_mask:0xf bank_mask:0xf bound_ctrl:0",
                "row_shr:4 row_mask:0xf bank_mask:0xf bound_ctrl:0", "row_shr:8 row_mask:0xf bank_mask:0xf bound_ctrl:0",
                "row_bcast:15 row_mask:0xa bank_mask:0xf", "row_bcast:31 row_mask:0xc bank_mask:0xf"):
        for r in R: g("v_add_f32_dpp v%d, v%d, v%d %s" % (r, r, r, mod))
    for t in ("v_cvt_pk_bf16_f32 v%d, v%d, v%d", "v_lshlrev_b32 v%d, 16, v%d", "v_mul_f32 v%%d, 0x%x, v%%d" % f2u(-LOG2E), "v_exp_f32 v%d, v%d",
              "v_add_f32 v%d, 1.0, v%d", "v_rcp_f32 v%d, v%d", "v_cvt_pk_bf16_f32 v%d, v%d, v%d", "v_lshlrev_b32 v%d, 16, v%d"):
        for r in R: g(t % ((r,) * t.count("%d")))
    g("v_mov_b32 v141, s%d\nv_mov_b32 v143, s%d\nv_mov_b32 v5, 0" % (S_TAG, S_TAG))
    g("s_lshl_b32 s80, s2, 3\ns_lshl_b32 s81, s%d, 1\ns_add_u32 s80, s80, s81\ns_lshl_b32 s80, s80, 3\ns_add_u32 s80, s80, 0x%x" % (S_W, G_OFF))
def g_store(g):
    g("s_mov_b32 exec_lo, 0\ns_mov_b32 exec_hi, 0x80000000")
    g("buffer_store_dwordx4 v[140:143], v5, %s, s80 offen sc1" % srd(S_WS))
    g("s_mov_b64 exec, -1")

def epoch_bump(g):
    L, P, D = g.lab("Leb"), g.lab("Lep"), g.lab("Led")
    g("s_cmp_lg_u32 s2, 255\ns_cbranch_scc1 %s" % L)
    g("s_cmp_lg_u32 s%d, 0\ns_cbranch_scc1 %s" % (S_W, L))
    for l in ("v_lshrrev_b32 v8, 5, v0", "v_lshlrev_b32 v8, 12, v8", "v_and_b32 v9, 31, v0", "v_lshlrev_b32 v9, 5, v9", "v_add_u32 v8, v8, v9", "v_add_u32 v9, 0x2000, v8", "v_add_u32 v10, 0x4000, v8", "v_add_u32 v11, 0x6000, v8",
              "s_mov_b32 s80, 0x%x" % FT_OFF, "s_mov_b32 s%d, 0x40000" % S_SPIN): g.raw(l)
    g(P + ":")
    for l in (*["buffer_load_dword v%d, v%d, %s, s80 offen sc1" % (12 + j, 8 + j, srd(S_WS)) for j in range(4)], "s_waitcnt vmcnt(0)",
              "v_xor_b32 v12, s%d, v12" % S_TAG, "v_xor_b32 v13, s%d, v13" % S_TAG, "v_xor_b32 v14, s%d, v14" % S_TAG, "v_xor_b32 v15, s%d, v15" % S_TAG,
              "v_or_b32 v12, v12, v13", "v_or_b32 v14, v14, v15", "v_or_b32 v12, v12, v14", "v_cmp_ne_u32 vcc, 0, v12", "s_nop 4",
              "s_cmp_eq_u64 vcc, 0", "s_cbranch_scc1 %s" % D, "s_sleep 4", "s_sub_u32 s%d, s%d, 1" % (S_SPIN, S_SPIN), "s_cmp_lg_u32 s%d, 0" % S_SPIN,
              "s_cbranch_scc1 %s" % P): g.raw(l)
    g(D + ":")
    g.raw("s_mov_b32 s80, 0x%x" % EP_OFF)
    g.raw("v_mov_b32 v8, s%d" % S_TAG); g.raw("v_mov_b32 v9, 0"); g.raw("s_mov_b64 exec, 1")
    g.raw("buffer_store_dword v8, v9, %s, s80 offen sc1" % srd(S_WS))
    g.raw("s_mov_b64 exec, -1")
    g(L + ":")

def uexp_addr(g):
    g("v_lshlrev_b32 v28, 2, v0")
    g("s_lshl_b32 s85, s%d, 6\ns_lshl_b32 s86, s%d, 1\ns_add_u32 s85, s85, s86\ns_mul_i32 s85, s85, %d" % (S_XCD, S_IDX, UT_STRIDE))
    g("s_lshl_b32 s86, s%d, 8\ns_add_u32 s85, s85, s86\ns_add_u32 s85, s85, %d" % (S_W, UT_OFF + 128 - 32))
    g("s_lshl_b32 s86, s%d, 10" % S_W)
def uexp_plane(ch, odd):
    lds = (UEO if odd else UEE)[ch]; src = ch*UT_STRIDE + (0 if odd else UT_ROW)
    q = ["s_add_u32 m0, s86, %d\ns_add_u32 s87, s85, %d\nbuffer_load_dwordx4 v28, %s, s87 offen sc1 lds" % (lds + j*4096, src + j*1024, srd(S_WS)) for j in range(4)]
    def tail(g):
        L = g.lab("Lw0")
        g("s_cmp_lg_u32 s%d, 0\ns_cbranch_scc1 %s" % (S_W, L))
        for l in ("s_mov_b64 exec, 0xff", "s_mov_b32 m0, %d" % (lds + 16384), "s_add_u32 s87, s85, %d" % (src + 4096),
                  "buffer_load_dwordx4 v28, %s, s87 offen sc1 lds" % srd(S_WS), "s_mov_b64 exec, -1"): g.raw(l)
        g(L + ":")
    return [tail] + q

def gemm1_dma(st):
    b = BUF[st % 3]; q = []
    pre = "s_add_u32 s9, s14, %d\ns_and_b32 s9, s9, 7\ns_lshl_b32 s35, s9, 7\ns_add_u32 s35, s35, s90\ns_mul_i32 s8, s9, %d\ns_add_u32 s8, s8, s91\n" % (st, 64*3584)
    for i in range(4):
        q.append((pre if i == 0 else "") + "s_add_u32 m0, s92, %d\ns_add_u32 s93, s35, %d\nbuffer_load_dwordx4 v%d, %s, s93 offen lds" % (b + i*1024, i*8192, 2 + (i & 1), srd(S_X)))
        q.append("s_add_u32 m0, s92, %d\ns_add_u32 s93, s8, %d\nbuffer_load_dwordx4 v4, %s, s93 offen lds" % (b + 16384 + i*1024, i*4*3584, srd(S_WG)))
        q.append("s_add_u32 m0, s92, %d\nbuffer_load_dwordx4 v4, %s, s93 offen lds" % (b + 32768 + i*1024, srd(S_WU)))
    return q

def cf(p, kind, i):
    if p == 0: return "a[%d:%d]" % ((0 if kind == "A" else 32) + 4*i, (0 if kind == "A" else 32) + 4*i + 3)
    return ("a[%d:%d]" % (64 + 4*i, 67 + 4*i)) if kind == "A" else ("v[%d:%d]" % (128 + 4*i, 131 + 4*i))
def sel(g, dst, c0, c1):
    g("s_cselect_b32 s%d, %d, %d" % (dst, c1, c0) if False else "s_mov_b32 s%d, %d" % (dst, c0))
def conv_addr(g):
    g("s_lshr_b32 s80, s%d, 1\ns_and_b32 s82, s%d, 1" % (S_W, S_W))
    g("s_mul_i32 s81, s80, %d\ns_add_u32 s81, s81, %d" % (UEE[1] - UEE[0], UEE[0]))
    g("s_mul_i32 s83, s80, %d\ns_sub_u32 s83, %d, s83" % (UEO[0] - UEO[1], UEO[0]))
    g("v_bfe_u32 v5, v0, 4, 1\nv_lshlrev_b32 v5, 1, v5\nv_lshrrev_b32 v6, 5, v0\nv_add_u32 v5, v5, v6")
    g("v_bfe_u32 v6, v0, 1, 3\nv_lshlrev_b32 v7, 2, v5\nv_sub_u32 v7, v6, v7\nv_add_u32 v7, 13, v7\nv_lshlrev_b32 v7, 4, v7")
    g("v_mov_b32 v8, s81\nv_mov_b32 v9, s83\nv_and_b32 v6, 1, v0\nv_cmp_eq_u32 vcc, 1, v6\nv_cndmask_b32 v8, v8, v9, vcc\nv_add_u32 v8, v8, v7")
    g("s_lshl_b32 s81, s82, 10\nv_add_u32 v8, s81, v8")
    g("v_and_b32 v13, 15, v0\nv_lshlrev_b32 v13, 7, v13\nv_lshrrev_b32 v14, 4, v0\nv_lshlrev_b32 v14, 5, v14\nv_add_u32 v13, v13, v14")
    g("s_lshl_b32 s81, s82, 13\ns_add_u32 s81, s81, s83\ns_add_u32 s81, s81, 128\nv_add_u32 v13, s81, v13")
    g("v_and_b32 v6, 15, v0\nv_lshrrev_b32 v7, 5, v0\nv_mul_u32_u24 v7, %d, v7\nv_bfe_u32 v9, v0, 4, 1\nv_add_u32 v9, v9, v6\nv_lshlrev_b32 v9, 4, v9\nv_add_u32 v7, v7, v9" % KF_PL)
    g("s_mul_i32 s81, s80, %d\ns_lshl_b32 s83, s82, 7\ns_sub_u32 s83, s81, s83\ns_add_u32 s83, s83, %d" % (KF_CH, KF + 16*(16 - 7)))
    g("v_add_u32 v9, s83, v7")
    g("v_lshlrev_b32 v10, 4, v0")
    g("s_lshl_b32 s81, s%d, 12\ns_add_u32 s81, s81, %d\ns_cmp_eq_u32 s%d, 3\ns_cselect_b32 s81, %d, s81\nv_add_u32 v12, s81, v10" % (S_W, XCH[0], S_W, XCH[3]))
    g("s_xor_b32 s83, s%d, 1\ns_lshl_b32 s81, s83, 12\ns_add_u32 s81, s81, %d\ns_cmp_eq_u32 s83, 3\ns_cselect_b32 s81, %d, s81\nv_add_u32 v11, s81, v10" % (S_W, XCH[0], XCH[3]))
    g("v_and_b32 v15, 15, v0\nv_lshlrev_b32 v15, 5, v15\nv_lshrrev_b32 v14, 4, v0\nv_lshlrev_b32 v14, 3, v14\nv_add_u32 v15, v15, v14")
    g("s_lshl_b32 s81, s%d, 12\ns_add_u32 s81, s81, %d\nv_add_u32 v15, s81, v15\nv_add_u32 v14, s81, v10" % (S_W, STG))
def conv_main(g, side):
    side = list(side)
    def reads(i):
        p = i & 1; q = []
        for a in range(8):
            q.append("ds_read_b128 %s, v8 offset:%d" % (cf(p, "A", a), a*2048 + i*256))
            q.append("ds_read_b128 %s, v9 offset:%d" % (cf(p, "B", a), a*256 + (3 - i)*32))
        return q
    for r in reads(0): g(r)
    first = set(); cnt = 0; last = None
    for i in range(4):
        p = i & 1
        nxt = reads(i + 1) if i < 3 else ["ds_read_b64 a[%d:%d], v13 offset:%d" % (2*cc, 1 + 2*cc, cc*2048) for cc in range(4)]
        pairs = sorted([(a, d) for a in range(8) for d in range(8) if a + d <= 7], key=lambda x: (max(x), x))
        for n, (a, d) in enumerate(pairs):
            c = a + d
            C = "v[%d:%d]" % (32 + 4*c, 35 + 4*c) if c in first else "0"
            first.add(c)
            g("v_mfma_f32_16x16x32_bf16 v[%d:%d], %s, %s, %s" % (32 + 4*c, 35 + 4*c, cf(p, "A", a), cf(p, "B", d), C))
            if n >= 12 and nxt: g(nxt.pop(0))
            elif n in (1, 3, 5, 7, 9, 11, 30, 33) and side: last = g(side.pop(0))
        assert not nxt
    assert not side
    for cc in range(4):
        for h in range(2):
            u = 128 + 2*cc + h; t = 136 + 4*cc + 2*h
            g("v_accvgpr_read_b32 v%d, a%d" % (u, 2*cc + h))
            g("v_lshlrev_b32 v%d, 16, v%d\nv_and_b32 v%d, 0xffff0000, v%d" % (t, u, t+1, u))
            g("v_mul_f32 v%d, v29, v%d\nv_mul_f32 v%d, v29, v%d" % (t, t, t+1, t+1))
            if cc == 0 and h == 1:
                L1, L2 = g.lab("Lx"), g.lab("Lx")
                g("s_and_b32 s82, s%d, 1\ns_cmp_lg_u32 s82, 0\ns_cbranch_scc1 %s" % (S_W, L1))
                for k in range(4): g.raw("ds_write_b128 v11, v[%d:%d] offset:%d" % (48 + 4*k, 51 + 4*k, k*1024))
                g("s_branch %s" % L2)
                g(L1 + ":")
                for k in range(4): g.raw("ds_write_b128 v11, v[%d:%d] offset:%d" % (32 + 4*k, 35 + 4*k, k*1024))
                g.nop(2)
                for r in range(16): g.raw("v_mov_b32 v%d, v%d" % (32 + r, 48 + r))
                g(L2 + ":")
                g.lg_seq += 4
            g("v_cvt_pk_bf16_f32 v%d, v%d, v%d" % (u, t, t+1))
            g("v_lshlrev_b32 v%d, 16, v%d\nv_and_b32 v%d, 0xffff0000, v%d" % (t, u, t+1, u))
    g.wait(lg=0)
    return last
def conv_fin(g):
    for r in range(16): g("v_add_f32 v%d, v%d, v%d" % (32 + r, 32 + r, 48 + r))
    for r in range(8): g("v_cvt_pk_bf16_f32 v%d, v%d, v%d" % (48 + r, 32 + 2*r, 33 + 2*r))
    for r in range(8): g("v_lshlrev_b32 v%d, 16, v%d\nv_and_b32 v%d, 0xffff0000, v%d" % (32 + 2*r, 48 + r, 33 + 2*r, 48 + r))
    for r in range(16): g("v_add_f32 v%d, v%d, v%d" % (32 + r, 32 + r, 136 + r))
    for r in range(8): g("v_cvt_pk_bf16_f32 v%d, v%d, v%d" % (48 + r, 32 + 2*r, 33 + 2*r))
    for cc in range(4): g("ds_write_b64 v15, v[%d:%d] offset:%d" % (48 + 2*cc, 49 + 2*cc, cc*512))
    for pr in range(2): g("ds_read_b128 v[%d:%d], v14 offset:%d" % (56 + 4*pr, 59 + 4*pr, pr*1024))
    g("s_and_b32 s82, s%d, 1\ns_lshl_b32 s81, s%d, 12\ns_lshl_b32 s83, s82, 11\ns_add_u32 s81, s81, s83\ns_add_u32 s81, s81, 0x%x" % (S_W, S_CH, AT_OFF))
    for pr in range(2):
        g("buffer_store_dwordx4 v[%d:%d], v10, %s, s81 offen offset:%d sc1" % (56 + 4*pr, 59 + 4*pr, srd(S_WS), pr*1024))

def chunk_ids(g):
    for c in range(7):
        g("s_add_u32 s%d, s%d, %d\ns_cmp_ge_u32 s%d, 7\ns_cselect_b32 s80, 7, 0\ns_sub_u32 s%d, s%d, s80" % (18 + c, S_NB, c, 18 + c, 18 + c, 18 + c))
    g("s_lshl_b32 s95, s%d, 14\ns_add_u32 s95, s95, %d\ns_lshl_b32 s25, s%d, 13" % (S_W, WDA, S_W))
def wd_setup(g, vreg):
    g("v_lshrrev_b32 v5, 3, v0\nv_lshlrev_b32 v5, 10, v5\nv_bfe_u32 v6, v0, 4, 1\nv_lshlrev_b32 v6, 2, v6\nv_and_b32 v7, 7, v0\nv_xor_b32 v6, v6, v7\nv_lshlrev_b32 v6, 4, v6\nv_add_u32 v%d, v5, v6" % vreg)
    g("s_mul_i32 s94, s%d, %d\ns_lshl_b32 s80, s%d, 7\ns_add_u32 s94, s94, s80" % (S_W, 448*1024, S_NB))
WSLOT = {2: (95, 0), 3: (95, 8192), 6: (95, 0)}
def wd_dma(c, vreg):
    sb, off = WSLOT[c]
    q = []
    for i in range(8):
        pre = "s_lshl_b32 s93, s%d, 16\ns_add_u32 s93, s93, s94\n" % (18 + c) if i == 0 else "s_add_u32 s93, s93, 8192\n"
        q.append("s_add_u32 m0, s%d, %d\n%sbuffer_load_dwordx4 v%d, %s, s93 offen lds" % (sb, off + i*1024, pre, vreg, srd(S_WD)))
    return q

def l2t_addr(g):
    g("s_lshl_b32 s80, s%d, 2\ns_add_u32 s80, s80, s%d\ns_lshl_b32 s26, s80, 12\ns_add_u32 s26, s26, 0x%x" % (S_IDX, S_W, WDT_OFF))
    g("s_lshr_b32 s27, s80, 5\ns_mul_i32 s27, s27, %d\ns_and_b32 s80, s80, 31\ns_lshl_b32 s80, s80, 11\ns_add_u32 s27, s27, s80" % (448*1024))
    g("v_and_b32 v24, 7, v0\nv_bfe_u32 v25, v0, 3, 1\nv_lshlrev_b32 v25, 10, v25\nv_lshlrev_b32 v23, 7, v24\nv_add_u32 v25, v25, v23")
    g("v_lshrrev_b32 v21, 4, v0\nv_add_u32 v21, v21, v24\nv_add_u32 v21, 2, v21\nv_subrev_u32 v23, 7, v21\nv_min_u32 v21, v21, v23\nv_lshlrev_b32 v21, 16, v21\nv_add_u32 v21, v21, v25")
    g("v_add_u32 v22, 6, v24\nv_subrev_u32 v23, 7, v22\nv_min_u32 v22, v22, v23\nv_lshlrev_b32 v22, 16, v22\nv_add_u32 v22, v22, v25")
    g("v_lshlrev_b32 v23, 7, v0")
def l2t(g):
    g("s_mov_b32 exec_hi, 0\nbuffer_load_dword v24, v23, %s, s26 offen sc1\ns_mov_b32 exec_hi, -1" % srd(S_WS))
    g("buffer_load_dword v25, v21, %s, s27 offen" % srd(S_WD))
    g("s_mov_b64 exec, 0xffff\nbuffer_load_dword v21, v22, %s, s27 offen\ns_mov_b64 exec, -1" % srd(S_WD))
def wd_reg(c):
    q = []
    for i in range(8):
        pre = "s_lshl_b32 s93, s%d, 16\ns_add_u32 s93, s93, s94\n" % (18 + c) if i == 0 else "s_add_u32 s93, s93, 8192\n"
        b = 64 + 32*(c - 4) + 4*i
        q.append("%sbuffer_load_dwordx4 v[%d:%d], v30, %s, s93 offen" % (pre, b, b+3, srd(S_WD)))
    return q
def dose(g, k):
    if OPT["l2t"] != 3: return
    if k < 4: g("%s\nbuffer_load_dword v%d, v21, %s, s27 offen\ns_mov_b64 exec, -1" % (lanes(16*k, 16*k + 16), 96 + k, srd(S_WD)))
    elif k == 4: g("%s\nbuffer_load_dword v100, v22, %s, s27 offen\ns_mov_b64 exec, -1" % (lanes(0, 16), srd(S_WD)))
    else: g("%s\nbuffer_load_dword v%d, v23, %s, s26 offen sc1\ns_mov_b64 exec, -1" % (lanes(16*(k-5), 16*(k-5) + 16), 96 + k, srd(S_WS)))
def H_part1(g, idle):
    D = (lambda st: []) if idle else gemm1_dma
    st_ = (lambda g, n: None) if idle else stamp
    def W(op):
        if op is not None: g.wait_op(op)
    g("global_load_ushort v39, v63, s[30:31]")
    g("global_load_ushort v33, v32, s[18:19]")
    g("global_load_ushort v34, v32, s[20:21]")
    g("global_load_ushort v126, v63, s[32:33]")
    if not idle:
        g.srd(S_WG, 36, 512*1792*2); g.srd(S_WU, 38, 512*1792*2)
    g.srd(S_X, 16, 2048*512*2)
    d = {}
    d[0] = weave(g, D(0), [])
    epoch_load(g)
    g.srd(S_WS, 48, WS_BYTES); g.srd(S_WD, 40, 512*1792*2); g.srd(S_OUT, 44, 2048*512*2)
    st_(g, "H:d0 issued")
    tag_compute(g)
    g("v_lshlrev_b32 v126, 16, v126")
    st_(g, "H:par")
    kgen_E(g)
    g.wait(lg=0)
    st_(g, "H:E done")
    g("s_barrier")
    d[1] = weave(g, D(1), rec(kfull_addr) + rec(T_addr))
    st_(g, "H:i0")
    W(d[0])
    g("s_barrier")
    tl = T_load(g)
    g("v_mov_b32 v29, v126")
    d[2] = weave(g, D(2), rec(kfull_read) + rec(l2t_addr))
    st_(g, "H:i1")
    g.wait(lg=0); g.wait_op(tl)
    g("s_barrier")
    for t in T_reads(): g(t)
    d[3] = weave(g, D(3), T_relayout())
    T_pad(g)
    for t in T_stores(): ts = g(t)
    st_(g, "H:i2")
    W(d[2])
    g("s_barrier")
    d[4] = weave(g, D(4), rec(kfull_write) + rec(uexp_addr))
    dose(g, 0)
    st_(g, "H:i3")
    g.wait(lg=0); g.wait_op(ts)
    T_flag_c(g)
    st_(g, "H:a3")
    g("s_barrier")
    d[5] = weave(g, D(5), [])
    dose(g, 1)
    conv_addr(g)
    st_(g, "H:i4")
    W(d[4])
    g("s_barrier")
    d[6] = weave(g, D(6), [])
    dose(g, 2); dose(g, 5)
    wd_setup(g, 30); chunk_ids(g)
    g("s_lshl_b32 s83, s%d, 2\ns_lshr_b32 s81, s%d, 3\ns_add_u32 s83, s83, s81\ns_lshl_b32 s83, s83, 10\ns_add_u32 s83, s83, 0x%x" % (S_XCD, S_IDX, FT_OFF))
    g("s_lshl_b32 s81, s%d, 9\ns_add_u32 s81, s81, 0x%x" % (S_NB, FW_OFF))
    g("v_lshlrev_b32 v5, 5, v0\nv_add_u32 v5, s83, v5\nv_and_b32 v6, 15, v0\nv_lshlrev_b32 v6, 5, v6\nv_add_u32 v6, s81, v6\nv_cmp_lt_u32 vcc, 31, v0\nv_cndmask_b32 v5, v5, v6, vcc\ns_mov_b32 s83, 0")
    st_(g, "H:i5")
    W(d[5])
    g("s_barrier")
    L0 = g.lab("Lq")
    g("s_cmp_lg_u32 s%d, 0\ns_cbranch_scc1 %s" % (S_W, L0))
    g.raw("buffer_load_dword v6, v5, %s, s83 offen sc1" % srd(S_WS))
    g(L0 + ":")
    d[7] = weave(g, D(7), [])
    nv = 0 if idle else 12
    if OPT["l2t"] == 1: l2t(g); nv += 3
    if OPT["l2t"] == 3: dose(g, 3); dose(g, 6); nv += 2
    st_(g, "H:i6")
    g.raw("s_waitcnt vmcnt(%d)" % nv); g.vm_done = max(g.vm_done, g.vm_seq - nv)
    Lok = g.lab("Lok")
    g("s_cmp_lg_u32 s%d, 0\ns_cbranch_scc1 %s" % (S_W, Lok))
    g("v_cmp_ne_u32 vcc, s%d, v6" % S_TAG)
    g.nop(4)
    g("s_cmp_eq_u64 vcc, 0\ns_cbranch_scc1 %s" % Lok)
    sv = g.vm_done
    poll(g, 5, 83, 6)
    g.vm_done = sv
    g(Lok + ":")
    st_(g, "H:a6")
    g("s_barrier")
    for t in uexp_plane(0, 0) + uexp_plane(0, 1) + uexp_plane(1, 0): emit(g, t)
    dose(g, 4)
    if OPT["l2t"] == 4: l2t(g)
    W(d[7])
    st_(g, "H:a7")
    g("s_barrier")
    for t in uexp_plane(1, 1): g.ue = emit(g, t)
    if OPT["seq"]: g_load(g)
    for t in (wd_reg(4) + wd_reg(5))[:OPT["nr7"]]: g(t)
    g("v_mov_b32 v16, %d\nv_lshlrev_b32 v17, 2, v0\nv_add_u32 v17, v16, v17\nv_mov_b32 v18, 0\nv_mov_b32 v19, 1" % SYW)
    g("ds_write_b32 v17, v18")
    g.wait(lg=0)
    if not OPT["seq"]: g.wait_op(g.ue)
    st_(g, "H:a8")

SYW = 28928
STG = 0
def hsync(g, target):
    L, D = g.lab("Lh"), g.lab("Lhd")
    g("s_mov_b64 exec, 1\nds_add_u32 v16, v19\ns_mov_b64 exec, -1")
    g("s_mov_b32 s%d, 0x100000" % S_SPIN)
    g(L + ":")
    for l in ("ds_read_b32 v18, v16", "s_waitcnt lgkmcnt(0)", "v_readfirstlane_b32 s80, v18", "s_sub_u32 s%d, s%d, 1" % (S_SPIN, S_SPIN), "s_cbranch_scc1 %s" % D,
              "s_cmp_lt_u32 s80, %d" % target, "s_cbranch_scc1 %s" % L): g.raw(l)
    g(D + ":")
    g.lg_done = g.lg_seq
def fin_addr(g, b, half):
    g("s_add_u32 s80, s95, %d\nv_add_u32 v%d, s80, v10" % (WDB1 - WDA + 12288, b))
    for q in (1, 2, 3):
        g("s_xor_b32 s80, s%d, %d\ns_lshl_b32 s80, s80, 14\ns_add_u32 s80, s80, %d\nv_add_u32 v%d, s80, v10" % (S_W, q, WDB1 + (q-1)*4096 + half*2048, b + q))
    g("v_and_b32 v%d, 31, v0\nv_lshlrev_b32 v%d, 10, v%d\nv_lshrrev_b32 v1, 5, v0\nv_lshlrev_b32 v1, 4, v1\nv_add_u32 v%d, v%d, v1" % (b+4, b+4, b+4, b+4, b+4))
    g("s_lshl_b32 s87, s%d, 16\ns_and_b32 s81, s%d, 1\ns_lshl_b32 s81, s81, 15\ns_add_u32 s87, s87, s81\ns_lshl_b32 s81, s%d, 7\ns_add_u32 s87, s87, s81\ns_lshr_b32 s81, s%d, 1\ns_lshl_b32 s81, s81, 6\ns_add_u32 s87, s87, s81\ns_add_u32 s87, s87, %d" % (S_TB2, S_W, S_NB, S_W, half*32))
def fin_math(g, P, GA, OMG, VO):
    for r in range(4):
        x = P + 2*r
        g("v_pk_add_f32 v[%d:%d], v[%d:%d], v[%d:%d]" % (x, x+1, x, x+1, x+8, x+9))
        g("v_pk_add_f32 v[%d:%d], v[%d:%d], v[%d:%d]" % (x+16, x+17, x+16, x+17, x+24, x+25))
    for r in range(4):
        x = P + 2*r
        g("v_pk_add_f32 v[%d:%d], v[%d:%d], v[%d:%d]" % (x, x+1, x, x+1, x+16, x+17))
    for r in range(4): g("v_cvt_pk_bf16_f32 v%d, v%d, v%d" % (P + 8 + r, P + 2*r, P + 2*r + 1))
    for r in range(4): g("v_lshlrev_b32 v%d, 16, v%d\nv_and_b32 v%d, 0xffff0000, v%d" % (P + 2*r, P + 8 + r, P + 2*r + 1, P + 8 + r))
    for r in range(8): g("v_mul_f32 v%d, v%d, v%d" % (P + r, OMG, P + r))
    for r in range(4): g("v_cvt_pk_bf16_f32 v%d, v%d, v%d" % (P + 8 + r, P + 2*r, P + 2*r + 1))
    for r in range(4): g("v_lshlrev_b32 v%d, 16, v%d\nv_and_b32 v%d, 0xffff0000, v%d" % (P + 16 + 2*r, GA + r, P + 17 + 2*r, GA + r))
    for r in range(4): g("v_lshlrev_b32 v%d, 16, v%d\nv_and_b32 v%d, 0xffff0000, v%d" % (P + 2*r, P + 8 + r, P + 2*r + 1, P + 8 + r))
    for r in range(4):
        x = P + 2*r
        g("v_pk_add_f32 v[%d:%d], v[%d:%d], v[%d:%d]" % (x, x+1, x, x+1, x+16, x+17))
    for r in range(4): g("v_cvt_pk_bf16_f32 v%d, v%d, v%d" % (GA + r, P + 2*r, P + 2*r + 1))
    g("v_permlane32_swap_b32 v%d, v%d" % (GA, GA + 2))
    g("v_permlane32_swap_b32 v%d, v%d" % (GA + 1, GA + 3))
    g("buffer_store_dwordx4 v[%d:%d], v%d, %s, s87 offen" % (GA, GA + 3, VO, srd(S_OUT)))

def build_H():
    g = G(); g.nlab = 1000; g.role = 1; g.nst = 1; St.names[48] = "H:start"
    prologue(g)
    g("s_setprio %d" % OPT["hprio"])
    h_dma_addr(g)
    if OPT["rot"] == 1: g("s_add_u32 s14, s%d, s%d\ns_and_b32 s14, s14, 3\ns_lshl_b32 s14, s14, 1" % (S_MT, S_FT))
    elif OPT["rot"] == 2: g("s_add_u32 s14, s%d, s%d\ns_and_b32 s14, s14, 1\ns_lshl_b32 s14, s14, 2" % (S_MT, S_FT))
    else: g("s_mov_b32 s14, 0")
    g("s_waitcnt lgkmcnt(0)")
    g("s_cmp_ge_u32 s%d, 28\ns_cbranch_scc1 Lhidle" % S_IDX)
    H_part1(g, False)
    g("Lh8:")
    g("s_barrier")
    g("s_setprio 0")
    rest = (wd_reg(4) + wd_reg(5))[OPT["nr7"]:]
    if OPT["seq"]:
        for t in rest + wd_dma(2, 30) + wd_dma(3, 30): last = g(t); g("s_sleep %d" % OPT["wsleep"])
        g_compute(g); g_store(g)
        g.wait_op(last)
        stamp(g, "H:a9")
        g("s_barrier")
        conv_main(g, [])
    else:
        stamp(g, "H:a9")
        last = conv_main(g, rest + wd_dma(2, 30) + wd_dma(3, 30))
    stamp(g, "H:convend")
    g("s_setprio 3")
    hsync(g, 4)
    for cc in range(4): g("ds_read_b128 v[%d:%d], v12 offset:%d" % (48 + 4*cc, 51 + 4*cc, cc*1024))
    conv_fin(g)
    aop = ("vm", g.vm_seq)
    stamp(g, "H:aiss")
    g("s_add_u32 s80, s95, %d\nv_add_u32 v11, s80, v10" % (WDB1 - WDA))
    for i in range(16): g("ds_write_b128 v11, v[%d:%d] offset:%d" % (64 + 4*i, 67 + 4*i, i*1024))
    g("s_and_b32 s82, s%d, 1\ns_lshl_b32 s80, s%d, 1\ns_add_u32 s80, s80, s82\ns_lshl_b32 s80, s80, 10\ns_and_b32 s81, s%d, 56\ns_lshl_b32 s81, s81, 4\ns_add_u32 s80, s80, s81\ns_and_b32 s81, s%d, 7\ns_lshl_b32 s81, s81, 2\ns_add_u32 s80, s80, s81\ns_add_u32 s80, s80, 0x%x" % (S_W, S_XCD, S_CH, S_CH, FA_OFF))
    g("s_lshl_b32 s81, s%d, 2\nv_add_u32 v17, s81, v16" % S_W)
    g.wait_op(last)
    g("ds_write_b32 v17, v19 offset:16")
    stamp(g, "H:wdland")
    g.wait_op(aop)
    flag_store(g, 80, 8)
    stamp(g, "H:aflag")
    if not OPT["seq"]: g_load(g); g_compute(g); g_store(g)
    g("v_and_b32 v5, 31, v0\nv_lshlrev_b32 v20, 3, v5")
    g("s_lshl_b32 s82, s%d, 1\ns_lshr_b32 s81, s%d, 4\ns_add_u32 s82, s82, s81\ns_lshl_b32 s82, s82, 10\ns_lshr_b32 s81, s%d, 1\ns_lshl_b32 s81, s81, 9\ns_add_u32 s82, s82, s81\ns_add_u32 s82, s82, 0x%x\ns_add_u32 s50, s48, s82\ns_addc_u32 s51, s49, 0" % (S_NB, S_TB2, S_W, FA_OFF))
    g("v_lshrrev_b32 v7, 2, v0\nv_lshlrev_b32 v8, 12, v7\nv_and_b32 v9, 3, v0\nv_lshlrev_b32 v9, 4, v9\nv_add_u32 v8, v8, v9")
    g("s_lshl_b32 s83, s%d, 18\ns_lshr_b32 s81, s%d, 1\ns_lshl_b32 s81, s81, 17\ns_add_u32 s83, s83, s81\ns_lshl_b32 s81, s%d, 7\ns_add_u32 s83, s83, s81\ns_and_b32 s81, s%d, 1\ns_lshl_b32 s81, s81, 6\ns_add_u32 s83, s83, s81\ns_add_u32 s83, s83, 0x%x\ns_add_u32 s84, s83, 0x10000" % (S_NB, S_W, S_TB2, S_W, AT_OFF))
    g("s_lshl_b32 s85, s%d, 9\ns_and_b32 s81, s%d, 1\ns_lshl_b32 s81, s81, 8\ns_add_u32 s85, s85, s81\ns_add_u32 s85, s85, 0x%x" % (S_TB2, S_W, G_OFF))
    g("s_lshl_b32 s86, s%d, 12\ns_add_u32 s86, s86, %d\nv_add_u32 v21, s86, v10" % (S_W, STG))
    g("v_lshrrev_b32 v22, 5, v0\nv_lshlrev_b32 v22, 2, v22\nv_bfe_u32 v23, v0, 2, 2\nv_add_u32 v22, v22, v23\nv_lshlrev_b32 v22, 6, v22")
    g("v_bfe_u32 v23, v0, 4, 1\nv_lshlrev_b32 v23, 5, v23\nv_add_u32 v22, v22, v23\nv_and_b32 v23, 3, v0\nv_lshlrev_b32 v23, 3, v23\nv_add_u32 v22, v22, v23\nv_add_u32 v22, s86, v22")
    fin_addr(g, 24, 1)
    spoll4(g)
    stamp(g, "H:apolled")
    g("buffer_load_dwordx4 v[12:15], v8, %s, s83 offen sc1" % srd(S_WS))
    g("buffer_load_dwordx4 v[16:19], v8, %s, s84 offen sc1" % srd(S_WS))
    poll(g, 20, 85, 2, width=2)
    g("v_sub_f32 v3, 1.0, v2\nv_cvt_pk_bf16_f32 v3, v3, v3\nv_lshlrev_b32 v3, 16, v3")
    g("ds_write_b128 v21, v[12:15]")
    g("ds_write_b128 v21, v[16:19] offset:1024")
    for q in range(4): g("ds_read_b64_tr_b16 v[%d:%d], v22 offset:%d" % (32 + 2*q, 33 + 2*q, q*512))
    for r in range(8):
        y = 48 + 2*r
        g("v_lshlrev_b32 v%d, 16, v%d\nv_and_b32 v%d, 0xffff0000, v%d" % (y, 32 + r, y+1, 32 + r))
        g("v_mul_f32 v%d, v2, v%d\nv_mul_f32 v%d, v2, v%d" % (y, y, y+1, y+1))
        g("v_cvt_pk_bf16_f32 v%d, v%d, v%d" % (40 + r, y, y+1))
    g("ds_write_b128 v21, v[40:43]")
    g("ds_write_b32 v21, v3 offset:1024")
    g.wait(lg=0)
    stamp(g, "H:aTready")
    g("s_barrier")
    for j in range(2):
        for sw in range(4): g("ds_read_b128 v[%d:%d], v%d offset:%d" % (64 + 8*sw + 4*j, 67 + 8*sw + 4*j, 24 + sw, j*1024))
    fin_math(g, 64, 44, 3, 28)
    stamp(g, "H:end")
    stamp_store(g)
    g("s_endpgm")
    g2 = G(); g2.nlab = 3000; g2.role = 1; g2.nst = 40
    g2("Lhidle:")
    H_part1(g2, True)
    g2("s_branch Lh8")
    return g.text(), g2.text()

RADDR = [8, 14, 20]
def gemm1_raddr(g):
    g("v_and_b32 v5, 31, v0\nv_lshrrev_b32 v6, 5, v0\nv_bfe_u32 v7, v0, 1, 3\nv_xor_b32 v6, v6, v7\nv_lshlrev_b32 v6, 4, v6\nv_lshlrev_b32 v5, 7, v5\nv_add_u32 v5, v5, v6")
    g("s_and_b32 s80, s%d, 1\ns_lshl_b32 s80, s80, 13\nv_add_u32 v8, s80, v5" % S_W)
    for s in range(1, 4): g("v_xor_b32 v%d, %d, v8" % (8 + s, 32*s))
    g("v_lshrrev_b32 v5, 5, v0\nv_lshlrev_b32 v5, 3, v5\nv_bfe_u32 v6, v0, 2, 2\nv_add_u32 v5, v5, v6\nv_lshlrev_b32 v5, 8, v5")
    g("s_lshr_b32 s80, s%d, 1\ns_lshl_b32 s80, s80, 1\nv_xor_b32 v6, s80, v6\nv_lshlrev_b32 v6, 6, v6\nv_add_u32 v5, v5, v6" % S_W)
    g("v_bfe_u32 v6, v0, 4, 1\nv_lshlrev_b32 v6, 5, v6\nv_add_u32 v5, v5, v6\nv_and_b32 v6, 3, v0\nv_lshlrev_b32 v6, 3, v6\nv_add_u32 v5, v5, v6")
    g("v_add_u32 v12, 0x4000, v5\nv_xor_b32 v13, 64, v12")
    for i in range(6):
        g("v_add_u32 v%d, 0x%x, v%d" % (14 + i, BUF[1], 8 + i))
        g("v_add_u32 v%d, 0x%x, v%d" % (20 + i, BUF[2], 8 + i))
def frag(p, kind, i): return 24*p + {"x": 0, "g": 8, "u": 16}[kind] + 4*i
def gemm1_reads(kk):
    st, s = divmod(kk, 4); p = kk & 1; ra = RADDR[st % 3]
    q = []
    def W(kind, fi):
        for h in range(2):
            b = frag(p, kind, fi) + 2*h
            q.append("ds_read_b64_tr_b16 a[%d:%d], v%d offset:%d" % (b, b+1, ra + 4 + fi, s*4096 + h*1024 + (16384 if kind == "u" else 0)))
    def X(ti):
        b = frag(p, "x", ti)
        q.append("ds_read_b128 a[%d:%d], v%d offset:%d" % (b, b+3, ra + s, ti*4096))
    X(0); W("g", 0); W("u", 0); X(1); W("g", 1); W("u", 1)
    return q
def acc1(kind, fi, ti): return 32 + {"g": 0, "u": 64}[kind] + 32*fi + 16*ti
def gemm1_mfmas(kk):
    p = kk & 1; q = []
    for fi, ti in ((0,0),(0,1),(1,0),(1,1)):
        for kind in "gu":
            a = acc1(kind, fi, ti); w = frag(p, kind, fi); x = frag(p, "x", ti)
            c = "0" if kk == 0 else "v[%d:%d]" % (a, a+15)
            q.append("v_mfma_f32_32x32x16_bf16 v[%d:%d], a[%d:%d], a[%d:%d], %s" % (a, a+15, w, w+3, x, x+3, c))
    return q
def gemm1_main(g, side):
    g("s_barrier")
    stamp(g, "C:B0")
    for r in gemm1_reads(0): g(r)
    for kk in range(32):
        st, s = divmod(kk, 4)
        mf = gemm1_mfmas(kk); pre = 0
        if s == 3:
            g(mf[0]); g(mf[1]); pre = 2
            for t in side.get("pre%d" % (st + 1), []): g(t)
            g.wait(lg=0)
            stamp(g, "C:a%d" % (st + 1))
            g("s_barrier")
            stamp(g, "C:B%d" % (st + 1))
        fill = gemm1_reads(kk + 1) if kk + 1 < 32 else []
        fill += side.get(kk, [])
        for i in range(pre, 8):
            g(mf[i])
            for _ in range(2 if i < 7 else 99):
                if fill: emit(g, fill.pop(0))
def gemm1_epilogue(g, load_w):
    k1 = -2*0.7978845608028654*LOG2E; k2 = k1*0.044715
    g("s_mov_b32 s84, 0x%x\ns_mov_b32 s85, 0x%x" % (f2u(k2), f2u(k2)))
    g("v_mov_b32 v2, 0x%x\nv_mov_b32 v3, 0x%x" % (f2u(k1), f2u(k1)))
    g("v_lshlrev_b32 v4, 4, v0")
    g("s_lshl_b32 s80, s%d, 2\ns_and_b32 s81, s%d, 1\ns_lshl_b32 s81, s81, 1\ns_add_u32 s80, s80, s81\ns_mul_i32 s80, s80, 112" % (S_MT, S_W))
    g("s_lshl_b32 s81, s%d, 3\ns_add_u32 s80, s80, s81\ns_lshr_b32 s81, s%d, 1\ns_lshl_b32 s81, s81, 2\ns_add_u32 s80, s80, s81" % (S_FT, S_W))
    g("s_lshl_b32 s80, s80, 10\ns_add_u32 s80, s80, 0x%x\ns_add_u32 s81, s80, %d" % (H_OFF, 112*1024))
    cnt = 0
    for fi in range(2):
        for ti in range(2):
            for half in range(2):
                G0 = acc1("g", fi, ti) + 8*half; U0 = acc1("u", fi, ti) + 8*half
                T = 8; D = 16 + 4*(cnt & 1)
                P = [(G0 + 2*j, U0 + 2*j, T + 2*j) for j in range(4)]
                if OPT["wpos"] == 0:
                    for t in load_w(cnt): g(t)
                if OPT["pk"]:
                    for (x, u, t) in P: g("v_pk_mul_f32 v[%d:%d], v[%d:%d], v[%d:%d]" % (t, t+1, x, x+1, x, x+1))
                    for (x, u, t) in P: g("v_pk_fma_f32 v[%d:%d], v[%d:%d], s[84:85], v[2:3]" % (t, t+1, t, t+1))
                    for (x, u, t) in P: g("v_pk_mul_f32 v[%d:%d], v[%d:%d], v[%d:%d]" % (t, t+1, t, t+1, x, x+1))
                    for j in range(8): g("v_exp_f32 v%d, v%d" % (T + j, T + j))
                    for (x, u, t) in P: g("v_pk_mul_f32 v[%d:%d], v[%d:%d], v[%d:%d]" % (x, x+1, x, x+1, u, u+1))
                    for (x, u, t) in P: g("v_pk_add_f32 v[%d:%d], v[%d:%d], 1.0 op_sel_hi:[1,0]" % (t, t+1, t, t+1))
                    for j in range(8): g("v_rcp_f32 v%d, v%d" % (T + j, T + j))
                    for (x, u, t) in P: g("v_pk_mul_f32 v[%d:%d], v[%d:%d], v[%d:%d]" % (x, x+1, x, x+1, t, t+1))
                else:
                    E = [(G0 + j, U0 + j, T + j) for j in range(8)]
                    for (x, u, t) in E: g("v_mul_f32 v%d, v%d, v%d" % (t, x, x))
                    for (x, u, t) in E: g("v_fma_f32 v%d, v%d, s84, v2" % (t, t))
                    for (x, u, t) in E: g("v_mul_f32 v%d, v%d, v%d" % (t, t, x))
                    for (x, u, t) in E: g("v_exp_f32 v%d, v%d\nv_mul_f32 v%d, v%d, v%d" % (t, t, x, x, u))
                    for (x, u, t) in E: g("v_add_f32 v%d, 1.0, v%d" % (t, t))
                    for (x, u, t) in E: g("v_rcp_f32 v%d, v%d" % (t, t))
                    for (x, u, t) in E: g("v_mul_f32 v%d, v%d, v%d" % (x, x, t))
                for j, (x, u, t) in enumerate(P): g("v_cvt_pk_bf16_f32 v%d, v%d, v%d" % (D + j, x, x+1))
                op = g("buffer_store_dwordx4 v[%d:%d], v4, %s, s%d offen offset:%d sc1" % (D, D+3, srd(S_WS), 80 + ti, (2*fi + half)*1024))
                cnt += 1
    return op

def touch_addr(g):
    g("s_lshl_b32 s80, s%d, 2\ns_add_u32 s80, s80, s%d" % (S_IDX, S_W))
    g("s_lshr_b32 s90, s%d, 1\ns_lshl_b32 s90, s90, 19\ns_lshl_b32 s81, s80, 12\ns_add_u32 s90, s90, s81" % S_XCD)
    g("v_lshlrev_b32 v30, 7, v0")
    g("v_mul_u32_u24 v5, 37, v0\nv_lshrrev_b32 v5, 8, v5\nv_mul_u32_u24 v6, 7, v5\nv_sub_u32 v6, v0, v6\nv_lshlrev_b32 v6, 7, v6")
    g("s_mov_b32 s81, %d\nv_mul_lo_u32 v5, v5, s81\nv_add_u32 v26, v5, v6" % (64*3584))
    g("s_lshr_b32 s91, s80, 1\ns_mul_i32 s91, s91, 3584\ns_and_b32 s81, s80, 1\ns_mul_i32 s81, s81, 896\ns_add_u32 s91, s91, s81\ns_and_b32 s81, s%d, 1\ns_mul_i32 s81, s81, 1792\ns_add_u32 s91, s91, s81" % S_XCD)
    g("s_mul_i32 s93, s80, %d\ns_lshl_b32 s92, s2, 2\ns_add_u32 s92, s92, s%d\ns_mul_i32 s92, s92, %d" % (112*128, S_W, 14*128))
def lanes(lo, hi):
    m = ((1 << hi) - 1) & ~((1 << lo) - 1)
    return "s_mov_b32 exec_lo, 0x%x\ns_mov_b32 exec_hi, 0x%x" % (m & 0xffffffff, m >> 32)
def touch_w(s0, s1, r):
    return "%s\nbuffer_load_dword a%d, v26, %s, s91 offen\nbuffer_load_dword a%d, v26, %s, s91 offen\ns_mov_b64 exec, -1" % (lanes(7*s0, 7*s1), r, srd(S_WG), r+1, srd(S_WU))
def touch_glob():
    return "%s\nbuffer_load_dword a74, v30, %s, s92 offen\nbuffer_load_dword a75, v30, %s, s92 offen\ns_lshl_b32 s80, s2, 2\ns_add_u32 s80, s80, s%d\ns_lshl_b32 s80, s80, 11\n%s\nbuffer_load_dword a70, v30, %s, s80 offen\ns_mov_b64 exec, -1" % (lanes(0, 14), srd(S_WG), srd(S_WU), S_W, lanes(0, 16), srd(S_X))
def touch_x(): return "%s\nbuffer_load_dword a70, v30, %s, s90 offen\ns_mov_b64 exec, -1" % (lanes(0, 32), srd(S_X))
def touch_wd_global(): return "%s\nbuffer_load_dword a71, v30, %s, s92 offen\ns_mov_b64 exec, -1" % (lanes(0, 14), srd(S_WD))
def touch_wd_xcd(): return "%s\nbuffer_load_dword a72, v30, %s, s93 offen\ns_add_u32 s93, s93, %d\nbuffer_load_dword a73, v30, %s, s93 offen\ns_mov_b64 exec, -1" % (lanes(0, 56), srd(S_WD), 56*128, srd(S_WD))

def build_C():
    g = G(); g.nlab = 2000; g.role = 0; g.nst = 1; St.names[0] = "C:start"
    g("Lcompute:")
    g("s_waitcnt lgkmcnt(0)")
    g("global_load_ushort v39, v63, s[30:31]")
    for i in range(6): g("global_load_ushort v%d, v32, s[%d:%d]" % (33 + i, 18 + 2*i, 19 + 2*i))
    epoch_load(g)
    srds2(g)
    kgen_addr(g); kgen_compact_addr(g); gemm1_raddr(g)
    tag_compute(g)
    kgen_W(g)
    g.wait(lg=0)
    stamp(g, "C:W done")
    g("s_barrier")
    stamp(g, 'C:Bk')
    kgen_mfma(g); kgen_compact(g)
    g.wait(lg=0)
    stamp(g, "C:K done")
    g("v_lshlrev_b32 v26, 4, v0\ns_lshr_b32 s80, s%d, 1\ns_lshl_b32 s80, s80, 10\nv_add_u32 v26, s80, v26\nv_xor_b32 v27, 0x400, v26" % S_W)
    g("s_lshl_b32 s94, s%d, 2\ns_add_u32 s94, s94, s%d\ns_lshl_b32 s94, s94, 14\ns_add_u32 s94, s94, 0x%x" % (S_NB, S_W, WDT_OFF))
    def wpre(kk, di): return (48 + 8*kk + 4*di) if kk < 6 else (8*(kk - 6) + 4*di)
    def load_w(kk):
        q = []
        pre = "s_add_u32 s93, s94, %d\n" % (kk*2048)
        for di in range(2):
            q.append(pre + "buffer_load_dwordx4 a[%d:%d], v%d, %s, s93 offen sc1" % (wpre(kk, di), wpre(kk, di) + 3, 26 + di, srd(S_WS))); pre = ""
        return q
    g("s_cmp_ge_u32 s%d, 28\ns_cbranch_scc1 Lnog1" % S_IDX)
    side = {}
    gemm1_main(g, side)
    stamp(g, "C:main1end")
    g("s_setprio %d" % OPT["cprio_epi"])
    hop = gemm1_epilogue(g, load_w)
    stamp(g, "C:epiend")
    if OPT["seq"]: g("s_barrier")
    if OPT["spoll"]:
        g("s_lshl_b32 s80, s%d, 1\ns_and_b32 s81, s%d, 1\ns_add_u32 s80, s80, s81\ns_lshl_b32 s80, s80, 9" % (S_MT, S_W))
        g("s_lshl_b32 s81, s%d, 1\ns_lshr_b32 s82, s%d, 1\ns_add_u32 s81, s81, s82\ns_mul_i32 s82, s81, 37\ns_lshr_b32 s82, s82, 8\ns_mul_i32 s82, s82, 100\ns_lshl_b32 s81, s81, 2\ns_add_u32 s80, s80, s81\ns_add_u32 s80, s80, s82\ns_add_u32 s87, s80, 0x%x" % (S_FT, S_W, FH_OFF))
    else:
        g("s_lshl_b32 s80, s%d, 1\ns_and_b32 s81, s%d, 1\ns_add_u32 s80, s80, s81\ns_lshl_b32 s80, s80, 5\ns_lshl_b32 s81, s%d, 1\ns_add_u32 s80, s80, s81\ns_lshr_b32 s81, s%d, 1\ns_add_u32 s80, s80, s81\ns_lshl_b32 s80, s80, 7\ns_add_u32 s87, s80, 0x%x" % (S_MT, S_W, S_FT, S_W, FH_OFF))
    g("s_branch Lg2")
    g("Lnog1:")
    g("v_lshrrev_b32 v5, 3, v0\nv_lshlrev_b32 v5, 10, v5\nv_bfe_u32 v6, v0, 4, 1\nv_lshlrev_b32 v6, 2, v6\nv_and_b32 v7, 7, v0\nv_xor_b32 v6, v6, v7\nv_lshlrev_b32 v6, 4, v6\nv_add_u32 v8, v5, v6")
    g("s_sub_u32 s82, s%d, 28" % S_IDX)
    g("s_lshr_b32 s83, s%d, 1\ns_add_u32 s83, s83, s%d\ns_cmp_ge_u32 s83, 7\ns_cselect_b32 s80, 7, 0\ns_sub_u32 s83, s83, s80" % (S_W, S_XCD))
    g("s_lshl_b32 s83, s83, 16\ns_and_b32 s80, s%d, 1\ns_lshl_b32 s80, s80, 15\ns_add_u32 s83, s83, s80\ns_mul_i32 s85, s82, %d\ns_add_u32 s83, s83, s85\ns_lshl_b32 s80, s%d, 7\ns_add_u32 s83, s83, s80\ns_lshl_b32 s84, s%d, 12" % (S_W, 448*1024, S_XCD, S_W))
    for i in range(4):
        g("s_add_u32 m0, s84, %d\ns_add_u32 s93, s83, %d\nbuffer_load_dwordx4 v8, %s, s93 offen lds" % (i*1024, i*8192, srd(S_WD)))
    g.raw("s_barrier"); g.raw("s_barrier")
    g("v_lshrrev_b32 v7, 5, v0\nv_lshlrev_b32 v7, 2, v7\nv_bfe_u32 v9, v0, 2, 2\nv_add_u32 v7, v7, v9\nv_lshlrev_b32 v7, 7, v7")
    g("v_bfe_u32 v9, v0, 3, 1\nv_lshlrev_b32 v9, 6, v9\nv_add_u32 v7, v7, v9\nv_bfe_u32 v9, v0, 4, 1\nv_lshlrev_b32 v9, 5, v9\nv_add_u32 v7, v7, v9")
    g("v_and_b32 v9, 3, v0\nv_lshlrev_b32 v9, 3, v9\nv_add_u32 v7, v7, v9\nv_add_u32 v5, s84, v7\nv_xor_b32 v6, 64, v5\nv_lshlrev_b32 v9, 4, v0")
    g("s_lshl_b32 s86, s%d, 2\ns_add_u32 s86, s86, s82\ns_lshl_b32 s86, s86, 2\ns_add_u32 s86, s86, s%d" % (S_XCD, S_W))
    g("s_lshl_b32 s83, s86, 12\ns_add_u32 s83, s83, 0x%x" % WDT_OFF)
    g.wait(vm=0)
    for k in range(2):
        for di in range(2):
            for h in range(2):
                b = 32 + 8*k + 4*di + 2*h
                g("ds_read_b64_tr_b16 v[%d:%d], v%d offset:%d" % (b, b+1, 5 + di, k*2048 + h*1024))
    for k in range(4):
        g("buffer_store_dwordx4 v[%d:%d], v9, %s, s83 offen offset:%d sc1" % (32 + 4*k, 35 + 4*k, srd(S_WS), k*1024))
    g("s_lshl_b32 s80, s86, 5\ns_add_u32 s80, s80, 0x%x" % FW_OFF)
    g.raw("s_barrier")
    g.wait(vm=0)
    flag_store(g, 80, 10)
    g.raw("s_barrier")
    g("s_sub_u32 s80, s2, 224\ns_lshl_b32 s80, s80, 2\ns_add_u32 s80, s80, s%d\ns_mul_i32 s93, s80, %d\nv_lshlrev_b32 v30, 7, v0" % (S_W, 112*128))
    g(touch_wd_xcd())
    for _ in range(5): g.raw("s_barrier")
    if OPT["wpos"] == 0:
        for kk in range(8):
            for t in load_w(kk): g(t)
    if OPT["seq"]: g.raw("s_barrier")
    g("s_mov_b32 s87, 0x%x" % (EP_OFF + 256))
    g("Lg2:")
    chunk_ids(g)
    g("v_lshrrev_b32 v7, 5, v0\nv_lshlrev_b32 v7, 2, v7\nv_bfe_u32 v8, v0, 2, 2\nv_add_u32 v7, v7, v8\nv_lshlrev_b32 v7, 7, v7")
    g("v_bfe_u32 v8, v0, 3, 1\ns_lshr_b32 s80, s%d, 1\nv_xor_b32 v8, s80, v8\nv_lshlrev_b32 v8, 6, v8\nv_add_u32 v7, v7, v8\nv_bfe_u32 v8, v0, 4, 1\nv_lshlrev_b32 v8, 5, v8\nv_add_u32 v7, v7, v8" % S_W)
    g("v_and_b32 v8, 3, v0\nv_lshlrev_b32 v8, 3, v8\nv_add_u32 v7, v7, v8\nv_add_u32 v5, s95, v7\nv_xor_b32 v6, 64, v5")
    g("v_add_u32 v28, 0x%x, v5\nv_add_u32 v29, 0x%x, v6" % (WDB1 - WDA, WDB1 - WDA))
    g("v_lshlrev_b32 v3, 4, v0\ns_and_b32 s80, s%d, 1\ns_mul_i32 s81, s80, %d\ns_xor_b32 s80, s80, 1\ns_mul_i32 s80, s80, %d\nv_add_u32 v4, s80, v3\nv_add_u32 v3, s81, v3" % (S_W, 112*1024, 112*1024))
    g("s_mul_i32 s91, s%d, %d\ns_mul_i32 s80, s%d, %d\ns_add_u32 s91, s91, s80\ns_add_u32 s91, s91, 0x%x" % (S_TB2, 2*112*1024, S_W, 28*1024, H_OFF))
    g.raw("s_waitcnt vmcnt(0)"); g.vm_done = g.vm_seq
    flag_store(g, 87, 8)
    g("s_setprio %d" % OPT["cprio2"])
    stamp(g, "C:flag0")
    if OPT["wpos"] == 1:
        for kk in range(8):
            for t in load_w(kk): g(t)
    epoch_bump(g)
    stamp(g, "C:flag")
    if OPT["spoll"]:
        g("s_lshl_b32 s80, s%d, 9\ns_lshl_b32 s81, s%d, 7\ns_add_u32 s80, s80, s81\ns_add_u32 s80, s80, 0x%x\ns_add_u32 s50, s48, s80\ns_addc_u32 s51, s49, 0" % (S_TB2, S_W, FH_OFF))
        spoll(g, 7)
    else:
        g("v_min_u32 v8, 6, v0\nv_lshlrev_b32 v8, 7, v8")
        g("s_lshl_b32 s80, s%d, 12\ns_mul_i32 s81, s%d, 896\ns_add_u32 s80, s80, s81\ns_add_u32 s80, s80, 0x%x" % (S_TB2, S_W, FH_OFF))
        poll(g, 8, 80, 9)
    stamp(g, "C:polled")
    RING = 12
    def hreg(kk, ti):
        i = kk % RING
        return ("v[%d:%d]" % (32 + 8*i + 4*ti, 32 + 8*i + 4*ti + 3)) if i < 8 else ("a[%d:%d]" % (16 + 8*(i-8) + 4*ti, 16 + 8*(i-8) + 4*ti + 3))
    def load_h(kk):
        q = []
        pre = "s_lshl_b32 s90, s%d, 12\ns_add_u32 s90, s90, s91\n" % (18 + kk//4) if kk % 4 == 0 else ""
        for ti in range(2):
            q.append(pre + "buffer_load_dwordx4 %s, v%d, %s, s90 offen offset:%d sc1" % (hreg(kk, ti), 3 + ti, srd(S_WS), (kk % 4)*1024)); pre = ""
        return q
    PRE = OPT["pre"]
    for kk in range(PRE):
        for t in load_h(kk): g(t)
    g("s_add_u32 s80, s95, %d\nv_lshlrev_b32 v2, 4, v0\nv_add_u32 v2, s80, v2" % (WDB1 - WDA))
    g("v_mov_b32 v8, v5\nv_mov_b32 v9, v6"); wd_setup(g, 30); g("v_mov_b32 v5, v8\nv_mov_b32 v6, v9")
    g("s_lshl_b32 s80, s%d, 2\ns_add_u32 s80, s80, %d\nv_mov_b32 v7, s80" % (S_W, SYW + 16))
    def wreg(kk, di):
        return ("a[%d:%d]" % (wpre(kk, di), wpre(kk, di) + 3)) if kk < 8 else ("v[%d:%d]" % (10 + 8*(kk & 1) + 4*di, 13 + 8*(kk & 1) + 4*di))
    def reads(kk):
        c, s = divmod(kk, 4); q = []
        for di in range(2):
            va, off = {2: ((5, 6), 0), 3: ((5, 6), 8192), 4: ((28, 29), 0), 5: ((28, 29), 8192), 6: ((5, 6), 0)}[c]
            for h in range(2):
                b = 10 + 8*(kk & 1) + 4*di + 2*h
                q.append("ds_read_b64_tr_b16 v[%d:%d], v%d offset:%d" % (b, b+1, va[di], off + s*2048 + h*1024))
        return q
    nh = PRE
    for kk in range(28):
        if kk in (1, 4, 8, 12, 16, 20, 24): stamp(g, "C:k%d" % kk)
        nx = reads(kk + 1) if 8 <= kk + 1 < 28 else []
        lq = []
        for _ in range(2):
            if nh < 28 and nh < kk + RING: lq += load_h(nh); nh += 1
        if 12 <= kk < 16: lq += [(t,) for t in wd_dma(6, 30)[2*(kk-12):2*(kk-12)+2]]
        n = 0
        for di, ti in (((0,0),(0,1),(1,0),(1,1)) if kk < 27 else ((0,1),(1,0),(1,1),(0,0))):
            if True:
                a = 96 + 32*di + 16*ti
                c = "0" if kk == 0 else "v[%d:%d]" % (a, a+15)
                g("v_mfma_f32_32x32x16_bf16 v[%d:%d], %s, %s, %s" % (a, a+15, wreg(kk, di), hreg(kk, ti), c))
                if n == 0:
                    KR = 16 if OPT["seq"] else 8
                    if kk + 2 == KR: g("ds_read_b32 v8, v7")
                    if kk + 1 == KR:
                        L, D = g.lab("Lr"), g.lab("Lrd")
                        g("v_readfirstlane_b32 s80, v8")
                        g("s_mov_b32 s%d, 0x100000\ns_cmp_lg_u32 s80, 0\ns_cbranch_scc1 %s" % (S_SPIN, D))
                        g(L + ":")
                        for l in ("ds_read_b32 v8, v7", "s_waitcnt lgkmcnt(0)", "v_readfirstlane_b32 s80, v8", "s_sub_u32 s%d, s%d, 1" % (S_SPIN, S_SPIN), "s_cbranch_scc1 %s" % D,
                                  "s_cmp_eq_u32 s80, 0", "s_cbranch_scc1 %s" % L): g.raw(l)
                        g(D + ":")
                    if kk + 1 == 24: g.wait_op(w6)
                    for r in nx: g(r)
                else:
                    for _ in range(2 if n < 3 else 9):
                        if lq:
                            t = lq.pop(0)
                            if isinstance(t, tuple): w6 = g(t[0])
                            else: g(t)
                n += 1
    assert nh == 28
    stamp(g, "C:main2end")
    g("v_lshlrev_b32 v10, 4, v0")
    fin_addr(g, 24, 0)
    g("s_lshl_b32 s80, s%d, 12\ns_add_u32 s80, s80, %d\nv_add_u32 v9, s80, v10" % (S_W, STG))
    for q in (1, 2, 3):
        for j in range(4):
            g("ds_write_b128 v2, v[%d:%d] offset:%d" % (96 + 16*q + 4*j, 96 + 16*q + 4*j + 3, (q-1)*4096 + j*1024))
    for j in range(2): g("ds_write_b128 v2, v[%d:%d] offset:%d" % (104 + 4*j, 107 + 4*j, 12288 + j*1024))
    g.wait(lg=0)
    stamp(g, "C:a13")
    g("s_barrier")
    stamp(g, "C:B13")
    for j in range(2):
        for sw in (1, 2, 3): g("ds_read_b128 v[%d:%d], v%d offset:%d" % (96 + 8*sw + 4*j, 99 + 8*sw + 4*j, 24 + sw, j*1024))
    g("ds_read_b128 v[44:47], v9")
    g("ds_read_b32 v3, v9 offset:1024")
    fin_math(g, 96, 44, 3, 28)
    stamp(g, "C:stores")
    if STAMPS:
        g.wait(vm=0); stamp(g, "C:drained")
    stamp_store(g)
    g("Lend:")
    g("s_endpgm")
    return g.text()

if __name__ == "__main__":
    if len(sys.argv) > 2 and sys.argv[2] != "-": STAMPS = sys.argv[2]
    for a in sys.argv[3:]:
        k, v = a.split("="); OPT[k] = int(v)
    h1, h2 = build_H(); body = h1 + build_C() + h2
    open(sys.argv[1], "w").write(build_file([(KN, 256, 512, 163840, body, 256, 100, 160)], single=True))
    if STAMPS:
        import json; json.dump(St.names, open("stnames.json", "w"))
```

```python
import sys, struct, math
from gen import *

def f2u(x): return struct.unpack("<I", struct.pack("<f", x))[0]
UT_OFF = 0x1400000; UT_STRIDE = 4096
CU = 16640; CU_CH = 4352
H_OFF = 0x400000
AT_OFF = 0xC00000
G_OFF = 0xE00000
FT_OFF = 0xE20000
FH_OFF = 0xE40000
FA_OFF = 0xE60000
EP_OFF = 0xE10000
FW_OFF = 0xE80000
WDT_OFF = 0x1A00000
DBG_OFF = 0x1000000
WS_BYTES = 268435456
BUF = [0, 49152, 98304]
TBLK = 147456
KT = 98304; KT_CH = 28672; KT_IM = 14336
KC = 160768; KC_CH = 1536
KF = 154624; KF_CH = 4608; KF_PL = 2304
UEE = [98304, 131840]; UEO = [115072, 128]
XCH = [16640, 20736, 24832, 148480]
WDA = 32768; WDB1 = 98304
RED_AT = 49152; RED_G = 57344
S_X, S_WG, S_WU, S_WD, S_WS, S_OUT = 52, 56, 60, 64, 68, 72
S_X1 = 36
S_XCD, S_IDX, S_W, S_CH = 76, 77, 78, 79
S_MT, S_FT = 88, 89
S_TAG, S_TB2, S_NB, S_SPIN = 96, 97, 98, 99
LOG2E = 1.4426950408889634
STAMPS = False
OPT = dict(hprio=0, cprio_epi=1, rot=1, pk=1, seq=1, pre=6, pfirst=0, psleep=1, b11first=0, l2t=0, wsleep=0, a5=0, wpos=1, spoll=1, nr7=8, cprio2=0, cpf=248, la=8, n1=0, mt=1, nr6=10, n9=16, asl=16, asl2=12, bprio=3, fai=1, bw=0, convp=2, wearly=6, w2=2, w3=4, gt=0, map=1, osc=0)
def srd(r): return "s[%d:%d]" % (r, r+3)
class St:
    names = {}
def stamp(g, name):
    if not STAMPS: return
    g.raw("%s s[6:7]" % STAMPS); g.smem_pending = True; g.wait(lg=0)
    g.raw("v_writelane_b32 v31, s6, %d" % g.nst)
    St.names[g.role*48 + g.nst] = name
    g.nst += 1
    assert g.nst <= 48
def stamp_store(g):
    if not STAMPS: return
    L = g.lab("Lst")
    g("s_cmp_lg_u32 s%d, 0\ns_cbranch_scc1 %s" % (S_W, L))
    g.raw("v_writelane_b32 v31, s4, 0")
    g.raw("s_getreg_b32 s6, hwreg(HW_REG_XCC_ID)"); g.raw("v_writelane_b32 v31, s6, 47")
    g.raw("s_mul_i32 s3, s2, 384"); g.raw("s_add_u32 s3, s3, 0x%x" % (DBG_OFF + g.role*192)); g.raw("v_lshlrev_b32 v1, 2, v0")
    g.raw("s_mov_b32 exec_hi, 0xffff")
    g.raw("buffer_store_dword v31, v1, %s, s3 offen" % srd(S_WS))
    if OPT.get("dbg") and g.role == 0:
        inv = {v: k for k, v in St.names.items()}
        sel = ["C:start", "C:Bk", "C:B0", "C:B1", "C:B2", "C:B4", "C:B6", "C:main1end", "C:epiend", "C:flag0", "C:polled", "C:k16", "C:main2end", "C:B13", "C:drained"]
        g.raw("s_cmp_ge_u32 s2, 224"); g.raw("s_cbranch_scc1 %s" % L)
        g.raw("s_not_b32 s6, s4"); g.raw("v_writelane_b32 v30, s6, 0")
        for i, n in enumerate(sel):
            g.raw("v_readlane_b32 s6, v31, %d" % inv[n]); g.raw("s_nop 3"); g.raw("v_writelane_b32 v30, s6, %d" % (i + 1))
        g.raw("s_mov_b64 exec, 0xffff")
        g.raw("global_atomic_umax v1, v30, s[46:47]")
    g.raw("s_mov_b64 exec, -1")
    g(L + ":")

def tag_compute(g):
    g("s_mul_i32 s%d, s%d, 0x9E3779B1\ns_add_u32 s%d, s%d, 0x7F4A7C15" % (S_TAG, S_TAG, S_TAG, S_TAG))
def poll(g, vaddr, soff, vtmp, width=1, sleep=1):
    L, D = g.lab("Lp"), g.lab("Lpd")
    g("s_mov_b32 s%d, 0x40000" % S_SPIN)
    g(L + ":")
    if width == 1: g.raw("buffer_load_dword v%d, v%d, %s, s%d offen sc1" % (vtmp, vaddr, srd(S_WS), soff))
    else: g.raw("buffer_load_dwordx2 v[%d:%d], v%d, %s, s%d offen sc1" % (vtmp, vtmp+1, vaddr, srd(S_WS), soff))
    g.raw("s_waitcnt vmcnt(0)"); g.vm_done = g.vm_seq
    g.raw("v_cmp_ne_u32 vcc, s%d, v%d" % (S_TAG, vtmp + width - 1))
    g.raw("s_nop 4")
    g.raw("s_cmp_eq_u64 vcc, 0")
    g.raw("s_cbranch_scc1 %s" % D)
    g.raw("s_sleep %d" % sleep)
    g.raw("s_sub_u32 s%d, s%d, 1" % (S_SPIN, S_SPIN))
    g.raw("s_cmp_lg_u32 s%d, 0" % S_SPIN)
    g.raw("s_cbranch_scc1 %s" % L)
    g(D + ":")
def spoll(g, n, off=0):
    L, D = g.lab("Ls"), g.lab("Lsd")
    g("s_mov_b32 s%d, 0x40000" % S_SPIN)
    g(L + ":")
    g.raw("s_load_dwordx8 s[8:15], s[50:51], %d glc" % off)
    g.raw("s_waitcnt lgkmcnt(0)"); g.lg_done = g.lg_seq
    for i in range(n): g.raw("s_xor_b32 s%d, s%d, s%d" % (8 + i, 8 + i, S_TAG))
    for i in range(1, n): g.raw("s_or_b32 s8, s8, s%d" % (8 + i))
    g.raw("s_cbranch_scc0 %s" % D)
    g.raw("s_sleep %d" % OPT["psleep"])
    g.raw("s_sub_u32 s%d, s%d, 1" % (S_SPIN, S_SPIN))
    g.raw("s_cbranch_scc0 %s" % L)
    g(D + ":")
def spoll4(g):
    L, D = g.lab("Ls"), g.lab("Lsd")
    R = [8, 32, 40, 56]
    g("s_mov_b32 s%d, 0x40000" % S_SPIN)
    g(L + ":")
    for j, r in enumerate(R): g.raw("s_load_dwordx8 s[%d:%d], s[50:51], %d glc" % (r, r + 7, 128*j))
    g.raw("s_mov_b32 s16, s%d" % S_TAG); g.raw("s_mov_b32 s17, s%d" % S_TAG)
    g.raw("s_waitcnt lgkmcnt(0)"); g.lg_done = g.lg_seq
    P = [r + 2*i for r in R for i in range(4)]
    for p in P: g.raw("s_xor_b64 s[%d:%d], s[%d:%d], s[16:17]" % (p, p+1, p, p+1))
    for p in P[1:]: g.raw("s_or_b64 s[8:9], s[8:9], s[%d:%d]" % (p, p+1))
    g.raw("s_cbranch_scc0 %s" % D)
    g.raw("s_sleep %d" % OPT["psleep"])
    g.raw("s_sub_u32 s%d, s%d, 1" % (S_SPIN, S_SPIN))
    g.raw("s_cbranch_scc0 %s" % L)
    g(D + ":")
def flag_store(g, soff, vt):
    g("v_mov_b32 v%d, s%d\nv_mov_b32 v%d, 0" % (vt, S_TAG, vt+1))
    g("s_mov_b64 exec, 1")
    g("buffer_store_dword v%d, v%d, %s, s%d offen sc1" % (vt, vt+1, srd(S_WS), soff))
    g("s_mov_b64 exec, -1")
class Rec:
    def __init__(self): self.q = []
    def __call__(self, t): self.q += [l for l in t.split("\n") if l.strip()]
def rec(f, *a):
    r = Rec(); f(r, *a); return r.q
def emit(g, f):
    return f(g) if callable(f) else g(f)
def weave(g, dmas, work):
    op = None; n = len(dmas); work = list(work)
    per = -(-len(work) // n) if n else 0
    for d in dmas:
        op = emit(g, d)
        for _ in range(per):
            if work: emit(g, work.pop(0))
    for w in work: emit(g, w)
    return op

def prologue(g):
    g("s_cmp_ge_u32 s2, 256")
    g("s_cbranch_scc1 Lend")
    if STAMPS or OPT.get("hold"): g.raw("%s s[4:5]" % (STAMPS or "s_memrealtime"))
    if OPT.get("badmap"): g("s_lshr_b32 s3, s2, 5\ns_and_b32 s2, s2, 31\ns_lshl_b32 s2, s2, 3\ns_or_b32 s2, s2, s3")
    g("s_load_dwordx16 s[16:31], s[0:1], 0")
    g("s_load_dwordx16 s[32:47], s[0:1], 64")
    g("s_load_dwordx2 s[48:49], s[0:1], 128")
    if OPT["cpf"]:
        g("s_cmp_lt_u32 s2, %d\ns_cbranch_scc1 Lcp" % OPT["cpf"])
        for l in ("s_getpc_b64 s[8:9]", "Lpc:", "s_sub_u32 s8, s8, Lpc-%s" % KN, "s_subb_u32 s9, s9, 0", "v_lshlrev_b32 v5, 7, v0",
                  "v_min_u32 v5, Lcodeend-%s-4, v5" % KN, "s_nop 0", "global_load_dword a94, v5, s[8:9]"): g.lines.append("    " + l if not l.endswith(":") else l)
        g("Lcp:")
    g("v_lshrrev_b32 v1, 6, v0")
    g("v_and_b32 v0, 63, v0")
    g("s_and_b32 s%d, s2, 7" % S_XCD)
    g("s_lshr_b32 s%d, s2, 3" % S_IDX)
    g("v_readfirstlane_b32 s3, v1")
    if OPT["map"]:
        g("s_lshr_b32 s80, s%d, 1\ns_mul_i32 s80, s80, 28\ns_add_u32 s80, s80, s%d\ns_lshr_b32 s%d, s80, 3\ns_and_b32 s80, s80, 7\ns_and_b32 s81, s%d, 1\ns_lshl_b32 s81, s81, 3\ns_add_u32 s%d, s80, s81" % (S_XCD, S_IDX, S_FT, S_XCD, S_MT))
    else:
        g("s_mul_i32 s80, s%d, 37\ns_lshr_b32 s80, s80, 8" % S_IDX)
        g("s_mul_i32 s81, s80, 7\ns_sub_u32 s81, s%d, s81" % S_IDX)
        g("s_lshr_b32 s%d, s%d, 1\ns_lshl_b32 s%d, s%d, 2\ns_add_u32 s%d, s%d, s80" % (S_MT, S_XCD, S_MT, S_MT, S_MT, S_MT))
        g("s_and_b32 s%d, s%d, 1\ns_mul_i32 s%d, s%d, 7\ns_add_u32 s%d, s%d, s81" % (S_FT, S_XCD, S_FT, S_FT, S_FT, S_FT))
    g("s_lshl_b32 s%d, s%d, 2\ns_lshr_b32 s80, s%d, 3\ns_add_u32 s%d, s%d, s80\ns_and_b32 s%d, s%d, 7" % (S_TB2, S_XCD, S_IDX, S_TB2, S_TB2, S_NB, S_IDX))
    g("s_and_b32 s%d, s3, 3" % S_W)
    g("s_lshl_b32 s80, s%d, 6\ns_lshl_b32 s81, s%d, 1\ns_add_u32 s80, s80, s81\ns_lshr_b32 s81, s%d, 1\ns_add_u32 s%d, s80, s81" % (S_XCD, S_IDX, S_W, S_CH))
    g("s_lshl_b32 s80, s%d, 8\ns_and_b32 s81, s%d, 1\ns_lshl_b32 s81, s81, 7\ns_add_u32 s80, s80, s81" % (S_CH, S_W))
    g("v_lshlrev_b32 v32, 1, v0\nv_add_u32 v32, s80, v32")
    g("s_lshl_b32 s80, s%d, 1\nv_mov_b32 v63, s80" % S_CH)
    g("s_lshr_b32 s80, s%d, 1\ns_mul_i32 s80, s80, %d\ns_and_b32 s81, s%d, 1\ns_mul_i32 s81, s81, %d\ns_add_u32 s80, s80, s81\ns_add_u32 s80, s80, %d" % (S_W, KT_CH, S_W, 64*112, KT))
    g("v_mul_u32_u24 v62, 112, v0\nv_add_u32 v62, s80, v62")
    g("s_cmp_lt_u32 s3, 4")
    g("s_cbranch_scc1 Lcompute")
def epoch_load(g):
    g("s_add_u32 s50, s48, 0x%x\ns_addc_u32 s51, s49, 0" % EP_OFF)
    g("s_load_dword s%d, s[50:51], 0" % S_TAG)
def srds2(g):
    g.srd(S_X, 16, 2048*512*2)
    g.srd(S_WD, 40, 512*1792*2)
    g.srd(S_WS, 48, WS_BYTES)
    g.srd(S_OUT, 44, 2048*512*2)
def h_dma_addr(g):
    g("v_lshrrev_b32 v4, 3, v0\nv_lshlrev_b32 v4, 10, v4\nv_and_b32 v5, 7, v0\nv_lshrrev_b32 v6, 4, v0\nv_xor_b32 v7, v5, v6")
    g("v_lshlrev_b32 v7, 4, v7\nv_add_u32 v2, v4, v7\nv_xor_b32 v3, 64, v2")
    g("s_lshl_b32 s90, s%d, 17\ns_lshl_b32 s80, s%d, 15\ns_add_u32 s90, s90, s80" % (S_MT, S_W))
    g("v_and_b32 v5, 15, v0\nv_lshlrev_b32 v7, 2, v6\nv_xor_b32 v5, v5, v7\nv_lshlrev_b32 v5, 4, v5")
    g("v_mul_u32_u24 v6, 3584, v6\nv_add_u32 v4, v6, v5")
    g("s_lshl_b32 s91, s%d, 8\ns_mul_i32 s80, s%d, %d\ns_add_u32 s91, s91, s80" % (S_FT, S_W, 16*3584))
    g("s_lshl_b32 s92, s%d, 12" % S_W)

def kbase(A):
    A("v_lshlrev_b32 v39, 16, v39\nv_mul_f32 v39, 0x%x, v39\nv_exp_f32 v39, v39\nv_lshlrev_b32 v33, 16, v33\nv_lshlrev_b32 v34, 16, v34" % f2u(LOG2E))
    A("v_cvt_pk_bf16_f32 v39, v39, v39\nv_lshlrev_b32 v39, 16, v39")
    A("v_mul_f32 v33, v39, v33\nv_mul_f32 v34, v39, v34")
    A("v_mul_f32 v33, 0x%x, v33\nv_mul_f32 v34, 0x%x, v34" % (f2u(LOG2E), f2u(1/(2*math.pi))))
def kpower(A, e, d, t):
    if e == 1: A("v_exp_f32 v%d, v33\nv_fract_f32 v%d, v34" % (t, t+1))
    else:
        A("v_mul_f32 v%d, 0x%x, v33\nv_mul_f32 v%d, 0x%x, v34" % (t, f2u(e), t+1, f2u(e)))
        A("v_exp_f32 v%d, v%d\nv_fract_f32 v%d, v%d" % (t, t, t+1, t+1))
    A("v_cos_f32 v%d, v%d\nv_sin_f32 v%d, v%d" % (d, t+1, d+1, t+1))
    A("v_mul_f32 v%d, v%d, v%d\nv_mul_f32 v%d, v%d, v%d" % (d, t, d, d+1, t, d+1))
def cm1(d, x, y): return "v_pk_mul_f32 v[%d:%d], v[%d:%d], v[%d:%d] op_sel:[0,0] op_sel_hi:[0,1]" % (d, d+1, x, x+1, y, y+1)
def cm2(d, x, y): return "v_pk_fma_f32 v[%d:%d], v[%d:%d], v[%d:%d], v[%d:%d] op_sel:[1,1,0] op_sel_hi:[1,0,1] neg_lo:[1,0,0]" % (d, d+1, x, x+1, y, y+1, d, d+1)
def cmul2(A, a, b):
    A(cm1(*a)); A(cm1(*b)); A(cm2(*a)); A(cm2(*b))
def kgen_W(A):
    kbase(A)
    for r in range(35, 39): A("v_lshlrev_b32 v%d, 16, v%d" % (r, r))
    A("v_mul_f32 v35, v39, v35\nv_mul_f32 v36, v39, v36")
    R = lambda i: 88 + 2*i
    A("v_mul_f32 v88, v37, v35\nv_mul_f32 v89, v37, v36\nv_fma_f32 v88, -v38, v36, v88\nv_fma_f32 v89, v38, v35, v89")
    Z1, Z2, ZB = 40, 42, 44
    kpower(A, 1, Z1, 46); kpower(A, 2, Z2, 48); kpower(A, 256, ZB, 50)
    def pack(i):
        x, y = R(2*i), R(min(2*i+1, 20))
        A("v_cvt_pk_bf16_f32 v%d, v%d, v%d" % (64 + i, x, y)); A("v_cvt_pk_bf16_f32 v%d, -v%d, -v%d" % (76 + i, x+1, y+1))
    cmul2(A, (R(1), R(0), Z1), (R(2), R(0), Z2))
    cmul2(A, (R(8), R(0), ZB), (R(3), R(1), Z2)); pack(0)
    cmul2(A, (R(4), R(2), Z2), (R(12), R(8), ZB)); pack(1)
    cmul2(A, (R(5), R(3), Z2), (R(9), R(2), ZB))
    cmul2(A, (R(6), R(4), Z2), (R(14), R(12), ZB)); pack(2); pack(4)
    cmul2(A, (R(7), R(5), Z2), (R(10), R(4), ZB))
    cmul2(A, (R(16), R(14), ZB), (R(11), R(6), ZB)); pack(3)
    cmul2(A, (R(13), R(10), ZB), (R(17), R(16), ZB)); pack(5)
    cmul2(A, (R(15), R(13), ZB), (R(18), R(17), ZB)); pack(6); pack(8)
    A(cm1(R(19), R(18), ZB)); pack(7); A(cm2(R(19), R(18), ZB))
    A("ds_write_b128 v62, v[64:67]\nds_write_b128 v62, v[76:79] offset:%d" % KT_IM)
    A(cm1(R(20), R(19), ZB)); pack(9); A(cm2(R(20), R(19), ZB))
    A("ds_write_b128 v62, v[68:71] offset:16\nds_write_b128 v62, v[80:83] offset:%d" % (KT_IM + 16))
    pack(10)
    A("ds_write_b128 v62, v[72:75] offset:32\nds_write_b128 v62, v[84:87] offset:%d" % (KT_IM + 32))
def kgen_E(A):
    kbase(A)
    Z8, Z16 = 40, 42
    kpower(A, 8, Z8, 46); kpower(A, 16, Z16, 48)
    A("v_cvt_pk_bf16_f32 v64, 1.0, v%d\nv_cvt_pk_bf16_f32 v80, 0, v%d" % (Z8, Z8 + 1))
    ev, od = Z16, Z8
    A(cm1(50, od, Z16)); A(cm2(50, od, Z16)); od = 50
    for i in range(1, 16):
        ne, no = (52, 54) if i % 2 else (56, 58)
        if i < 15: A(cm1(ne, ev, Z16)); A(cm1(no, od, Z16))
        A("v_cvt_pk_bf16_f32 v%d, v%d, v%d" % (64 + i, ev, od)); A("v_cvt_pk_bf16_f32 v%d, v%d, v%d" % (80 + i, ev + 1, od + 1))
        if i < 15: A(cm2(ne, ev, Z16)); A(cm2(no, od, Z16))
        ev, od = ne, no
        if i % 4 == 3:
            j = i // 4
            A("ds_write_b128 v62, v[%d:%d] offset:%d" % (64 + 4*j, 67 + 4*j, 48 + 16*j))
            A("ds_write_b128 v62, v[%d:%d] offset:%d" % (80 + 4*j, 83 + 4*j, KT_IM + 48 + 16*j))
def kgen_addr(g):
    g("s_lshr_b32 s80, s%d, 1\ns_mul_i32 s80, s80, %d\ns_add_u32 s80, s80, %d" % (S_W, KT_CH, KT))
    g("v_lshrrev_b32 v140, 2, v0\nv_mul_u32_u24 v140, 112, v140\nv_and_b32 v141, 3, v0\nv_lshlrev_b32 v141, 3, v141\nv_add_u32 v140, v140, v141\nv_add_u32 v140, s80, v140")
    g("s_and_b32 s81, s%d, 1\ns_lshl_b32 s81, s81, 5\ns_add_u32 s81, s81, 48\nv_add_u32 v141, s81, v140" % S_W)
def kgen_mfma(g):
    def kmf(ks):
        b = 12 * ks
        c0 = "0" if ks == 0 else "v[32:35]"; c1 = "0" if ks == 0 else "v[36:39]"
        g("v_mfma_f32_16x16x32_bf16 v[32:35], a[%d:%d], a[%d:%d], %s" % (b, b+3, b+8, b+11, c0))
        g("v_mfma_f32_16x16x32_bf16 v[36:39], a[%d:%d], a[%d:%d], %s" % (b+4, b+7, b+8, b+11, c1))
    for ks in range(8):
        off = (ks >> 2) * KT_IM + (ks & 3) * 32 * 112
        b = 12 * ks
        for h in range(2):
            g("ds_read_b64_tr_b16 a[%d:%d], v140 offset:%d" % (b + 2*h, b + 2*h + 1, off + h*16*112))
            g("ds_read_b64_tr_b16 a[%d:%d], v140 offset:%d" % (b + 4 + 2*h, b + 4 + 2*h + 1, off + h*16*112 + 32))
            g("ds_read_b64_tr_b16 a[%d:%d], v141 offset:%d" % (b + 8 + 2*h, b + 8 + 2*h + 1, off + h*16*112))
        if ks >= 2: kmf(ks - 2)
    kmf(6); kmf(7)
def kgen_compact_addr(g):
    g("s_and_b32 s81, s%d, 1\ns_lshl_b32 s81, s81, 4" % S_W)
    g("v_and_b32 v152, 15, v0\nv_add_u32 v152, s81, v152")
    g("v_lshrrev_b32 v153, 4, v0")
    g("v_lshlrev_b32 v154, 3, v152\nv_lshlrev_b32 v155, 2, v153\nv_add_u32 v154, v154, v155")
    g("v_lshlrev_b32 v155, 2, v152\nv_add_u32 v155, 0x100, v155")
    g("v_lshlrev_b32 v156, 1, v152\nv_add_u32 v156, 0x180, v156")
    g("v_cmp_eq_u32 vcc, 2, v153\nv_cndmask_b32 v154, v154, v155, vcc")
    g("v_cmp_eq_u32 vcc, 3, v153\nv_cndmask_b32 v154, v154, v156, vcc")
    g("v_mov_b32 v155, 2\nv_mov_b32 v156, 64\nv_cndmask_b32 v155, v155, v156, vcc\nv_add_u32 v155, v154, v155")
    g("s_lshr_b32 s80, s%d, 1\ns_mul_i32 s80, s80, %d\ns_add_u32 s80, s80, %d" % (S_W, KC_CH, KC))
    g("v_lshlrev_b32 v154, 1, v154\nv_add_u32 v142, s80, v154")
    g("v_lshlrev_b32 v155, 1, v155\nv_add_u32 v143, s80, v155")
    g("v_min_u32 v156, 1, v153\nv_lshlrev_b32 v156, 7, v156\nv_add_u32 v156, v156, v152\nv_add_u32 v156, 0x200, v156")
    g("v_lshlrev_b32 v156, 1, v156\nv_add_u32 v144, s80, v156")
def kgen_compact(g):
    g("v_cvt_pk_bf16_f32 v32, v32, v33\nv_cvt_pk_bf16_f32 v33, v34, v35\nv_cvt_pk_bf16_f32 v34, v36, v37\nv_cvt_pk_bf16_f32 v35, v38, v39")
    g("ds_write_b32 v142, v32\nds_write_b32 v143, v33")
    g("s_mov_b32 exec_hi, 0\nds_write_b16 v144, v34\nds_write_b16_d16_hi v144, v34 offset:64\nds_write_b16 v144, v35 offset:128\nds_write_b16_d16_hi v144, v35 offset:192\ns_mov_b32 exec_hi, -1")
def kfull_addr(g):
    g("s_lshl_b32 s80, s%d, 9\nv_lshlrev_b32 v152, 3, v0\nv_add_u32 v152, s80, v152" % S_W)
    for e in range(8):
        g("v_add_u32 v153, %d, v152" % (7 - e))
        g("v_cvt_f32_u32 v154, v153\nv_cvt_pk_bf16_f32 v154, v154, v154\nv_and_b32 v154, 0xffff, v154")
        g("v_subrev_u32 v154, 0x%x, v154" % (0x4300 - 128))
        g("v_cmp_gt_u32 vcc, 0x80, v153\nv_cndmask_b32 v154, v154, v153, vcc\nv_lshlrev_b32 v154, 1, v154")
        g("v_add_u32 v%d, 0x%x, v154" % (144 + e, KC))
    g("v_lshrrev_b32 v153, 4, v152\nv_lshlrev_b32 v153, 4, v153")
    g("v_and_b32 v154, 1, v0\nv_mul_u32_u24 v154, %d, v154" % KF_PL)
    g("v_add_u32 v153, v153, v154\nv_add_u32 v26, 0x%x, v153" % (KF + 256))
    g("v_lshrrev_b32 v153, 4, v0\nv_mul_u32_u24 v153, %d, v153\nv_and_b32 v154, 15, v0\nv_lshlrev_b32 v154, 4, v154\nv_add_u32 v153, v153, v154\nv_add_u32 v27, 0x%x, v153" % (KF_PL, KF))
def kfull_read(g):
    for ch in range(2):
        for e in range(8):
            g("ds_read_u16 v%d, v%d offset:%d" % (64 + 8*ch + e, 144 + e, ch*KC_CH))
    for ch in range(2):
        for e in range(4):
            g("v_lshl_or_b32 v%d, v%d, 16, v%d" % (52 + 4*ch + e, 64 + 8*ch + 2*e + 1, 64 + 8*ch + 2*e))
    g("v_mov_b32 v64, 0\nv_mov_b32 v65, 0\nv_mov_b32 v66, 0\nv_mov_b32 v67, 0")
def kfull_write(g):
    g("ds_write_b128 v27, v[64:67]")
    for ch in range(2): g("ds_write_b128 v26, v[%d:%d] offset:%d" % (52 + 4*ch, 55 + 4*ch, ch*KF_CH))

def T_issue(g):
    g("s_sub_u32 s10, s%d, 28\ns_lshl_b32 s10, s10, 3\ns_add_u32 s10, s10, s3" % S_IDX)
    g("s_mul_i32 s11, s3, 10880")
    g("v_lshrrev_b32 v5, 3, v0\nv_and_b32 v6, 7, v0\nv_lshlrev_b32 v6, 4, v6\nv_lshlrev_b32 v7, 10, v5\nv_add_u32 v8, v7, v6")
    g("s_lshl_b32 s12, s10, 16\ns_lshl_b32 s81, s%d, 7\ns_add_u32 s12, s12, s81" % S_XCD)
    for i in range(8):
        g.tl = g("s_add_u32 m0, s11, %d\ns_add_u32 s13, s12, %d\nbuffer_load_dwordx4 v8, %s, s13 offen lds" % (i*1056, i*8192, srd(S_X)))
def mall_touch(g):
    g("s_sub_u32 s80, s2, 224\ns_lshl_b32 s80, s80, 3\ns_add_u32 s80, s80, s3\ns_mul_i32 s80, s80, %d\nv_lshlrev_b32 v7, 7, v0" % (56*128))
    g("s_mov_b32 exec_hi, 0xffffff\nbuffer_load_dword v159, v7, %s, s80 offen\ns_mov_b32 exec_hi, -1" % srd(S_WD))
def T_process(g):
    g("v_lshrrev_b32 v5, 3, v0\nv_and_b32 v6, 7, v0\nv_lshlrev_b32 v6, 4, v6")
    g("v_mul_u32_u24 v27, 160, v5\nv_add_u32 v27, v27, v6\ns_add_u32 s12, s11, 9504\nv_add_u32 v27, s12, v27")
    g("v_lshlrev_b32 v5, 12, v5\nv_add_u32 v30, v5, v6")
    g("v_and_b32 v26, 3, v0\nv_lshrrev_b32 v5, 5, v0\nv_lshlrev_b32 v5, 2, v5\nv_add_u32 v26, v26, v5\nv_mul_u32_u24 v26, 1056, v26")
    g("v_bfe_u32 v5, v0, 2, 2\nv_lshlrev_b32 v6, 7, v5\nv_add_u32 v26, v26, v6")
    g("v_bfe_u32 v6, v0, 4, 1\nv_lshlrev_b32 v6, 3, v6\nv_add_u32 v26, v26, v6\nv_add_u32 v26, s11, v26")
    g("v_bfe_u32 v5, v0, 4, 1\nv_lshlrev_b32 v5, 2, v5\nv_and_b32 v6, 3, v0\nv_add_u32 v5, v5, v6\nv_mul_u32_u24 v5, 160, v5")
    g("v_bfe_u32 v6, v0, 2, 2\nv_lshlrev_b32 v6, 4, v6\nv_add_u32 v5, v5, v6")
    g("v_lshrrev_b32 v6, 5, v0\nv_lshlrev_b32 v6, 6, v6\nv_add_u32 v28, v5, v6\nv_add_u32 v28, s12, v28")
    g("s_lshl_b32 s12, s%d, 18\ns_lshl_b32 s81, s10, 7\ns_add_u32 s12, s12, s81\ns_add_u32 s12, s12, 0x%x" % (S_XCD, UT_OFF))
    g.wait_op(g.tl)
    if g.role == 1: stamp(g, "I:Tland")
    def rd(k):
        b = 64 + 4*k
        g("ds_read_b64_tr_b16 v[%d:%d], v26 offset:%d" % (b, b+1, 16*k))
        g("ds_read_b64_tr_b16 v[%d:%d], v26 offset:%d" % (b+2, b+3, 16*k + 512))
    def rl(k):
        g("ds_write_b128 v28, v[%d:%d]" % (64 + 4*k, 67 + 4*k)); g("ds_read_b128 a[%d:%d], v27" % (4*k, 4*k + 3))
    def st(k):
        g("s_add_u32 s13, s12, %d\nbuffer_store_dwordx4 a[%d:%d], v30, %s, s13 offen sc1" % (k*8*UT_STRIDE, 4*k, 4*k + 3, srd(S_WS)))
    for k in range(12):
        if k < 8: rd(k)
        if 2 <= k < 10: rl(k - 2)
        if k >= 4: st(k - 4)
    g("s_lshl_b32 s80, s%d, 9\ns_lshr_b32 s81, s10, 3\ns_lshl_b32 s81, s81, 7\ns_add_u32 s80, s80, s81\ns_lshl_b32 s81, s3, 2\ns_add_u32 s80, s80, s81\ns_add_u32 s15, s80, 0x%x" % (S_XCD, FT_OFF))

def g_load(g):
    g("s_lshl_b32 s83, s2, 3\ns_lshl_b32 s81, s%d, 1\ns_add_u32 s83, s83, s81\ns_lshl_b32 s81, s83, 10" % S_W)
    g("v_lshlrev_b32 v5, 4, v0")
    g("global_load_dwordx4 v[128:131], v5, s[42:43]")
    for j in range(2):
        g("buffer_load_dwordx4 v[%d:%d], v5, %s, s81 offen offset:%d" % (132 + 4*j, 135 + 4*j, srd(S_X), j*1024))
def g_compute(g):
    R = [140, 142]
    for r in R: g("v_mov_b32 v%d, 0" % r)
    for i in range(4):
        for j, r in enumerate(R): g("v_dot2_f32_bf16 v%d, v%d, v%d, v%d" % (r, 132 + 4*j + i, 128 + i, r))
        g("s_nop 0")
    g("s_nop 2")
    for mod in ("row_shr:1 row_mask:0xf bank_mask:0xf bound_ctrl:0", "row_shr:2 row_mask:0xf bank_mask:0xf bound_ctrl:0",
                "row_shr:4 row_mask:0xf bank_mask:0xf bound_ctrl:0", "row_shr:8 row_mask:0xf bank_mask:0xf bound_ctrl:0",
                "row_bcast:15 row_mask:0xa bank_mask:0xf", "row_bcast:31 row_mask:0xc bank_mask:0xf"):
        for r in R: g("v_add_f32_dpp v%d, v%d, v%d %s" % (r, r, r, mod))
    for t in ("v_cvt_pk_bf16_f32 v%d, v%d, v%d", "v_lshlrev_b32 v%d, 16, v%d", "v_mul_f32 v%%d, 0x%x, v%%d" % f2u(-LOG2E), "v_exp_f32 v%d, v%d",
              "v_add_f32 v%d, 1.0, v%d", "v_rcp_f32 v%d, v%d", "v_cvt_pk_bf16_f32 v%d, v%d, v%d", "v_lshlrev_b32 v%d, 16, v%d"):
        for r in R: g(t % ((r,) * t.count("%d")))
    g("v_mov_b32 v141, s%d\nv_mov_b32 v143, s%d\nv_mov_b32 v5, 0" % (S_TAG, S_TAG))
    g("s_lshl_b32 s80, s2, 3\ns_lshl_b32 s81, s%d, 1\ns_add_u32 s80, s80, s81\ns_lshl_b32 s80, s80, 3\ns_add_u32 s80, s80, 0x%x" % (S_W, G_OFF))
def g_store(g):
    g("s_mov_b32 exec_lo, 0\ns_mov_b32 exec_hi, 0x80000000")
    g("buffer_store_dwordx4 v[140:143], v5, %s, s80 offen sc1" % srd(S_WS))
    g("s_mov_b64 exec, -1")

def epoch_bump(g):
    L, P, D = g.lab("Leb"), g.lab("Lep"), g.lab("Led")
    g("s_cmp_lg_u32 s2, 255\ns_cbranch_scc1 %s" % L)
    g("s_cmp_lg_u32 s%d, 0\ns_cbranch_scc1 %s" % (S_W, L))
    for l in ("v_lshrrev_b32 v100, 3, v0", "v_lshlrev_b32 v100, 11, v100", "v_and_b32 v101, 7, v0", "v_lshlrev_b32 v101, 7, v101", "v_add_u32 v100, v100, v101",
              "s_mov_b32 s80, 0x%x" % FA_OFF, "s_mov_b32 s%d, 0x40000" % S_SPIN): g.raw(l)
    g(P + ":")
    for l in ("buffer_load_dwordx4 v[104:107], v100, %s, s80 offen sc1" % srd(S_WS), "buffer_load_dwordx4 v[108:111], v100, %s, s80 offen offset:16 sc1" % srd(S_WS), "s_waitcnt vmcnt(0)",
              "v_xor_b32 v104, s%d, v104" % S_TAG, "v_xor_b32 v106, s%d, v106" % S_TAG, "v_xor_b32 v108, s%d, v108" % S_TAG, "v_xor_b32 v110, s%d, v110" % S_TAG,
              "v_or_b32 v104, v104, v106", "v_or_b32 v108, v108, v110", "v_or_b32 v104, v104, v108", "v_cmp_ne_u32 vcc, 0, v104", "s_nop 4",
              "s_cmp_eq_u64 vcc, 0", "s_cbranch_scc1 %s" % D, "s_sleep 8", "s_sub_u32 s%d, s%d, 1" % (S_SPIN, S_SPIN), "s_cbranch_scc0 %s" % P): g.raw(l)
    g(D + ":")
    g.raw("s_mov_b32 s80, 0x%x" % EP_OFF)
    g.raw("v_mov_b32 v100, s%d" % S_TAG); g.raw("v_mov_b32 v101, 0"); g.raw("s_mov_b64 exec, 1")
    g.raw("buffer_store_dword v100, v101, %s, s80 offen sc1" % srd(S_WS))
    g.raw("s_mov_b64 exec, -1")
    g(L + ":")

def uexp_addr(g):
    g("s_lshl_b32 s85, s%d, 12\ns_and_b32 s81, s%d, 1\ns_lshl_b32 s80, s81, 11\ns_add_u32 s85, s85, s80\ns_add_u32 s85, s85, 0x%x" % (S_CH, S_W, UT_OFF))
    g("s_lshr_b32 s82, s%d, 1\ns_mul_i32 s83, s82, %d\ns_add_u32 s83, s83, %d\ns_add_u32 s86, s83, s80\ns_add_u32 s86, s86, 64" % (S_W, CU_CH, CU))
    g("v_lshlrev_b32 v28, 2, v0\nv_add_u32 v22, s83, v28\ns_lshl_b32 s80, s81, 8\ns_add_u32 s80, s80, s83\ns_add_u32 s80, s80, %d\nv_add_u32 v28, s80, v28" % (64 - 36))
    g("s_lshl_b32 s81, s81, 10\ns_mul_i32 s80, s82, %d\ns_add_u32 s80, s80, %d\ns_add_u32 s80, s80, s81\nv_lshlrev_b32 v20, 4, v0\nv_add_u32 v21, s80, v20" % (UEE[1] - UEE[0], UEE[0]))
    g("s_mul_i32 s80, s82, %d\ns_sub_u32 s80, %d, s80\ns_add_u32 s80, s80, s81\nv_add_u32 v20, s80, v20" % (UEO[0] - UEO[1], UEO[0]))
def u_load(g):
    for i in range(2):
        op = g("s_mov_b32 m0, s86\ns_nop 0\nbuffer_load_dwordx4 v10, %s, s85 offen offset:%d sc1 lds" % (srd(S_WS), i*1024))
    g("v_mov_b32 v23, 0\ns_mov_b64 exec, 0xffff\nds_write_b32 v22, v23\ns_mov_b64 exec, -1")
    return op
def u_build(g):
    def rd(i):
        b = 32 + 10*(i % 3)
        g("ds_read2_b32 v[%d:%d], v28 offset0:1 offset1:2\nds_read2_b32 v[%d:%d], v28 offset0:3 offset1:4\nds_read_b32 v%d, v28\nv_add_u32 v28, 0x200, v28" % (b, b+1, b+2, b+3, b+4))
    def wr(i):
        b = 32 + 10*(i % 3); e = b + 6
        g("v_alignbit_b32 v%d, v%d, v%d, 16" % (e, b, b+4))
        for k in (1, 2, 3): g("v_alignbit_b32 v%d, v%d, v%d, 16" % (e + k, b + k, b + k - 1))
        if i == 8: g("s_and_b32 s80, s%d, 1\ns_sub_u32 s80, s80, 1\ns_and_b32 exec_lo, s80, 0xff\ns_mov_b32 exec_hi, 0" % S_W)
        g("ds_write_b128 v20, v[%d:%d] offset:%d" % (b, b+3, i*2048))
        g("ds_write_b128 v21, v[%d:%d] offset:%d" % (e, e+3, i*2048))
        if i == 8: g("s_mov_b64 exec, -1")
    rd(0); rd(1)
    for i in range(9):
        if i + 2 < 9: rd(i + 2)
        wr(i)

class Rec2:
    def __init__(self): self.q = []
    def __call__(self, t): self.q.append(t)
def ub_items():
    r = Rec2(); u_build(r)
    q = r.q
    return q[:-4] + ["\n".join(q[-4:])]
def gemm1_dma(st):
    b = BUF[st % 3]; q = []
    p0 = "s_add_u32 s9, s14, %d\ns_and_b32 s9, s9, 7\n" % st
    if OPT["rot"] >= 3:
        p0 = ("s_mov_b32 s9, %d\n" % st) if st < 2 else ("s_add_u32 s9, s14, %d\ns_cmp_ge_u32 s9, 8\ns_cselect_b32 s8, 6, 0\ns_sub_u32 s9, s9, s8\n" % st)
    pre = p0 + "s_lshl_b32 s35, s9, 7\ns_add_u32 s35, s35, s90\ns_mul_i32 s8, s9, %d\ns_add_u32 s8, s8, s91\n" % (64*3584)
    for i in range(4):
        q.append((pre if i == 0 else "") + "s_add_u32 m0, s92, %d\ns_add_u32 s93, s35, %d\nbuffer_load_dwordx4 v%d, %s, s93 offen lds" % (b + i*1024, i*8192, 2 + (i & 1), srd(S_X)))
        q.append("s_add_u32 m0, s92, %d\ns_add_u32 s93, s8, %d\nbuffer_load_dwordx4 v4, %s, s93 offen lds" % (b + 16384 + i*1024, i*4*3584, srd(S_WG)))
        q.append("s_add_u32 m0, s92, %d\nbuffer_load_dwordx4 v4, %s, s93 offen lds" % (b + 32768 + i*1024, srd(S_WU)))
    return q

def cf(p, kind, i):
    if p == 0: return "a[%d:%d]" % ((0 if kind == "A" else 32) + 4*i, (0 if kind == "A" else 32) + 4*i + 3)
    return ("a[%d:%d]" % (64 + 4*i, 67 + 4*i)) if kind == "A" else ("v[%d:%d]" % (128 + 4*i, 131 + 4*i))
def sel(g, dst, c0, c1):
    g("s_cselect_b32 s%d, %d, %d" % (dst, c1, c0) if False else "s_mov_b32 s%d, %d" % (dst, c0))
def conv_addr(g):
    g("s_lshr_b32 s80, s%d, 1\ns_and_b32 s82, s%d, 1" % (S_W, S_W))
    g("s_mul_i32 s81, s80, %d\ns_add_u32 s81, s81, %d" % (UEE[1] - UEE[0], UEE[0]))
    g("s_mul_i32 s83, s80, %d\ns_sub_u32 s83, %d, s83" % (UEO[0] - UEO[1], UEO[0]))
    g("v_bfe_u32 v5, v0, 4, 1\nv_lshlrev_b32 v5, 1, v5\nv_lshrrev_b32 v6, 5, v0\nv_add_u32 v5, v5, v6")
    g("v_bfe_u32 v6, v0, 1, 3\nv_lshlrev_b32 v7, 2, v5\nv_sub_u32 v7, v6, v7\nv_add_u32 v7, 13, v7\nv_lshlrev_b32 v7, 4, v7")
    g("v_mov_b32 v8, s81\nv_mov_b32 v9, s83\nv_and_b32 v6, 1, v0\nv_cmp_eq_u32 vcc, 1, v6\nv_cndmask_b32 v8, v8, v9, vcc\nv_add_u32 v8, v8, v7")
    g("s_lshl_b32 s81, s82, 10\nv_add_u32 v8, s81, v8")
    g("v_and_b32 v13, 15, v0\nv_lshlrev_b32 v13, 7, v13\nv_lshrrev_b32 v14, 4, v0\nv_lshlrev_b32 v14, 5, v14\nv_add_u32 v13, v13, v14")
    g("s_lshl_b32 s81, s82, 13\ns_add_u32 s81, s81, s83\ns_add_u32 s81, s81, 128\nv_add_u32 v13, s81, v13")
    g("v_and_b32 v6, 15, v0\nv_lshrrev_b32 v7, 5, v0\nv_mul_u32_u24 v7, %d, v7\nv_bfe_u32 v9, v0, 4, 1\nv_add_u32 v9, v9, v6\nv_lshlrev_b32 v9, 4, v9\nv_add_u32 v7, v7, v9" % KF_PL)
    g("s_mul_i32 s81, s80, %d\ns_lshl_b32 s83, s82, 7\ns_sub_u32 s83, s81, s83\ns_add_u32 s83, s83, %d" % (KF_CH, KF + 16*(16 - 7)))
    g("v_add_u32 v9, s83, v7")
    g("v_lshlrev_b32 v10, 4, v0")
    g("s_lshl_b32 s81, s%d, 12\ns_add_u32 s81, s81, %d\ns_cmp_eq_u32 s%d, 3\ns_cselect_b32 s81, %d, s81\nv_add_u32 v12, s81, v10" % (S_W, XCH[0], S_W, XCH[3]))
    g("s_xor_b32 s83, s%d, 1\ns_lshl_b32 s81, s83, 12\ns_add_u32 s81, s81, %d\ns_cmp_eq_u32 s83, 3\ns_cselect_b32 s81, %d, s81\nv_add_u32 v11, s81, v10" % (S_W, XCH[0], XCH[3]))
    g("v_and_b32 v15, 15, v0\nv_lshlrev_b32 v15, 5, v15\nv_lshrrev_b32 v14, 4, v0\nv_lshlrev_b32 v14, 3, v14\nv_add_u32 v15, v15, v14")
    g("s_lshl_b32 s81, s%d, 12\ns_add_u32 s81, s81, %d\nv_add_u32 v15, s81, v15\nv_add_u32 v14, s81, v10" % (S_W, STG))
def conv_main(g, side, hooks={}):
    side = list(side)
    def reads(i):
        p = i & 1; q = []
        for a in range(8):
            q.append("ds_read_b128 %s, v8 offset:%d" % (cf(p, "A", a), a*2048 + i*256))
            q.append("ds_read_b128 %s, v9 offset:%d" % (cf(p, "B", a), a*256 + (3 - i)*32))
        return q
    for r in reads(0): g(r)
    first = set(); cnt = 0; last = None
    for i in range(4):
        p = i & 1
        nxt = reads(i + 1) if i < 3 else ["ds_read_b64 a[%d:%d], v13 offset:%d" % (2*cc, 1 + 2*cc, cc*2048) for cc in range(4)]
        pairs = sorted([(a, d) for a in range(8) for d in range(8) if a + d <= 7], key=lambda x: (max(x), x))
        for n, (a, d) in enumerate(pairs):
            c = a + d
            C = "v[%d:%d]" % (32 + 4*c, 35 + 4*c) if c in first else "0"
            first.add(c)
            g("v_mfma_f32_16x16x32_bf16 v[%d:%d], %s, %s, %s" % (32 + 4*c, 35 + 4*c, cf(p, "A", a), cf(p, "B", d), C))
            if n >= 12 and nxt: g(nxt.pop(0))
            elif n in (1, 3, 5, 7, 9, 11, 30, 33) and side: last = g(side.pop(0))
        assert not nxt
        if i in hooks: hooks[i](g)
    assert not side
    for cc in range(4):
        for h in range(2):
            u = 128 + 2*cc + h; t = 136 + 4*cc + 2*h
            g("v_accvgpr_read_b32 v%d, a%d" % (u, 2*cc + h))
            g("v_lshlrev_b32 v%d, 16, v%d\nv_and_b32 v%d, 0xffff0000, v%d" % (t, u, t+1, u))
            g("v_mul_f32 v%d, v29, v%d\nv_mul_f32 v%d, v29, v%d" % (t, t, t+1, t+1))
            if cc == 0 and h == 1:
                L1, L2 = g.lab("Lx"), g.lab("Lx")
                g("s_and_b32 s82, s%d, 1\ns_cmp_lg_u32 s82, 0\ns_cbranch_scc1 %s" % (S_W, L1))
                for k in range(4): g.raw("ds_write_b128 v11, v[%d:%d] offset:%d" % (48 + 4*k, 51 + 4*k, k*1024))
                g("s_branch %s" % L2)
                g(L1 + ":")
                for k in range(4): g.raw("ds_write_b128 v11, v[%d:%d] offset:%d" % (32 + 4*k, 35 + 4*k, k*1024))
                g.nop(2)
                for r in range(16): g.raw("v_mov_b32 v%d, v%d" % (32 + r, 48 + r))
                g(L2 + ":")
                g.lg_seq += 4
            g("v_cvt_pk_bf16_f32 v%d, v%d, v%d" % (u, t, t+1))
            g("v_lshlrev_b32 v%d, 16, v%d\nv_and_b32 v%d, 0xffff0000, v%d" % (t, u, t+1, u))
    g.wait(lg=0)
    return last
def conv_fin(g):
    for r in range(16): g("v_add_f32 v%d, v%d, v%d" % (32 + r, 32 + r, 48 + r))
    for r in range(8): g("v_cvt_pk_bf16_f32 v%d, v%d, v%d" % (48 + r, 32 + 2*r, 33 + 2*r))
    for r in range(8): g("v_lshlrev_b32 v%d, 16, v%d\nv_and_b32 v%d, 0xffff0000, v%d" % (32 + 2*r, 48 + r, 33 + 2*r, 48 + r))
    for r in range(16): g("v_add_f32 v%d, v%d, v%d" % (32 + r, 32 + r, 136 + r))
    for r in range(8): g("v_cvt_pk_bf16_f32 v%d, v%d, v%d" % (48 + r, 32 + 2*r, 33 + 2*r))
    for cc in range(4): g("ds_write_b64 v15, v[%d:%d] offset:%d" % (48 + 2*cc, 49 + 2*cc, cc*512))
    for pr in range(2): g("ds_read_b128 v[%d:%d], v14 offset:%d" % (56 + 4*pr, 59 + 4*pr, pr*1024))
    g("s_and_b32 s82, s%d, 1\ns_lshl_b32 s81, s%d, 12\ns_lshl_b32 s83, s82, 11\ns_add_u32 s81, s81, s83\ns_add_u32 s81, s81, 0x%x" % (S_W, S_CH, AT_OFF))
    for pr in range(2):
        g("buffer_store_dwordx4 v[%d:%d], v10, %s, s81 offen offset:%d sc1" % (56 + 4*pr, 59 + 4*pr, srd(S_WS), pr*1024))

def chunk_ids(g):
    for c in range(7):
        g("s_add_u32 s%d, s%d, %d\ns_cmp_ge_u32 s%d, 7\ns_cselect_b32 s80, 7, 0\ns_sub_u32 s%d, s%d, s80" % (18 + c, S_NB, c, 18 + c, 18 + c, 18 + c))
    g("s_lshl_b32 s95, s%d, 14\ns_add_u32 s95, s95, %d\ns_lshl_b32 s25, s%d, 13" % (S_W, WDA, S_W))
def wd_setup(g, vreg):
    g("v_lshrrev_b32 v5, 3, v0\nv_lshlrev_b32 v5, 10, v5\nv_bfe_u32 v6, v0, 4, 1\nv_lshlrev_b32 v6, 2, v6\nv_and_b32 v7, 7, v0\nv_xor_b32 v6, v6, v7\nv_lshlrev_b32 v6, 4, v6\nv_add_u32 v%d, v5, v6" % vreg)
    g("s_mul_i32 s94, s%d, %d\ns_lshl_b32 s80, s%d, 7\ns_add_u32 s94, s94, s80" % (S_W, 448*1024, S_NB))
WSLOT = {3: (95, 0), 4: (95, 8192)}
def wd_dma(c, vreg):
    sb, off = WSLOT[c]
    q = []
    for i in range(8):
        pre = "s_lshl_b32 s93, s%d, 16\ns_add_u32 s93, s93, s94\n" % (18 + c) if i == 0 else "s_add_u32 s93, s93, 8192\n"
        q.append("s_add_u32 m0, s%d, %d\n%sbuffer_load_dwordx4 v%d, %s, s93 offen lds" % (sb, off + i*1024, pre, vreg, srd(S_WD)))
    return q

def l2t_addr(g):
    g("s_lshl_b32 s80, s%d, 2\ns_add_u32 s80, s80, s%d\ns_lshl_b32 s26, s80, 12\ns_add_u32 s26, s26, 0x%x" % (S_IDX, S_W, WDT_OFF))
    g("s_lshr_b32 s27, s80, 5\ns_mul_i32 s27, s27, %d\ns_and_b32 s80, s80, 31\ns_lshl_b32 s80, s80, 11\ns_add_u32 s27, s27, s80" % (448*1024))
    g("v_and_b32 v24, 7, v0\nv_bfe_u32 v25, v0, 3, 1\nv_lshlrev_b32 v25, 10, v25\nv_lshlrev_b32 v23, 7, v24\nv_add_u32 v25, v25, v23")
    g("v_lshrrev_b32 v21, 4, v0\nv_add_u32 v21, v21, v24\nv_add_u32 v21, 2, v21\nv_subrev_u32 v23, 7, v21\nv_min_u32 v21, v21, v23\nv_lshlrev_b32 v21, 16, v21\nv_add_u32 v21, v21, v25")
    g("v_add_u32 v22, 6, v24\nv_subrev_u32 v23, 7, v22\nv_min_u32 v22, v22, v23\nv_lshlrev_b32 v22, 16, v22\nv_add_u32 v22, v22, v25")
    g("v_lshlrev_b32 v23, 7, v0")
def l2t(g):
    g("s_mov_b32 exec_hi, 0\nbuffer_load_dword v24, v23, %s, s26 offen sc1\ns_mov_b32 exec_hi, -1" % srd(S_WS))
    g("buffer_load_dword v25, v21, %s, s27 offen" % srd(S_WD))
    g("s_mov_b64 exec, 0xffff\nbuffer_load_dword v21, v22, %s, s27 offen\ns_mov_b64 exec, -1" % srd(S_WD))
def wd_reg(c):
    q = []
    for i in range(8):
        pre = "s_lshl_b32 s26, s%d, 16\ns_add_u32 s26, s26, s94\n" % (18 + c) if i == 0 else "s_add_u32 s26, s26, 8192\n"
        r = ("v[%d:%d]" % (64 + 32*(c - 5) + 4*i, 67 + 32*(c - 5) + 4*i)) if c >= 5 else ("a[%d:%d]" % (32*(c - 3) + 4*i, 32*(c - 3) + 4*i + 3))
        q.append("%sbuffer_load_dwordx4 %s, v30, %s, s26 offen" % (pre, r, srd(S_WD)))
    return q
def dose(g, k):
    if OPT["l2t"] != 3: return
    if k < 4: g("%s\nbuffer_load_dword v%d, v21, %s, s27 offen\ns_mov_b64 exec, -1" % (lanes(16*k, 16*k + 16), 96 + k, srd(S_WD)))
    elif k == 4: g("%s\nbuffer_load_dword v100, v22, %s, s27 offen\ns_mov_b64 exec, -1" % (lanes(0, 16), srd(S_WD)))
    else: g("%s\nbuffer_load_dword v%d, v23, %s, s26 offen sc1\ns_mov_b64 exec, -1" % (lanes(16*(k-5), 16*(k-5) + 16), 96 + k, srd(S_WS)))
def H_part1(g, idle):
    D = (lambda st: []) if idle else gemm1_dma
    st_ = (lambda g, n: None) if idle else stamp
    def W(op):
        if op is not None: g.wait_op(op)
    if idle:
        g.srd(S_X, 16, 2048*512*2); T_issue(g); g.srd(S_WD, 40, 512*1792*2); epoch_load(g); g.srd(S_WS, 48, WS_BYTES); tag_compute(g); T_process(g)
        tst = ("vm", g.vm_seq)
    g("global_load_ushort v39, v63, s[30:31]")
    g("global_load_ushort v33, v32, s[18:19]")
    g("global_load_ushort v34, v32, s[20:21]")
    g("global_load_ushort v29, v63, s[32:33]")
    if not idle:
        g.srd(S_WG, 36, 512*1792*2); g.srd(S_WU, 38, 512*1792*2)
    g.srd(S_X, 16, 2048*512*2)
    d = {}
    d[0] = weave(g, D(0), [])
    if OPT["gt"] and not idle:
        g("s_lshl_b32 s80, s2, 2\ns_add_u32 s80, s80, s%d\ns_lshl_b32 s81, s80, 11\ns_mul_i32 s80, s80, %d\nv_lshlrev_b32 v5, 7, v0" % (S_W, 19*128))
        g("s_mov_b64 exec, 0xffff\nbuffer_load_dword v157, v5, %s, s81 offen\nbuffer_load_dword v158, v5, %s, s81 offen" % (srd(S_WG), srd(S_WU)))
        g("s_mov_b64 exec, 0x7ffff\nbuffer_load_dword v159, v5, %s, s80 offen\ns_mov_b64 exec, -1" % srd(S_X))
    if not idle: epoch_load(g)
    g.srd(S_WS, 48, WS_BYTES); g.srd(S_WD, 40, 512*1792*2); g.srd(S_OUT, 44, 2048*512*2)
    st_(g, "H:d0 issued")
    if not idle: tag_compute(g)
    else: stamp(g, "I:Tiss"); g.wait_op(tst); flag_store(g, 15, 8); mall_touch(g); stamp(g, "I:Tflag")
    g("v_lshlrev_b32 v29, 16, v29")
    st_(g, "H:par")
    q1 = D(1); n1 = OPT["n1"]
    weave(g, q1[:n1], rec(kgen_E)) if (n1 and q1) else kgen_E(g)
    g.wait(lg=0)
    st_(g, "H:E done")
    if idle: stamp(g, "I:Edone")
    g("s_barrier")
    if idle: stamp(g, "I:Bk")
    d[1] = weave(g, q1[n1:], rec(kfull_addr))
    st_(g, "H:i0")
    W(d[0])
    g("s_barrier")
    d[2] = weave(g, D(2), rec(kfull_read))
    st_(g, "H:i1")
    g.wait(lg=0); W(d[1])
    g("s_barrier")
    if idle: stamp(g, "I:B1")
    d[3] = weave(g, D(3), rec(kfull_write) + rec(uexp_addr))
    wd_setup(g, 30); chunk_ids(g)
    wr = wd_reg(5) + wd_reg(6) + wd_reg(3) + wd_reg(4)
    def WR(n):
        for _ in range(n):
            if wr: g(wr.pop(0))
    st_(g, "H:i2")
    W(d[2])
    g("s_barrier")
    d[4] = weave(g, D(4), [])
    WR(OPT["w2"])
    conv_addr(g)
    st_(g, "H:i3")
    W(d[3])
    g("s_barrier")
    d[5] = weave(g, D(5), [])
    WR(OPT["w3"])
    st_(g, "H:i4")
    W(d[4])
    g("s_barrier")
    d[6] = weave(g, D(6), [])
    WR(OPT["w3"])
    g("s_lshl_b32 s84, s%d, 9\ns_add_u32 s84, s84, 0x%x\ns_lshl_b32 s80, s%d, 9\ns_add_u32 s80, s80, 0x%x" % (S_XCD, FT_OFF, S_NB, FW_OFF))
    g("v_bfe_u32 v24, v0, 3, 2\nv_lshlrev_b32 v24, 7, v24\nv_and_b32 v25, 7, v0\nv_lshlrev_b32 v25, 2, v25\nv_add_u32 v24, v24, v25")
    g("v_and_b32 v25, 0x18c, v24\nv_add_u32 v25, s80, v25\nv_add_u32 v24, s84, v24\nv_cmp_lt_u32 vcc, 31, v0\nv_cndmask_b32 v24, v24, v25, vcc\ns_mov_b32 s84, 0")
    st_(g, "H:i5")
    g.wait(lg=0); W(d[5])
    g("s_barrier")
    d[7] = weave(g, D(7), [])
    WR(OPT["w3"])
    st_(g, "H:i6")
    W(d[6])
    g("s_barrier")
    L0 = g.lab("Lq")
    g("s_cmp_lg_u32 s%d, 0\ns_cbranch_scc1 %s" % (S_W, L0))
    g.raw("buffer_load_dword v25, v24, %s, s84 offen sc1" % srd(S_WS))
    g(L0 + ":")
    s0 = g.vm_seq
    g_load(g)
    WR(OPT["nr6"])
    nv = g.vm_seq - s0
    stamp(g, "I:prepoll" if idle else "H:prepoll")
    g.raw("s_waitcnt vmcnt(%d)" % nv); g.vm_done = max(g.vm_done, g.vm_seq - nv)
    Lok = g.lab("Lok")
    g("s_cmp_lg_u32 s%d, 0\ns_cbranch_scc1 %s" % (S_W, Lok))
    g("v_cmp_ne_u32 vcc, s%d, v25" % S_TAG)
    g.nop(4)
    g("s_cmp_eq_u64 vcc, 0\ns_cbranch_scc1 %s" % Lok)
    sv = g.vm_done
    poll(g, 24, 84, 25, sleep=8)
    g.vm_done = sv
    g(Lok + ":")
    if idle: stamp(g, "I:polled")
    st_(g, "H:a7")
    g("s_barrier")
    ul = u_load(g)
    WR(99)
    g_compute(g); g_store(g)
    g("v_mov_b32 v16, %d\nv_lshlrev_b32 v17, 2, v0\nv_add_u32 v17, v16, v17\nv_mov_b32 v18, 0\nv_mov_b32 v19, 1" % SYW)
    g("ds_write_b32 v17, v18")
    g.wait(lg=0); g.wait_op(ul)
    if idle: stamp(g, "I:a8")
    st_(g, "H:a8")

SYW = 28928
STG = 0
def hsync(g, target):
    L, D = g.lab("Lh"), g.lab("Lhd")
    g("s_mov_b64 exec, 1\nds_add_u32 v16, v19\ns_mov_b64 exec, -1")
    g("s_mov_b32 s%d, 0x100000" % S_SPIN)
    g(L + ":")
    for l in ("ds_read_b32 v18, v16", "s_waitcnt lgkmcnt(0)", "v_readfirstlane_b32 s80, v18", "s_sub_u32 s%d, s%d, 1" % (S_SPIN, S_SPIN), "s_cbranch_scc1 %s" % D,
              "s_cmp_lt_u32 s80, %d" % target, "s_cbranch_scc1 %s" % L): g.raw(l)
    g(D + ":")
    g.lg_done = g.lg_seq
def fin_addr(g, b, half):
    g("s_add_u32 s80, s95, %d\nv_add_u32 v%d, s80, v10" % (WDB1 - WDA + 12288, b))
    for q in (1, 2, 3):
        g("s_xor_b32 s80, s%d, %d\ns_lshl_b32 s80, s80, 14\ns_add_u32 s80, s80, %d\nv_add_u32 v%d, s80, v10" % (S_W, q, WDB1 + (q-1)*4096 + half*2048, b + q))
    g("v_and_b32 v%d, 31, v0\nv_lshlrev_b32 v%d, 10, v%d\nv_lshrrev_b32 v1, 5, v0\nv_lshlrev_b32 v1, 4, v1\nv_add_u32 v%d, v%d, v1" % (b+4, b+4, b+4, b+4, b+4))
    g("s_lshl_b32 s87, s%d, 16\ns_and_b32 s81, s%d, 1\ns_lshl_b32 s81, s81, 15\ns_add_u32 s87, s87, s81\ns_lshl_b32 s81, s%d, 7\ns_add_u32 s87, s87, s81\ns_lshr_b32 s81, s%d, 1\ns_lshl_b32 s81, s81, 6\ns_add_u32 s87, s87, s81\ns_add_u32 s87, s87, %d" % (S_TB2, S_W, S_NB, S_W, half*32))
def fin_math(g, P, GA, OMG, VO):
    for r in range(4):
        x = P + 2*r
        g("v_pk_add_f32 v[%d:%d], v[%d:%d], v[%d:%d]" % (x, x+1, x, x+1, x+8, x+9))
        g("v_pk_add_f32 v[%d:%d], v[%d:%d], v[%d:%d]" % (x+16, x+17, x+16, x+17, x+24, x+25))
    for r in range(4):
        x = P + 2*r
        g("v_pk_add_f32 v[%d:%d], v[%d:%d], v[%d:%d]" % (x, x+1, x, x+1, x+16, x+17))
    for r in range(4): g("v_cvt_pk_bf16_f32 v%d, v%d, v%d" % (P + 8 + r, P + 2*r, P + 2*r + 1))
    for r in range(4): g("v_lshlrev_b32 v%d, 16, v%d\nv_and_b32 v%d, 0xffff0000, v%d" % (P + 2*r, P + 8 + r, P + 2*r + 1, P + 8 + r))
    for r in range(8): g("v_mul_f32 v%d, v%d, v%d" % (P + r, OMG, P + r))
    for r in range(4): g("v_cvt_pk_bf16_f32 v%d, v%d, v%d" % (P + 8 + r, P + 2*r, P + 2*r + 1))
    for r in range(4): g("v_lshlrev_b32 v%d, 16, v%d\nv_and_b32 v%d, 0xffff0000, v%d" % (P + 16 + 2*r, GA + r, P + 17 + 2*r, GA + r))
    for r in range(4): g("v_lshlrev_b32 v%d, 16, v%d\nv_and_b32 v%d, 0xffff0000, v%d" % (P + 2*r, P + 8 + r, P + 2*r + 1, P + 8 + r))
    for r in range(4):
        x = P + 2*r
        g("v_pk_add_f32 v[%d:%d], v[%d:%d], v[%d:%d]" % (x, x+1, x, x+1, x+16, x+17))
    for r in range(4): g("v_cvt_pk_bf16_f32 v%d, v%d, v%d" % (GA + r, P + 2*r, P + 2*r + 1))
    g("v_permlane32_swap_b32 v%d, v%d" % (GA, GA + 2))
    g("v_permlane32_swap_b32 v%d, v%d" % (GA + 1, GA + 3))
    g("buffer_store_dwordx4 v[%d:%d], v%d, %s, s87 offen %s" % (GA, GA + 3, VO, srd(S_OUT), {0: "", 1: "sc1", 2: "nt", 3: "sc0 sc1"}[OPT["osc"]]))

def build_H():
    g = G(); g.nlab = 1000; g.role = 1; g.nst = 1; St.names[48] = "H:start"
    prologue(g)
    g("s_setprio %d" % OPT["hprio"])
    h_dma_addr(g)
    if OPT["rot"] == 1: g("s_add_u32 s14, s%d, s%d\ns_and_b32 s14, s14, 3\ns_lshl_b32 s14, s14, 1" % (S_MT, S_FT))
    elif OPT["rot"] == 2: g("s_add_u32 s14, s%d, s%d\ns_and_b32 s14, s14, 1\ns_lshl_b32 s14, s14, 2" % (S_MT, S_FT))
    elif OPT["rot"] == 3: g("s_add_u32 s14, s%d, s%d\ns_and_b32 s14, s14, 1\ns_mul_i32 s14, s14, 3" % (S_MT, S_FT))
    else: g("s_mov_b32 s14, 0")
    g("s_waitcnt lgkmcnt(0)")
    g("s_cmp_ge_u32 s%d, 28\ns_cbranch_scc1 Lhidle" % S_IDX)
    H_part1(g, False)
    g("Lh8:")
    g("s_barrier")
    g("s_setprio %d" % OPT["bprio"])
    u_build(g)
    stamp(g, "H:built")
    g("v_add_u32 v23, s95, v10\ns_lshl_b32 s81, s%d, 2\nv_add_u32 v17, s81, v16" % S_W)
    for i in range(16): g("ds_write_b128 v23, a[%d:%d] offset:%d" % (4*i, 4*i + 3, i*1024))
    g("ds_write_b32 v17, v19 offset:32")
    g("s_setprio 0")
    g.wait(lg=0)
    stamp(g, "H:a9")
    g("s_lshl_b32 s81, s%d, 2\nv_add_u32 v17, s81, v16" % S_W)
    hsync(g, 4)
    L, D = g.lab("Lw"), g.lab("Lwd")
    g(L + ":")
    for l in ("ds_read_b32 v18, v17 offset:48", "s_waitcnt lgkmcnt(0)", "v_readfirstlane_b32 s80, v18", "s_sub_u32 s%d, s%d, 1" % (S_SPIN, S_SPIN), "s_cbranch_scc1 %s" % D,
              "s_cmp_lg_u32 s80, 0", "s_cbranch_scc1 %s" % D, "s_sleep 1", "s_branch %s" % L): g.raw(l)
    g(D + ":")
    stamp(g, "H:go")
    g("s_setprio %d" % OPT["convp"])
    conv_main(g, [])
    stamp(g, "H:convend")
    g("s_setprio 3")
    hsync(g, 8)
    for cc in range(4): g("ds_read_b128 v[%d:%d], v12 offset:%d" % (48 + 4*cc, 51 + 4*cc, cc*1024))
    conv_fin(g)
    aop = ("vm", g.vm_seq)
    stamp(g, "H:aiss")
    g("s_add_u32 s80, s95, %d\nv_add_u32 v11, s80, v10" % (WDB1 - WDA))
    for i in range(16): g("ds_write_b128 v11, v[%d:%d] offset:%d" % (64 + 4*i, 67 + 4*i, i*1024))
    g("s_and_b32 s82, s%d, 1\ns_lshl_b32 s80, s%d, 1\ns_add_u32 s80, s80, s82\ns_lshl_b32 s80, s80, 10\ns_and_b32 s81, s%d, 56\ns_lshl_b32 s81, s81, 4\ns_add_u32 s80, s80, s81\ns_and_b32 s81, s%d, 7\ns_lshl_b32 s81, s81, 2\ns_add_u32 s80, s80, s81\ns_add_u32 s80, s80, 0x%x" % (S_W, S_XCD, S_CH, S_CH, FA_OFF))
    g("ds_write_b32 v17, v19 offset:16")
    stamp(g, "H:wdland")
    g.wait_op(aop)
    flag_store(g, 80, 8)
    stamp(g, "H:aflag")
    g("v_and_b32 v5, 31, v0\nv_lshlrev_b32 v20, 3, v5")
    g("s_lshl_b32 s82, s%d, 1\ns_lshr_b32 s81, s%d, 4\ns_add_u32 s82, s82, s81\ns_lshl_b32 s82, s82, 10\ns_lshr_b32 s81, s%d, 1\ns_lshl_b32 s81, s81, 9\ns_add_u32 s82, s82, s81\ns_add_u32 s82, s82, 0x%x\ns_add_u32 s50, s48, s82\ns_addc_u32 s51, s49, 0" % (S_NB, S_TB2, S_W, FA_OFF))
    g("v_lshrrev_b32 v7, 2, v0\nv_lshlrev_b32 v8, 12, v7\nv_and_b32 v9, 3, v0\nv_lshlrev_b32 v9, 4, v9\nv_add_u32 v8, v8, v9")
    g("s_lshl_b32 s83, s%d, 18\ns_lshr_b32 s81, s%d, 1\ns_lshl_b32 s81, s81, 17\ns_add_u32 s83, s83, s81\ns_lshl_b32 s81, s%d, 7\ns_add_u32 s83, s83, s81\ns_and_b32 s81, s%d, 1\ns_lshl_b32 s81, s81, 6\ns_add_u32 s83, s83, s81\ns_add_u32 s83, s83, 0x%x\ns_add_u32 s84, s83, 0x10000" % (S_NB, S_W, S_TB2, S_W, AT_OFF))
    g("s_lshl_b32 s85, s%d, 9\ns_and_b32 s81, s%d, 1\ns_lshl_b32 s81, s81, 8\ns_add_u32 s85, s85, s81\ns_add_u32 s85, s85, 0x%x" % (S_TB2, S_W, G_OFF))
    g("s_lshl_b32 s86, s%d, 12\ns_add_u32 s86, s86, %d\nv_add_u32 v21, s86, v10" % (S_W, STG))
    g("v_lshrrev_b32 v22, 5, v0\nv_lshlrev_b32 v22, 2, v22\nv_bfe_u32 v23, v0, 2, 2\nv_add_u32 v22, v22, v23\nv_lshlrev_b32 v22, 6, v22")
    g("v_bfe_u32 v23, v0, 4, 1\nv_lshlrev_b32 v23, 5, v23\nv_add_u32 v22, v22, v23\nv_and_b32 v23, 3, v0\nv_lshlrev_b32 v23, 3, v23\nv_add_u32 v22, v22, v23\nv_add_u32 v22, s86, v22")
    fin_addr(g, 24, 1)
    g("v_bfe_u32 v5, v0, 3, 2\nv_lshlrev_b32 v5, 7, v5\nv_and_b32 v6, 7, v0\nv_lshlrev_b32 v6, 2, v6\nv_add_u32 v5, v5, v6")
    if OPT["asl"]: g("s_sleep %d" % OPT["asl"])
    poll(g, 5, 82, 6, sleep=OPT["asl2"])
    stamp(g, "H:apolled")
    g("buffer_load_dwordx4 v[12:15], v8, %s, s83 offen sc1" % srd(S_WS))
    g("buffer_load_dwordx4 v[16:19], v8, %s, s84 offen sc1" % srd(S_WS))
    poll(g, 20, 85, 2, width=2)
    g("v_sub_f32 v3, 1.0, v2\nv_cvt_pk_bf16_f32 v3, v3, v3\nv_lshlrev_b32 v3, 16, v3")
    g("ds_write_b128 v21, v[12:15]")
    g("ds_write_b128 v21, v[16:19] offset:1024")
    for q in range(4): g("ds_read_b64_tr_b16 v[%d:%d], v22 offset:%d" % (32 + 2*q, 33 + 2*q, q*512))
    for r in range(8):
        y = 48 + 2*r
        g("v_lshlrev_b32 v%d, 16, v%d\nv_and_b32 v%d, 0xffff0000, v%d" % (y, 32 + r, y+1, 32 + r))
        g("v_mul_f32 v%d, v2, v%d\nv_mul_f32 v%d, v2, v%d" % (y, y, y+1, y+1))
        g("v_cvt_pk_bf16_f32 v%d, v%d, v%d" % (40 + r, y, y+1))
    g("ds_write_b128 v21, v[40:43]")
    g("ds_write_b32 v21, v3 offset:1024")
    g.wait(lg=0)
    epoch_bump(g)
    stamp(g, "H:aTready")
    g("s_barrier")
    for j in range(2):
        for sw in range(4): g("ds_read_b128 v[%d:%d], v%d offset:%d" % (64 + 8*sw + 4*j, 67 + 8*sw + 4*j, 24 + sw, j*1024))
    fin_math(g, 64, 44, 3, 28)
    stamp(g, "H:end")
    stamp_store(g)
    g("s_endpgm")
    g2 = G(); g2.nlab = 3000; g2.role = 1; g2.nst = 36
    g2("Lhidle:")
    H_part1(g2, True)
    g2("s_branch Lh8")
    g2("Lcodeend:")
    return g.text(), g2.text()

RADDR = [8, 14, 20]
def gemm1_raddr(g):
    g("v_and_b32 v5, 31, v0\nv_lshrrev_b32 v6, 5, v0\nv_bfe_u32 v7, v0, 1, 3\nv_xor_b32 v6, v6, v7\nv_lshlrev_b32 v6, 4, v6\nv_lshlrev_b32 v5, 7, v5\nv_add_u32 v5, v5, v6")
    g("s_and_b32 s80, s%d, 1\ns_lshl_b32 s80, s80, 13\nv_add_u32 v8, s80, v5" % S_W)
    for s in range(1, 4): g("v_xor_b32 v%d, %d, v8" % (8 + s, 32*s))
    g("v_lshrrev_b32 v5, 5, v0\nv_lshlrev_b32 v5, 3, v5\nv_bfe_u32 v6, v0, 2, 2\nv_add_u32 v5, v5, v6\nv_lshlrev_b32 v5, 8, v5")
    g("s_lshr_b32 s80, s%d, 1\ns_lshl_b32 s80, s80, 1\nv_xor_b32 v6, s80, v6\nv_lshlrev_b32 v6, 6, v6\nv_add_u32 v5, v5, v6" % S_W)
    g("v_bfe_u32 v6, v0, 4, 1\nv_lshlrev_b32 v6, 5, v6\nv_add_u32 v5, v5, v6\nv_and_b32 v6, 3, v0\nv_lshlrev_b32 v6, 3, v6\nv_add_u32 v5, v5, v6")
    g("v_add_u32 v12, 0x4000, v5\nv_xor_b32 v13, 64, v12")
    for i in range(6):
        g("v_add_u32 v%d, 0x%x, v%d" % (14 + i, BUF[1], 8 + i))
        g("v_add_u32 v%d, 0x%x, v%d" % (20 + i, BUF[2], 8 + i))
def frag(p, kind, i): return 24*p + {"x": 0, "g": 8, "u": 16}[kind] + 4*i
def gemm1_reads(kk):
    st, s = divmod(kk, 4); p = kk & 1; ra = RADDR[st % 3]
    q = []
    def W(kind, fi):
        for h in range(2):
            b = frag(p, kind, fi) + 2*h
            q.append("ds_read_b64_tr_b16 a[%d:%d], v%d offset:%d" % (b, b+1, ra + 4 + fi, s*4096 + h*1024 + (16384 if kind == "u" else 0)))
    def X(ti):
        b = frag(p, "x", ti)
        q.append("ds_read_b128 a[%d:%d], v%d offset:%d" % (b, b+3, ra + s, ti*4096))
    X(0); W("g", 0); W("u", 0); X(1); W("g", 1); W("u", 1)
    return q
def acc1(kind, fi, ti): return 32 + {"g": 0, "u": 64}[kind] + 32*fi + 16*ti
def gemm1_mfmas(kk):
    p = kk & 1; q = []
    for fi, ti in ((0,0),(0,1),(1,0),(1,1)):
        for kind in "gu":
            a = acc1(kind, fi, ti); w = frag(p, kind, fi); x = frag(p, "x", ti)
            c = "0" if kk == 0 else "v[%d:%d]" % (a, a+15)
            q.append("v_mfma_f32_32x32x16_bf16 v[%d:%d], a[%d:%d], a[%d:%d], %s" % (a, a+15, w, w+3, x, x+3, c))
    return q
def gemm1_main(g, side):
    g("s_barrier")
    stamp(g, "C:B0")
    for r in gemm1_reads(0): g(r)
    for kk in range(32):
        st, s = divmod(kk, 4)
        mf = gemm1_mfmas(kk); pre = 0
        if s == 3:
            g(mf[0]); g(mf[1]); pre = 2
            for t in side.get("pre%d" % (st + 1), []): g(t)
            g.wait(lg=0)
            stamp(g, "C:a%d" % (st + 1))
            g("s_barrier")
            stamp(g, "C:B%d" % (st + 1))
        fill = gemm1_reads(kk + 1) if kk + 1 < 32 else []
        fill += side.get(kk, [])
        for i in range(pre, 8):
            g(mf[i])
            for _ in range(2 if i < 7 else 99):
                if fill: emit(g, fill.pop(0))
def gemm1_epilogue(g, load_w):
    k1 = -2*0.7978845608028654*LOG2E; k2 = k1*0.044715
    g("s_mov_b32 s84, 0x%x\ns_mov_b32 s85, 0x%x" % (f2u(k2), f2u(k2)))
    g("v_mov_b32 v2, 0x%x\nv_mov_b32 v3, 0x%x" % (f2u(k1), f2u(k1)))
    g("v_lshlrev_b32 v4, 4, v0")
    g("s_lshl_b32 s80, s%d, 2\ns_and_b32 s81, s%d, 1\ns_lshl_b32 s81, s81, 1\ns_add_u32 s80, s80, s81\ns_mul_i32 s80, s80, 112" % (S_MT, S_W))
    g("s_lshl_b32 s81, s%d, 3\ns_add_u32 s80, s80, s81\ns_lshr_b32 s81, s%d, 1\ns_lshl_b32 s81, s81, 2\ns_add_u32 s80, s80, s81" % (S_FT, S_W))
    g("s_lshl_b32 s80, s80, 10\ns_add_u32 s80, s80, 0x%x\ns_add_u32 s81, s80, %d" % (H_OFF, 112*1024))
    cnt = 0
    for fi in range(2):
        for ti in range(2):
            for half in range(2):
                G0 = acc1("g", fi, ti) + 8*half; U0 = acc1("u", fi, ti) + 8*half
                T = 8; D = 16 + 4*(cnt & 1)
                P = [(G0 + 2*j, U0 + 2*j, T + 2*j) for j in range(4)]
                if OPT["pk"]:
                    for (x, u, t) in P: g("v_pk_mul_f32 v[%d:%d], v[%d:%d], v[%d:%d]" % (t, t+1, x, x+1, x, x+1))
                    for (x, u, t) in P: g("v_pk_fma_f32 v[%d:%d], v[%d:%d], s[84:85], v[2:3]" % (t, t+1, t, t+1))
                    for (x, u, t) in P: g("v_pk_mul_f32 v[%d:%d], v[%d:%d], v[%d:%d]" % (t, t+1, t, t+1, x, x+1))
                    for j in range(8): g("v_exp_f32 v%d, v%d" % (T + j, T + j))
                    for (x, u, t) in P: g("v_pk_mul_f32 v[%d:%d], v[%d:%d], v[%d:%d]" % (x, x+1, x, x+1, u, u+1))
                    for (x, u, t) in P: g("v_pk_add_f32 v[%d:%d], v[%d:%d], 1.0 op_sel_hi:[1,0]" % (t, t+1, t, t+1))
                    for j in range(8): g("v_rcp_f32 v%d, v%d" % (T + j, T + j))
                    for (x, u, t) in P: g("v_pk_mul_f32 v[%d:%d], v[%d:%d], v[%d:%d]" % (x, x+1, x, x+1, t, t+1))
                else:
                    E = [(G0 + j, U0 + j, T + j) for j in range(8)]
                    for (x, u, t) in E: g("v_mul_f32 v%d, v%d, v%d" % (t, x, x))
                    for (x, u, t) in E: g("v_fma_f32 v%d, v%d, s84, v2" % (t, t))
                    for (x, u, t) in E: g("v_mul_f32 v%d, v%d, v%d" % (t, t, x))
                    for (x, u, t) in E: g("v_exp_f32 v%d, v%d\nv_mul_f32 v%d, v%d, v%d" % (t, t, x, x, u))
                    for (x, u, t) in E: g("v_add_f32 v%d, 1.0, v%d" % (t, t))
                    for (x, u, t) in E: g("v_rcp_f32 v%d, v%d" % (t, t))
                    for (x, u, t) in E: g("v_mul_f32 v%d, v%d, v%d" % (x, x, t))
                for j, (x, u, t) in enumerate(P): g("v_cvt_pk_bf16_f32 v%d, v%d, v%d" % (D + j, x, x+1))
                op = g("buffer_store_dwordx4 v[%d:%d], v4, %s, s%d offen offset:%d sc1" % (D, D+3, srd(S_WS), 80 + ti, (2*fi + half)*1024))
                cnt += 1
    return op

def touch_addr(g):
    g("s_lshl_b32 s80, s%d, 2\ns_add_u32 s80, s80, s%d" % (S_IDX, S_W))
    g("s_lshr_b32 s90, s%d, 1\ns_lshl_b32 s90, s90, 19\ns_lshl_b32 s81, s80, 12\ns_add_u32 s90, s90, s81" % S_XCD)
    g("v_lshlrev_b32 v30, 7, v0")
    g("v_mul_u32_u24 v5, 37, v0\nv_lshrrev_b32 v5, 8, v5\nv_mul_u32_u24 v6, 7, v5\nv_sub_u32 v6, v0, v6\nv_lshlrev_b32 v6, 7, v6")
    g("s_mov_b32 s81, %d\nv_mul_lo_u32 v5, v5, s81\nv_add_u32 v26, v5, v6" % (64*3584))
    g("s_lshr_b32 s91, s80, 1\ns_mul_i32 s91, s91, 3584\ns_and_b32 s81, s80, 1\ns_mul_i32 s81, s81, 896\ns_add_u32 s91, s91, s81\ns_and_b32 s81, s%d, 1\ns_mul_i32 s81, s81, 1792\ns_add_u32 s91, s91, s81" % S_XCD)
    g("s_mul_i32 s93, s80, %d\ns_lshl_b32 s92, s2, 2\ns_add_u32 s92, s92, s%d\ns_mul_i32 s92, s92, %d" % (112*128, S_W, 14*128))
def lanes(lo, hi):
    m = ((1 << hi) - 1) & ~((1 << lo) - 1)
    return "s_mov_b32 exec_lo, 0x%x\ns_mov_b32 exec_hi, 0x%x" % (m & 0xffffffff, m >> 32)
def touch_w(s0, s1, r):
    return "%s\nbuffer_load_dword a%d, v26, %s, s91 offen\nbuffer_load_dword a%d, v26, %s, s91 offen\ns_mov_b64 exec, -1" % (lanes(7*s0, 7*s1), r, srd(S_WG), r+1, srd(S_WU))
def touch_glob():
    return "%s\nbuffer_load_dword a74, v30, %s, s92 offen\nbuffer_load_dword a75, v30, %s, s92 offen\ns_lshl_b32 s80, s2, 2\ns_add_u32 s80, s80, s%d\ns_lshl_b32 s80, s80, 11\n%s\nbuffer_load_dword a70, v30, %s, s80 offen\ns_mov_b64 exec, -1" % (lanes(0, 14), srd(S_WG), srd(S_WU), S_W, lanes(0, 16), srd(S_X))
def touch_x(): return "%s\nbuffer_load_dword a70, v30, %s, s90 offen\ns_mov_b64 exec, -1" % (lanes(0, 32), srd(S_X))
def touch_wd_global(): return "%s\nbuffer_load_dword a71, v30, %s, s92 offen\ns_mov_b64 exec, -1" % (lanes(0, 14), srd(S_WD))
def touch_wd_xcd(): return "%s\nbuffer_load_dword a72, v30, %s, s93 offen\ns_add_u32 s93, s93, %d\nbuffer_load_dword a73, v30, %s, s93 offen\ns_mov_b64 exec, -1" % (lanes(0, 56), srd(S_WD), 56*128, srd(S_WD))

WDS = 87040
def wdt_issue(g):
    g("v_lshrrev_b32 v5, 3, v0\nv_lshlrev_b32 v5, 10, v5\nv_bfe_u32 v6, v0, 4, 1\nv_lshlrev_b32 v6, 2, v6\nv_and_b32 v7, 7, v0\nv_xor_b32 v6, v6, v7\nv_lshlrev_b32 v6, 4, v6\nv_add_u32 v9, v5, v6")
    g("s_sub_u32 s82, s%d, 28\ns_mul_i32 s85, s82, %d\ns_lshl_b32 s80, s%d, 7\ns_add_u32 s85, s85, s80" % (S_IDX, 448*1024, S_XCD))
    g("s_lshl_b32 s83, s%d, 2\ns_mul_i32 s80, s%d, 3\ns_add_u32 s83, s83, s80" % (S_XCD, S_W))
    for j in range(3):
        g("s_add_u32 s80, s83, %d\ns_cmp_ge_u32 s80, 28\ns_cselect_b32 s81, 28, 0\ns_sub_u32 s80, s80, s81\ns_lshl_b32 s80, s80, 14\ns_add_u32 s93, s80, s85" % j)
        g("buffer_load_dwordx4 v[%d:%d], v9, %s, s93 offen" % (128 + 8*j, 131 + 8*j, srd(S_WD)))
        g("s_add_u32 s93, s93, 8192\nbuffer_load_dwordx4 v[%d:%d], v9, %s, s93 offen" % (132 + 8*j, 135 + 8*j, srd(S_WD)))
def wdt_process(g):
    g("v_lshlrev_b32 v9, 4, v0\nv_add_u32 v8, s11, v9")
    for i in range(6): g("ds_write_b128 v8, v[%d:%d] offset:%d" % (128 + 4*i, 131 + 4*i, i*1024))
    g("v_lshrrev_b32 v7, 5, v0\nv_lshlrev_b32 v7, 2, v7\nv_bfe_u32 v10, v0, 2, 2\nv_add_u32 v7, v7, v10\nv_lshlrev_b32 v7, 7, v7")
    g("v_bfe_u32 v10, v0, 3, 1\nv_lshlrev_b32 v10, 6, v10\nv_add_u32 v7, v7, v10\nv_bfe_u32 v10, v0, 4, 1\nv_lshlrev_b32 v10, 5, v10\nv_add_u32 v7, v7, v10")
    g("v_and_b32 v10, 3, v0\nv_lshlrev_b32 v10, 3, v10\nv_add_u32 v7, v7, v10\nv_add_u32 v5, s11, v7\nv_xor_b32 v6, 64, v5")
    g("s_sub_u32 s82, s%d, 28\ns_lshl_b32 s86, s%d, 2\ns_add_u32 s86, s86, s82\ns_lshl_b32 s83, s86, 15\ns_mul_i32 s80, s%d, 6144\ns_add_u32 s83, s83, s80\ns_add_u32 s83, s83, 0x%x" % (S_IDX, S_XCD, S_W, WDT_OFF))
    for k in range(3):
        for di in range(2):
            for h in range(2):
                b = 96 + 8*k + 4*di + 2*h
                g("ds_read_b64_tr_b16 v[%d:%d], v%d offset:%d" % (b, b+1, 5 + di, k*2048 + h*1024))
    for k in range(6):
        if k == 4: g("s_add_u32 s83, s83, 4096")
        g("buffer_store_dwordx4 v[%d:%d], v9, %s, s83 offen offset:%d sc1" % (96 + 4*k, 99 + 4*k, srd(S_WS), (k % 4)*1024))
    g("s_lshl_b32 s80, s86, 7\ns_lshl_b32 s81, s%d, 2\ns_add_u32 s80, s80, s81\ns_add_u32 s80, s80, 0x%x" % (S_W, FW_OFF))
def build_C():
    g = G(); g.nlab = 2000; g.role = 0; g.nst = 1; St.names[0] = "C:start"
    g("Lcompute:")
    def wpre(kk, di): return (48 + 8*kk + 4*di) if kk < 6 else (8*(kk - 6) + 4*di)
    def load_w(kk):
        q = []
        pre = "s_add_u32 s93, s94, %d\n" % (kk*2048)
        for di in range(2):
            q.append(pre + "buffer_load_dwordx4 a[%d:%d], v%d, %s, s93 offen sc1" % (wpre(kk, di), wpre(kk, di) + 3, 26 + di, srd(S_WS))); pre = ""
        return q
    def part0(g, idle):
        st_ = (lambda g, n: None) if idle else stamp
        g("s_waitcnt lgkmcnt(0)")
        if idle:
            srds2(g); T_issue(g); wdt_issue(g); epoch_load(g); tag_compute(g); T_process(g)
            wdt_process(g); g("s_mov_b32 s14, s80")
            tst = ("vm", g.vm_seq)
        g("global_load_ushort v39, v63, s[30:31]")
        for i in range(6): g("global_load_ushort v%d, v32, s[%d:%d]" % (33 + i, 18 + 2*i, 19 + 2*i))
        if not idle: epoch_load(g); srds2(g)
        kgen_addr(g); kgen_compact_addr(g)
        if not idle: gemm1_raddr(g); tag_compute(g)
        else: g.wait_op(tst); flag_store(g, 15, 8); flag_store(g, 14, 8); mall_touch(g)
        g("v_lshlrev_b32 v26, 4, v0\ns_lshr_b32 s80, s%d, 1\ns_lshl_b32 s80, s80, 10\nv_add_u32 v26, s80, v26\nv_xor_b32 v27, 0x400, v26" % S_W)
        g("s_lshl_b32 s94, s%d, 2\ns_add_u32 s94, s94, s%d\ns_lshl_b32 s94, s94, 15\ns_add_u32 s94, s94, 0x%x" % (S_NB, S_W, WDT_OFF))
        kgen_W(g)
        g.wait(lg=0)
        st_(g, "C:W done")
        g("s_barrier")
        st_(g, "C:Bk")
        kgen_mfma(g); kgen_compact(g)
        g.wait(lg=0)
        st_(g, "C:K done")
    g("s_cmp_ge_u32 s%d, 28\ns_cbranch_scc1 Lnog1" % S_IDX)
    part0(g, False)
    ne = OPT["wearly"]
    side = {28: load_w(0) + load_w(1), 29: load_w(2) + load_w(3), 30: load_w(4) + load_w(5)} if ne else {}
    gemm1_main(g, side)
    stamp(g, "C:main1end")
    g("s_setprio %d" % OPT["cprio_epi"])
    hop = gemm1_epilogue(g, load_w)
    stamp(g, "C:epiend")
    if OPT["spoll"]:
        g("s_lshl_b32 s80, s%d, 1\ns_and_b32 s81, s%d, 1\ns_add_u32 s80, s80, s81\ns_lshl_b32 s80, s80, 9" % (S_MT, S_W))
        g("s_lshl_b32 s81, s%d, 1\ns_lshr_b32 s82, s%d, 1\ns_add_u32 s81, s81, s82\ns_mul_i32 s82, s81, 37\ns_lshr_b32 s82, s82, 8\ns_mul_i32 s82, s82, 100\ns_lshl_b32 s81, s81, 2\ns_add_u32 s80, s80, s81\ns_add_u32 s80, s80, s82\ns_add_u32 s87, s80, 0x%x" % (S_FT, S_W, FH_OFF))
    else:
        g("s_lshl_b32 s80, s%d, 1\ns_and_b32 s81, s%d, 1\ns_add_u32 s80, s80, s81\ns_lshl_b32 s80, s80, 5\ns_lshl_b32 s81, s%d, 1\ns_add_u32 s80, s80, s81\ns_lshr_b32 s81, s%d, 1\ns_add_u32 s80, s80, s81\ns_lshl_b32 s80, s80, 7\ns_add_u32 s87, s80, 0x%x" % (S_MT, S_W, S_FT, S_W, FH_OFF))
    g("s_branch Lg2")
    g("Lnog1:")
    part0(g, True)
    for _ in range(9): g.raw("s_barrier")
    for kk in range(ne):
        for t in load_w(kk): g(t)
    g("s_mov_b32 s87, 0x%x" % (EP_OFF + 256))
    g("Lg2:")
    g("s_lshl_b32 s80, s%d, 2\ns_add_u32 s80, s80, %d\nv_mov_b32 v30, s80\nv_mov_b32 v9, 1\nds_write_b32 v30, v9 offset:32" % (S_W, SYW + 16))
    chunk_ids(g)
    g("v_lshrrev_b32 v7, 5, v0\nv_lshlrev_b32 v7, 2, v7\nv_bfe_u32 v8, v0, 2, 2\nv_add_u32 v7, v7, v8\nv_lshlrev_b32 v7, 7, v7")
    g("v_bfe_u32 v8, v0, 3, 1\ns_lshr_b32 s80, s%d, 1\nv_xor_b32 v8, s80, v8\nv_lshlrev_b32 v8, 6, v8\nv_add_u32 v7, v7, v8\nv_bfe_u32 v8, v0, 4, 1\nv_lshlrev_b32 v8, 5, v8\nv_add_u32 v7, v7, v8" % S_W)
    g("v_and_b32 v8, 3, v0\nv_lshlrev_b32 v8, 3, v8\nv_add_u32 v7, v7, v8\nv_add_u32 v5, s95, v7\nv_xor_b32 v6, 64, v5")
    g("v_add_u32 v28, 0x%x, v5\nv_add_u32 v29, 0x%x, v6" % (WDB1 - WDA, WDB1 - WDA))
    g("v_lshlrev_b32 v3, 4, v0\ns_and_b32 s80, s%d, 1\ns_mul_i32 s81, s80, %d\ns_xor_b32 s80, s80, 1\ns_mul_i32 s80, s80, %d\nv_add_u32 v4, s80, v3\nv_add_u32 v3, s81, v3" % (S_W, 112*1024, 112*1024))
    g("s_mul_i32 s91, s%d, %d\ns_mul_i32 s80, s%d, %d\ns_add_u32 s91, s91, s80\ns_add_u32 s91, s91, 0x%x" % (S_TB2, 2*112*1024, S_W, 28*1024, H_OFF))
    g.raw("s_waitcnt vmcnt(0)"); g.vm_done = g.vm_seq
    g("s_cmp_ge_u32 s%d, 28\ns_cbranch_scc1 Lnofl" % S_IDX)
    sq = g.vm_seq; flag_store(g, 87, 8); g.vm_seq = sq
    g("Lnofl:")
    g("s_setprio %d" % OPT["cprio2"])
    stamp(g, "C:flag0")
    for kk in range(ne, 12):
        for t in load_w(kk): g(t)
    stamp(g, "C:flag")
    if OPT["spoll"]:
        g("s_lshl_b32 s80, s%d, 9\ns_lshl_b32 s81, s%d, 7\ns_add_u32 s80, s80, s81\ns_add_u32 s80, s80, 0x%x\ns_add_u32 s50, s48, s80\ns_addc_u32 s51, s49, 0" % (S_TB2, S_W, FH_OFF))
        spoll(g, 7)
    else:
        g("v_min_u32 v8, 6, v0\nv_lshlrev_b32 v8, 7, v8")
        g("s_lshl_b32 s80, s%d, 12\ns_mul_i32 s81, s%d, 896\ns_add_u32 s80, s80, s81\ns_add_u32 s80, s80, 0x%x" % (S_TB2, S_W, FH_OFF))
        poll(g, 8, 80, 9)
    stamp(g, "C:polled")
    RING = 8
    assert OPT['la'] <= 8
    def hreg(kk, ti):
        i = kk % RING
        return ("v[%d:%d]" % (32 + 8*i + 4*ti, 32 + 8*i + 4*ti + 3)) if i < 8 else ("a[%d:%d]" % (16 + 8*(i-8) + 4*ti, 16 + 8*(i-8) + 4*ti + 3))
    def load_h(kk):
        q = []
        pre = "s_lshl_b32 s90, s%d, 12\ns_add_u32 s90, s90, s91\n" % (18 + kk//4) if kk % 4 == 0 else ""
        for ti in range(2):
            q.append(pre + "buffer_load_dwordx4 %s, v%d, %s, s90 offen offset:%d sc1" % (hreg(kk, ti), 3 + ti, srd(S_WS), (kk % 4)*1024)); pre = ""
        return q
    PRE = OPT["pre"]
    for kk in range(PRE):
        for t in load_h(kk): g(t)
    g("s_add_u32 s80, s95, %d\nv_lshlrev_b32 v2, 4, v0\nv_add_u32 v2, s80, v2" % (WDB1 - WDA))
    g("v_mov_b32 v7, v30")
    def wreg(kk, di):
        return ("a[%d:%d]" % (wpre(kk, di), wpre(kk, di) + 3)) if kk < 12 else ("v[%d:%d]" % (10 + 8*(kk & 1) + 4*di, 13 + 8*(kk & 1) + 4*di))
    def reads(kk):
        c, s = divmod(kk, 4); q = []
        for di in range(2):
            va, off = {3: ((5, 6), 0), 4: ((5, 6), 8192), 5: ((28, 29), 0), 6: ((28, 29), 8192)}[c]
            for h in range(2):
                b = 10 + 8*(kk & 1) + 4*di + 2*h
                q.append("ds_read_b64_tr_b16 v[%d:%d], v%d offset:%d" % (b, b+1, va[di], off + s*2048 + h*1024))
        return q
    nh = PRE
    for kk in range(28):
        if kk in (1, 4, 8, 12, 16, 20, 24): stamp(g, "C:k%d" % kk)
        nx = reads(kk + 1) if 12 <= kk + 1 < 28 else []
        lq = []
        for _ in range(2):
            if nh < 28 and nh < kk + OPT["la"]: lq += load_h(nh); nh += 1
        n = 0
        for di, ti in (((0,0),(0,1),(1,0),(1,1)) if kk < 27 else ((0,1),(1,0),(1,1),(0,0))):
            if True:
                a = 96 + 32*di + 16*ti
                c = "0" if kk == 0 else "v[%d:%d]" % (a, a+15)
                g("v_mfma_f32_32x32x16_bf16 v[%d:%d], %s, %s, %s" % (a, a+15, wreg(kk, di), hreg(kk, ti), c))
                if n == 0:
                    for KR, fo in ((12, 16), (20, 0)):
                        if kk + 2 == KR: g("ds_read_b32 v8, v7 offset:%d" % fo)
                        if kk + 1 == KR:
                            L, D = g.lab("Lr"), g.lab("Lrd")
                            g("v_readfirstlane_b32 s80, v8")
                            g("s_mov_b32 s%d, 0x100000\ns_cmp_lg_u32 s80, 0\ns_cbranch_scc1 %s" % (S_SPIN, D))
                            g(L + ":")
                            for l in ("ds_read_b32 v8, v7 offset:%d" % fo, "s_waitcnt lgkmcnt(0)", "v_readfirstlane_b32 s80, v8", "s_sub_u32 s%d, s%d, 1" % (S_SPIN, S_SPIN), "s_cbranch_scc1 %s" % D,
                                      "s_cmp_eq_u32 s80, 0", "s_cbranch_scc1 %s" % L): g.raw(l)
                            g(D + ":")
                    for r in nx: g(r)
                else:
                    for _ in range(2 if n < 3 else 9):
                        if lq:
                            t = lq.pop(0)
                            if isinstance(t, tuple): w6 = g(t[0])
                            else: g(t)
                n += 1
    assert nh == 28
    stamp(g, "C:main2end")
    g("v_lshlrev_b32 v10, 4, v0")
    fin_addr(g, 24, 0)
    g("s_lshl_b32 s80, s%d, 12\ns_add_u32 s80, s80, %d\nv_add_u32 v9, s80, v10" % (S_W, STG))
    for q in (1, 2, 3):
        for j in range(4):
            g("ds_write_b128 v2, v[%d:%d] offset:%d" % (96 + 16*q + 4*j, 96 + 16*q + 4*j + 3, (q-1)*4096 + j*1024))
    for j in range(2): g("ds_write_b128 v2, v[%d:%d] offset:%d" % (104 + 4*j, 107 + 4*j, 12288 + j*1024))
    g.wait(lg=0)
    stamp(g, "C:a13")
    g("s_barrier")
    stamp(g, "C:B13")
    for j in range(2):
        for sw in (1, 2, 3): g("ds_read_b128 v[%d:%d], v%d offset:%d" % (96 + 8*sw + 4*j, 99 + 8*sw + 4*j, 24 + sw, j*1024))
    g("ds_read_b128 v[44:47], v9")
    g("ds_read_b32 v3, v9 offset:1024")
    fin_math(g, 96, 44, 3, 28)
    stamp(g, "C:stores")
    if STAMPS:
        g.wait(vm=0); stamp(g, "C:drained")
    stamp_store(g)
    if OPT.get("hold"):
        for l in ("Lhold:", "s_memrealtime s[6:7]", "s_waitcnt lgkmcnt(0)", "s_sub_u32 s6, s6, s4", "s_cmp_lt_u32 s6, %d" % OPT["hold"], "s_cbranch_scc1 Lhold"):
            g.lines.append(l)
    g("Lend:")
    g("s_endpgm")
    return g.text()

if __name__ == "__main__":
    if len(sys.argv) > 2 and sys.argv[2] != "-": STAMPS = sys.argv[2]
    for a in sys.argv[3:]:
        k, v = a.split("="); OPT[k] = int(v)
    h1, h2 = build_H(); body = h1 + build_C() + h2
    open(sys.argv[1], "w").write(build_file([(KN, 256, 512, 163840, body, 256, 100, 160)], single=True))
    if STAMPS:
        import json; json.dump(St.names, open("stnames.json", "w"))
```

```python
import sys, struct, math
from gen import *

def f2u(x): return struct.unpack("<I", struct.pack("<f", x))[0]
UT_OFF = 0x1400000; UT_STRIDE = 4096
CU = 16640; CU_CH = 4352
H_OFF = 0x400000
AT_OFF = 0xC00000
G_OFF = 0xE00000
FT_OFF = 0xE20000
FH_OFF = 0xE40000
FA_OFF = 0xE60000
EP_OFF = 0xE10000
FW_OFF = 0xE80000
WDT_OFF = 0x1A00000
DBG_OFF = 0x1000000
WS_BYTES = 268435456
BUF = [0, 49152, 98304]
TBLK = 147456
KT = 98304; KT_CH = 28672; KT_IM = 14336
KC = 160768; KC_CH = 1536
KF = 154624; KF_CH = 4608; KF_PL = 2304
UEE = [98304, 131840]; UEO = [115072, 128]
XCH = [16640, 20736, 24832, 148480]
WDA = 32768; WDB1 = 98304
RED_AT = 49152; RED_G = 57344
S_X, S_WG, S_WU, S_WD, S_WS, S_OUT = 52, 56, 60, 64, 68, 72
S_X1 = 36
S_XCD, S_IDX, S_W, S_CH = 76, 77, 78, 79
S_MT, S_FT = 88, 89
S_TAG, S_TB2, S_NB, S_SPIN = 96, 97, 98, 99
LOG2E = 1.4426950408889634
STAMPS = False
OPT = dict(hprio=0, cprio_epi=1, rot=1, pk=1, seq=1, pre=8, pfirst=0, psleep=1, b11first=0, l2t=0, wsleep=0, a5=0, wpos=1, spoll=1, nr7=8, cprio2=0, cpf=248, la=8, n1=0, mt=1, nr6=12, n9=16, asl=16, asl2=12, bprio=3, fai=1, bw=0, convp=2, wearly=6, w2=0, w3=5, gt=0, map=1, osc=1, fa=6, wrate=2, half=0, lastq=4, gow=1, nwa=8, pord=0, t3=9)
def srd(r): return "s[%d:%d]" % (r, r+3)
class St:
    names = {}
def stamp(g, name):
    if not STAMPS: return
    g.raw("%s s[6:7]" % STAMPS); g.smem_pending = True; g.wait(lg=0)
    g.raw("v_writelane_b32 v31, s6, %d" % g.nst)
    St.names[g.role*48 + g.nst] = name
    g.nst += 1
    assert g.nst <= 48
def stamp_store(g):
    if not STAMPS: return
    L = g.lab("Lst")
    g("s_cmp_lg_u32 s%d, 0\ns_cbranch_scc1 %s" % (S_W, L))
    g.raw("v_writelane_b32 v31, s4, 0")
    g.raw("s_getreg_b32 s6, hwreg(HW_REG_XCC_ID)"); g.raw("v_writelane_b32 v31, s6, 47")
    g.raw("s_mul_i32 s3, s2, 384"); g.raw("s_add_u32 s3, s3, 0x%x" % (DBG_OFF + g.role*192)); g.raw("v_lshlrev_b32 v1, 2, v0")
    g.raw("s_mov_b32 exec_hi, 0xffff")
    g.raw("buffer_store_dword v31, v1, %s, s3 offen" % srd(S_WS))
    if OPT.get("dbg") and g.role == 0:
        inv = {v: k for k, v in St.names.items()}
        sel = ["C:start", "C:Bk", "C:B0", "C:B1", "C:B2", "C:B4", "C:B6", "C:main1end", "C:epiend", "C:flag0", "C:polled", "C:k16", "C:main2end", "C:B13", "C:drained"]
        g.raw("s_cmp_ge_u32 s2, 224"); g.raw("s_cbranch_scc1 %s" % L)
        g.raw("s_not_b32 s6, s4"); g.raw("v_writelane_b32 v30, s6, 0")
        for i, n in enumerate(sel):
            g.raw("v_readlane_b32 s6, v31, %d" % inv[n]); g.raw("s_nop 3"); g.raw("v_writelane_b32 v30, s6, %d" % (i + 1))
        g.raw("s_mov_b64 exec, 0xffff")
        g.raw("global_atomic_umax v1, v30, s[46:47]")
    g.raw("s_mov_b64 exec, -1")
    g(L + ":")

def tag_compute(g):
    g("s_mul_i32 s%d, s%d, 0x9E3779B1\ns_add_u32 s%d, s%d, 0x7F4A7C15" % (S_TAG, S_TAG, S_TAG, S_TAG))
def poll(g, vaddr, soff, vtmp, width=1, sleep=1):
    L, D = g.lab("Lp"), g.lab("Lpd")
    g("s_mov_b32 s%d, 0x40000" % S_SPIN)
    g(L + ":")
    if width == 1: g.raw("buffer_load_dword v%d, v%d, %s, s%d offen sc1" % (vtmp, vaddr, srd(S_WS), soff))
    else: g.raw("buffer_load_dwordx2 v[%d:%d], v%d, %s, s%d offen sc1" % (vtmp, vtmp+1, vaddr, srd(S_WS), soff))
    g.raw("s_waitcnt vmcnt(0)"); g.vm_done = g.vm_seq
    g.raw("v_cmp_ne_u32 vcc, s%d, v%d" % (S_TAG, vtmp + width - 1))
    g.raw("s_nop 4")
    g.raw("s_cmp_eq_u64 vcc, 0")
    g.raw("s_cbranch_scc1 %s" % D)
    g.raw("s_sleep %d" % sleep)
    g.raw("s_sub_u32 s%d, s%d, 1" % (S_SPIN, S_SPIN))
    g.raw("s_cmp_lg_u32 s%d, 0" % S_SPIN)
    g.raw("s_cbranch_scc1 %s" % L)
    g(D + ":")
def spoll(g, n, off=0, issued=False):
    L, D, M = g.lab("Ls"), g.lab("Lsd"), g.lab("Lsm")
    g("s_mov_b32 s%d, 0x40000" % S_SPIN)
    if issued: g.raw("s_branch %s" % M)
    g(L + ":")
    g.raw("s_load_dwordx8 s[8:15], s[50:51], %d glc" % off)
    g(M + ":")
    g.raw("s_waitcnt lgkmcnt(0)"); g.lg_done = g.lg_seq
    for i in range(n): g.raw("s_xor_b32 s%d, s%d, s%d" % (8 + i, 8 + i, S_TAG))
    for i in range(1, n): g.raw("s_or_b32 s8, s8, s%d" % (8 + i))
    g.raw("s_cbranch_scc0 %s" % D)
    g.raw("s_sleep %d" % OPT["psleep"])
    g.raw("s_sub_u32 s%d, s%d, 1" % (S_SPIN, S_SPIN))
    g.raw("s_cbranch_scc0 %s" % L)
    g(D + ":")
def spoll4(g):
    L, D = g.lab("Ls"), g.lab("Lsd")
    R = [8, 32, 40, 56]
    g("s_mov_b32 s%d, 0x40000" % S_SPIN)
    g(L + ":")
    for j, r in enumerate(R): g.raw("s_load_dwordx8 s[%d:%d], s[50:51], %d glc" % (r, r + 7, 128*j))
    g.raw("s_mov_b32 s16, s%d" % S_TAG); g.raw("s_mov_b32 s17, s%d" % S_TAG)
    g.raw("s_waitcnt lgkmcnt(0)"); g.lg_done = g.lg_seq
    P = [r + 2*i for r in R for i in range(4)]
    for p in P: g.raw("s_xor_b64 s[%d:%d], s[%d:%d], s[16:17]" % (p, p+1, p, p+1))
    for p in P[1:]: g.raw("s_or_b64 s[8:9], s[8:9], s[%d:%d]" % (p, p+1))
    g.raw("s_cbranch_scc0 %s" % D)
    g.raw("s_sleep %d" % OPT["psleep"])
    g.raw("s_sub_u32 s%d, s%d, 1" % (S_SPIN, S_SPIN))
    g.raw("s_cbranch_scc0 %s" % L)
    g(D + ":")
def flag_store(g, soff, vt):
    g("v_mov_b32 v%d, s%d\nv_mov_b32 v%d, 0" % (vt, S_TAG, vt+1))
    g("s_mov_b64 exec, 1")
    g("buffer_store_dword v%d, v%d, %s, s%d offen sc1" % (vt, vt+1, srd(S_WS), soff))
    g("s_mov_b64 exec, -1")
class Rec:
    def __init__(self): self.q = []
    def __call__(self, t): self.q += [l for l in t.split("\n") if l.strip()]
def rec(f, *a):
    r = Rec(); f(r, *a); return r.q
def emit(g, f):
    return f(g) if callable(f) else g(f)
def weave(g, dmas, work):
    op = None; n = len(dmas); work = list(work)
    per = -(-len(work) // n) if n else 0
    for d in dmas:
        op = emit(g, d)
        for _ in range(per):
            if work: emit(g, work.pop(0))
    for w in work: emit(g, w)
    return op

def prologue(g):
    g("s_cmp_ge_u32 s2, 256")
    g("s_cbranch_scc1 Lend")
    if STAMPS or OPT.get("hold"): g.raw("%s s[4:5]" % (STAMPS or "s_memrealtime"))
    if OPT.get("badmap"): g("s_lshr_b32 s3, s2, 5\ns_and_b32 s2, s2, 31\ns_lshl_b32 s2, s2, 3\ns_or_b32 s2, s2, s3")
    g("s_load_dwordx16 s[16:31], s[0:1], 0")
    g("s_load_dwordx16 s[32:47], s[0:1], 64")
    g("s_load_dwordx2 s[48:49], s[0:1], 128")
    if OPT["cpf"]:
        g("s_cmp_lt_u32 s2, %d\ns_cbranch_scc1 Lcp" % OPT["cpf"])
        for l in ("s_getpc_b64 s[8:9]", "Lpc:", "s_sub_u32 s8, s8, Lpc-%s" % KN, "s_subb_u32 s9, s9, 0", "v_lshlrev_b32 v5, 7, v0",
                  "v_min_u32 v5, Lcodeend-%s-4, v5" % KN, "s_nop 0", "global_load_dword a94, v5, s[8:9]"): g.lines.append("    " + l if not l.endswith(":") else l)
        g("Lcp:")
    g("v_lshrrev_b32 v1, 6, v0")
    g("v_and_b32 v0, 63, v0")
    g("s_and_b32 s%d, s2, 7" % S_XCD)
    g("s_lshr_b32 s%d, s2, 3" % S_IDX)
    g("v_readfirstlane_b32 s3, v1")
    if OPT["map"]:
        g("s_lshr_b32 s80, s%d, 1\ns_mul_i32 s80, s80, 28\ns_add_u32 s80, s80, s%d\ns_lshr_b32 s%d, s80, 3\ns_and_b32 s80, s80, 7\ns_and_b32 s81, s%d, 1\ns_lshl_b32 s81, s81, 3\ns_add_u32 s%d, s80, s81" % (S_XCD, S_IDX, S_FT, S_XCD, S_MT))
    else:
        g("s_mul_i32 s80, s%d, 37\ns_lshr_b32 s80, s80, 8" % S_IDX)
        g("s_mul_i32 s81, s80, 7\ns_sub_u32 s81, s%d, s81" % S_IDX)
        g("s_lshr_b32 s%d, s%d, 1\ns_lshl_b32 s%d, s%d, 2\ns_add_u32 s%d, s%d, s80" % (S_MT, S_XCD, S_MT, S_MT, S_MT, S_MT))
        g("s_and_b32 s%d, s%d, 1\ns_mul_i32 s%d, s%d, 7\ns_add_u32 s%d, s%d, s81" % (S_FT, S_XCD, S_FT, S_FT, S_FT, S_FT))
    g("s_lshl_b32 s%d, s%d, 2\ns_lshr_b32 s80, s%d, 3\ns_add_u32 s%d, s%d, s80\ns_and_b32 s%d, s%d, 7" % (S_TB2, S_XCD, S_IDX, S_TB2, S_TB2, S_NB, S_IDX))
    g("s_and_b32 s%d, s3, 3" % S_W)
    g("s_lshl_b32 s80, s%d, 6\ns_lshl_b32 s81, s%d, 1\ns_add_u32 s80, s80, s81\ns_lshr_b32 s81, s%d, 1\ns_add_u32 s%d, s80, s81" % (S_XCD, S_IDX, S_W, S_CH))
    g("s_lshl_b32 s80, s%d, 8\ns_and_b32 s81, s%d, 1\ns_lshl_b32 s81, s81, 7\ns_add_u32 s80, s80, s81" % (S_CH, S_W))
    g("v_lshlrev_b32 v32, 1, v0\nv_add_u32 v32, s80, v32")
    g("s_lshl_b32 s80, s%d, 1\nv_mov_b32 v63, s80" % S_CH)
    g("s_lshr_b32 s80, s%d, 1\ns_mul_i32 s80, s80, %d\ns_and_b32 s81, s%d, 1\ns_mul_i32 s81, s81, %d\ns_add_u32 s80, s80, s81\ns_add_u32 s80, s80, %d" % (S_W, KT_CH, S_W, 64*112, KT))
    g("v_mul_u32_u24 v62, 112, v0\nv_add_u32 v62, s80, v62")
    g("s_cmp_lt_u32 s3, 4")
    g("s_cbranch_scc1 Lcompute")
def epoch_load(g):
    g("s_add_u32 s50, s48, 0x%x\ns_addc_u32 s51, s49, 0" % EP_OFF)
    g("s_load_dword s%d, s[50:51], 0" % S_TAG)
def srds2(g):
    g.srd(S_X, 16, 2048*512*2)
    g.srd(S_WD, 40, 512*1792*2)
    g.srd(S_WS, 48, WS_BYTES)
    g.srd(S_OUT, 44, 2048*512*2)
def h_dma_addr(g):
    g("v_lshrrev_b32 v4, 3, v0\nv_lshlrev_b32 v4, 10, v4\nv_and_b32 v5, 7, v0\nv_lshrrev_b32 v6, 4, v0\nv_xor_b32 v7, v5, v6")
    g("v_lshlrev_b32 v7, 4, v7\nv_add_u32 v2, v4, v7\nv_xor_b32 v3, 64, v2")
    g("s_lshl_b32 s90, s%d, 17\ns_lshl_b32 s80, s%d, 15\ns_add_u32 s90, s90, s80" % (S_MT, S_W))
    g("v_and_b32 v5, 15, v0\nv_lshlrev_b32 v7, 2, v6\nv_xor_b32 v5, v5, v7\nv_lshlrev_b32 v5, 4, v5")
    g("v_mul_u32_u24 v6, 3584, v6\nv_add_u32 v4, v6, v5")
    g("s_lshl_b32 s91, s%d, 8\ns_mul_i32 s80, s%d, %d\ns_add_u32 s91, s91, s80" % (S_FT, S_W, 16*3584))
    g("s_lshl_b32 s92, s%d, 12" % S_W)

def kbase(A):
    A("v_lshlrev_b32 v39, 16, v39\nv_mul_f32 v39, 0x%x, v39\nv_exp_f32 v39, v39\nv_lshlrev_b32 v33, 16, v33\nv_lshlrev_b32 v34, 16, v34" % f2u(LOG2E))
    A("v_cvt_pk_bf16_f32 v39, v39, v39\nv_lshlrev_b32 v39, 16, v39")
    A("v_mul_f32 v33, v39, v33\nv_mul_f32 v34, v39, v34")
    A("v_mul_f32 v33, 0x%x, v33\nv_mul_f32 v34, 0x%x, v34" % (f2u(LOG2E), f2u(1/(2*math.pi))))
def kpower(A, e, d, t):
    if e == 1: A("v_exp_f32 v%d, v33\nv_fract_f32 v%d, v34" % (t, t+1))
    else:
        A("v_mul_f32 v%d, 0x%x, v33\nv_mul_f32 v%d, 0x%x, v34" % (t, f2u(e), t+1, f2u(e)))
        A("v_exp_f32 v%d, v%d\nv_fract_f32 v%d, v%d" % (t, t, t+1, t+1))
    A("v_cos_f32 v%d, v%d\nv_sin_f32 v%d, v%d" % (d, t+1, d+1, t+1))
    A("v_mul_f32 v%d, v%d, v%d\nv_mul_f32 v%d, v%d, v%d" % (d, t, d, d+1, t, d+1))
def cm1(d, x, y): return "v_pk_mul_f32 v[%d:%d], v[%d:%d], v[%d:%d] op_sel:[0,0] op_sel_hi:[0,1]" % (d, d+1, x, x+1, y, y+1)
def cm2(d, x, y): return "v_pk_fma_f32 v[%d:%d], v[%d:%d], v[%d:%d], v[%d:%d] op_sel:[1,1,0] op_sel_hi:[1,0,1] neg_lo:[1,0,0]" % (d, d+1, x, x+1, y, y+1, d, d+1)
def cmul2(A, a, b):
    A(cm1(*a)); A(cm1(*b)); A(cm2(*a)); A(cm2(*b))
def kgen_W(A):
    kbase(A)
    for r in range(35, 39): A("v_lshlrev_b32 v%d, 16, v%d" % (r, r))
    A("v_mul_f32 v35, v39, v35\nv_mul_f32 v36, v39, v36")
    R = lambda i: 88 + 2*i
    A("v_mul_f32 v88, v37, v35\nv_mul_f32 v89, v37, v36\nv_fma_f32 v88, -v38, v36, v88\nv_fma_f32 v89, v38, v35, v89")
    Z1, Z2, ZB = 40, 42, 44
    kpower(A, 1, Z1, 46); kpower(A, 2, Z2, 48); kpower(A, 256, ZB, 50)
    def pack(i):
        x, y = R(2*i), R(min(2*i+1, 20))
        A("v_cvt_pk_bf16_f32 v%d, v%d, v%d" % (64 + i, x, y)); A("v_cvt_pk_bf16_f32 v%d, -v%d, -v%d" % (76 + i, x+1, y+1))
    cmul2(A, (R(1), R(0), Z1), (R(2), R(0), Z2))
    cmul2(A, (R(8), R(0), ZB), (R(3), R(1), Z2)); pack(0)
    cmul2(A, (R(4), R(2), Z2), (R(12), R(8), ZB)); pack(1)
    cmul2(A, (R(5), R(3), Z2), (R(9), R(2), ZB))
    cmul2(A, (R(6), R(4), Z2), (R(14), R(12), ZB)); pack(2); pack(4)
    cmul2(A, (R(7), R(5), Z2), (R(10), R(4), ZB))
    cmul2(A, (R(16), R(14), ZB), (R(11), R(6), ZB)); pack(3)
    cmul2(A, (R(13), R(10), ZB), (R(17), R(16), ZB)); pack(5)
    cmul2(A, (R(15), R(13), ZB), (R(18), R(17), ZB)); pack(6); pack(8)
    A(cm1(R(19), R(18), ZB)); pack(7); A(cm2(R(19), R(18), ZB))
    A("ds_write_b128 v62, v[64:67]\nds_write_b128 v62, v[76:79] offset:%d" % KT_IM)
    A(cm1(R(20), R(19), ZB)); pack(9); A(cm2(R(20), R(19), ZB))
    A("ds_write_b128 v62, v[68:71] offset:16\nds_write_b128 v62, v[80:83] offset:%d" % (KT_IM + 16))
    pack(10)
    A("ds_write_b128 v62, v[72:75] offset:32\nds_write_b128 v62, v[84:87] offset:%d" % (KT_IM + 32))
def kgen_E(A):
    kbase(A)
    Z8, Z16 = 40, 42
    kpower(A, 8, Z8, 46); kpower(A, 16, Z16, 48)
    A("v_cvt_pk_bf16_f32 v64, 1.0, v%d\nv_cvt_pk_bf16_f32 v80, 0, v%d" % (Z8, Z8 + 1))
    ev, od = Z16, Z8
    A(cm1(50, od, Z16)); A(cm2(50, od, Z16)); od = 50
    for i in range(1, 16):
        ne, no = (52, 54) if i % 2 else (56, 58)
        if i < 15: A(cm1(ne, ev, Z16)); A(cm1(no, od, Z16))
        A("v_cvt_pk_bf16_f32 v%d, v%d, v%d" % (64 + i, ev, od)); A("v_cvt_pk_bf16_f32 v%d, v%d, v%d" % (80 + i, ev + 1, od + 1))
        if i < 15: A(cm2(ne, ev, Z16)); A(cm2(no, od, Z16))
        ev, od = ne, no
        if i % 4 == 3:
            j = i // 4
            A("ds_write_b128 v62, v[%d:%d] offset:%d" % (64 + 4*j, 67 + 4*j, 48 + 16*j))
            A("ds_write_b128 v62, v[%d:%d] offset:%d" % (80 + 4*j, 83 + 4*j, KT_IM + 48 + 16*j))
def kgen_addr(g):
    g("s_lshr_b32 s80, s%d, 1\ns_mul_i32 s80, s80, %d\ns_add_u32 s80, s80, %d" % (S_W, KT_CH, KT))
    g("v_lshrrev_b32 v140, 2, v0\nv_mul_u32_u24 v140, 112, v140\nv_and_b32 v141, 3, v0\nv_lshlrev_b32 v141, 3, v141\nv_add_u32 v140, v140, v141\nv_add_u32 v140, s80, v140")
    g("s_and_b32 s81, s%d, 1\ns_lshl_b32 s81, s81, 5\ns_add_u32 s81, s81, 48\nv_add_u32 v141, s81, v140" % S_W)
def kgen_mfma(g):
    def kmf(ks):
        b = 12 * ks
        c0 = "0" if ks == 0 else "v[32:35]"; c1 = "0" if ks == 0 else "v[36:39]"
        g("v_mfma_f32_16x16x32_bf16 v[32:35], a[%d:%d], a[%d:%d], %s" % (b, b+3, b+8, b+11, c0))
        g("v_mfma_f32_16x16x32_bf16 v[36:39], a[%d:%d], a[%d:%d], %s" % (b+4, b+7, b+8, b+11, c1))
    for ks in range(8):
        off = (ks >> 2) * KT_IM + (ks & 3) * 32 * 112
        b = 12 * ks
        for h in range(2):
            g("ds_read_b64_tr_b16 a[%d:%d], v140 offset:%d" % (b + 2*h, b + 2*h + 1, off + h*16*112))
            g("ds_read_b64_tr_b16 a[%d:%d], v140 offset:%d" % (b + 4 + 2*h, b + 4 + 2*h + 1, off + h*16*112 + 32))
            g("ds_read_b64_tr_b16 a[%d:%d], v141 offset:%d" % (b + 8 + 2*h, b + 8 + 2*h + 1, off + h*16*112))
        if ks >= 2: kmf(ks - 2)
    kmf(6); kmf(7)
def kgen_compact_addr(g):
    g("s_and_b32 s81, s%d, 1\ns_lshl_b32 s81, s81, 4" % S_W)
    g("v_and_b32 v152, 15, v0\nv_add_u32 v152, s81, v152")
    g("v_lshrrev_b32 v153, 4, v0")
    g("v_lshlrev_b32 v154, 3, v152\nv_lshlrev_b32 v155, 2, v153\nv_add_u32 v154, v154, v155")
    g("v_lshlrev_b32 v155, 2, v152\nv_add_u32 v155, 0x100, v155")
    g("v_lshlrev_b32 v156, 1, v152\nv_add_u32 v156, 0x180, v156")
    g("v_cmp_eq_u32 vcc, 2, v153\nv_cndmask_b32 v154, v154, v155, vcc")
    g("v_cmp_eq_u32 vcc, 3, v153\nv_cndmask_b32 v154, v154, v156, vcc")
    g("v_mov_b32 v155, 2\nv_mov_b32 v156, 64\nv_cndmask_b32 v155, v155, v156, vcc\nv_add_u32 v155, v154, v155")
    g("s_lshr_b32 s80, s%d, 1\ns_mul_i32 s80, s80, %d\ns_add_u32 s80, s80, %d" % (S_W, KC_CH, KC))
    g("v_lshlrev_b32 v154, 1, v154\nv_add_u32 v142, s80, v154")
    g("v_lshlrev_b32 v155, 1, v155\nv_add_u32 v143, s80, v155")
    g("v_min_u32 v156, 1, v153\nv_lshlrev_b32 v156, 7, v156\nv_add_u32 v156, v156, v152\nv_add_u32 v156, 0x200, v156")
    g("v_lshlrev_b32 v156, 1, v156\nv_add_u32 v144, s80, v156")
def kgen_compact(g):
    g("v_cvt_pk_bf16_f32 v32, v32, v33\nv_cvt_pk_bf16_f32 v33, v34, v35\nv_cvt_pk_bf16_f32 v34, v36, v37\nv_cvt_pk_bf16_f32 v35, v38, v39")
    g("ds_write_b32 v142, v32\nds_write_b32 v143, v33")
    g("s_mov_b32 exec_hi, 0\nds_write_b16 v144, v34\nds_write_b16_d16_hi v144, v34 offset:64\nds_write_b16 v144, v35 offset:128\nds_write_b16_d16_hi v144, v35 offset:192\ns_mov_b32 exec_hi, -1")
def kfull_addr(g):
    g("s_lshl_b32 s80, s%d, 9\nv_lshlrev_b32 v152, 3, v0\nv_add_u32 v152, s80, v152" % S_W)
    for e in range(8):
        g("v_add_u32 v153, %d, v152" % (7 - e))
        g("v_cvt_f32_u32 v154, v153\nv_cvt_pk_bf16_f32 v154, v154, v154\nv_and_b32 v154, 0xffff, v154")
        g("v_subrev_u32 v154, 0x%x, v154" % (0x4300 - 128))
        g("v_cmp_gt_u32 vcc, 0x80, v153\nv_cndmask_b32 v154, v154, v153, vcc\nv_lshlrev_b32 v154, 1, v154")
        g("v_add_u32 v%d, 0x%x, v154" % (144 + e, KC))
    g("v_lshrrev_b32 v153, 4, v152\nv_lshlrev_b32 v153, 4, v153")
    g("v_and_b32 v154, 1, v0\nv_mul_u32_u24 v154, %d, v154" % KF_PL)
    g("v_add_u32 v153, v153, v154\nv_add_u32 v26, 0x%x, v153" % (KF + 256))
    g("v_lshrrev_b32 v153, 4, v0\nv_mul_u32_u24 v153, %d, v153\nv_and_b32 v154, 15, v0\nv_lshlrev_b32 v154, 4, v154\nv_add_u32 v153, v153, v154\nv_add_u32 v27, 0x%x, v153" % (KF_PL, KF))
def kfull_read(g):
    for ch in range(2):
        for e in range(8):
            g("ds_read_u16 v%d, v%d offset:%d" % (64 + 8*ch + e, 144 + e, ch*KC_CH))
    for ch in range(2):
        for e in range(4):
            g("v_lshl_or_b32 v%d, v%d, 16, v%d" % (52 + 4*ch + e, 64 + 8*ch + 2*e + 1, 64 + 8*ch + 2*e))
    g("v_mov_b32 v64, 0\nv_mov_b32 v65, 0\nv_mov_b32 v66, 0\nv_mov_b32 v67, 0")
def kfull_write(g):
    g("ds_write_b128 v27, v[64:67]")
    for ch in range(2): g("ds_write_b128 v26, v[%d:%d] offset:%d" % (52 + 4*ch, 55 + 4*ch, ch*KF_CH))

def T_issue(g):
    g("s_sub_u32 s10, s%d, 28\ns_lshl_b32 s10, s10, 3\ns_add_u32 s10, s10, s3" % S_IDX)
    g("s_mul_i32 s11, s3, 10880")
    g("v_lshrrev_b32 v5, 3, v0\nv_and_b32 v6, 7, v0\nv_lshlrev_b32 v6, 4, v6\nv_lshlrev_b32 v7, 10, v5\nv_add_u32 v8, v7, v6")
    g("s_lshl_b32 s12, s10, 16\ns_lshl_b32 s81, s%d, 7\ns_add_u32 s12, s12, s81" % S_XCD)
    for i in range(8):
        g.tl = g("s_add_u32 m0, s11, %d\ns_add_u32 s13, s12, %d\nbuffer_load_dwordx4 v8, %s, s13 offen lds" % (i*1056, i*8192, srd(S_X)))
def mall_touch(g):
    g("s_sub_u32 s80, s2, 224\ns_lshl_b32 s80, s80, 3\ns_add_u32 s80, s80, s3\ns_mul_i32 s80, s80, %d\nv_lshlrev_b32 v7, 7, v0" % (56*128))
    g("s_mov_b32 exec_hi, 0xffffff\nbuffer_load_dword v159, v7, %s, s80 offen\ns_mov_b32 exec_hi, -1" % srd(S_WD))
def T_process(g):
    g("v_lshrrev_b32 v5, 3, v0\nv_and_b32 v6, 7, v0\nv_lshlrev_b32 v6, 4, v6")
    g("v_mul_u32_u24 v27, 160, v5\nv_add_u32 v27, v27, v6\ns_add_u32 s12, s11, 9504\nv_add_u32 v27, s12, v27")
    g("v_lshlrev_b32 v5, 12, v5\nv_add_u32 v30, v5, v6")
    g("v_and_b32 v26, 3, v0\nv_lshrrev_b32 v5, 5, v0\nv_lshlrev_b32 v5, 2, v5\nv_add_u32 v26, v26, v5\nv_mul_u32_u24 v26, 1056, v26")
    g("v_bfe_u32 v5, v0, 2, 2\nv_lshlrev_b32 v6, 7, v5\nv_add_u32 v26, v26, v6")
    g("v_bfe_u32 v6, v0, 4, 1\nv_lshlrev_b32 v6, 3, v6\nv_add_u32 v26, v26, v6\nv_add_u32 v26, s11, v26")
    g("v_bfe_u32 v5, v0, 4, 1\nv_lshlrev_b32 v5, 2, v5\nv_and_b32 v6, 3, v0\nv_add_u32 v5, v5, v6\nv_mul_u32_u24 v5, 160, v5")
    g("v_bfe_u32 v6, v0, 2, 2\nv_lshlrev_b32 v6, 4, v6\nv_add_u32 v5, v5, v6")
    g("v_lshrrev_b32 v6, 5, v0\nv_lshlrev_b32 v6, 6, v6\nv_add_u32 v28, v5, v6\nv_add_u32 v28, s12, v28")
    g("s_lshl_b32 s12, s%d, 18\ns_lshl_b32 s81, s10, 7\ns_add_u32 s12, s12, s81\ns_add_u32 s12, s12, 0x%x" % (S_XCD, UT_OFF))
    g.wait_op(g.tl)
    if g.role == 1: stamp(g, "I:Tland")
    def rd(k):
        b = 64 + 4*k
        g("ds_read_b64_tr_b16 v[%d:%d], v26 offset:%d" % (b, b+1, 16*k))
        g("ds_read_b64_tr_b16 v[%d:%d], v26 offset:%d" % (b+2, b+3, 16*k + 512))
    def rl(k):
        g("ds_write_b128 v28, v[%d:%d]" % (64 + 4*k, 67 + 4*k)); g("ds_read_b128 a[%d:%d], v27" % (4*k, 4*k + 3))
    def st(k):
        g("s_add_u32 s13, s12, %d\nbuffer_store_dwordx4 a[%d:%d], v30, %s, s13 offen sc1" % (k*8*UT_STRIDE, 4*k, 4*k + 3, srd(S_WS)))
    for k in range(12):
        if k < 8: rd(k)
        if 2 <= k < 10: rl(k - 2)
        if k >= 4: st(k - 4)
    g("s_lshl_b32 s80, s%d, 9\ns_lshr_b32 s81, s10, 3\ns_lshl_b32 s81, s81, 7\ns_add_u32 s80, s80, s81\ns_lshl_b32 s81, s3, 2\ns_add_u32 s80, s80, s81\ns_add_u32 s15, s80, 0x%x" % (S_XCD, FT_OFF))

def g_idle(g):
    g("s_sub_u32 s82, s2, 224\ns_lshl_b32 s82, s82, 2\ns_add_u32 s82, s82, s%d\ns_lshl_b32 s83, s82, 14\nv_lshlrev_b32 v9, 4, v0" % S_W)
    g("global_load_dwordx4 v[12:15], v9, s[42:43]")
    for j in range(16):
        if j % 4 == 0 and j: g("s_add_u32 s83, s83, 4096")
        g("buffer_load_dwordx4 v[%d:%d], v9, %s, s83 offen offset:%d" % (32 + 4*j, 35 + 4*j, srd(S_X), (j % 4)*1024))
    R = list(range(96, 112))
    for r in R: g("v_mov_b32 v%d, 0" % r)
    for jb in range(0, 16, 4):
        for i in range(4):
            for j in range(jb, jb + 4): g("v_dot2_f32_bf16 v%d, v%d, v%d, v%d" % (96 + j, 32 + 4*j + i, 12 + i, 96 + j))
    g("s_nop 3")
    for mod in ("row_shr:1 row_mask:0xf bank_mask:0xf bound_ctrl:0", "row_shr:2 row_mask:0xf bank_mask:0xf bound_ctrl:0",
                "row_shr:4 row_mask:0xf bank_mask:0xf bound_ctrl:0", "row_shr:8 row_mask:0xf bank_mask:0xf bound_ctrl:0",
                "row_bcast:15 row_mask:0xa bank_mask:0xf", "row_bcast:31 row_mask:0xc bank_mask:0xf"):
        for r in R: g("v_add_f32_dpp v%d, v%d, v%d %s" % (r, r, r, mod))
    for jb in range(0, 16, 8):
        for j in range(8): g("v_readlane_b32 s%d, v%d, 63" % (8 + j, 96 + jb + j))
        for j in range(8): g("v_writelane_b32 v16, s%d, %d" % (8 + j, jb + j))
    for t in ("v_cvt_pk_bf16_f32 v16, v16, v16", "v_lshlrev_b32 v16, 16, v16", "v_mul_f32 v16, 0x%x, v16" % f2u(-LOG2E), "v_exp_f32 v16, v16",
              "v_add_f32 v16, 1.0, v16", "v_rcp_f32 v16, v16", "v_cvt_pk_bf16_f32 v16, v16, v16", "v_lshlrev_b32 v16, 16, v16"): g(t)
    g("v_mov_b32 v17, s%d\nv_lshlrev_b32 v9, 3, v0\ns_lshl_b32 s82, s82, 7\ns_add_u32 s82, s82, 0x%x" % (S_TAG, G_OFF))
    g("s_mov_b64 exec, 0xffff\nbuffer_store_dwordx2 v[16:17], v9, %s, s82 offen sc1\ns_mov_b64 exec, -1" % srd(S_WS))

def epoch_bump(g):
    L, P, D = g.lab("Leb"), g.lab("Lep"), g.lab("Led")
    g("s_cmp_lg_u32 s2, 255\ns_cbranch_scc1 %s" % L)
    g("s_cmp_lg_u32 s%d, 0\ns_cbranch_scc1 %s" % (S_W, L))
    for l in ("v_lshrrev_b32 v100, 3, v0", "v_lshlrev_b32 v100, 11, v100", "v_and_b32 v101, 7, v0", "v_lshlrev_b32 v101, 7, v101", "v_add_u32 v100, v100, v101",
              "s_mov_b32 s80, 0x%x" % FA_OFF, "s_mov_b32 s%d, 0x40000" % S_SPIN): g.raw(l)
    g(P + ":")
    for l in ("buffer_load_dwordx4 v[104:107], v100, %s, s80 offen sc1" % srd(S_WS), "buffer_load_dwordx4 v[108:111], v100, %s, s80 offen offset:16 sc1" % srd(S_WS), "s_waitcnt vmcnt(0)",
              "v_xor_b32 v104, s%d, v104" % S_TAG, "v_xor_b32 v106, s%d, v106" % S_TAG, "v_xor_b32 v108, s%d, v108" % S_TAG, "v_xor_b32 v110, s%d, v110" % S_TAG,
              "v_or_b32 v104, v104, v106", "v_or_b32 v108, v108, v110", "v_or_b32 v104, v104, v108", "v_cmp_ne_u32 vcc, 0, v104", "s_nop 4",
              "s_cmp_eq_u64 vcc, 0", "s_cbranch_scc1 %s" % D, "s_sleep 8", "s_sub_u32 s%d, s%d, 1" % (S_SPIN, S_SPIN), "s_cbranch_scc0 %s" % P): g.raw(l)
    g(D + ":")
    g.raw("s_mov_b32 s80, 0x%x" % EP_OFF)
    g.raw("v_mov_b32 v100, s%d" % S_TAG); g.raw("v_mov_b32 v101, 0"); g.raw("s_mov_b64 exec, 1")
    g.raw("buffer_store_dword v100, v101, %s, s80 offen sc1" % srd(S_WS))
    g.raw("s_mov_b64 exec, -1")
    g(L + ":")

def uexp_addr(g):
    g("s_lshl_b32 s85, s%d, 12\ns_and_b32 s81, s%d, 1\ns_lshl_b32 s80, s81, 11\ns_add_u32 s85, s85, s80\ns_add_u32 s85, s85, 0x%x" % (S_CH, S_W, UT_OFF))
    g("s_lshr_b32 s82, s%d, 1\ns_mul_i32 s83, s82, %d\ns_add_u32 s83, s83, %d\ns_add_u32 s86, s83, s80\ns_add_u32 s86, s86, 64" % (S_W, CU_CH, CU))
    g("v_lshlrev_b32 v28, 2, v0\nv_add_u32 v22, s83, v28\ns_lshl_b32 s80, s81, 8\ns_add_u32 s80, s80, s83\ns_add_u32 s80, s80, %d\nv_add_u32 v28, s80, v28" % (64 - 36))
    g("s_lshl_b32 s81, s81, 10\ns_mul_i32 s80, s82, %d\ns_add_u32 s80, s80, %d\ns_add_u32 s80, s80, s81\nv_lshlrev_b32 v20, 4, v0\nv_add_u32 v21, s80, v20" % (UEE[1] - UEE[0], UEE[0]))
    g("s_mul_i32 s80, s82, %d\ns_sub_u32 s80, %d, s80\ns_add_u32 s80, s80, s81\nv_add_u32 v20, s80, v20" % (UEO[0] - UEO[1], UEO[0]))
def u_load(g):
    for i in range(2):
        op = g("s_mov_b32 m0, s86\ns_nop 0\nbuffer_load_dwordx4 v10, %s, s85 offen offset:%d sc1 lds" % (srd(S_WS), i*1024))
    g("v_mov_b32 v23, 0\ns_mov_b64 exec, 0xffff\nds_write_b32 v22, v23\ns_mov_b64 exec, -1")
    return op
def u_build(g):
    def rd(i):
        b = 32 + 10*(i % 3)
        g("ds_read2_b32 v[%d:%d], v28 offset0:1 offset1:2\nds_read2_b32 v[%d:%d], v28 offset0:3 offset1:4\nds_read_b32 v%d, v28\nv_add_u32 v28, 0x200, v28" % (b, b+1, b+2, b+3, b+4))
    def wr(i):
        b = 32 + 10*(i % 3); e = b + 6
        g("v_alignbit_b32 v%d, v%d, v%d, 16" % (e, b, b+4))
        for k in (1, 2, 3): g("v_alignbit_b32 v%d, v%d, v%d, 16" % (e + k, b + k, b + k - 1))
        if i == 8: g("s_and_b32 s80, s%d, 1\ns_sub_u32 s80, s80, 1\ns_and_b32 exec_lo, s80, 0xff\ns_mov_b32 exec_hi, 0" % S_W)
        g("ds_write_b128 v20, v[%d:%d] offset:%d" % (b, b+3, i*2048))
        g("ds_write_b128 v21, v[%d:%d] offset:%d" % (e, e+3, i*2048))
        if i == 8: g("s_mov_b64 exec, -1")
    rd(0); rd(1)
    for i in range(9):
        if i + 2 < 9: rd(i + 2)
        wr(i)

class Rec2:
    def __init__(self): self.q = []
    def __call__(self, t): self.q.append(t)
def ub_items():
    r = Rec2(); u_build(r)
    q = r.q
    return q[:-4] + ["\n".join(q[-4:])]
def gemm1_dma(st):
    b = BUF[st % 3]; q = []
    p0 = "s_add_u32 s9, s14, %d\ns_and_b32 s9, s9, 7\n" % st
    if OPT["rot"] >= 3:
        p0 = ("s_mov_b32 s9, %d\n" % st) if st < 2 else ("s_add_u32 s9, s14, %d\ns_cmp_ge_u32 s9, 8\ns_cselect_b32 s8, 6, 0\ns_sub_u32 s9, s9, s8\n" % st)
    pre = p0 + "s_lshl_b32 s35, s9, 7\ns_add_u32 s35, s35, s90\ns_mul_i32 s8, s9, %d\ns_add_u32 s8, s8, s91\n" % (64*3584)
    for i in range(4):
        q.append((pre if i == 0 else "") + "s_add_u32 m0, s92, %d\ns_add_u32 s93, s35, %d\nbuffer_load_dwordx4 v%d, %s, s93 offen lds" % (b + i*1024, i*8192, 2 + (i & 1), srd(S_X)))
        q.append("s_add_u32 m0, s92, %d\ns_add_u32 s93, s8, %d\nbuffer_load_dwordx4 v4, %s, s93 offen lds" % (b + 16384 + i*1024, i*4*3584, srd(S_WG)))
        q.append("s_add_u32 m0, s92, %d\nbuffer_load_dwordx4 v4, %s, s93 offen lds" % (b + 32768 + i*1024, srd(S_WU)))
    return q

def cf(p, kind, i):
    if p == 0: return "a[%d:%d]" % ((0 if kind == "A" else 32) + 4*i, (0 if kind == "A" else 32) + 4*i + 3)
    return ("a[%d:%d]" % (64 + 4*i, 67 + 4*i)) if kind == "A" else ("v[%d:%d]" % (128 + 4*i, 131 + 4*i))
def sel(g, dst, c0, c1):
    g("s_cselect_b32 s%d, %d, %d" % (dst, c1, c0) if False else "s_mov_b32 s%d, %d" % (dst, c0))
def conv_addr(g):
    g("s_lshr_b32 s80, s%d, 1\ns_and_b32 s82, s%d, 1" % (S_W, S_W))
    g("s_mul_i32 s81, s80, %d\ns_add_u32 s81, s81, %d" % (UEE[1] - UEE[0], UEE[0]))
    g("s_mul_i32 s83, s80, %d\ns_sub_u32 s83, %d, s83" % (UEO[0] - UEO[1], UEO[0]))
    g("v_bfe_u32 v5, v0, 4, 1\nv_lshlrev_b32 v5, 1, v5\nv_lshrrev_b32 v6, 5, v0\nv_add_u32 v5, v5, v6")
    g("v_bfe_u32 v6, v0, 1, 3\nv_lshlrev_b32 v7, 2, v5\nv_sub_u32 v7, v6, v7\nv_add_u32 v7, 13, v7\nv_lshlrev_b32 v7, 4, v7")
    g("v_mov_b32 v8, s81\nv_mov_b32 v9, s83\nv_and_b32 v6, 1, v0\nv_cmp_eq_u32 vcc, 1, v6\nv_cndmask_b32 v8, v8, v9, vcc\nv_add_u32 v8, v8, v7")
    g("s_lshl_b32 s81, s82, 10\nv_add_u32 v8, s81, v8")
    g("v_and_b32 v13, 15, v0\nv_lshlrev_b32 v13, 7, v13\nv_lshrrev_b32 v14, 4, v0\nv_lshlrev_b32 v14, 5, v14\nv_add_u32 v13, v13, v14")
    g("s_lshl_b32 s81, s82, 13\ns_add_u32 s81, s81, s83\ns_add_u32 s81, s81, 128\nv_add_u32 v13, s81, v13")
    g("v_and_b32 v6, 15, v0\nv_lshrrev_b32 v7, 5, v0\nv_mul_u32_u24 v7, %d, v7\nv_bfe_u32 v9, v0, 4, 1\nv_add_u32 v9, v9, v6\nv_lshlrev_b32 v9, 4, v9\nv_add_u32 v7, v7, v9" % KF_PL)
    g("s_mul_i32 s81, s80, %d\ns_lshl_b32 s83, s82, 7\ns_sub_u32 s83, s81, s83\ns_add_u32 s83, s83, %d" % (KF_CH, KF + 16*(16 - 7)))
    g("v_add_u32 v9, s83, v7")
    g("v_lshlrev_b32 v10, 4, v0")
    g("s_lshl_b32 s81, s%d, 12\ns_add_u32 s81, s81, %d\ns_cmp_eq_u32 s%d, 3\ns_cselect_b32 s81, %d, s81\nv_add_u32 v12, s81, v10" % (S_W, XCH[0], S_W, XCH[3]))
    g("s_xor_b32 s83, s%d, 1\ns_lshl_b32 s81, s83, 12\ns_add_u32 s81, s81, %d\ns_cmp_eq_u32 s83, 3\ns_cselect_b32 s81, %d, s81\nv_add_u32 v11, s81, v10" % (S_W, XCH[0], XCH[3]))
    g("v_and_b32 v15, 15, v0\nv_lshlrev_b32 v15, 5, v15\nv_lshrrev_b32 v14, 4, v0\nv_lshlrev_b32 v14, 3, v14\nv_add_u32 v15, v15, v14")
    g("s_lshl_b32 s81, s%d, 12\ns_add_u32 s81, s81, %d\nv_add_u32 v15, s81, v15\nv_add_u32 v14, s81, v10" % (S_W, STG))
def conv_main(g, side, hooks={}):
    side = list(side)
    def reads(i):
        p = i & 1; q = []
        for a in range(8):
            q.append("ds_read_b128 %s, v8 offset:%d" % (cf(p, "A", a), a*2048 + i*256))
            q.append("ds_read_b128 %s, v9 offset:%d" % (cf(p, "B", a), a*256 + (3 - i)*32))
        return q
    for r in reads(0): g(r)
    first = set(); cnt = 0; last = None
    for i in range(4):
        p = i & 1
        nxt = reads(i + 1) if i < 3 else ["ds_read_b64 a[%d:%d], v13 offset:%d" % (2*cc, 1 + 2*cc, cc*2048) for cc in range(4)]
        pairs = sorted([(a, d) for a in range(8) for d in range(8) if a + d <= 7], key=lambda x: (max(x), x))
        for n, (a, d) in enumerate(pairs):
            c = a + d
            C = "v[%d:%d]" % (32 + 4*c, 35 + 4*c) if c in first else "0"
            first.add(c)
            g("v_mfma_f32_16x16x32_bf16 v[%d:%d], %s, %s, %s" % (32 + 4*c, 35 + 4*c, cf(p, "A", a), cf(p, "B", d), C))
            if n >= 12 and nxt: g(nxt.pop(0))
            elif n in (1, 3, 5, 7, 9, 11, 30, 33) and side: last = g(side.pop(0))
        assert not nxt
        if i in hooks: hooks[i](g)
    assert not side
    for cc in range(4):
        for h in range(2):
            u = 128 + 2*cc + h; t = 136 + 4*cc + 2*h
            g("v_accvgpr_read_b32 v%d, a%d" % (u, 2*cc + h))
            g("v_lshlrev_b32 v%d, 16, v%d\nv_and_b32 v%d, 0xffff0000, v%d" % (t, u, t+1, u))
            g("v_mul_f32 v%d, v29, v%d\nv_mul_f32 v%d, v29, v%d" % (t, t, t+1, t+1))
            if cc == 0 and h == 1:
                L1, L2 = g.lab("Lx"), g.lab("Lx")
                g("s_and_b32 s82, s%d, 1\ns_cmp_lg_u32 s82, 0\ns_cbranch_scc1 %s" % (S_W, L1))
                for k in range(4): g.raw("ds_write_b128 v11, v[%d:%d] offset:%d" % (48 + 4*k, 51 + 4*k, k*1024))
                g("s_branch %s" % L2)
                g(L1 + ":")
                for k in range(4): g.raw("ds_write_b128 v11, v[%d:%d] offset:%d" % (32 + 4*k, 35 + 4*k, k*1024))
                g.nop(2)
                for r in range(16): g.raw("v_mov_b32 v%d, v%d" % (32 + r, 48 + r))
                g(L2 + ":")
                g.lg_seq += 4
            g("v_cvt_pk_bf16_f32 v%d, v%d, v%d" % (u, t, t+1))
            g("v_lshlrev_b32 v%d, 16, v%d\nv_and_b32 v%d, 0xffff0000, v%d" % (t, u, t+1, u))
    g.wait(lg=0)
    return last
def conv_fin(g):
    for r in range(16): g("v_add_f32 v%d, v%d, v%d" % (32 + r, 32 + r, 48 + r))
    for r in range(8): g("v_cvt_pk_bf16_f32 v%d, v%d, v%d" % (48 + r, 32 + 2*r, 33 + 2*r))
    for r in range(8): g("v_lshlrev_b32 v%d, 16, v%d\nv_and_b32 v%d, 0xffff0000, v%d" % (32 + 2*r, 48 + r, 33 + 2*r, 48 + r))
    for r in range(16): g("v_add_f32 v%d, v%d, v%d" % (32 + r, 32 + r, 136 + r))
    for r in range(8): g("v_cvt_pk_bf16_f32 v%d, v%d, v%d" % (48 + r, 32 + 2*r, 33 + 2*r))
    for cc in range(4): g("ds_write_b64 v15, v[%d:%d] offset:%d" % (48 + 2*cc, 49 + 2*cc, cc*512))
    for pr in range(2): g("ds_read_b128 v[%d:%d], v14 offset:%d" % (56 + 4*pr, 59 + 4*pr, pr*1024))
    g("s_and_b32 s82, s%d, 1\ns_lshl_b32 s81, s%d, 12\ns_lshl_b32 s83, s82, 11\ns_add_u32 s81, s81, s83\ns_add_u32 s81, s81, 0x%x" % (S_W, S_CH, AT_OFF))
    for pr in range(2):
        g("buffer_store_dwordx4 v[%d:%d], v10, %s, s81 offen offset:%d sc1" % (56 + 4*pr, 59 + 4*pr, srd(S_WS), pr*1024))

def chunk_ids(g):
    for c in range(7):
        g("s_add_u32 s%d, s%d, %d\ns_cmp_ge_u32 s%d, 7\ns_cselect_b32 s80, 7, 0\ns_sub_u32 s%d, s%d, s80" % (18 + c, S_NB, c, 18 + c, 18 + c, 18 + c))
    g("s_lshl_b32 s95, s%d, 14\ns_add_u32 s95, s95, %d\ns_lshl_b32 s25, s%d, 13" % (S_W, WDA, S_W))
def wd_setup(g, vreg):
    g("v_lshrrev_b32 v5, 3, v0\nv_lshlrev_b32 v5, 10, v5\nv_bfe_u32 v6, v0, 4, 1\nv_lshlrev_b32 v6, 2, v6\nv_and_b32 v7, 7, v0\nv_xor_b32 v6, v6, v7\nv_lshlrev_b32 v6, 4, v6\nv_add_u32 v%d, v5, v6" % vreg)
    g("s_mul_i32 s94, s%d, %d\ns_lshl_b32 s80, s%d, 7\ns_add_u32 s94, s94, s80" % (S_W, 448*1024, S_NB))
WSLOT = {3: (95, 0), 4: (95, 8192)}
def wd_dma(c, vreg):
    sb, off = WSLOT[c]
    q = []
    for i in range(8):
        pre = "s_lshl_b32 s93, s%d, 16\ns_add_u32 s93, s93, s94\n" % (18 + c) if i == 0 else "s_add_u32 s93, s93, 8192\n"
        q.append("s_add_u32 m0, s%d, %d\n%sbuffer_load_dwordx4 v%d, %s, s93 offen lds" % (sb, off + i*1024, pre, vreg, srd(S_WD)))
    return q

def l2t_addr(g):
    g("s_lshl_b32 s80, s%d, 2\ns_add_u32 s80, s80, s%d\ns_lshl_b32 s26, s80, 12\ns_add_u32 s26, s26, 0x%x" % (S_IDX, S_W, WDT_OFF))
    g("s_lshr_b32 s27, s80, 5\ns_mul_i32 s27, s27, %d\ns_and_b32 s80, s80, 31\ns_lshl_b32 s80, s80, 11\ns_add_u32 s27, s27, s80" % (448*1024))
    g("v_and_b32 v24, 7, v0\nv_bfe_u32 v25, v0, 3, 1\nv_lshlrev_b32 v25, 10, v25\nv_lshlrev_b32 v23, 7, v24\nv_add_u32 v25, v25, v23")
    g("v_lshrrev_b32 v21, 4, v0\nv_add_u32 v21, v21, v24\nv_add_u32 v21, 2, v21\nv_subrev_u32 v23, 7, v21\nv_min_u32 v21, v21, v23\nv_lshlrev_b32 v21, 16, v21\nv_add_u32 v21, v21, v25")
    g("v_add_u32 v22, 6, v24\nv_subrev_u32 v23, 7, v22\nv_min_u32 v22, v22, v23\nv_lshlrev_b32 v22, 16, v22\nv_add_u32 v22, v22, v25")
    g("v_lshlrev_b32 v23, 7, v0")
def l2t(g):
    g("s_mov_b32 exec_hi, 0\nbuffer_load_dword v24, v23, %s, s26 offen sc1\ns_mov_b32 exec_hi, -1" % srd(S_WS))
    g("buffer_load_dword v25, v21, %s, s27 offen" % srd(S_WD))
    g("s_mov_b64 exec, 0xffff\nbuffer_load_dword v21, v22, %s, s27 offen\ns_mov_b64 exec, -1" % srd(S_WD))
def pm(p): return (p % 7, p // 7) if OPT["pord"] else (p >> 1, p & 1)
def wd_reg(c):
    q = []
    for i in range(8):
        p = 2*c + (i >> 2)
        pre = "s_lshl_b32 s26, s%d, 16\ns_add_u32 s26, s26, s94\n%s" % (18 + pm(p)[0], "s_add_u32 s26, s26, 0x8000\n" if pm(p)[1] else "") if i % 4 == 0 else "s_add_u32 s26, s26, 8192\n"
        r = ("v[%d:%d]" % (64 + 32*(c - 5) + 4*i, 67 + 32*(c - 5) + 4*i)) if c >= 5 else ("a[%d:%d]" % (32*(c - 3) + 4*i, 32*(c - 3) + 4*i + 3))
        q.append("%sbuffer_load_dwordx4 %s, v30, %s, s26 offen" % (pre, r, srd(S_WD)))
    return q
def dose(g, k):
    if OPT["l2t"] != 3: return
    if k < 4: g("%s\nbuffer_load_dword v%d, v21, %s, s27 offen\ns_mov_b64 exec, -1" % (lanes(16*k, 16*k + 16), 96 + k, srd(S_WD)))
    elif k == 4: g("%s\nbuffer_load_dword v100, v22, %s, s27 offen\ns_mov_b64 exec, -1" % (lanes(0, 16), srd(S_WD)))
    else: g("%s\nbuffer_load_dword v%d, v23, %s, s26 offen sc1\ns_mov_b64 exec, -1" % (lanes(16*(k-5), 16*(k-5) + 16), 96 + k, srd(S_WS)))
def H_part1(g, idle):
    D = (lambda st: []) if idle else gemm1_dma
    st_ = (lambda g, n: None) if idle else stamp
    def W(op):
        if op is not None: g.wait_op(op)
    if idle:
        g.srd(S_X, 16, 2048*512*2); T_issue(g); g.srd(S_WD, 40, 512*1792*2); epoch_load(g); g.srd(S_WS, 48, WS_BYTES); tag_compute(g); T_process(g)
        tst = ("vm", g.vm_seq)
    g("global_load_ushort v39, v63, s[30:31]")
    g("global_load_ushort v33, v32, s[18:19]")
    g("global_load_ushort v34, v32, s[20:21]")
    g("global_load_ushort v29, v63, s[32:33]")
    if not idle:
        g.srd(S_WG, 36, 512*1792*2); g.srd(S_WU, 38, 512*1792*2)
    g.srd(S_X, 16, 2048*512*2)
    d = {}
    d[0] = weave(g, D(0), [])
    if OPT["gt"] and not idle:
        g("s_lshl_b32 s80, s2, 2\ns_add_u32 s80, s80, s%d\ns_lshl_b32 s81, s80, 11\ns_mul_i32 s80, s80, %d\nv_lshlrev_b32 v5, 7, v0" % (S_W, 19*128))
        g("s_mov_b64 exec, 0xffff\nbuffer_load_dword v157, v5, %s, s81 offen\nbuffer_load_dword v158, v5, %s, s81 offen" % (srd(S_WG), srd(S_WU)))
        g("s_mov_b64 exec, 0x7ffff\nbuffer_load_dword v159, v5, %s, s80 offen\ns_mov_b64 exec, -1" % srd(S_X))
    if not idle: epoch_load(g)
    g.srd(S_WS, 48, WS_BYTES); g.srd(S_WD, 40, 512*1792*2); g.srd(S_OUT, 44, 2048*512*2)
    st_(g, "H:d0 issued")
    if not idle: tag_compute(g)
    else: stamp(g, "I:Tiss"); g.wait_op(tst); flag_store(g, 15, 8); mall_touch(g); stamp(g, "I:Tflag")
    g("v_lshlrev_b32 v29, 16, v29")
    st_(g, "H:par")
    q1 = D(1); n1 = OPT["n1"]
    if not OPT.get("nok"): weave(g, q1[:n1], rec(kgen_E)) if (n1 and q1) else kgen_E(g)
    g.wait(lg=0)
    st_(g, "H:E done")
    if idle: stamp(g, "I:Edone")
    if not OPT.get("nok"): g("s_barrier")
    if idle: stamp(g, "I:Bk")
    d[1] = weave(g, q1[n1:], rec(kfull_addr))
    st_(g, "H:i0")
    W(d[0])
    g("s_barrier")
    d[2] = weave(g, D(2), rec(kfull_read))
    st_(g, "H:i1")
    g.wait(lg=0); W(d[1])
    g("s_barrier")
    if idle: stamp(g, "I:B1")
    q3 = D(3)
    d[3] = weave(g, q3[:OPT["t3"]], rec(kfull_write) + rec(uexp_addr))
    wd_setup(g, 30); chunk_ids(g)
    wr = wd_reg(5) + wd_reg(6) + wd_reg(3) + wd_reg(4)
    def WR(n):
        for _ in range(n):
            if wr: g(wr.pop(0))
    st_(g, "H:i2")
    W(d[2])
    g("s_barrier")
    if q3[OPT["t3"]:]: d[3] = weave(g, q3[OPT["t3"]:], [])
    d[4] = weave(g, D(4), [])
    WR(OPT["w2"])
    conv_addr(g)
    st_(g, "H:i3")
    W(d[3])
    g("s_barrier")
    d[5] = weave(g, D(5), [])
    WR(OPT["w3"])
    st_(g, "H:i4")
    W(d[4])
    g("s_barrier")
    d[6] = weave(g, D(6), [])
    WR(OPT["w3"])
    g("s_lshl_b32 s84, s%d, 9\ns_add_u32 s84, s84, 0x%x\ns_lshl_b32 s80, s%d, 9\ns_add_u32 s80, s80, 0x%x" % (S_XCD, FT_OFF, S_NB, FW_OFF))
    g("v_bfe_u32 v24, v0, 3, 2\nv_lshlrev_b32 v24, 7, v24\nv_and_b32 v25, 7, v0\nv_lshlrev_b32 v25, 2, v25\nv_add_u32 v24, v24, v25")
    g("v_and_b32 v25, 0x18c, v24\nv_add_u32 v25, s80, v25\nv_add_u32 v24, s84, v24\nv_cmp_lt_u32 vcc, 31, v0\nv_cndmask_b32 v24, v24, v25, vcc\ns_mov_b32 s84, 0")
    st_(g, "H:i5")
    g.wait(lg=0); W(d[5])
    g("s_barrier")
    d[7] = weave(g, D(7), [])
    WR(OPT["w3"])
    st_(g, "H:i6")
    W(d[6])
    g("s_barrier")
    L0 = g.lab("Lq")
    g("s_cmp_lg_u32 s%d, 0\ns_cbranch_scc1 %s" % (S_W, L0))
    g.raw("buffer_load_dword v25, v24, %s, s84 offen sc1" % srd(S_WS))
    g(L0 + ":")
    s0 = g.vm_seq
    WR(OPT["nr6"])
    nv = g.vm_seq - s0
    stamp(g, "I:prepoll" if idle else "H:prepoll")
    g.raw("s_waitcnt vmcnt(%d)" % nv); g.vm_done = max(g.vm_done, g.vm_seq - nv)
    Lok = g.lab("Lok")
    g("s_cmp_lg_u32 s%d, 0\ns_cbranch_scc1 %s" % (S_W, Lok))
    g("v_cmp_ne_u32 vcc, s%d, v25" % S_TAG)
    g.nop(4)
    g("s_cmp_eq_u64 vcc, 0\ns_cbranch_scc1 %s" % Lok)
    sv = g.vm_done
    poll(g, 24, 84, 25, sleep=8)
    g.vm_done = sv
    g(Lok + ":")
    if idle: stamp(g, "I:polled")
    st_(g, "H:a7")
    g("s_barrier")
    ul = u_load(g)
    WR(99)
    g("v_mov_b32 v16, %d\nv_lshlrev_b32 v17, 2, v0\nv_add_u32 v17, v16, v17\nv_mov_b32 v18, 0\nv_mov_b32 v19, 1" % SYW)
    g("ds_write_b32 v17, v18")
    g.wait(lg=0); g.ul = ul
    if idle: stamp(g, "I:a8")
    st_(g, "H:a8")

SYW = 28928
STG = 0
def hsync(g, target):
    L, D = g.lab("Lh"), g.lab("Lhd")
    g("s_mov_b64 exec, 1\nds_add_u32 v16, v19\ns_mov_b64 exec, -1")
    g("s_mov_b32 s%d, 0x100000" % S_SPIN)
    g(L + ":")
    for l in ("ds_read_b32 v18, v16", "s_waitcnt lgkmcnt(0)", "v_readfirstlane_b32 s80, v18", "s_sub_u32 s%d, s%d, 1" % (S_SPIN, S_SPIN), "s_cbranch_scc1 %s" % D,
              "s_cmp_lt_u32 s80, %d" % target, "s_cbranch_scc1 %s" % L): g.raw(l)
    g(D + ":")
    g.lg_done = g.lg_seq
def fin_addr(g, b):
    t = b + 4
    g("s_and_b32 s80, s3, 3\ns_lshl_b32 s80, s80, 3\nv_lshrrev_b32 v%d, 3, v0\nv_add_u32 v%d, s80, v%d" % (t, b+2, t))
    g("v_lshlrev_b32 v%d, 10, v%d\nv_and_b32 v%d, 7, v0\nv_lshlrev_b32 v%d, 4, v%d\nv_add_u32 v%d, v%d, v%d" % (b+3, t, t, b, t, b+3, b+3, b))
    g("v_mul_u32_u24 v%d, 0x420, v%d\nv_lshlrev_b32 v%d, 4, v%d\nv_xor_b32 v%d, v%d, v%d" % (b, t, b+1, b+2, b, b, b+1))
    g("s_lshr_b32 s81, s3, 2\ns_lshl_b32 s80, s81, 13\ns_add_u32 s80, s80, %d\nv_add_u32 v%d, s80, v%d" % (WDA, b, b))
    g("v_lshlrev_b32 v%d, 6, v%d\nv_and_b32 v%d, 3, v0\nv_lshlrev_b32 v%d, 4, v%d\nv_add_u32 v%d, v%d, v%d" % (b+1, b+2, t, t, t, b+1, b+1, t))
    g("v_bfe_u32 v%d, v0, 2, 1\nv_lshlrev_b32 v%d, 13, v%d\nv_add_u32 v%d, v%d, v%d" % (t, t, t, b+1, b+1, t))
    g("s_lshl_b32 s80, s81, 12\ns_add_u32 s80, s80, %d\nv_add_u32 v%d, s80, v%d\nv_lshlrev_b32 v%d, 2, v%d\nv_add_u32 v%d, s80, v%d" % (STG, b+1, b+1, b+2, b+2, b+2, b+2))
    g("s_lshl_b32 s87, s%d, 16\ns_lshl_b32 s81, s3, 13\ns_add_u32 s87, s87, s81\ns_lshl_b32 s81, s%d, 7\ns_add_u32 s87, s87, s81" % (S_TB2, S_NB))
def fin(g, b, P, GA, OMG):
    for j in range(2):
        for sw in range(4): g("ds_read_b128 v[%d:%d], v%d offset:%d" % (P + 8*sw + 4*j, P + 3 + 8*sw + 4*j, b, sw*16384 + j*512))
        if j == 0: g("ds_read_b32 v%d, v%d" % (OMG, b + 2))
    g("ds_read_b128 v[%d:%d], v%d offset:2048" % (GA, GA + 3, b + 1))
    fin_math(g, P, GA, OMG, b + 3)
def fin_math(g, P, GA, OMG, VO):
    for r in range(4):
        x = P + 2*r
        g("v_pk_add_f32 v[%d:%d], v[%d:%d], v[%d:%d]" % (x, x+1, x, x+1, x+8, x+9))
        g("v_pk_add_f32 v[%d:%d], v[%d:%d], v[%d:%d]" % (x+16, x+17, x+16, x+17, x+24, x+25))
    for r in range(4):
        x = P + 2*r
        g("v_pk_add_f32 v[%d:%d], v[%d:%d], v[%d:%d]" % (x, x+1, x, x+1, x+16, x+17))
    for r in range(4): g("v_cvt_pk_bf16_f32 v%d, v%d, v%d" % (P + 8 + r, P + 2*r, P + 2*r + 1))
    for r in range(4): g("v_lshlrev_b32 v%d, 16, v%d\nv_and_b32 v%d, 0xffff0000, v%d" % (P + 2*r, P + 8 + r, P + 2*r + 1, P + 8 + r))
    for r in range(8): g("v_mul_f32 v%d, v%d, v%d" % (P + r, OMG, P + r))
    for r in range(4): g("v_cvt_pk_bf16_f32 v%d, v%d, v%d" % (P + 8 + r, P + 2*r, P + 2*r + 1))
    for r in range(4): g("v_lshlrev_b32 v%d, 16, v%d\nv_and_b32 v%d, 0xffff0000, v%d" % (P + 16 + 2*r, GA + r, P + 17 + 2*r, GA + r))
    for r in range(4): g("v_lshlrev_b32 v%d, 16, v%d\nv_and_b32 v%d, 0xffff0000, v%d" % (P + 2*r, P + 8 + r, P + 2*r + 1, P + 8 + r))
    for r in range(4):
        x = P + 2*r
        g("v_pk_add_f32 v[%d:%d], v[%d:%d], v[%d:%d]" % (x, x+1, x, x+1, x+16, x+17))
    for r in range(4): g("v_cvt_pk_bf16_f32 v%d, v%d, v%d" % (GA + r, P + 2*r, P + 2*r + 1))
    g("buffer_store_dwordx4 v[%d:%d], v%d, %s, s87 offen %s" % (GA, GA + 3, VO, srd(S_OUT), {0: "", 1: "sc1", 2: "nt", 3: "sc0 sc1"}[OPT["osc"]]))

def build_H():
    g = G(); g.nlab = 1000; g.role = 1; g.nst = 1; St.names[48] = "H:start"
    prologue(g)
    g("s_setprio %d" % OPT["hprio"])
    h_dma_addr(g)
    if OPT["rot"] == 1: g("s_add_u32 s14, s%d, s%d\ns_and_b32 s14, s14, 3\ns_lshl_b32 s14, s14, 1" % (S_MT, S_FT))
    elif OPT["rot"] == 2: g("s_add_u32 s14, s%d, s%d\ns_and_b32 s14, s14, 1\ns_lshl_b32 s14, s14, 2" % (S_MT, S_FT))
    elif OPT["rot"] == 3: g("s_add_u32 s14, s%d, s%d\ns_and_b32 s14, s14, 1\ns_mul_i32 s14, s14, 3" % (S_MT, S_FT))
    else: g("s_mov_b32 s14, 0")
    g("s_waitcnt lgkmcnt(0)")
    g("s_cmp_ge_u32 s%d, 28\ns_cbranch_scc1 Lhidle" % S_IDX)
    H_part1(g, False)
    g("Lh8:")
    g("s_barrier")
    g("s_setprio %d" % OPT["bprio"])
    g.wait_op(g.ul)
    hsync(g, 4)
    u_build(g)
    stamp(g, "H:built")
    g("v_add_u32 v23, s95, v10\ns_lshl_b32 s81, s%d, 2\nv_add_u32 v17, s81, v16" % S_W)
    for i in range(16): g("ds_write_b128 v23, a[%d:%d] offset:%d" % (4*i, 4*i + 3, i*1024))
    g("ds_write_b32 v17, v19 offset:32")
    g("s_setprio 0")
    g.wait(lg=0)
    stamp(g, "H:a9")
    hsync(g, 8)
    if OPT["gow"]:
        L, D = g.lab("Lw"), g.lab("Lwd")
        g(L + ":")
        for l in ("ds_read_b32 v18, v17 offset:48", "s_waitcnt lgkmcnt(0)", "v_readfirstlane_b32 s80, v18", "s_sub_u32 s%d, s%d, 1" % (S_SPIN, S_SPIN), "s_cbranch_scc1 %s" % D,
                  "s_cmp_lg_u32 s80, 0", "s_cbranch_scc1 %s" % D, "s_sleep 1", "s_branch %s" % L): g.raw(l)
        g(D + ":")
    stamp(g, "H:go")
    g("s_setprio %d" % OPT["convp"])
    conv_main(g, [])
    stamp(g, "H:convend")
    g("s_setprio 3")
    hsync(g, 12)
    for cc in range(4): g("ds_read_b128 v[%d:%d], v12 offset:%d" % (48 + 4*cc, 51 + 4*cc, cc*1024))
    conv_fin(g)
    aop = ("vm", g.vm_seq)
    stamp(g, "H:aiss")
    g("s_add_u32 s80, s95, %d\nv_add_u32 v11, s80, v10" % (WDB1 - WDA))
    g("s_and_b32 s82, s%d, 1\ns_lshl_b32 s80, s%d, 1\ns_add_u32 s80, s80, s82\ns_lshl_b32 s80, s80, 10\ns_and_b32 s81, s%d, 56\ns_lshl_b32 s81, s81, 4\ns_add_u32 s80, s80, s81\ns_and_b32 s81, s%d, 7\ns_lshl_b32 s81, s81, 2\ns_add_u32 s80, s80, s81\ns_add_u32 s80, s80, 0x%x" % (S_W, S_XCD, S_CH, S_CH, FA_OFF))
    for i in range(16):
        if i == OPT["nwa"]: g.wait_op(aop); flag_store(g, 80, 8); stamp(g, "H:aflag")
        g("ds_write_b128 v11, v[%d:%d] offset:%d" % (64 + 4*i, 67 + 4*i, i*1024))
    g("ds_write_b32 v17, v19 offset:16")
    stamp(g, "H:wdland")
    g("v_and_b32 v5, 31, v0\nv_lshlrev_b32 v20, 3, v5")
    g("s_lshl_b32 s82, s%d, 1\ns_lshr_b32 s81, s%d, 4\ns_add_u32 s82, s82, s81\ns_lshl_b32 s82, s82, 10\ns_lshr_b32 s81, s%d, 1\ns_lshl_b32 s81, s81, 9\ns_add_u32 s82, s82, s81\ns_add_u32 s82, s82, 0x%x\ns_add_u32 s50, s48, s82\ns_addc_u32 s51, s49, 0" % (S_NB, S_TB2, S_W, FA_OFF))
    g("v_lshrrev_b32 v7, 2, v0\nv_lshlrev_b32 v8, 12, v7\nv_and_b32 v9, 3, v0\nv_lshlrev_b32 v9, 4, v9\nv_add_u32 v8, v8, v9")
    g("s_lshl_b32 s83, s%d, 18\ns_lshr_b32 s81, s%d, 1\ns_lshl_b32 s81, s81, 17\ns_add_u32 s83, s83, s81\ns_lshl_b32 s81, s%d, 7\ns_add_u32 s83, s83, s81\ns_and_b32 s81, s%d, 1\ns_lshl_b32 s81, s81, 6\ns_add_u32 s83, s83, s81\ns_add_u32 s83, s83, 0x%x\ns_add_u32 s84, s83, 0x10000" % (S_NB, S_W, S_TB2, S_W, AT_OFF))
    g("s_lshl_b32 s85, s%d, 9\ns_and_b32 s81, s%d, 1\ns_lshl_b32 s81, s81, 8\ns_add_u32 s85, s85, s81\ns_add_u32 s85, s85, 0x%x" % (S_TB2, S_W, G_OFF))
    g("s_lshl_b32 s86, s%d, 12\ns_add_u32 s86, s86, %d\nv_add_u32 v21, s86, v10" % (S_W, STG))
    g("v_lshrrev_b32 v22, 5, v0\nv_lshlrev_b32 v22, 2, v22\nv_bfe_u32 v23, v0, 2, 2\nv_add_u32 v22, v22, v23\nv_lshlrev_b32 v22, 6, v22")
    g("v_bfe_u32 v23, v0, 4, 1\nv_lshlrev_b32 v23, 5, v23\nv_add_u32 v22, v22, v23\nv_and_b32 v23, 3, v0\nv_lshlrev_b32 v23, 3, v23\nv_add_u32 v22, v22, v23\nv_add_u32 v22, s86, v22")
    fin_addr(g, 24)
    g("v_and_b32 v29, 31, v0\nv_lshlrev_b32 v30, 2, v29\nv_add_u32 v30, s86, v30\nv_lshlrev_b32 v29, 6, v29\nv_lshrrev_b32 v23, 5, v0\nv_lshlrev_b32 v23, 3, v23\nv_add_u32 v29, v29, v23\nv_add_u32 v29, s86, v29")
    g("v_bfe_u32 v5, v0, 3, 2\nv_lshlrev_b32 v5, 7, v5\nv_and_b32 v6, 7, v0\nv_lshlrev_b32 v6, 2, v6\nv_add_u32 v5, v5, v6")
    if OPT["asl"]: g("s_sleep %d" % OPT["asl"])
    poll(g, 5, 82, 6, sleep=OPT["asl2"])
    stamp(g, "H:apolled")
    g("buffer_load_dwordx4 v[12:15], v8, %s, s83 offen sc1" % srd(S_WS))
    g("buffer_load_dwordx4 v[16:19], v8, %s, s84 offen sc1" % srd(S_WS))
    poll(g, 20, 85, 2, width=2)
    g("v_sub_f32 v3, 1.0, v2\nv_cvt_pk_bf16_f32 v3, v3, v3\nv_lshlrev_b32 v3, 16, v3")
    g("ds_write_b128 v21, v[12:15]")
    g("ds_write_b128 v21, v[16:19] offset:1024")
    for q in range(4): g("ds_read_b64_tr_b16 v[%d:%d], v22 offset:%d" % (32 + 2*q, 33 + 2*q, q*512))
    for r in range(8):
        y = 48 + 2*r
        g("v_lshlrev_b32 v%d, 16, v%d\nv_and_b32 v%d, 0xffff0000, v%d" % (y, 32 + r, y+1, 32 + r))
        g("v_mul_f32 v%d, v2, v%d\nv_mul_f32 v%d, v2, v%d" % (y, y, y+1, y+1))
        g("v_cvt_pk_bf16_f32 v%d, v%d, v%d" % (40 + r, y, y+1))
    for q in range(4): g("ds_write_b64 v29, v[%d:%d] offset:%d" % (40 + 2*q, 41 + 2*q, 2048 + 16*q))
    g("ds_write_b32 v30, v3")
    g.wait(lg=0)
    epoch_bump(g)
    stamp(g, "H:aTready")
    g("s_barrier")
    fin(g, 24, 64, 44, 3)
    stamp(g, "H:end")
    stamp_store(g)
    g("s_endpgm")
    g2 = G(); g2.nlab = 3000; g2.role = 1; g2.nst = 36
    g2("Lhidle:")
    H_part1(g2, True)
    g2("s_branch Lh8")
    g2("Lcodeend:")
    return g.text(), g2.text()

RADDR = [8, 14, 20]
def gemm1_raddr(g):
    g("v_and_b32 v5, 31, v0\nv_lshrrev_b32 v6, 5, v0\nv_bfe_u32 v7, v0, 1, 3\nv_xor_b32 v6, v6, v7\nv_lshlrev_b32 v6, 4, v6\nv_lshlrev_b32 v5, 7, v5\nv_add_u32 v5, v5, v6")
    g("s_and_b32 s80, s%d, 1\ns_lshl_b32 s80, s80, 13\nv_add_u32 v8, s80, v5" % S_W)
    for s in range(1, 4): g("v_xor_b32 v%d, %d, v8" % (8 + s, 32*s))
    g("v_lshrrev_b32 v5, 5, v0\nv_lshlrev_b32 v5, 3, v5\nv_bfe_u32 v6, v0, 2, 2\nv_add_u32 v5, v5, v6\nv_lshlrev_b32 v5, 8, v5")
    g("s_lshr_b32 s80, s%d, 1\ns_lshl_b32 s80, s80, 1\nv_xor_b32 v6, s80, v6\nv_lshlrev_b32 v6, 6, v6\nv_add_u32 v5, v5, v6" % S_W)
    g("v_bfe_u32 v6, v0, 4, 1\nv_lshlrev_b32 v6, 5, v6\nv_add_u32 v5, v5, v6\nv_and_b32 v6, 3, v0\nv_lshlrev_b32 v6, 3, v6\nv_add_u32 v5, v5, v6")
    g("v_add_u32 v12, 0x4000, v5\nv_xor_b32 v13, 64, v12")
    for i in range(6):
        g("v_add_u32 v%d, 0x%x, v%d" % (14 + i, BUF[1], 8 + i))
        g("v_add_u32 v%d, 0x%x, v%d" % (20 + i, BUF[2], 8 + i))
def frag(p, kind, i): return 24*p + {"x": 0, "g": 8, "u": 16}[kind] + 4*i
def gemm1_reads(kk):
    st, s = divmod(kk, 4); p = kk & 1; ra = RADDR[st % 3]
    q = []
    def W(kind, fi):
        for h in range(2):
            b = frag(p, kind, fi) + 2*h
            q.append("ds_read_b64_tr_b16 a[%d:%d], v%d offset:%d" % (b, b+1, ra + 4 + fi, s*4096 + h*1024 + (16384 if kind == "u" else 0)))
    def X(ti):
        b = frag(p, "x", ti)
        q.append("ds_read_b128 a[%d:%d], v%d offset:%d" % (b, b+3, ra + s, ti*4096))
    X(0); W("g", 0); W("u", 0); X(1); W("g", 1); W("u", 1)
    return q
def acc1(kind, fi, ti): return 32 + {"g": 0, "u": 64}[kind] + 32*fi + 16*ti
def gemm1_mfmas(kk):
    p = kk & 1; q = []
    for fi, ti in ((0,0),(0,1),(1,0),(1,1)):
        for kind in "gu":
            a = acc1(kind, fi, ti); w = frag(p, kind, fi); x = frag(p, "x", ti)
            c = "0" if kk == 0 else "v[%d:%d]" % (a, a+15)
            q.append("v_mfma_f32_32x32x16_bf16 v[%d:%d], a[%d:%d], a[%d:%d], %s" % (a, a+15, w, w+3, x, x+3, c))
    return q
def gemm1_main(g, side):
    g("s_barrier")
    stamp(g, "C:B0")
    for r in gemm1_reads(0): g(r)
    for kk in range(32):
        st, s = divmod(kk, 4)
        mf = gemm1_mfmas(kk); pre = 0
        if s == 3:
            g(mf[0]); g(mf[1]); pre = 2
            for t in side.get("pre%d" % (st + 1), []): g(t)
            g.wait(lg=0)
            stamp(g, "C:a%d" % (st + 1))
            g("s_barrier")
            stamp(g, "C:B%d" % (st + 1))
        fill = gemm1_reads(kk + 1) if kk + 1 < 32 else []
        fill += side.get(kk, [])
        for i in range(pre, 8):
            g(mf[i])
            for _ in range(2 if i < 7 else 99):
                if fill: emit(g, fill.pop(0))
def gemm1_epilogue(g, load_w):
    k1 = -2*0.7978845608028654*LOG2E; k2 = k1*0.044715
    g("s_mov_b32 s84, 0x%x\ns_mov_b32 s85, 0x%x" % (f2u(k2), f2u(k2)))
    g("v_mov_b32 v2, 0x%x\nv_mov_b32 v3, 0x%x" % (f2u(k1), f2u(k1)))
    g("v_lshlrev_b32 v4, 4, v0")
    g("s_lshl_b32 s80, s%d, 2\ns_and_b32 s81, s%d, 1\ns_lshl_b32 s81, s81, 1\ns_add_u32 s80, s80, s81\ns_mul_i32 s80, s80, 112" % (S_MT, S_W))
    g("s_lshl_b32 s81, s%d, 3\ns_add_u32 s80, s80, s81\ns_lshr_b32 s81, s%d, 1\ns_lshl_b32 s81, s81, 2\ns_add_u32 s80, s80, s81" % (S_FT, S_W))
    g("s_lshl_b32 s80, s80, 10\ns_add_u32 s80, s80, 0x%x\ns_add_u32 s81, s80, %d" % (H_OFF, 112*1024))
    cnt = 0
    for fi in range(2):
        for ti in range(2):
            for half in range(2):
                G0 = acc1("g", fi, ti) + 8*half; U0 = acc1("u", fi, ti) + 8*half
                T = 8; D = 16 + 4*(cnt & 1)
                P = [(G0 + 2*j, U0 + 2*j, T + 2*j) for j in range(4)]
                if OPT["pk"]:
                    for (x, u, t) in P: g("v_pk_mul_f32 v[%d:%d], v[%d:%d], v[%d:%d]" % (t, t+1, x, x+1, x, x+1))
                    for (x, u, t) in P: g("v_pk_fma_f32 v[%d:%d], v[%d:%d], s[84:85], v[2:3]" % (t, t+1, t, t+1))
                    for (x, u, t) in P: g("v_pk_mul_f32 v[%d:%d], v[%d:%d], v[%d:%d]" % (t, t+1, t, t+1, x, x+1))
                    for j in range(8): g("v_exp_f32 v%d, v%d" % (T + j, T + j))
                    for (x, u, t) in P: g("v_pk_mul_f32 v[%d:%d], v[%d:%d], v[%d:%d]" % (x, x+1, x, x+1, u, u+1))
                    for (x, u, t) in P: g("v_pk_add_f32 v[%d:%d], v[%d:%d], 1.0 op_sel_hi:[1,0]" % (t, t+1, t, t+1))
                    for j in range(8): g("v_rcp_f32 v%d, v%d" % (T + j, T + j))
                    for (x, u, t) in P: g("v_pk_mul_f32 v[%d:%d], v[%d:%d], v[%d:%d]" % (x, x+1, x, x+1, t, t+1))
                else:
                    E = [(G0 + j, U0 + j, T + j) for j in range(8)]
                    for (x, u, t) in E: g("v_mul_f32 v%d, v%d, v%d" % (t, x, x))
                    for (x, u, t) in E: g("v_fma_f32 v%d, v%d, s84, v2" % (t, t))
                    for (x, u, t) in E: g("v_mul_f32 v%d, v%d, v%d" % (t, t, x))
                    for (x, u, t) in E: g("v_exp_f32 v%d, v%d\nv_mul_f32 v%d, v%d, v%d" % (t, t, x, x, u))
                    for (x, u, t) in E: g("v_add_f32 v%d, 1.0, v%d" % (t, t))
                    for (x, u, t) in E: g("v_rcp_f32 v%d, v%d" % (t, t))
                    for (x, u, t) in E: g("v_mul_f32 v%d, v%d, v%d" % (x, x, t))
                for j, (x, u, t) in enumerate(P): g("v_cvt_pk_bf16_f32 v%d, v%d, v%d" % (D + j, x, x+1))
                op = g("buffer_store_dwordx4 v[%d:%d], v4, %s, s%d offen offset:%d sc1" % (D, D+3, srd(S_WS), 80 + ti, (2*fi + half)*1024))
                if cnt == 3: opA = op
                if cnt == OPT["fa"] and OPT["half"]: g.wait_op(opA); flag_store(g, 87, 24)
                cnt += 1
    return op

def touch_addr(g):
    g("s_lshl_b32 s80, s%d, 2\ns_add_u32 s80, s80, s%d" % (S_IDX, S_W))
    g("s_lshr_b32 s90, s%d, 1\ns_lshl_b32 s90, s90, 19\ns_lshl_b32 s81, s80, 12\ns_add_u32 s90, s90, s81" % S_XCD)
    g("v_lshlrev_b32 v30, 7, v0")
    g("v_mul_u32_u24 v5, 37, v0\nv_lshrrev_b32 v5, 8, v5\nv_mul_u32_u24 v6, 7, v5\nv_sub_u32 v6, v0, v6\nv_lshlrev_b32 v6, 7, v6")
    g("s_mov_b32 s81, %d\nv_mul_lo_u32 v5, v5, s81\nv_add_u32 v26, v5, v6" % (64*3584))
    g("s_lshr_b32 s91, s80, 1\ns_mul_i32 s91, s91, 3584\ns_and_b32 s81, s80, 1\ns_mul_i32 s81, s81, 896\ns_add_u32 s91, s91, s81\ns_and_b32 s81, s%d, 1\ns_mul_i32 s81, s81, 1792\ns_add_u32 s91, s91, s81" % S_XCD)
    g("s_mul_i32 s93, s80, %d\ns_lshl_b32 s92, s2, 2\ns_add_u32 s92, s92, s%d\ns_mul_i32 s92, s92, %d" % (112*128, S_W, 14*128))
def lanes(lo, hi):
    m = ((1 << hi) - 1) & ~((1 << lo) - 1)
    return "s_mov_b32 exec_lo, 0x%x\ns_mov_b32 exec_hi, 0x%x" % (m & 0xffffffff, m >> 32)
def touch_w(s0, s1, r):
    return "%s\nbuffer_load_dword a%d, v26, %s, s91 offen\nbuffer_load_dword a%d, v26, %s, s91 offen\ns_mov_b64 exec, -1" % (lanes(7*s0, 7*s1), r, srd(S_WG), r+1, srd(S_WU))
def touch_glob():
    return "%s\nbuffer_load_dword a74, v30, %s, s92 offen\nbuffer_load_dword a75, v30, %s, s92 offen\ns_lshl_b32 s80, s2, 2\ns_add_u32 s80, s80, s%d\ns_lshl_b32 s80, s80, 11\n%s\nbuffer_load_dword a70, v30, %s, s80 offen\ns_mov_b64 exec, -1" % (lanes(0, 14), srd(S_WG), srd(S_WU), S_W, lanes(0, 16), srd(S_X))
def touch_x(): return "%s\nbuffer_load_dword a70, v30, %s, s90 offen\ns_mov_b64 exec, -1" % (lanes(0, 32), srd(S_X))
def touch_wd_global(): return "%s\nbuffer_load_dword a71, v30, %s, s92 offen\ns_mov_b64 exec, -1" % (lanes(0, 14), srd(S_WD))
def touch_wd_xcd(): return "%s\nbuffer_load_dword a72, v30, %s, s93 offen\ns_add_u32 s93, s93, %d\nbuffer_load_dword a73, v30, %s, s93 offen\ns_mov_b64 exec, -1" % (lanes(0, 56), srd(S_WD), 56*128, srd(S_WD))

WDS = 87040
def wdt_issue(g):
    g("v_lshrrev_b32 v5, 3, v0\nv_lshlrev_b32 v5, 10, v5\nv_bfe_u32 v6, v0, 4, 1\nv_lshlrev_b32 v6, 2, v6\nv_and_b32 v7, 7, v0\nv_xor_b32 v6, v6, v7\nv_lshlrev_b32 v6, 4, v6\nv_add_u32 v9, v5, v6")
    g("s_sub_u32 s82, s%d, 28\ns_mul_i32 s85, s82, %d\ns_lshl_b32 s80, s%d, 7\ns_add_u32 s85, s85, s80" % (S_IDX, 448*1024, S_XCD))
    g("s_mul_i32 s83, s%d, 3" % S_W)
    for j in range(3):
        g("s_add_u32 s84, s83, %d\ns_lshr_b32 s80, s84, %d\ns_add_u32 s80, s80, s%d\ns_cmp_ge_u32 s80, 7\ns_cselect_b32 s81, 7, 0\ns_sub_u32 s80, s80, s81\ns_lshl_b32 s80, s80, 16\ns_and_b32 s84, s84, %d\ns_lshl_b32 s84, s84, 14\ns_add_u32 s80, s80, s84\ns_add_u32 s93, s80, s85" % (j, 1 if OPT["pord"] else 2, S_XCD, 1 if OPT["pord"] else 3))
        g("buffer_load_dwordx4 v[%d:%d], v9, %s, s93 offen" % (128 + 8*j, 131 + 8*j, srd(S_WD)))
        g("s_add_u32 s93, s93, 8192\nbuffer_load_dwordx4 v[%d:%d], v9, %s, s93 offen" % (132 + 8*j, 135 + 8*j, srd(S_WD)))
def wdt_process(g):
    g("v_lshlrev_b32 v9, 4, v0\nv_add_u32 v8, s11, v9")
    for i in range(6): g("ds_write_b128 v8, v[%d:%d] offset:%d" % (128 + 4*i, 131 + 4*i, i*1024))
    g("v_lshrrev_b32 v7, 5, v0\nv_lshlrev_b32 v7, 2, v7\nv_bfe_u32 v10, v0, 2, 2\nv_add_u32 v7, v7, v10\nv_lshlrev_b32 v7, 7, v7")
    g("v_bfe_u32 v10, v0, 3, 1\nv_lshlrev_b32 v10, 6, v10\nv_add_u32 v7, v7, v10\nv_bfe_u32 v10, v0, 4, 1\nv_lshlrev_b32 v10, 5, v10\nv_add_u32 v7, v7, v10")
    g("v_and_b32 v10, 3, v0\nv_lshlrev_b32 v10, 3, v10\nv_add_u32 v7, v7, v10\nv_add_u32 v5, s11, v7\nv_xor_b32 v6, 64, v5")
    g("s_sub_u32 s82, s%d, 28\ns_lshl_b32 s86, s%d, 2\ns_add_u32 s86, s86, s82\ns_lshl_b32 s83, s86, 15\ns_mul_i32 s80, s%d, 6144\ns_add_u32 s83, s83, s80\ns_add_u32 s83, s83, 0x%x" % (S_IDX, S_XCD, S_W, WDT_OFF))
    for k in range(3):
        for di in range(2):
            for h in range(2):
                b = 96 + 8*k + 4*di + 2*h
                g("ds_read_b64_tr_b16 v[%d:%d], v%d offset:%d" % (b, b+1, 5 + di, k*2048 + h*1024))
    for k in range(6):
        if k == 4: g("s_add_u32 s83, s83, 4096")
        g("buffer_store_dwordx4 v[%d:%d], v9, %s, s83 offen offset:%d sc1" % (96 + 4*k, 99 + 4*k, srd(S_WS), (k % 4)*1024))
    g("s_lshl_b32 s80, s86, 7\ns_lshl_b32 s81, s%d, 2\ns_add_u32 s80, s80, s81\ns_add_u32 s80, s80, 0x%x" % (S_W, FW_OFF))
def build_C():
    g = G(); g.nlab = 2000; g.role = 0; g.nst = 1; St.names[0] = "C:start"
    g("Lcompute:")
    def wpre(kk, di): return (48 + 8*kk + 4*di) if kk < 6 else (8*(kk - 6) + 4*di)
    def load_w(kk):
        q = []
        pre = "s_add_u32 s93, s94, %d\n" % (kk*2048)
        for di in range(2):
            q.append(pre + "buffer_load_dwordx4 a[%d:%d], v%d, %s, s93 offen sc1" % (wpre(kk, di), wpre(kk, di) + 3, 26 + di, srd(S_WS))); pre = ""
        return q
    def g2setup(g):
        chunk_ids(g)
        g("s_lshl_b32 s80, s%d, 1\ns_and_b32 s81, s%d, 1\ns_add_u32 s80, s80, s81\ns_lshl_b32 s80, s80, 9" % (S_MT, S_W))
        g("s_lshl_b32 s81, s%d, 1\ns_lshr_b32 s82, s%d, 1\ns_add_u32 s81, s81, s82\ns_mul_i32 s82, s81, 37\ns_lshr_b32 s82, s82, 8\ns_mul_i32 s82, s82, 100\ns_lshl_b32 s81, s81, 2\ns_add_u32 s80, s80, s81\ns_add_u32 s80, s80, s82\ns_add_u32 s87, s80, 0x%x\ns_add_u32 s86, s87, 0x8000" % (S_FT, S_W, FH_OFF))
        g("s_lshl_b32 s80, s%d, 2\ns_add_u32 s80, s80, %d\nv_mov_b32 v30, s80" % (S_W, SYW + 16))
        g("v_lshrrev_b32 v7, 5, v0\nv_lshlrev_b32 v7, 2, v7\nv_bfe_u32 v2, v0, 2, 2\nv_add_u32 v7, v7, v2\nv_lshlrev_b32 v7, 7, v7")
        g("v_bfe_u32 v2, v0, 3, 1\ns_lshr_b32 s80, s%d, 1\nv_xor_b32 v2, s80, v2\nv_lshlrev_b32 v2, 6, v2\nv_add_u32 v7, v7, v2\nv_bfe_u32 v2, v0, 4, 1\nv_lshlrev_b32 v2, 5, v2\nv_add_u32 v7, v7, v2" % S_W)
        g("v_and_b32 v2, 3, v0\nv_lshlrev_b32 v2, 3, v2\nv_add_u32 v7, v7, v2\nv_add_u32 v5, s95, v7\nv_xor_b32 v6, 64, v5")
        g("v_add_u32 v28, 0x%x, v5\nv_add_u32 v29, 0x%x, v6" % (WDB1 - WDA, WDB1 - WDA))
        g("v_lshlrev_b32 v1, 4, v0\ns_and_b32 s80, s%d, 1\ns_mul_i32 s81, s80, %d\ns_xor_b32 s80, s80, 1\ns_mul_i32 s80, s80, %d\nv_add_u32 v7, s80, v1\nv_add_u32 v1, s81, v1" % (S_W, 112*1024, 112*1024))
        g("s_mul_i32 s91, s%d, %d\ns_mul_i32 s80, s%d, %d\ns_add_u32 s91, s91, s80\ns_add_u32 s91, s91, 0x%x" % (S_TB2, 2*112*1024, S_W, 28*1024, H_OFF))
        g("s_lshl_b32 s80, s%d, 9\ns_lshl_b32 s81, s%d, 7\ns_add_u32 s80, s80, s81\ns_add_u32 s80, s80, 0x%x\ns_add_u32 s50, s48, s80\ns_addc_u32 s51, s49, 0" % (S_TB2, S_W, FH_OFF))
    def part0(g, idle):
        st_ = (lambda g, n: None) if idle else stamp
        g("s_waitcnt lgkmcnt(0)")
        if idle:
            srds2(g); T_issue(g); wdt_issue(g); epoch_load(g); tag_compute(g); T_process(g)
            wdt_process(g); g("s_mov_b32 s14, s80")
            tst = ("vm", g.vm_seq)
        g("global_load_ushort v39, v63, s[30:31]")
        for i in range(6): g("global_load_ushort v%d, v32, s[%d:%d]" % (33 + i, 18 + 2*i, 19 + 2*i))
        if not idle: epoch_load(g); srds2(g)
        kgen_addr(g); kgen_compact_addr(g)
        if not idle: gemm1_raddr(g); tag_compute(g)
        else: g.wait_op(tst); flag_store(g, 15, 8); flag_store(g, 14, 8); mall_touch(g)
        g("v_lshlrev_b32 v26, 4, v0\ns_lshr_b32 s80, s%d, 1\ns_lshl_b32 s80, s80, 10\nv_add_u32 v26, s80, v26\nv_xor_b32 v27, 0x400, v26" % S_W)
        g("s_lshl_b32 s94, s%d, 2\ns_add_u32 s94, s94, s%d\ns_lshl_b32 s94, s94, 15\ns_add_u32 s94, s94, 0x%x" % (S_NB, S_W, WDT_OFF))
        g2setup(g)
        if not OPT.get("nok"): kgen_W(g)
        g.wait(lg=0)
        st_(g, "C:W done")
        if not OPT.get("nok"): g("s_barrier")
        st_(g, "C:Bk")
        if not OPT.get("nok"): kgen_mfma(g); kgen_compact(g)
        g.wait(lg=0)
        st_(g, "C:K done")
    g("s_cmp_ge_u32 s%d, 28\ns_cbranch_scc1 Lnog1" % S_IDX)
    part0(g, False)
    ne = OPT["wearly"]
    side = {28: load_w(0) + load_w(1), 29: load_w(2) + load_w(3), 30: load_w(4) + load_w(5)} if ne else {}
    gemm1_main(g, side)
    stamp(g, "C:main1end")
    g("s_setprio %d" % OPT["cprio_epi"])
    hop = gemm1_epilogue(g, load_w)
    stamp(g, "C:epiend")
    g("v_mov_b32 v9, 1\nds_write_b32 v30, v9 offset:32")
    if OPT["half"]: g.raw("s_load_dwordx8 s[8:15], s[50:51], 0 glc")
    g.raw("s_waitcnt vmcnt(0)"); g.vm_done = g.vm_seq
    flag_store(g, 86, 8)
    g("s_branch Lg2")
    g("Lnog1:")
    part0(g, True)
    for _ in range(9): g.raw("s_barrier")
    g("v_mov_b32 v9, 1\nds_write_b32 v30, v9 offset:32")
    g_idle(g)
    for kk in range(ne):
        for t in load_w(kk): g(t)
    if OPT["half"]: g.raw("s_load_dwordx8 s[8:15], s[50:51], 0 glc")
    g.raw("s_waitcnt vmcnt(0)"); g.vm_done = g.vm_seq
    g("Lg2:")
    g("s_setprio %d" % OPT["cprio2"])
    stamp(g, "C:flag0")
    if OPT["half"]: spoll(g, 7, 0, issued=True)
    else:
        for kk in range(ne, 12):
            for t in load_w(kk): g(t)
        spoll(g, 7, 0x8000)
    stamp(g, "C:polled")
    RING = 8
    assert OPT['la'] <= 8
    def hreg(kk, ti):
        i = kk % RING
        return ("v[%d:%d]" % (32 + 8*i + 4*ti, 32 + 8*i + 4*ti + 3)) if i < 8 else ("a[%d:%d]" % (16 + 8*(i-8) + 4*ti, 16 + 8*(i-8) + 4*ti + 3))
    def load_h(kk):
        q = []; p = kk >> 1
        pre = "s_lshl_b32 s90, s%d, 12\ns_add_u32 s90, s90, s91\n" % (18 + pm(p)[0]) if kk % 2 == 0 else ""
        for ti in range(2):
            q.append(pre + "buffer_load_dwordx4 %s, v%d, %s, s90 offen offset:%d sc1" % (hreg(kk, ti), (1, 7)[ti], srd(S_WS), pm(p)[1]*2048 + (kk & 1)*1024)); pre = ""
        return q
    PRE = OPT["pre"]
    for kk in range(PRE):
        for t in load_h(kk): g(t)
    wq = [load_w(kk) for kk in range(ne, 12)] if OPT["half"] else []
    g("s_lshr_b32 s80, s%d, 1\ns_mul_i32 s80, s80, 4224\ns_and_b32 s81, s%d, 1\ns_lshl_b32 s81, s81, 13\ns_add_u32 s80, s80, s81\nv_lshlrev_b32 v2, 4, v0\nv_xor_b32 v2, s80, v2\nv_add_u32 v2, s95, v2" % (S_W, S_W))
    LQ = OPT["lastq"]; K0 = 28 - LQ
    def wb(kk, di):
        if kk < 12: return "a", wpre(kk, di)
        if kk >= K0: return "a", 8*(kk - K0) + 4*di
        return "v", 10 + 8*(kk & 1) + 4*di
    def wreg(kk, di):
        t, b = wb(kk, di); return "%s[%d:%d]" % (t, b, b + 3)
    def reads(kk):
        c, s = divmod(kk, 4); q = []
        for di in range(2):
            va, off = {3: ((5, 6), 0), 4: ((5, 6), 8192), 5: ((28, 29), 0), 6: ((28, 29), 8192)}[c]
            t, b = wb(kk, di)
            for h in range(2):
                q.append("ds_read_b64_tr_b16 %s[%d:%d], v%d offset:%d" % (t, b + 2*h, b + 2*h + 1, va[di], off + s*2048 + h*1024))
        return q
    def mf(kk, di, ti):
        a = 96 + 32*di + 16*ti
        g("v_mfma_f32_32x32x16_bf16 v[%d:%d], %s, %s, %s" % (a, a+15, wreg(kk, di), hreg(kk, ti), "0" if kk == 0 else "v[%d:%d]" % (a, a+15)))
    nh = PRE
    fa = rec(fin_addr, 40)
    for kk in range(K0):
        if kk in (1, 4, 8, 12, 16, 20): stamp(g, "C:k%d" % kk)
        nx = reads(kk + 1) if 12 <= kk + 1 < K0 else []
        lq = []
        for _ in range(OPT["wrate"]):
            if wq: lq += wq.pop(0)
        if OPT["half"] and kk == 14 - OPT["la"] - 2: g.raw("s_load_dwordx8 s[8:15], s[50:51], 0x8000 glc")
        for _ in range(2):
            if nh < 28 and nh < kk + OPT["la"]:
                if nh == 14 and OPT["half"]: lq.append(lambda g: (spoll(g, 7, 0x8000, issued=True), stamp(g, "C:pB")))
                lq += load_h(nh); nh += 1
        if kk == K0 - 2: lq += sum([reads(k) for k in range(K0, K0 + LQ//2)], [])
        if kk == K0 - 1: lq += sum([reads(k) for k in range(K0 + LQ//2, 28)], [])
        n = 0
        for di, ti in ((0,0),(0,1),(1,0),(1,1)):
            mf(kk, di, ti)
            if n == 0:
                for KR, fo in ((12, 16), (20, 0)):
                    if kk + 2 == KR: g("ds_read_b32 v8, v30 offset:%d" % fo)
                    if kk + 1 == KR:
                        L, D = g.lab("Lr"), g.lab("Lrd")
                        g("v_readfirstlane_b32 s80, v8")
                        g("s_mov_b32 s%d, 0x100000\ns_cmp_lg_u32 s80, 0\ns_cbranch_scc1 %s" % (S_SPIN, D))
                        g(L + ":")
                        for l in ("ds_read_b32 v8, v30 offset:%d" % fo, "s_waitcnt lgkmcnt(0)", "v_readfirstlane_b32 s80, v8", "s_sub_u32 s%d, s%d, 1" % (S_SPIN, S_SPIN), "s_cbranch_scc1 %s" % D,
                                  "s_cmp_eq_u32 s80, 0", "s_cbranch_scc1 %s" % L): g.raw(l)
                        g(D + ":")
                for r in nx: g(r)
            else:
                for _ in range(3 if n < 3 else 99):
                    if lq: emit(g, lq.pop(0))
            n += 1
    assert nh == 28
    stamp(g, "C:k%d" % K0)
    FB = 10
    fa = rec(fin_addr, FB)
    pend = []
    cnt = [0]
    def pw(di, ti):
        q = []
        for j in range(4):
            t = 16 + (cnt[0] & 3); cnt[0] += 1
            a = 96 + 32*di + 16*ti + 4*j
            q.append("v_xor_b32 v%d, 0x%x, v2\nds_write_b128 v%d, v[%d:%d]" % (t, j*1056 ^ di*4224 ^ ti*8192, t, a, a + 3))
        return q
    quads = ((0,0),(0,1),(1,0),(1,1))
    for qi, (di, ti) in enumerate(quads):
        for kk in range(K0, 28):
            mf(kk, di, ti)
            if qi == 0 or (qi == 1 and kk < K0 + 2):
                for _ in range(6):
                    if fa: g(fa.pop(0))
            elif pend and (kk - K0 >= 2 or len(pend) > 4 or LQ < 4): g(pend.pop(0));
        pend += pw(di, ti)
    for l in fa: g(l)
    stamp(g, "C:main2end")
    for t in pend: g(t)
    g.wait(lg=0)
    stamp(g, "C:a13")
    g("s_barrier")
    stamp(g, "C:B13")
    fin(g, FB, 64, 44, 3)
    stamp(g, "C:stores")
    if STAMPS:
        g.wait(vm=0); stamp(g, "C:drained")
    stamp_store(g)
    if OPT.get("hold"):
        for l in ("Lhold:", "s_memrealtime s[6:7]", "s_waitcnt lgkmcnt(0)", "s_sub_u32 s6, s6, s4", "s_cmp_lt_u32 s6, %d" % OPT["hold"], "s_cbranch_scc1 Lhold"):
            g.lines.append(l)
    g("Lend:")
    g("s_endpgm")
    return g.text()

if __name__ == "__main__":
    if len(sys.argv) > 2 and sys.argv[2] != "-": STAMPS = sys.argv[2]
    for a in sys.argv[3:]:
        k, v = a.split("="); OPT[k] = int(v)
    h1, h2 = build_H(); body = h1 + build_C() + h2
    open(sys.argv[1], "w").write(build_file([(KN, 256, 512, 163840, body, 256, 100, 160)], single=True))
    if STAMPS:
        import json; json.dump(St.names, open("stnames.json", "w"))
```

```python
import sys, struct, math
from gen import *

def f2u(x): return struct.unpack("<I", struct.pack("<f", x))[0]
UT_OFF = 0x1400000; UT_STRIDE = 4096
CU = 16640; CU_CH = 4352
H_OFF = 0x400000
AT_OFF = 0xC00000
G_OFF = 0xE00000
FT_OFF = 0xE20000
FH_OFF = 0xE40000
FA_OFF = 0xE60000
EP_OFF = 0xE10000
FW_OFF = 0xE80000
WDT_OFF = 0x1A00000
DBG_OFF = 0x1000000
WS_BYTES = 268435456
BUF = [0, 49152, 98304]
TBLK = 147456
KT = 98304; KT_CH = 28672; KT_IM = 14336
KC = 160768; KC_CH = 1536
CSW = 160000
KF = 154624; KF_CH = 4608; KF_PL = 2304
UEE = [98304, 131840]; UEO = [115072, 128]
XCH = [16640, 20736, 24832, 148480]
WDA = 32768; WDB1 = 98304
RED_AT = 49152; RED_G = 57344
S_X, S_WG, S_WU, S_WD, S_WS, S_OUT = 52, 56, 60, 64, 68, 72
S_X1 = 36
S_XCD, S_IDX, S_W, S_CH = 76, 77, 78, 79
S_MT, S_FT = 88, 89
S_TAG, S_TB2, S_NB, S_SPIN = 96, 97, 98, 99
LOG2E = 1.4426950408889634
STAMPS = False
OPT = dict(hprio=0, cprio_epi=1, rot=1, pk=1, seq=1, pre=8, pfirst=0, psleep=1, b11first=0, l2t=0, wsleep=0, a5=0, wpos=1, spoll=1, nr7=8, cprio2=0, cpf=248, la=8, n1=0, mt=1, nr6=12, n9=16, asl=0, asl2=16, bprio=3, fai=1, bw=0, convp=2, wearly=6, w2=0, w3=5, gt=0, map=1, osc=1, fa=6, wrate=2, half=0, lastq=4, gow=1, nwa=8, pord=0, t3=9, te=1, hrot=0, wsp=0, nb3=1, r1=0)
def srd(r): return "s[%d:%d]" % (r, r+3)
class St:
    names = {}
def stamp(g, name):
    if not STAMPS: return
    g.raw("%s s[6:7]" % STAMPS); g.smem_pending = True; g.wait(lg=0)
    g.raw("v_writelane_b32 v31, s6, %d" % g.nst)
    St.names[g.role*48 + g.nst] = name
    g.nst += 1
    assert g.nst <= 48
def stamp_store(g):
    if not STAMPS: return
    L = g.lab("Lst")
    g("s_cmp_lg_u32 s%d, 0\ns_cbranch_scc1 %s" % (S_W, L))
    g.raw("v_writelane_b32 v31, s4, 0")
    g.raw("s_getreg_b32 s6, hwreg(HW_REG_XCC_ID)"); g.raw("v_writelane_b32 v31, s6, 47")
    g.raw("s_mul_i32 s3, s2, 384"); g.raw("s_add_u32 s3, s3, 0x%x" % (DBG_OFF + g.role*192)); g.raw("v_lshlrev_b32 v1, 2, v0")
    g.raw("s_mov_b32 exec_hi, 0xffff")
    g.raw("buffer_store_dword v31, v1, %s, s3 offen" % srd(S_WS))
    if OPT.get("dbg") and g.role == 0:
        inv = {v: k for k, v in St.names.items()}
        sel = ["C:start", "C:Bk", "C:B0", "C:B1", "C:B2", "C:B4", "C:B6", "C:main1end", "C:epiend", "C:flag0", "C:polled", "C:k16", "C:main2end", "C:B13", "C:drained"]
        g.raw("s_cmp_ge_u32 s2, 224"); g.raw("s_cbranch_scc1 %s" % L)
        g.raw("s_not_b32 s6, s4"); g.raw("v_writelane_b32 v30, s6, 0")
        for i, n in enumerate(sel):
            g.raw("v_readlane_b32 s6, v31, %d" % inv[n]); g.raw("s_nop 3"); g.raw("v_writelane_b32 v30, s6, %d" % (i + 1))
        g.raw("s_mov_b64 exec, 0xffff")
        g.raw("global_atomic_umax v1, v30, s[46:47]")
    g.raw("s_mov_b64 exec, -1")
    g(L + ":")

def tag_compute(g):
    g("s_mul_i32 s%d, s%d, 0x9E3779B1\ns_add_u32 s%d, s%d, 0x7F4A7C15" % (S_TAG, S_TAG, S_TAG, S_TAG))
def poll(g, vaddr, soff, vtmp, width=1, sleep=1):
    L, D = g.lab("Lp"), g.lab("Lpd")
    g("s_mov_b32 s%d, 0x40000" % S_SPIN)
    g(L + ":")
    if width == 1: g.raw("buffer_load_dword v%d, v%d, %s, s%d offen sc1" % (vtmp, vaddr, srd(S_WS), soff))
    else: g.raw("buffer_load_dwordx2 v[%d:%d], v%d, %s, s%d offen sc1" % (vtmp, vtmp+1, vaddr, srd(S_WS), soff))
    g.raw("s_waitcnt vmcnt(0)"); g.vm_done = g.vm_seq
    g.raw("v_cmp_ne_u32 vcc, s%d, v%d" % (S_TAG, vtmp + width - 1))
    g.raw("s_nop 4")
    g.raw("s_cmp_eq_u64 vcc, 0")
    g.raw("s_cbranch_scc1 %s" % D)
    g.raw("s_sleep %d" % sleep)
    g.raw("s_sub_u32 s%d, s%d, 1" % (S_SPIN, S_SPIN))
    g.raw("s_cmp_lg_u32 s%d, 0" % S_SPIN)
    g.raw("s_cbranch_scc1 %s" % L)
    g(D + ":")
def spoll(g, n, off=0, issued=False):
    L, D, M = g.lab("Ls"), g.lab("Lsd"), g.lab("Lsm")
    g("s_mov_b32 s%d, 0x40000" % S_SPIN)
    if issued: g.raw("s_branch %s" % M)
    g(L + ":")
    g.raw("s_load_dwordx8 s[8:15], s[50:51], %d glc" % off)
    g(M + ":")
    g.raw("s_waitcnt lgkmcnt(0)"); g.lg_done = g.lg_seq
    for i in range(n): g.raw("s_xor_b32 s%d, s%d, s%d" % (8 + i, 8 + i, S_TAG))
    for i in range(1, n): g.raw("s_or_b32 s8, s8, s%d" % (8 + i))
    g.raw("s_cbranch_scc0 %s" % D)
    g.raw("s_sleep %d" % OPT["psleep"])
    g.raw("s_sub_u32 s%d, s%d, 1" % (S_SPIN, S_SPIN))
    g.raw("s_cbranch_scc0 %s" % L)
    g(D + ":")
def spoll4(g):
    L, D = g.lab("Ls"), g.lab("Lsd")
    R = [8, 32, 40, 56]
    g("s_mov_b32 s%d, 0x40000" % S_SPIN)
    g(L + ":")
    for j, r in enumerate(R): g.raw("s_load_dwordx8 s[%d:%d], s[50:51], %d glc" % (r, r + 7, 128*j))
    g.raw("s_mov_b32 s16, s%d" % S_TAG); g.raw("s_mov_b32 s17, s%d" % S_TAG)
    g.raw("s_waitcnt lgkmcnt(0)"); g.lg_done = g.lg_seq
    P = [r + 2*i for r in R for i in range(4)]
    for p in P: g.raw("s_xor_b64 s[%d:%d], s[%d:%d], s[16:17]" % (p, p+1, p, p+1))
    for p in P[1:]: g.raw("s_or_b64 s[8:9], s[8:9], s[%d:%d]" % (p, p+1))
    g.raw("s_cbranch_scc0 %s" % D)
    g.raw("s_sleep %d" % OPT["psleep"])
    g.raw("s_sub_u32 s%d, s%d, 1" % (S_SPIN, S_SPIN))
    g.raw("s_cbranch_scc0 %s" % L)
    g(D + ":")
def flag_store(g, soff, vt):
    g("v_mov_b32 v%d, s%d\nv_mov_b32 v%d, 0" % (vt, S_TAG, vt+1))
    g("s_mov_b64 exec, 1")
    g("buffer_store_dword v%d, v%d, %s, s%d offen sc1" % (vt, vt+1, srd(S_WS), soff))
    g("s_mov_b64 exec, -1")
class Rec:
    def __init__(self): self.q = []
    def __call__(self, t): self.q += [l for l in t.split("\n") if l.strip()]
def rec(f, *a):
    r = Rec(); f(r, *a); return r.q
def emit(g, f):
    return f(g) if callable(f) else g(f)
def weave(g, dmas, work):
    op = None; n = len(dmas); work = list(work)
    per = -(-len(work) // n) if n else 0
    for d in dmas:
        op = emit(g, d)
        for _ in range(per):
            if work: emit(g, work.pop(0))
    for w in work: emit(g, w)
    return op

def prologue(g):
    g("s_cmp_ge_u32 s2, 256")
    g("s_cbranch_scc1 Lend")
    if STAMPS or OPT.get("hold"): g.raw("%s s[4:5]" % (STAMPS or "s_memrealtime"))
    if OPT.get("badmap"): g("s_lshr_b32 s3, s2, 5\ns_and_b32 s2, s2, 31\ns_lshl_b32 s2, s2, 3\ns_or_b32 s2, s2, s3")
    g("s_load_dwordx16 s[16:31], s[0:1], 0")
    g("s_load_dwordx16 s[32:47], s[0:1], 64")
    g("s_load_dwordx2 s[48:49], s[0:1], 128")
    if OPT["cpf"]:
        g("s_cmp_lt_u32 s2, %d\ns_cbranch_scc1 Lcp" % OPT["cpf"])
        for l in ("s_getpc_b64 s[8:9]", "Lpc:", "s_sub_u32 s8, s8, Lpc-%s" % KN, "s_subb_u32 s9, s9, 0", "v_lshlrev_b32 v5, 7, v0",
                  "v_min_u32 v5, Lcodeend-%s-4, v5" % KN, "s_nop 0", "global_load_dword a94, v5, s[8:9]"): g.lines.append("    " + l if not l.endswith(":") else l)
        g("Lcp:")
    g("v_mov_b32 v57, %d\nv_mov_b32 v58, 0\nds_write_b32 v57, v58" % CSW)
    g("v_lshrrev_b32 v1, 6, v0")
    g("v_and_b32 v0, 63, v0")
    g("s_and_b32 s%d, s2, 7" % S_XCD)
    g("s_lshr_b32 s%d, s2, 3" % S_IDX)
    g("v_readfirstlane_b32 s3, v1")
    if OPT["map"]:
        g("s_lshr_b32 s80, s%d, 1\ns_mul_i32 s80, s80, 28\ns_add_u32 s80, s80, s%d\ns_lshr_b32 s%d, s80, 3\ns_and_b32 s80, s80, 7\ns_and_b32 s81, s%d, 1\ns_lshl_b32 s81, s81, 3\ns_add_u32 s%d, s80, s81" % (S_XCD, S_IDX, S_FT, S_XCD, S_MT))
    else:
        g("s_mul_i32 s80, s%d, 37\ns_lshr_b32 s80, s80, 8" % S_IDX)
        g("s_mul_i32 s81, s80, 7\ns_sub_u32 s81, s%d, s81" % S_IDX)
        g("s_lshr_b32 s%d, s%d, 1\ns_lshl_b32 s%d, s%d, 2\ns_add_u32 s%d, s%d, s80" % (S_MT, S_XCD, S_MT, S_MT, S_MT, S_MT))
        g("s_and_b32 s%d, s%d, 1\ns_mul_i32 s%d, s%d, 7\ns_add_u32 s%d, s%d, s81" % (S_FT, S_XCD, S_FT, S_FT, S_FT, S_FT))
    if OPT["nb3"]:
        g("s_mul_i32 s80, s%d, 37\ns_lshr_b32 s80, s80, 8\ns_mul_i32 s81, s80, 7\ns_sub_u32 s81, s%d, s81" % (S_IDX, S_IDX))
        g("s_cmp_ge_u32 s81, 3\ns_addc_u32 s%d, s81, 0" % S_NB)
        g("s_cmp_ge_u32 s%d, 28\ns_cselect_b32 s%d, 3, s%d\ns_cselect_b32 s80, s81, s80" % (S_IDX, S_NB, S_NB))
        g("s_lshl_b32 s%d, s%d, 2\ns_add_u32 s%d, s%d, s80" % (S_TB2, S_XCD, S_TB2, S_TB2))
    else:
        g("s_lshl_b32 s%d, s%d, 2\ns_lshr_b32 s80, s%d, 3\ns_add_u32 s%d, s%d, s80\ns_and_b32 s%d, s%d, 7" % (S_TB2, S_XCD, S_IDX, S_TB2, S_TB2, S_NB, S_IDX))
    g("s_and_b32 s%d, s3, 3" % S_W)
    g("s_lshl_b32 s80, s%d, 6\ns_lshl_b32 s81, s%d, 1\ns_add_u32 s80, s80, s81\ns_lshr_b32 s81, s%d, 1\ns_add_u32 s%d, s80, s81" % (S_XCD, S_IDX, S_W, S_CH))
    g("s_lshl_b32 s80, s%d, 8\ns_and_b32 s81, s%d, 1\ns_lshl_b32 s81, s81, 7\ns_add_u32 s80, s80, s81" % (S_CH, S_W))
    g("v_lshlrev_b32 v32, 1, v0\nv_add_u32 v32, s80, v32")
    g("s_lshl_b32 s80, s%d, 1\nv_mov_b32 v63, s80" % S_CH)
    g("s_lshr_b32 s80, s%d, 1\ns_mul_i32 s80, s80, %d\ns_and_b32 s81, s%d, 1\ns_mul_i32 s81, s81, %d\ns_add_u32 s80, s80, s81\ns_add_u32 s80, s80, %d" % (S_W, KT_CH, S_W, 64*112, KT))
    g("v_mul_u32_u24 v62, 112, v0\nv_add_u32 v62, s80, v62")
    g("s_cmp_lt_u32 s3, 4")
    g("s_cbranch_scc1 Lcompute")
def epoch_load(g):
    g("s_add_u32 s50, s48, 0x%x\ns_addc_u32 s51, s49, 0" % EP_OFF)
    g("s_load_dword s%d, s[50:51], 0" % S_TAG)
def srds2(g):
    g.srd(S_X, 16, 2048*512*2)
    g.srd(S_WD, 40, 512*1792*2)
    g.srd(S_WS, 48, WS_BYTES)
    g.srd(S_OUT, 44, 2048*512*2)
def h_dma_addr(g):
    g("v_lshrrev_b32 v4, 3, v0\nv_lshlrev_b32 v4, 10, v4\nv_and_b32 v5, 7, v0\nv_lshrrev_b32 v6, 4, v0\nv_xor_b32 v7, v5, v6")
    g("v_lshlrev_b32 v7, 4, v7\nv_add_u32 v2, v4, v7\nv_xor_b32 v3, 64, v2")
    g("s_lshl_b32 s90, s%d, 17\ns_lshl_b32 s80, s%d, 15\ns_add_u32 s90, s90, s80" % (S_MT, S_W))
    g("v_and_b32 v5, 15, v0\nv_lshlrev_b32 v7, 2, v6\nv_xor_b32 v5, v5, v7\nv_lshlrev_b32 v5, 4, v5")
    g("v_mul_u32_u24 v6, 3584, v6\nv_add_u32 v4, v6, v5")
    g("s_lshl_b32 s91, s%d, 8\ns_mul_i32 s80, s%d, %d\ns_add_u32 s91, s91, s80" % (S_FT, S_W, 16*3584))
    g("s_lshl_b32 s92, s%d, 12" % S_W)

def kbase(A):
    A("v_lshlrev_b32 v39, 16, v39\nv_mul_f32 v39, 0x%x, v39\nv_exp_f32 v39, v39\nv_lshlrev_b32 v33, 16, v33\nv_lshlrev_b32 v34, 16, v34" % f2u(LOG2E))
    A("v_cvt_pk_bf16_f32 v39, v39, v39\nv_lshlrev_b32 v39, 16, v39")
    A("v_mul_f32 v33, v39, v33\nv_mul_f32 v34, v39, v34")
    A("v_mul_f32 v33, 0x%x, v33\nv_mul_f32 v34, 0x%x, v34" % (f2u(LOG2E), f2u(1/(2*math.pi))))
def kpower(A, e, d, t):
    if e == 1: A("v_exp_f32 v%d, v33\nv_fract_f32 v%d, v34" % (t, t+1))
    else:
        A("v_mul_f32 v%d, 0x%x, v33\nv_mul_f32 v%d, 0x%x, v34" % (t, f2u(e), t+1, f2u(e)))
        A("v_exp_f32 v%d, v%d\nv_fract_f32 v%d, v%d" % (t, t, t+1, t+1))
    A("v_cos_f32 v%d, v%d\nv_sin_f32 v%d, v%d" % (d, t+1, d+1, t+1))
    A("v_mul_f32 v%d, v%d, v%d\nv_mul_f32 v%d, v%d, v%d" % (d, t, d, d+1, t, d+1))
def cm1(d, x, y): return "v_pk_mul_f32 v[%d:%d], v[%d:%d], v[%d:%d] op_sel:[0,0] op_sel_hi:[0,1]" % (d, d+1, x, x+1, y, y+1)
def cm2(d, x, y): return "v_pk_fma_f32 v[%d:%d], v[%d:%d], v[%d:%d], v[%d:%d] op_sel:[1,1,0] op_sel_hi:[1,0,1] neg_lo:[1,0,0]" % (d, d+1, x, x+1, y, y+1, d, d+1)
def cmul2(A, a, b):
    A(cm1(*a)); A(cm1(*b)); A(cm2(*a)); A(cm2(*b))
def kgen_WE(g):
    kbase(g)
    for r in range(35, 39): g("v_lshlrev_b32 v%d, 16, v%d" % (r, r))
    Z1, Z2, ZB, Z8, Z16 = 40, 42, 44, 148, 150
    kpower(g, 8, Z8, 46); kpower(g, 16, Z16, 48); kpower(g, 1, Z1, 50); kpower(g, 2, Z2, 46); kpower(g, 256, ZB, 48)
    g("v_mul_f32 v35, v39, v35\nv_mul_f32 v36, v39, v36")
    g("v_mul_f32 v88, v37, v35\nv_mul_f32 v89, v37, v36\nv_fma_f32 v88, -v38, v36, v88\nv_fma_f32 v89, v38, v35, v89")
    A = Rec()
    R = lambda i: 88 + 2*i
    def pack(i):
        x, y = R(2*i), R(min(2*i+1, 20))
        A("v_cvt_pk_bf16_f32 v%d, v%d, v%d" % (64 + i, x, y)); A("v_cvt_pk_bf16_f32 v%d, -v%d, -v%d" % (76 + i, x+1, y+1))
    cmul2(A, (R(1), R(0), Z1), (R(2), R(0), Z2))
    cmul2(A, (R(8), R(0), ZB), (R(3), R(1), Z2)); pack(0)
    cmul2(A, (R(4), R(2), Z2), (R(12), R(8), ZB)); pack(1)
    cmul2(A, (R(5), R(3), Z2), (R(9), R(2), ZB))
    cmul2(A, (R(6), R(4), Z2), (R(14), R(12), ZB)); pack(2); pack(4)
    cmul2(A, (R(7), R(5), Z2), (R(10), R(4), ZB))
    cmul2(A, (R(16), R(14), ZB), (R(11), R(6), ZB)); pack(3)
    A("ds_write_b128 v62, v[64:67]\nds_write_b128 v62, v[76:79] offset:%d" % KT_IM)
    cmul2(A, (R(13), R(10), ZB), (R(17), R(16), ZB)); pack(5)
    cmul2(A, (R(15), R(13), ZB), (R(18), R(17), ZB)); pack(6); pack(8)
    A(cm1(R(19), R(18), ZB)); pack(7); A(cm2(R(19), R(18), ZB))
    A("ds_write_b128 v62, v[68:71] offset:16\nds_write_b128 v62, v[80:83] offset:%d" % (KT_IM + 16))
    A(cm1(R(20), R(19), ZB)); pack(9); A(cm2(R(20), R(19), ZB))
    pack(10)
    A("ds_write_b128 v62, v[72:75] offset:32\nds_write_b128 v62, v[84:87] offset:%d" % (KT_IM + 32))
    B = Rec()
    TR = lambda i: 132 + 8*((i >> 2) & 1) + (i & 3)
    B("v_cvt_pk_bf16_f32 v%d, 1.0, v%d\nv_cvt_pk_bf16_f32 v%d, 0, v%d" % (TR(0), Z8, TR(0) + 4, Z8 + 1))
    ev, od = Z16, 158
    B(cm1(158, Z8, Z16)); B(cm2(158, Z8, Z16))
    for i in range(1, 16):
        ne, no = (152, 154) if i % 2 else (156, 158)
        if i < 15: B(cm1(ne, ev, Z16)); B(cm1(no, od, Z16))
        B("v_cvt_pk_bf16_f32 v%d, v%d, v%d" % (TR(i), ev, od)); B("v_cvt_pk_bf16_f32 v%d, v%d, v%d" % (TR(i) + 4, ev + 1, od + 1))
        if i < 15: B(cm2(ne, ev, Z16)); B(cm2(no, od, Z16))
        ev, od = ne, no
        if i % 4 == 3:
            j = i // 4; t = TR(i) - 3
            B("ds_write_b128 v62, v[%d:%d] offset:%d" % (t, t + 3, 48 + 16*j))
            B("ds_write_b128 v62, v[%d:%d] offset:%d" % (t + 4, t + 7, KT_IM + 48 + 16*j))
    qa, qb = A.q, B.q
    while qa or qb:
        for _ in range(3):
            if qb: g(qb.pop(0))
        for _ in range(2):
            if qa: g(qa.pop(0))
def kgen_addr(g):
    g("s_lshr_b32 s80, s%d, 1\ns_mul_i32 s80, s80, %d\ns_add_u32 s80, s80, %d" % (S_W, KT_CH, KT))
    g("v_lshrrev_b32 v52, 2, v0\nv_mul_u32_u24 v52, 112, v52\nv_and_b32 v53, 3, v0\nv_lshlrev_b32 v53, 3, v53\nv_add_u32 v52, v52, v53\nv_add_u32 v52, s80, v52")
    g("s_and_b32 s81, s%d, 1\ns_lshl_b32 s81, s81, 5\ns_add_u32 s81, s81, 48\nv_add_u32 v53, s81, v52" % S_W)
def kgen_mfma(g):
    def kmf(ks):
        b = 12 * ks
        c0 = "0" if ks == 0 else "v[32:35]"; c1 = "0" if ks == 0 else "v[36:39]"
        g("v_mfma_f32_16x16x32_bf16 v[32:35], a[%d:%d], a[%d:%d], %s" % (b, b+3, b+8, b+11, c0))
        g("v_mfma_f32_16x16x32_bf16 v[36:39], a[%d:%d], a[%d:%d], %s" % (b+4, b+7, b+8, b+11, c1))
    for ks in range(8):
        off = (ks >> 2) * KT_IM + (ks & 3) * 32 * 112
        b = 12 * ks
        for h in range(2):
            g("ds_read_b64_tr_b16 a[%d:%d], v52 offset:%d" % (b + 2*h, b + 2*h + 1, off + h*16*112))
            g("ds_read_b64_tr_b16 a[%d:%d], v52 offset:%d" % (b + 4 + 2*h, b + 4 + 2*h + 1, off + h*16*112 + 32))
            g("ds_read_b64_tr_b16 a[%d:%d], v53 offset:%d" % (b + 8 + 2*h, b + 8 + 2*h + 1, off + h*16*112))
        if ks >= 2: kmf(ks - 2)
    kmf(6); kmf(7)
def kgen_compact_addr(g):
    g("s_and_b32 s81, s%d, 1\ns_lshl_b32 s81, s81, 4" % S_W)
    g("v_and_b32 v152, 15, v0\nv_add_u32 v152, s81, v152")
    g("v_lshrrev_b32 v153, 4, v0")
    g("v_lshlrev_b32 v154, 3, v152\nv_lshlrev_b32 v155, 2, v153\nv_add_u32 v154, v154, v155")
    g("v_lshlrev_b32 v155, 2, v152\nv_add_u32 v155, 0x100, v155")
    g("v_lshlrev_b32 v156, 1, v152\nv_add_u32 v156, 0x180, v156")
    g("v_cmp_eq_u32 vcc, 2, v153\nv_cndmask_b32 v154, v154, v155, vcc")
    g("v_cmp_eq_u32 vcc, 3, v153\nv_cndmask_b32 v154, v154, v156, vcc")
    g("v_mov_b32 v155, 2\nv_mov_b32 v156, 64\nv_cndmask_b32 v155, v155, v156, vcc\nv_add_u32 v155, v154, v155")
    g("s_lshr_b32 s80, s%d, 1\ns_mul_i32 s80, s80, %d\ns_add_u32 s80, s80, %d" % (S_W, KC_CH, KC))
    g("v_lshlrev_b32 v154, 1, v154\nv_add_u32 v54, s80, v154")
    g("v_lshlrev_b32 v155, 1, v155\nv_add_u32 v55, s80, v155")
    g("v_min_u32 v156, 1, v153\nv_lshlrev_b32 v156, 7, v156\nv_add_u32 v156, v156, v152\nv_add_u32 v156, 0x200, v156")
    g("v_lshlrev_b32 v156, 1, v156\nv_add_u32 v56, s80, v156")
def kgen_compact(g):
    g("v_cvt_pk_bf16_f32 v32, v32, v33\nv_cvt_pk_bf16_f32 v33, v34, v35\nv_cvt_pk_bf16_f32 v34, v36, v37\nv_cvt_pk_bf16_f32 v35, v38, v39")
    g("ds_write_b32 v54, v32\nds_write_b32 v55, v33")
    g("s_mov_b32 exec_hi, 0\nds_write_b16 v56, v34\nds_write_b16_d16_hi v56, v34 offset:64\nds_write_b16 v56, v35 offset:128\nds_write_b16_d16_hi v56, v35 offset:192\ns_mov_b32 exec_hi, -1")
def kfull_addr(g):
    g("s_lshl_b32 s80, s%d, 9\nv_lshlrev_b32 v152, 3, v0\nv_add_u32 v152, s80, v152" % S_W)
    for e in range(8):
        g("v_add_u32 v153, %d, v152" % (7 - e))
        g("v_cvt_f32_u32 v154, v153\nv_cvt_pk_bf16_f32 v154, v154, v154\nv_and_b32 v154, 0xffff, v154")
        g("v_subrev_u32 v154, 0x%x, v154" % (0x4300 - 128))
        g("v_cmp_gt_u32 vcc, 0x80, v153\nv_cndmask_b32 v154, v154, v153, vcc\nv_lshlrev_b32 v154, 1, v154")
        g("v_add_u32 v%d, 0x%x, v154" % (144 + e, KC))
    g("v_lshrrev_b32 v153, 4, v152\nv_lshlrev_b32 v153, 4, v153")
    g("v_and_b32 v154, 1, v0\nv_mul_u32_u24 v154, %d, v154" % KF_PL)
    g("v_add_u32 v153, v153, v154\nv_add_u32 v26, 0x%x, v153" % (KF + 256))
    g("v_lshrrev_b32 v153, 4, v0\nv_mul_u32_u24 v153, %d, v153\nv_and_b32 v154, 15, v0\nv_lshlrev_b32 v154, 4, v154\nv_add_u32 v153, v153, v154\nv_add_u32 v27, 0x%x, v153" % (KF_PL, KF))
def kfull_read(g):
    for ch in range(2):
        for e in range(8):
            g("ds_read_u16 v%d, v%d offset:%d" % (64 + 8*ch + e, 144 + e, ch*KC_CH))
    for ch in range(2):
        for e in range(4):
            g("v_lshl_or_b32 v%d, v%d, 16, v%d" % (52 + 4*ch + e, 64 + 8*ch + 2*e + 1, 64 + 8*ch + 2*e))
    g("v_mov_b32 v64, 0\nv_mov_b32 v65, 0\nv_mov_b32 v66, 0\nv_mov_b32 v67, 0")
def kfull_write(g):
    g("ds_write_b128 v27, v[64:67]")
    for ch in range(2): g("ds_write_b128 v26, v[%d:%d] offset:%d" % (52 + 4*ch, 55 + 4*ch, ch*KF_CH))

def T_issue(g):
    g("s_sub_u32 s10, s%d, 28\ns_lshl_b32 s10, s10, 3\ns_add_u32 s10, s10, s3" % S_IDX)
    g("s_mul_i32 s11, s3, 10880")
    g("v_lshrrev_b32 v5, 3, v0\nv_and_b32 v6, 7, v0\nv_lshlrev_b32 v6, 4, v6\nv_lshlrev_b32 v7, 10, v5\nv_add_u32 v8, v7, v6")
    g("s_lshl_b32 s12, s10, 16\ns_lshl_b32 s81, s%d, 7\ns_add_u32 s12, s12, s81" % S_XCD)
    for i in range(8):
        g.tl = g("s_add_u32 m0, s11, %d\ns_add_u32 s13, s12, %d\nbuffer_load_dwordx4 v8, %s, s13 offen lds" % (i*1056, i*8192, srd(S_X)))
def mall_touch(g):
    g("s_sub_u32 s80, s2, 224\ns_lshl_b32 s80, s80, 2\ns_add_u32 s80, s80, s%d\ns_mul_i32 s80, s80, %d\ns_add_u32 s81, s80, %d\nv_lshlrev_b32 v7, 7, v0" % (S_W, 112*128, 56*128))
    g("s_mov_b32 exec_hi, 0xffffff\nbuffer_load_dword v159, v7, %s, s80 offen\nbuffer_load_dword v158, v7, %s, s81 offen\ns_mov_b32 exec_hi, -1" % (srd(S_WD), srd(S_WD)))
def T_process(g):
    g("v_lshrrev_b32 v5, 3, v0\nv_and_b32 v6, 7, v0\nv_lshlrev_b32 v6, 4, v6")
    g("v_mul_u32_u24 v27, 160, v5\nv_add_u32 v27, v27, v6\ns_add_u32 s12, s11, 9504\nv_add_u32 v27, s12, v27")
    g("v_lshlrev_b32 v5, 12, v5\nv_add_u32 v30, v5, v6")
    g("v_and_b32 v26, 3, v0\nv_lshrrev_b32 v5, 5, v0\nv_lshlrev_b32 v5, 2, v5\nv_add_u32 v26, v26, v5\nv_mul_u32_u24 v26, 1056, v26")
    g("v_bfe_u32 v5, v0, 2, 2\nv_lshlrev_b32 v6, 7, v5\nv_add_u32 v26, v26, v6")
    g("v_bfe_u32 v6, v0, 4, 1\nv_lshlrev_b32 v6, 3, v6\nv_add_u32 v26, v26, v6\nv_add_u32 v26, s11, v26")
    g("v_bfe_u32 v5, v0, 4, 1\nv_lshlrev_b32 v5, 2, v5\nv_and_b32 v6, 3, v0\nv_add_u32 v5, v5, v6\nv_mul_u32_u24 v5, 160, v5")
    g("v_bfe_u32 v6, v0, 2, 2\nv_lshlrev_b32 v6, 4, v6\nv_add_u32 v5, v5, v6")
    g("v_lshrrev_b32 v6, 5, v0\nv_lshlrev_b32 v6, 6, v6\nv_add_u32 v28, v5, v6\nv_add_u32 v28, s12, v28")
    g("s_lshl_b32 s12, s%d, 18\ns_lshl_b32 s81, s10, 7\ns_add_u32 s12, s12, s81\ns_add_u32 s12, s12, 0x%x" % (S_XCD, UT_OFF))
    g.wait_op(g.tl)
    if g.role == 1: stamp(g, "I:Tland")
    def rd(k):
        b = 64 + 4*k
        g("ds_read_b64_tr_b16 v[%d:%d], v26 offset:%d" % (b, b+1, 16*k))
        g("ds_read_b64_tr_b16 v[%d:%d], v26 offset:%d" % (b+2, b+3, 16*k + 512))
    def rl(k):
        g("ds_write_b128 v28, v[%d:%d]" % (64 + 4*k, 67 + 4*k)); g("ds_read_b128 a[%d:%d], v27" % (4*k, 4*k + 3))
    def st(k):
        g("s_add_u32 s13, s12, %d\nbuffer_store_dwordx4 a[%d:%d], v30, %s, s13 offen sc1" % (k*8*UT_STRIDE, 4*k, 4*k + 3, srd(S_WS)))
    for k in range(12):
        if k < 8: rd(k)
        if 2 <= k < 10: rl(k - 2)
        if k >= 4: st(k - 4)
    g("s_lshl_b32 s80, s%d, 9\ns_lshr_b32 s81, s10, 3\ns_lshl_b32 s81, s81, 7\ns_add_u32 s80, s80, s81\ns_lshl_b32 s81, s3, 2\ns_add_u32 s80, s80, s81\ns_add_u32 s15, s80, 0x%x" % (S_XCD, FT_OFF))

def g_idle(g):
    g("s_sub_u32 s82, s2, 224\ns_lshl_b32 s82, s82, 2\ns_add_u32 s82, s82, s%d\ns_lshl_b32 s83, s82, 14\nv_lshlrev_b32 v9, 4, v0" % S_W)
    g("global_load_dwordx4 v[12:15], v9, s[42:43]")
    for j in range(16):
        if j % 4 == 0 and j: g("s_add_u32 s83, s83, 4096")
        g("buffer_load_dwordx4 v[%d:%d], v9, %s, s83 offen offset:%d" % (32 + 4*j, 35 + 4*j, srd(S_X), (j % 4)*1024))
    R = list(range(96, 112))
    for r in R: g("v_mov_b32 v%d, 0" % r)
    for jb in range(0, 16, 4):
        for i in range(4):
            for j in range(jb, jb + 4): g("v_dot2_f32_bf16 v%d, v%d, v%d, v%d" % (96 + j, 32 + 4*j + i, 12 + i, 96 + j))
    g("s_nop 3")
    for mod in ("row_shr:1 row_mask:0xf bank_mask:0xf bound_ctrl:0", "row_shr:2 row_mask:0xf bank_mask:0xf bound_ctrl:0",
                "row_shr:4 row_mask:0xf bank_mask:0xf bound_ctrl:0", "row_shr:8 row_mask:0xf bank_mask:0xf bound_ctrl:0",
                "row_bcast:15 row_mask:0xa bank_mask:0xf", "row_bcast:31 row_mask:0xc bank_mask:0xf"):
        for r in R: g("v_add_f32_dpp v%d, v%d, v%d %s" % (r, r, r, mod))
    for jb in range(0, 16, 8):
        for j in range(8): g("v_readlane_b32 s%d, v%d, 63" % (8 + j, 96 + jb + j))
        for j in range(8): g("v_writelane_b32 v16, s%d, %d" % (8 + j, jb + j))
    for t in ("v_cvt_pk_bf16_f32 v16, v16, v16", "v_lshlrev_b32 v16, 16, v16", "v_mul_f32 v16, 0x%x, v16" % f2u(-LOG2E), "v_exp_f32 v16, v16",
              "v_add_f32 v16, 1.0, v16", "v_rcp_f32 v16, v16", "v_cvt_pk_bf16_f32 v16, v16, v16", "v_lshlrev_b32 v16, 16, v16"): g(t)
    g("v_mov_b32 v17, s%d\nv_lshlrev_b32 v9, 3, v0\ns_lshl_b32 s82, s82, 7\ns_add_u32 s82, s82, 0x%x" % (S_TAG, G_OFF))
    g("s_mov_b64 exec, 0xffff\nbuffer_store_dwordx2 v[16:17], v9, %s, s82 offen sc1\ns_mov_b64 exec, -1" % srd(S_WS))

def epoch_bump(g):
    L, P, D = g.lab("Leb"), g.lab("Lep"), g.lab("Led")
    g("s_cmp_lg_u32 s2, 255\ns_cbranch_scc1 %s" % L)
    g("s_cmp_lg_u32 s%d, 0\ns_cbranch_scc1 %s" % (S_W, L))
    for l in ("v_lshrrev_b32 v100, 3, v0", "v_lshlrev_b32 v100, 11, v100", "v_and_b32 v101, 7, v0", "v_lshlrev_b32 v101, 7, v101", "v_add_u32 v100, v100, v101",
              "s_mov_b32 s80, 0x%x" % FA_OFF, "s_mov_b32 s%d, 0x40000" % S_SPIN): g.raw(l)
    g(P + ":")
    for l in ("buffer_load_dwordx4 v[104:107], v100, %s, s80 offen sc1" % srd(S_WS), "buffer_load_dwordx4 v[108:111], v100, %s, s80 offen offset:16 sc1" % srd(S_WS), "s_waitcnt vmcnt(0)",
              "v_xor_b32 v104, s%d, v104" % S_TAG, "v_xor_b32 v106, s%d, v106" % S_TAG, "v_xor_b32 v108, s%d, v108" % S_TAG, "v_xor_b32 v110, s%d, v110" % S_TAG,
              "v_or_b32 v104, v104, v106", "v_or_b32 v108, v108, v110", "v_or_b32 v104, v104, v108", "v_cmp_ne_u32 vcc, 0, v104", "s_nop 4",
              "s_cmp_eq_u64 vcc, 0", "s_cbranch_scc1 %s" % D, "s_sleep 8", "s_sub_u32 s%d, s%d, 1" % (S_SPIN, S_SPIN), "s_cbranch_scc0 %s" % P): g.raw(l)
    g(D + ":")
    g.raw("s_mov_b32 s80, 0x%x" % EP_OFF)
    g.raw("v_mov_b32 v100, s%d" % S_TAG); g.raw("v_mov_b32 v101, 0"); g.raw("s_mov_b64 exec, 1")
    g.raw("buffer_store_dword v100, v101, %s, s80 offen sc1" % srd(S_WS))
    g.raw("s_mov_b64 exec, -1")
    g(L + ":")

def uexp_addr(g):
    g("s_lshl_b32 s85, s%d, 12\ns_and_b32 s81, s%d, 1\ns_lshl_b32 s80, s81, 11\ns_add_u32 s85, s85, s80\ns_add_u32 s85, s85, 0x%x" % (S_CH, S_W, UT_OFF))
    g("s_lshr_b32 s82, s%d, 1\ns_mul_i32 s83, s82, %d\ns_add_u32 s83, s83, %d\ns_add_u32 s86, s83, s80\ns_add_u32 s86, s86, 64" % (S_W, CU_CH, CU))
    g("v_lshlrev_b32 v28, 2, v0\nv_add_u32 v22, s83, v28\ns_lshl_b32 s80, s81, 8\ns_add_u32 s80, s80, s83\ns_add_u32 s80, s80, %d\nv_add_u32 v28, s80, v28" % (64 - 36))
    g("s_lshl_b32 s81, s81, 10\ns_mul_i32 s80, s82, %d\ns_add_u32 s80, s80, %d\ns_add_u32 s80, s80, s81\nv_lshlrev_b32 v20, 4, v0\nv_add_u32 v21, s80, v20" % (UEE[1] - UEE[0], UEE[0]))
    g("s_mul_i32 s80, s82, %d\ns_sub_u32 s80, %d, s80\ns_add_u32 s80, s80, s81\nv_add_u32 v20, s80, v20" % (UEO[0] - UEO[1], UEO[0]))
def u_load(g):
    for i in range(2):
        op = g("s_mov_b32 m0, s86\ns_nop 0\nbuffer_load_dwordx4 v10, %s, s85 offen offset:%d sc1 lds" % (srd(S_WS), i*1024))
    g("v_mov_b32 v23, 0\ns_mov_b64 exec, 0xffff\nds_write_b32 v22, v23\ns_mov_b64 exec, -1")
    return op
def u_build(g):
    def rd(i):
        b = 32 + 10*(i % 3)
        g("ds_read2_b32 v[%d:%d], v28 offset0:1 offset1:2\nds_read2_b32 v[%d:%d], v28 offset0:3 offset1:4\nds_read_b32 v%d, v28\nv_add_u32 v28, 0x200, v28" % (b, b+1, b+2, b+3, b+4))
    def wr(i):
        b = 32 + 10*(i % 3); e = b + 6
        g("v_alignbit_b32 v%d, v%d, v%d, 16" % (e, b, b+4))
        for k in (1, 2, 3): g("v_alignbit_b32 v%d, v%d, v%d, 16" % (e + k, b + k, b + k - 1))
        if i == 8: g("s_and_b32 s80, s%d, 1\ns_sub_u32 s80, s80, 1\ns_and_b32 exec_lo, s80, 0xff\ns_mov_b32 exec_hi, 0" % S_W)
        g("ds_write_b128 v20, v[%d:%d] offset:%d" % (b, b+3, i*2048))
        g("ds_write_b128 v21, v[%d:%d] offset:%d" % (e, e+3, i*2048))
        if i == 8: g("s_mov_b64 exec, -1")
    rd(0); rd(1)
    for i in range(9):
        if i + 2 < 9: rd(i + 2)
        wr(i)

class Rec2:
    def __init__(self): self.q = []
    def __call__(self, t): self.q.append(t)
def ub_items():
    r = Rec2(); u_build(r)
    q = r.q
    return q[:-4] + ["\n".join(q[-4:])]
def gemm1_dma(st):
    b = BUF[st % 3]; q = []
    p0 = "s_add_u32 s9, s14, %d\ns_and_b32 s9, s9, 7\n" % st
    if OPT["rot"] >= 3:
        p0 = ("s_mov_b32 s9, %d\n" % st) if st < 2 else ("s_add_u32 s9, s14, %d\ns_cmp_ge_u32 s9, 8\ns_cselect_b32 s8, 6, 0\ns_sub_u32 s9, s9, s8\n" % st)
    pre = p0 + "s_lshl_b32 s35, s9, 7\ns_add_u32 s35, s35, s90\ns_mul_i32 s8, s9, %d\ns_add_u32 s8, s8, s91\n" % (64*3584)
    for i in range(4):
        q.append((pre if i == 0 else "") + "s_add_u32 m0, s92, %d\ns_add_u32 s93, s35, %d\nbuffer_load_dwordx4 v%d, %s, s93 offen lds" % (b + i*1024, i*8192, 2 + (i & 1), srd(S_X)))
        q.append("s_add_u32 m0, s92, %d\ns_add_u32 s93, s8, %d\nbuffer_load_dwordx4 v4, %s, s93 offen lds" % (b + 16384 + i*1024, i*4*3584, srd(S_WG)))
        q.append("s_add_u32 m0, s92, %d\nbuffer_load_dwordx4 v4, %s, s93 offen lds" % (b + 32768 + i*1024, srd(S_WU)))
    return q

def cf(p, kind, i):
    if p == 0: return "a[%d:%d]" % ((0 if kind == "A" else 32) + 4*i, (0 if kind == "A" else 32) + 4*i + 3)
    return ("a[%d:%d]" % (64 + 4*i, 67 + 4*i)) if kind == "A" else ("v[%d:%d]" % (128 + 4*i, 131 + 4*i))
def sel(g, dst, c0, c1):
    g("s_cselect_b32 s%d, %d, %d" % (dst, c1, c0) if False else "s_mov_b32 s%d, %d" % (dst, c0))
def conv_addr(g):
    g("s_lshr_b32 s80, s%d, 1\ns_and_b32 s82, s%d, 1" % (S_W, S_W))
    g("s_mul_i32 s81, s80, %d\ns_add_u32 s81, s81, %d" % (UEE[1] - UEE[0], UEE[0]))
    g("s_mul_i32 s83, s80, %d\ns_sub_u32 s83, %d, s83" % (UEO[0] - UEO[1], UEO[0]))
    g("v_bfe_u32 v5, v0, 4, 1\nv_lshlrev_b32 v5, 1, v5\nv_lshrrev_b32 v6, 5, v0\nv_add_u32 v5, v5, v6")
    g("v_bfe_u32 v6, v0, 1, 3\nv_lshlrev_b32 v7, 2, v5\nv_sub_u32 v7, v6, v7\nv_add_u32 v7, 13, v7\nv_lshlrev_b32 v7, 4, v7")
    g("v_mov_b32 v8, s81\nv_mov_b32 v9, s83\nv_and_b32 v6, 1, v0\nv_cmp_eq_u32 vcc, 1, v6\nv_cndmask_b32 v8, v8, v9, vcc\nv_add_u32 v8, v8, v7")
    g("s_lshl_b32 s81, s82, 10\nv_add_u32 v8, s81, v8")
    g("v_and_b32 v13, 15, v0\nv_lshlrev_b32 v13, 7, v13\nv_lshrrev_b32 v14, 4, v0\nv_lshlrev_b32 v14, 5, v14\nv_add_u32 v13, v13, v14")
    g("s_lshl_b32 s81, s82, 13\ns_add_u32 s81, s81, s83\ns_add_u32 s81, s81, 128\nv_add_u32 v13, s81, v13")
    g("v_and_b32 v6, 15, v0\nv_lshrrev_b32 v7, 5, v0\nv_mul_u32_u24 v7, %d, v7\nv_bfe_u32 v9, v0, 4, 1\nv_add_u32 v9, v9, v6\nv_lshlrev_b32 v9, 4, v9\nv_add_u32 v7, v7, v9" % KF_PL)
    g("s_mul_i32 s81, s80, %d\ns_lshl_b32 s83, s82, 7\ns_sub_u32 s83, s81, s83\ns_add_u32 s83, s83, %d" % (KF_CH, KF + 16*(16 - 7)))
    g("v_add_u32 v9, s83, v7")
    g("v_lshlrev_b32 v10, 4, v0")
    g("s_lshl_b32 s81, s%d, 12\ns_add_u32 s81, s81, %d\ns_cmp_eq_u32 s%d, 3\ns_cselect_b32 s81, %d, s81\nv_add_u32 v12, s81, v10" % (S_W, XCH[0], S_W, XCH[3]))
    g("s_xor_b32 s83, s%d, 1\ns_lshl_b32 s81, s83, 12\ns_add_u32 s81, s81, %d\ns_cmp_eq_u32 s83, 3\ns_cselect_b32 s81, %d, s81\nv_add_u32 v11, s81, v10" % (S_W, XCH[0], XCH[3]))
    g("v_and_b32 v15, 15, v0\nv_lshlrev_b32 v15, 5, v15\nv_lshrrev_b32 v14, 4, v0\nv_lshlrev_b32 v14, 3, v14\nv_add_u32 v15, v15, v14")
    g("s_lshl_b32 s81, s%d, 12\ns_add_u32 s81, s81, %d\nv_add_u32 v15, s81, v15\nv_add_u32 v14, s81, v10" % (S_W, STG))
def conv_main(g, side, hooks={}):
    side = list(side)
    def reads(i):
        p = i & 1; q = []
        for a in range(8):
            q.append("ds_read_b128 %s, v8 offset:%d" % (cf(p, "A", a), a*2048 + i*256))
            q.append("ds_read_b128 %s, v9 offset:%d" % (cf(p, "B", a), a*256 + (3 - i)*32))
        return q
    for r in reads(0): g(r)
    first = set(); cnt = 0; last = None
    for i in range(4):
        p = i & 1
        nxt = reads(i + 1) if i < 3 else ["ds_read_b64 a[%d:%d], v13 offset:%d" % (2*cc, 1 + 2*cc, cc*2048) for cc in range(4)]
        pairs = sorted([(a, d) for a in range(8) for d in range(8) if a + d <= 7], key=lambda x: (max(x), x))
        for n, (a, d) in enumerate(pairs):
            c = a + d
            C = "v[%d:%d]" % (32 + 4*c, 35 + 4*c) if c in first else "0"
            first.add(c)
            g("v_mfma_f32_16x16x32_bf16 v[%d:%d], %s, %s, %s" % (32 + 4*c, 35 + 4*c, cf(p, "A", a), cf(p, "B", d), C))
            if n >= 12 and nxt: g(nxt.pop(0))
            elif n in (1, 3, 5, 7, 9, 11, 30, 33) and side: last = g(side.pop(0))
        assert not nxt
        if i in hooks: hooks[i](g)
    assert not side
    for cc in range(4):
        for h in range(2):
            u = 128 + 2*cc + h; t = 136 + 4*cc + 2*h
            g("v_accvgpr_read_b32 v%d, a%d" % (u, 2*cc + h))
            g("v_lshlrev_b32 v%d, 16, v%d\nv_and_b32 v%d, 0xffff0000, v%d" % (t, u, t+1, u))
            g("v_mul_f32 v%d, v29, v%d\nv_mul_f32 v%d, v29, v%d" % (t, t, t+1, t+1))
            if cc == 0 and h == 1:
                L1, L2 = g.lab("Lx"), g.lab("Lx")
                g("s_and_b32 s82, s%d, 1\ns_cmp_lg_u32 s82, 0\ns_cbranch_scc1 %s" % (S_W, L1))
                for k in range(4): g.raw("ds_write_b128 v11, v[%d:%d] offset:%d" % (48 + 4*k, 51 + 4*k, k*1024))
                g("s_branch %s" % L2)
                g(L1 + ":")
                for k in range(4): g.raw("ds_write_b128 v11, v[%d:%d] offset:%d" % (32 + 4*k, 35 + 4*k, k*1024))
                g.nop(2)
                for r in range(16): g.raw("v_mov_b32 v%d, v%d" % (32 + r, 48 + r))
                g(L2 + ":")
                g.lg_seq += 4
            g("v_cvt_pk_bf16_f32 v%d, v%d, v%d" % (u, t, t+1))
            g("v_lshlrev_b32 v%d, 16, v%d\nv_and_b32 v%d, 0xffff0000, v%d" % (t, u, t+1, u))
    g.wait(lg=0)
    return last
def conv_fin(g):
    for r in range(16): g("v_add_f32 v%d, v%d, v%d" % (32 + r, 32 + r, 48 + r))
    for r in range(8): g("v_cvt_pk_bf16_f32 v%d, v%d, v%d" % (48 + r, 32 + 2*r, 33 + 2*r))
    for r in range(8): g("v_lshlrev_b32 v%d, 16, v%d\nv_and_b32 v%d, 0xffff0000, v%d" % (32 + 2*r, 48 + r, 33 + 2*r, 48 + r))
    for r in range(16): g("v_add_f32 v%d, v%d, v%d" % (32 + r, 32 + r, 136 + r))
    for r in range(8): g("v_cvt_pk_bf16_f32 v%d, v%d, v%d" % (48 + r, 32 + 2*r, 33 + 2*r))
    for cc in range(4): g("ds_write_b64 v15, v[%d:%d] offset:%d" % (48 + 2*cc, 49 + 2*cc, cc*512))
    for pr in range(2): g("ds_read_b128 v[%d:%d], v14 offset:%d" % (56 + 4*pr, 59 + 4*pr, pr*1024))
    g("s_and_b32 s82, s%d, 1\ns_lshl_b32 s81, s%d, 12\ns_lshl_b32 s83, s82, 11\ns_add_u32 s81, s81, s83\ns_add_u32 s81, s81, 0x%x" % (S_W, S_CH, AT_OFF))
    for pr in range(2):
        g("buffer_store_dwordx4 v[%d:%d], v10, %s, s81 offen offset:%d sc1" % (56 + 4*pr, 59 + 4*pr, srd(S_WS), pr*1024))

def chunk_ids(g):
    for c in range(7):
        if OPT["hrot"]: g("s_add_u32 s%d, s%d, %d\ns_cmp_ge_u32 s%d, 7\ns_cselect_b32 s80, 7, 0\ns_sub_u32 s%d, s%d, s80" % (18 + c, S_NB, c, 18 + c, 18 + c, 18 + c))
        else: g("s_mov_b32 s%d, %d" % (18 + c, c))
    g("s_lshl_b32 s95, s%d, 14\ns_add_u32 s95, s95, %d\ns_lshl_b32 s25, s%d, 13" % (S_W, WDA, S_W))
def wd_setup(g, vreg):
    g("v_lshrrev_b32 v5, 3, v0\nv_lshlrev_b32 v5, 10, v5\nv_bfe_u32 v6, v0, 4, 1\nv_lshlrev_b32 v6, 2, v6\nv_and_b32 v7, 7, v0\nv_xor_b32 v6, v6, v7\nv_lshlrev_b32 v6, 4, v6\nv_add_u32 v%d, v5, v6" % vreg)
    g("s_mul_i32 s94, s%d, %d\ns_lshl_b32 s80, s%d, 7\ns_add_u32 s94, s94, s80" % (S_W, 448*1024, S_NB))
WSLOT = {3: (95, 0), 4: (95, 8192)}
def wd_dma(c, vreg):
    sb, off = WSLOT[c]
    q = []
    for i in range(8):
        pre = "s_lshl_b32 s93, s%d, 16\ns_add_u32 s93, s93, s94\n" % (18 + c) if i == 0 else "s_add_u32 s93, s93, 8192\n"
        q.append("s_add_u32 m0, s%d, %d\n%sbuffer_load_dwordx4 v%d, %s, s93 offen lds" % (sb, off + i*1024, pre, vreg, srd(S_WD)))
    return q

def l2t_addr(g):
    g("s_lshl_b32 s80, s%d, 2\ns_add_u32 s80, s80, s%d\ns_lshl_b32 s26, s80, 12\ns_add_u32 s26, s26, 0x%x" % (S_IDX, S_W, WDT_OFF))
    g("s_lshr_b32 s27, s80, 5\ns_mul_i32 s27, s27, %d\ns_and_b32 s80, s80, 31\ns_lshl_b32 s80, s80, 11\ns_add_u32 s27, s27, s80" % (448*1024))
    g("v_and_b32 v24, 7, v0\nv_bfe_u32 v25, v0, 3, 1\nv_lshlrev_b32 v25, 10, v25\nv_lshlrev_b32 v23, 7, v24\nv_add_u32 v25, v25, v23")
    g("v_lshrrev_b32 v21, 4, v0\nv_add_u32 v21, v21, v24\nv_add_u32 v21, 2, v21\nv_subrev_u32 v23, 7, v21\nv_min_u32 v21, v21, v23\nv_lshlrev_b32 v21, 16, v21\nv_add_u32 v21, v21, v25")
    g("v_add_u32 v22, 6, v24\nv_subrev_u32 v23, 7, v22\nv_min_u32 v22, v22, v23\nv_lshlrev_b32 v22, 16, v22\nv_add_u32 v22, v22, v25")
    g("v_lshlrev_b32 v23, 7, v0")
def l2t(g):
    g("s_mov_b32 exec_hi, 0\nbuffer_load_dword v24, v23, %s, s26 offen sc1\ns_mov_b32 exec_hi, -1" % srd(S_WS))
    g("buffer_load_dword v25, v21, %s, s27 offen" % srd(S_WD))
    g("s_mov_b64 exec, 0xffff\nbuffer_load_dword v21, v22, %s, s27 offen\ns_mov_b64 exec, -1" % srd(S_WD))
def pm(p): return (p % 7, p // 7) if OPT["pord"] else (p >> 1, p & 1)
def wd_reg(c):
    q = []
    for i in range(8):
        p = 2*c + (i >> 2)
        pre = "s_lshl_b32 s26, s%d, 16\ns_add_u32 s26, s26, s94\n%s" % (18 + pm(p)[0], "s_add_u32 s26, s26, 0x8000\n" if pm(p)[1] else "") if i % 4 == 0 else "s_add_u32 s26, s26, 8192\n"
        r = ("v[%d:%d]" % (64 + 32*(c - 5) + 4*i, 67 + 32*(c - 5) + 4*i)) if c >= 5 else ("a[%d:%d]" % (32*(c - 3) + 4*i, 32*(c - 3) + 4*i + 3))
        q.append("%sbuffer_load_dwordx4 %s, v30, %s, s26 offen" % (pre, r, srd(S_WD)))
    return q
def dose(g, k):
    if OPT["l2t"] != 3: return
    if k < 4: g("%s\nbuffer_load_dword v%d, v21, %s, s27 offen\ns_mov_b64 exec, -1" % (lanes(16*k, 16*k + 16), 96 + k, srd(S_WD)))
    elif k == 4: g("%s\nbuffer_load_dword v100, v22, %s, s27 offen\ns_mov_b64 exec, -1" % (lanes(0, 16), srd(S_WD)))
    else: g("%s\nbuffer_load_dword v%d, v23, %s, s26 offen sc1\ns_mov_b64 exec, -1" % (lanes(16*(k-5), 16*(k-5) + 16), 96 + k, srd(S_WS)))
def H_part1(g, idle):
    D = (lambda st: []) if idle else gemm1_dma
    st_ = (lambda g, n: None) if idle else stamp
    def W(op):
        if op is not None: g.wait_op(op)
    if not idle:
        g.srd(S_WG, 36, 512*1792*2); g.srd(S_WU, 38, 512*1792*2)
    g.srd(S_X, 16, 2048*512*2)
    d = {}
    d[0] = weave(g, D(0), [])
    st_(g, "H:d0 issued")
    g("s_barrier")
    g("global_load_ushort v29, v63, s[32:33]")
    epoch_load(g)
    g.srd(S_WS, 48, WS_BYTES); g.srd(S_WD, 40, 512*1792*2); g.srd(S_OUT, 44, 2048*512*2)
    d[1] = weave(g, D(1), rec(kfull_addr))
    tag_compute(g)
    if idle:
        if OPT["te"]: T_issue(g)
        mall_touch(g)
    st_(g, "H:i0")
    W(d[0])
    g("s_barrier")
    if idle:
        stamp(g, "I:B0")
        if not OPT["te"]: T_issue(g)
        kfull_read(g)
        g("v_mov_b32 v20, v26\nv_mov_b32 v21, v27"); T_process(g); g("v_mov_b32 v26, v20\nv_mov_b32 v27, v21")
        stamp(g, "I:Tiss"); g.wait(vm=0); flag_store(g, 15, 8); stamp(g, "I:Tflag")
        g("v_mov_b32 v64, 0\nv_mov_b32 v65, 0\nv_mov_b32 v66, 0\nv_mov_b32 v67, 0")
        d[2] = None
    else: d[2] = weave(g, D(2), rec(kfull_read))
    g("v_lshlrev_b32 v29, 16, v29")
    st_(g, "H:i1")
    g.wait(lg=0); W(d[1])
    g("s_barrier")
    if idle: stamp(g, "I:B1")
    q3 = D(3)
    d[3] = weave(g, q3[:OPT["t3"]], rec(kfull_write) + rec(uexp_addr))
    wd_setup(g, 30); chunk_ids(g)
    wr = wd_reg(5) + wd_reg(6) + wd_reg(3) + wd_reg(4)
    def WR(n):
        for _ in range(n):
            if wr: g(wr.pop(0))
    st_(g, "H:i2")
    W(d[2])
    g("s_barrier")
    if q3[OPT["t3"]:]: d[3] = weave(g, q3[OPT["t3"]:], [])
    d[4] = weave(g, D(4), [])
    WR(OPT["w2"])
    conv_addr(g)
    st_(g, "H:i3")
    W(d[3])
    g("s_barrier")
    d[5] = weave(g, D(5), [])
    WR(OPT["w3"])
    st_(g, "H:i4")
    W(d[4])
    g("s_barrier")
    d[6] = weave(g, D(6), [])
    WR(OPT["w3"])
    g("s_lshl_b32 s84, s%d, 9\ns_add_u32 s84, s84, 0x%x\ns_lshl_b32 s80, s%d, 9\ns_add_u32 s80, s80, 0x%x" % (S_XCD, FT_OFF, S_NB, FW_OFF))
    g("v_bfe_u32 v24, v0, 3, 2\nv_lshlrev_b32 v24, 7, v24\nv_and_b32 v25, 7, v0\nv_lshlrev_b32 v25, 2, v25\nv_add_u32 v24, v24, v25")
    g("v_and_b32 v25, 0x18c, v24\nv_add_u32 v25, s80, v25\nv_add_u32 v24, s84, v24\nv_cmp_lt_u32 vcc, 31, v0\nv_cndmask_b32 v24, v24, v25, vcc\ns_mov_b32 s84, 0")
    st_(g, "H:i5")
    g.wait(lg=0); W(d[5])
    g("s_barrier")
    d[7] = weave(g, D(7), [])
    WR(OPT["w3"])
    st_(g, "H:i6")
    W(d[6])
    g("s_barrier")
    L0 = g.lab("Lq")
    g("s_cmp_lg_u32 s%d, 0\ns_cbranch_scc1 %s" % (S_W, L0))
    g.raw("buffer_load_dword v25, v24, %s, s84 offen sc1" % srd(S_WS))
    g(L0 + ":")
    s0 = g.vm_seq
    WR(OPT["nr6"])
    nv = g.vm_seq - s0
    stamp(g, "I:prepoll" if idle else "H:prepoll")
    g.raw("s_waitcnt vmcnt(%d)" % nv); g.vm_done = max(g.vm_done, g.vm_seq - nv)
    Lok = g.lab("Lok")
    g("s_cmp_lg_u32 s%d, 0\ns_cbranch_scc1 %s" % (S_W, Lok))
    g("v_cmp_ne_u32 vcc, s%d, v25" % S_TAG)
    g.nop(4)
    g("s_cmp_eq_u64 vcc, 0\ns_cbranch_scc1 %s" % Lok)
    sv = g.vm_done
    poll(g, 24, 84, 25, sleep=8)
    g.vm_done = sv
    g(Lok + ":")
    if idle: stamp(g, "I:polled")
    st_(g, "H:a7")
    g("s_barrier")
    ul = u_load(g)
    WR(99)
    g("v_mov_b32 v16, %d\nv_lshlrev_b32 v17, 2, v0\nv_add_u32 v17, v16, v17\nv_mov_b32 v18, 0\nv_mov_b32 v19, 1" % SYW)
    g("ds_write_b32 v17, v18")
    g.wait(lg=0); g.ul = ul
    if idle: stamp(g, "I:a8")
    st_(g, "H:a8")

SYW = 28928
STG = 0
def hsync(g, target):
    L, D = g.lab("Lh"), g.lab("Lhd")
    g("s_mov_b64 exec, 1\nds_add_u32 v16, v19\ns_mov_b64 exec, -1")
    g("s_mov_b32 s%d, 0x100000" % S_SPIN)
    g(L + ":")
    for l in ("ds_read_b32 v18, v16", "s_waitcnt lgkmcnt(0)", "v_readfirstlane_b32 s80, v18", "s_sub_u32 s%d, s%d, 1" % (S_SPIN, S_SPIN), "s_cbranch_scc1 %s" % D,
              "s_cmp_lt_u32 s80, %d" % target, "s_cbranch_scc1 %s" % L): g.raw(l)
    g(D + ":")
    g.lg_done = g.lg_seq
def fin_addr(g, b):
    t = b + 4
    g("s_and_b32 s80, s3, 3\ns_lshl_b32 s80, s80, 3\nv_lshrrev_b32 v%d, 3, v0\nv_add_u32 v%d, s80, v%d" % (t, b+2, t))
    g("v_lshlrev_b32 v%d, 10, v%d\nv_and_b32 v%d, 7, v0\nv_lshlrev_b32 v%d, 4, v%d\nv_add_u32 v%d, v%d, v%d" % (b+3, t, t, b, t, b+3, b+3, b))
    g("v_mul_u32_u24 v%d, 0x420, v%d\nv_lshlrev_b32 v%d, 4, v%d\nv_xor_b32 v%d, v%d, v%d" % (b, t, b+1, b+2, b, b, b+1))
    g("s_lshr_b32 s81, s3, 2\ns_lshl_b32 s80, s81, 13\ns_add_u32 s80, s80, %d\nv_add_u32 v%d, s80, v%d" % (WDA, b, b))
    g("v_lshlrev_b32 v%d, 6, v%d\nv_and_b32 v%d, 3, v0\nv_lshlrev_b32 v%d, 4, v%d\nv_add_u32 v%d, v%d, v%d" % (b+1, b+2, t, t, t, b+1, b+1, t))
    g("v_bfe_u32 v%d, v0, 2, 1\nv_lshlrev_b32 v%d, 13, v%d\nv_add_u32 v%d, v%d, v%d" % (t, t, t, b+1, b+1, t))
    g("s_lshl_b32 s80, s81, 12\ns_add_u32 s80, s80, %d\nv_add_u32 v%d, s80, v%d\nv_lshlrev_b32 v%d, 2, v%d\nv_add_u32 v%d, s80, v%d" % (STG, b+1, b+1, b+2, b+2, b+2, b+2))
    g("s_lshl_b32 s87, s%d, 16\ns_lshl_b32 s81, s3, 13\ns_add_u32 s87, s87, s81\ns_lshl_b32 s81, s%d, 7\ns_add_u32 s87, s87, s81" % (S_TB2, S_NB))
def fin(g, b, P, GA, OMG):
    for j in range(2):
        for sw in range(4): g("ds_read_b128 v[%d:%d], v%d offset:%d" % (P + 8*sw + 4*j, P + 3 + 8*sw + 4*j, b, sw*16384 + j*512))
        if j == 0: g("ds_read_b32 v%d, v%d" % (OMG, b + 2))
    g("ds_read_b128 v[%d:%d], v%d offset:2048" % (GA, GA + 3, b + 1))
    fin_math(g, P, GA, OMG, b + 3)
def fin_math(g, P, GA, OMG, VO):
    for r in range(4):
        x = P + 2*r
        g("v_pk_add_f32 v[%d:%d], v[%d:%d], v[%d:%d]" % (x, x+1, x, x+1, x+8, x+9))
        g("v_pk_add_f32 v[%d:%d], v[%d:%d], v[%d:%d]" % (x+16, x+17, x+16, x+17, x+24, x+25))
    for r in range(4):
        x = P + 2*r
        g("v_pk_add_f32 v[%d:%d], v[%d:%d], v[%d:%d]" % (x, x+1, x, x+1, x+16, x+17))
    for r in range(4): g("v_cvt_pk_bf16_f32 v%d, v%d, v%d" % (P + 8 + r, P + 2*r, P + 2*r + 1))
    for r in range(4): g("v_lshlrev_b32 v%d, 16, v%d\nv_and_b32 v%d, 0xffff0000, v%d" % (P + 2*r, P + 8 + r, P + 2*r + 1, P + 8 + r))
    for r in range(8): g("v_mul_f32 v%d, v%d, v%d" % (P + r, OMG, P + r))
    for r in range(4): g("v_cvt_pk_bf16_f32 v%d, v%d, v%d" % (P + 8 + r, P + 2*r, P + 2*r + 1))
    for r in range(4): g("v_lshlrev_b32 v%d, 16, v%d\nv_and_b32 v%d, 0xffff0000, v%d" % (P + 16 + 2*r, GA + r, P + 17 + 2*r, GA + r))
    for r in range(4): g("v_lshlrev_b32 v%d, 16, v%d\nv_and_b32 v%d, 0xffff0000, v%d" % (P + 2*r, P + 8 + r, P + 2*r + 1, P + 8 + r))
    for r in range(4):
        x = P + 2*r
        g("v_pk_add_f32 v[%d:%d], v[%d:%d], v[%d:%d]" % (x, x+1, x, x+1, x+16, x+17))
    for r in range(4): g("v_cvt_pk_bf16_f32 v%d, v%d, v%d" % (GA + r, P + 2*r, P + 2*r + 1))
    g("buffer_store_dwordx4 v[%d:%d], v%d, %s, s87 offen %s" % (GA, GA + 3, VO, srd(S_OUT), {0: "", 1: "sc1", 2: "nt", 3: "sc0 sc1"}[OPT["osc"]]))

def build_H():
    g = G(); g.nlab = 1000; g.role = 1; g.nst = 1; St.names[48] = "H:start"
    prologue(g)
    g("s_setprio %d" % OPT["hprio"])
    h_dma_addr(g)
    if OPT["rot"] == 1: g("s_add_u32 s14, s%d, s%d\ns_and_b32 s14, s14, 3\ns_lshl_b32 s14, s14, 1\ns_add_u32 s14, s14, %d" % (S_MT, S_FT, OPT["r1"]))
    elif OPT["rot"] == 2: g("s_add_u32 s14, s%d, s%d\ns_and_b32 s14, s14, 1\ns_lshl_b32 s14, s14, 2" % (S_MT, S_FT))
    elif OPT["rot"] == 3: g("s_add_u32 s14, s%d, s%d\ns_and_b32 s14, s14, 1\ns_mul_i32 s14, s14, 3" % (S_MT, S_FT))
    else: g("s_mov_b32 s14, 0")
    g("s_waitcnt lgkmcnt(0)")
    g("s_cmp_ge_u32 s%d, 28\ns_cbranch_scc1 Lhidle" % S_IDX)
    H_part1(g, False)
    g("Lh8:")
    g("s_barrier")
    g("s_setprio %d" % OPT["bprio"])
    g.wait_op(g.ul)
    hsync(g, 4)
    u_build(g)
    stamp(g, "H:built")
    g("v_add_u32 v23, s95, v10\ns_lshl_b32 s81, s%d, 2\nv_add_u32 v17, s81, v16" % S_W)
    for i in range(16): g("ds_write_b128 v23, a[%d:%d] offset:%d" % (4*i, 4*i + 3, i*1024))
    g("ds_write_b32 v17, v19 offset:32")
    g("s_setprio 0")
    g.wait(lg=0)
    stamp(g, "H:a9")
    hsync(g, 8)
    if OPT["gow"]:
        L, D = g.lab("Lw"), g.lab("Lwd")
        g(L + ":")
        for l in ("ds_read_b32 v18, v17 offset:48", "s_waitcnt lgkmcnt(0)", "v_readfirstlane_b32 s80, v18", "s_sub_u32 s%d, s%d, 1" % (S_SPIN, S_SPIN), "s_cbranch_scc1 %s" % D,
                  "s_cmp_lg_u32 s80, 0", "s_cbranch_scc1 %s" % D, "s_sleep 1", "s_branch %s" % L): g.raw(l)
        g(D + ":")
    stamp(g, "H:go")
    g("s_setprio %d" % OPT["convp"])
    conv_main(g, [])
    stamp(g, "H:convend")
    g("s_setprio 3")
    hsync(g, 12)
    for cc in range(4): g("ds_read_b128 v[%d:%d], v12 offset:%d" % (48 + 4*cc, 51 + 4*cc, cc*1024))
    conv_fin(g)
    aop = ("vm", g.vm_seq)
    stamp(g, "H:aiss")
    g("s_add_u32 s80, s95, %d\nv_add_u32 v11, s80, v10" % (WDB1 - WDA))
    g("s_and_b32 s82, s%d, 1\ns_lshl_b32 s80, s%d, 1\ns_add_u32 s80, s80, s82\ns_lshl_b32 s80, s80, 10\ns_and_b32 s81, s%d, 56\ns_lshl_b32 s81, s81, 4\ns_add_u32 s80, s80, s81\ns_and_b32 s81, s%d, 7\ns_lshl_b32 s81, s81, 2\ns_add_u32 s80, s80, s81\ns_add_u32 s80, s80, 0x%x" % (S_W, S_XCD, S_CH, S_CH, FA_OFF))
    for i in range(16):
        if i == OPT["nwa"]: g.wait_op(aop); flag_store(g, 80, 8); stamp(g, "H:aflag")
        g("ds_write_b128 v11, v[%d:%d] offset:%d" % (64 + 4*i, 67 + 4*i, i*1024))
    g("ds_write_b32 v17, v19 offset:16")
    stamp(g, "H:wdland")
    g("v_and_b32 v5, 31, v0\nv_lshlrev_b32 v20, 3, v5")
    g("s_lshl_b32 s82, s%d, 1\ns_lshr_b32 s81, s%d, 4\ns_add_u32 s82, s82, s81\ns_lshl_b32 s82, s82, 10\ns_lshr_b32 s81, s%d, 1\ns_lshl_b32 s81, s81, 9\ns_add_u32 s82, s82, s81\ns_add_u32 s82, s82, 0x%x\ns_add_u32 s50, s48, s82\ns_addc_u32 s51, s49, 0" % (S_NB, S_TB2, S_W, FA_OFF))
    g("v_lshrrev_b32 v7, 2, v0\nv_lshlrev_b32 v8, 12, v7\nv_and_b32 v9, 3, v0\nv_lshlrev_b32 v9, 4, v9\nv_add_u32 v8, v8, v9")
    g("s_lshl_b32 s83, s%d, 18\ns_lshr_b32 s81, s%d, 1\ns_lshl_b32 s81, s81, 17\ns_add_u32 s83, s83, s81\ns_lshl_b32 s81, s%d, 7\ns_add_u32 s83, s83, s81\ns_and_b32 s81, s%d, 1\ns_lshl_b32 s81, s81, 6\ns_add_u32 s83, s83, s81\ns_add_u32 s83, s83, 0x%x\ns_add_u32 s84, s83, 0x10000" % (S_NB, S_W, S_TB2, S_W, AT_OFF))
    g("s_lshl_b32 s85, s%d, 9\ns_and_b32 s81, s%d, 1\ns_lshl_b32 s81, s81, 8\ns_add_u32 s85, s85, s81\ns_add_u32 s85, s85, 0x%x" % (S_TB2, S_W, G_OFF))
    g("s_lshl_b32 s86, s%d, 12\ns_add_u32 s86, s86, %d\nv_add_u32 v21, s86, v10" % (S_W, STG))
    g("v_lshrrev_b32 v22, 5, v0\nv_lshlrev_b32 v22, 2, v22\nv_bfe_u32 v23, v0, 2, 2\nv_add_u32 v22, v22, v23\nv_lshlrev_b32 v22, 6, v22")
    g("v_bfe_u32 v23, v0, 4, 1\nv_lshlrev_b32 v23, 5, v23\nv_add_u32 v22, v22, v23\nv_and_b32 v23, 3, v0\nv_lshlrev_b32 v23, 3, v23\nv_add_u32 v22, v22, v23\nv_add_u32 v22, s86, v22")
    fin_addr(g, 24)
    g("v_and_b32 v29, 31, v0\nv_lshlrev_b32 v30, 2, v29\nv_add_u32 v30, s86, v30\nv_lshlrev_b32 v29, 6, v29\nv_lshrrev_b32 v23, 5, v0\nv_lshlrev_b32 v23, 3, v23\nv_add_u32 v29, v29, v23\nv_add_u32 v29, s86, v29")
    g("v_bfe_u32 v5, v0, 3, 2\nv_lshlrev_b32 v5, 7, v5\nv_and_b32 v6, 7, v0\nv_lshlrev_b32 v6, 2, v6\nv_add_u32 v5, v5, v6")
    if OPT["asl"]: g("s_sleep %d" % OPT["asl"])
    poll(g, 5, 82, 6, sleep=OPT["asl2"])
    stamp(g, "H:apolled")
    g("buffer_load_dwordx4 v[12:15], v8, %s, s83 offen sc1" % srd(S_WS))
    g("buffer_load_dwordx4 v[16:19], v8, %s, s84 offen sc1" % srd(S_WS))
    poll(g, 20, 85, 2, width=2)
    g("v_sub_f32 v3, 1.0, v2\nv_cvt_pk_bf16_f32 v3, v3, v3\nv_lshlrev_b32 v3, 16, v3")
    g("ds_write_b128 v21, v[12:15]")
    g("ds_write_b128 v21, v[16:19] offset:1024")
    for q in range(4): g("ds_read_b64_tr_b16 v[%d:%d], v22 offset:%d" % (32 + 2*q, 33 + 2*q, q*512))
    for r in range(8):
        y = 48 + 2*r
        g("v_lshlrev_b32 v%d, 16, v%d\nv_and_b32 v%d, 0xffff0000, v%d" % (y, 32 + r, y+1, 32 + r))
        g("v_mul_f32 v%d, v2, v%d\nv_mul_f32 v%d, v2, v%d" % (y, y, y+1, y+1))
        g("v_cvt_pk_bf16_f32 v%d, v%d, v%d" % (40 + r, y, y+1))
    for q in range(4): g("ds_write_b64 v29, v[%d:%d] offset:%d" % (40 + 2*q, 41 + 2*q, 2048 + 16*q))
    g("ds_write_b32 v30, v3")
    g.wait(lg=0)
    epoch_bump(g)
    stamp(g, "H:aTready")
    g("s_barrier")
    fin(g, 24, 64, 44, 3)
    stamp(g, "H:end")
    stamp_store(g)
    g("s_endpgm")
    g2 = G(); g2.nlab = 3000; g2.role = 1; g2.nst = 36
    g2("Lhidle:")
    H_part1(g2, True)
    g2("s_branch Lh8")
    g2("Lcodeend:")
    return g.text(), g2.text()

RADDR = [8, 14, 20]
def gemm1_raddr(g):
    g("v_and_b32 v5, 31, v0\nv_lshrrev_b32 v6, 5, v0\nv_bfe_u32 v7, v0, 1, 3\nv_xor_b32 v6, v6, v7\nv_lshlrev_b32 v6, 4, v6\nv_lshlrev_b32 v5, 7, v5\nv_add_u32 v5, v5, v6")
    g("s_and_b32 s80, s%d, 1\ns_lshl_b32 s80, s80, 13\nv_add_u32 v8, s80, v5" % S_W)
    for s in range(1, 4): g("v_xor_b32 v%d, %d, v8" % (8 + s, 32*s))
    g("v_lshrrev_b32 v5, 5, v0\nv_lshlrev_b32 v5, 3, v5\nv_bfe_u32 v6, v0, 2, 2\nv_add_u32 v5, v5, v6\nv_lshlrev_b32 v5, 8, v5")
    g("s_lshr_b32 s80, s%d, 1\ns_lshl_b32 s80, s80, 1\nv_xor_b32 v6, s80, v6\nv_lshlrev_b32 v6, 6, v6\nv_add_u32 v5, v5, v6" % S_W)
    g("v_bfe_u32 v6, v0, 4, 1\nv_lshlrev_b32 v6, 5, v6\nv_add_u32 v5, v5, v6\nv_and_b32 v6, 3, v0\nv_lshlrev_b32 v6, 3, v6\nv_add_u32 v5, v5, v6")
    g("v_add_u32 v12, 0x4000, v5\nv_xor_b32 v13, 64, v12")
    for i in range(6):
        g("v_add_u32 v%d, 0x%x, v%d" % (14 + i, BUF[1], 8 + i))
        g("v_add_u32 v%d, 0x%x, v%d" % (20 + i, BUF[2], 8 + i))
def frag(p, kind, i): return 24*p + {"x": 0, "g": 8, "u": 16}[kind] + 4*i
def gemm1_reads(kk):
    st, s = divmod(kk, 4); p = kk & 1; ra = RADDR[st % 3]
    q = []
    def W(kind, fi):
        for h in range(2):
            b = frag(p, kind, fi) + 2*h
            q.append("ds_read_b64_tr_b16 a[%d:%d], v%d offset:%d" % (b, b+1, ra + 4 + fi, s*4096 + h*1024 + (16384 if kind == "u" else 0)))
    def X(ti):
        b = frag(p, "x", ti)
        q.append("ds_read_b128 a[%d:%d], v%d offset:%d" % (b, b+3, ra + s, ti*4096))
    X(0); W("g", 0); W("u", 0); X(1); W("g", 1); W("u", 1)
    return q
def acc1(kind, fi, ti): return 32 + {"g": 0, "u": 64}[kind] + 32*fi + 16*ti
def gemm1_mfmas(kk):
    p = kk & 1; q = []
    for fi, ti in ((0,0),(0,1),(1,0),(1,1)):
        for kind in "gu":
            a = acc1(kind, fi, ti); w = frag(p, kind, fi); x = frag(p, "x", ti)
            c = "0" if kk == 0 else "v[%d:%d]" % (a, a+15)
            q.append("v_mfma_f32_32x32x16_bf16 v[%d:%d], a[%d:%d], a[%d:%d], %s" % (a, a+15, w, w+3, x, x+3, c))
    return q
def gemm1_main(g, side):
    g("s_barrier")
    stamp(g, "C:B0")
    for r in gemm1_reads(0): g(r)
    for kk in range(32):
        st, s = divmod(kk, 4)
        mf = gemm1_mfmas(kk); pre = 0
        if s == 3:
            g(mf[0]); g(mf[1]); pre = 2
            for t in side.get("pre%d" % (st + 1), []): g(t)
            g.wait(lg=0)
            stamp(g, "C:a%d" % (st + 1))
            g("s_barrier")
            stamp(g, "C:B%d" % (st + 1))
        fill = gemm1_reads(kk + 1) if kk + 1 < 32 else []
        fill += side.get(kk, [])
        for i in range(pre, 8):
            g(mf[i])
            for _ in range(2 if i < 7 else 99):
                if fill: emit(g, fill.pop(0))
def gemm1_epilogue(g, load_w):
    k1 = -2*0.7978845608028654*LOG2E; k2 = k1*0.044715
    g("s_mov_b32 s84, 0x%x\ns_mov_b32 s85, 0x%x" % (f2u(k2), f2u(k2)))
    g("v_mov_b32 v2, 0x%x\nv_mov_b32 v3, 0x%x" % (f2u(k1), f2u(k1)))
    g("v_lshlrev_b32 v4, 4, v0")
    g("s_lshl_b32 s80, s%d, 2\ns_and_b32 s81, s%d, 1\ns_lshl_b32 s81, s81, 1\ns_add_u32 s80, s80, s81\ns_mul_i32 s80, s80, 112" % (S_MT, S_W))
    g("s_lshl_b32 s81, s%d, 3\ns_add_u32 s80, s80, s81\ns_lshr_b32 s81, s%d, 1\ns_lshl_b32 s81, s81, 2\ns_add_u32 s80, s80, s81" % (S_FT, S_W))
    g("s_lshl_b32 s80, s80, 10\ns_add_u32 s80, s80, 0x%x\ns_add_u32 s81, s80, %d" % (H_OFF, 112*1024))
    cnt = 0
    for fi in range(2):
        for ti in range(2):
            for half in range(2):
                G0 = acc1("g", fi, ti) + 8*half; U0 = acc1("u", fi, ti) + 8*half
                T = 8; D = 16 + 4*(cnt & 1)
                P = [(G0 + 2*j, U0 + 2*j, T + 2*j) for j in range(4)]
                if OPT["pk"]:
                    for (x, u, t) in P: g("v_pk_mul_f32 v[%d:%d], v[%d:%d], v[%d:%d]" % (t, t+1, x, x+1, x, x+1))
                    for (x, u, t) in P: g("v_pk_fma_f32 v[%d:%d], v[%d:%d], s[84:85], v[2:3]" % (t, t+1, t, t+1))
                    for (x, u, t) in P: g("v_pk_mul_f32 v[%d:%d], v[%d:%d], v[%d:%d]" % (t, t+1, t, t+1, x, x+1))
                    for j in range(8): g("v_exp_f32 v%d, v%d" % (T + j, T + j))
                    for (x, u, t) in P: g("v_pk_mul_f32 v[%d:%d], v[%d:%d], v[%d:%d]" % (x, x+1, x, x+1, u, u+1))
                    for (x, u, t) in P: g("v_pk_add_f32 v[%d:%d], v[%d:%d], 1.0 op_sel_hi:[1,0]" % (t, t+1, t, t+1))
                    for j in range(8): g("v_rcp_f32 v%d, v%d" % (T + j, T + j))
                    for (x, u, t) in P: g("v_pk_mul_f32 v[%d:%d], v[%d:%d], v[%d:%d]" % (x, x+1, x, x+1, t, t+1))
                else:
                    E = [(G0 + j, U0 + j, T + j) for j in range(8)]
                    for (x, u, t) in E: g("v_mul_f32 v%d, v%d, v%d" % (t, x, x))
                    for (x, u, t) in E: g("v_fma_f32 v%d, v%d, s84, v2" % (t, t))
                    for (x, u, t) in E: g("v_mul_f32 v%d, v%d, v%d" % (t, t, x))
                    for (x, u, t) in E: g("v_exp_f32 v%d, v%d\nv_mul_f32 v%d, v%d, v%d" % (t, t, x, x, u))
                    for (x, u, t) in E: g("v_add_f32 v%d, 1.0, v%d" % (t, t))
                    for (x, u, t) in E: g("v_rcp_f32 v%d, v%d" % (t, t))
                    for (x, u, t) in E: g("v_mul_f32 v%d, v%d, v%d" % (x, x, t))
                for j, (x, u, t) in enumerate(P): g("v_cvt_pk_bf16_f32 v%d, v%d, v%d" % (D + j, x, x+1))
                op = g("buffer_store_dwordx4 v[%d:%d], v4, %s, s%d offen offset:%d sc1" % (D, D+3, srd(S_WS), 80 + ti, (2*fi + half)*1024))
                if cnt == 3: opA = op
                if cnt == OPT["fa"] and OPT["half"]: g.wait_op(opA); flag_store(g, 87, 24)
                cnt += 1
    return op

def touch_addr(g):
    g("s_lshl_b32 s80, s%d, 2\ns_add_u32 s80, s80, s%d" % (S_IDX, S_W))
    g("s_lshr_b32 s90, s%d, 1\ns_lshl_b32 s90, s90, 19\ns_lshl_b32 s81, s80, 12\ns_add_u32 s90, s90, s81" % S_XCD)
    g("v_lshlrev_b32 v30, 7, v0")
    g("v_mul_u32_u24 v5, 37, v0\nv_lshrrev_b32 v5, 8, v5\nv_mul_u32_u24 v6, 7, v5\nv_sub_u32 v6, v0, v6\nv_lshlrev_b32 v6, 7, v6")
    g("s_mov_b32 s81, %d\nv_mul_lo_u32 v5, v5, s81\nv_add_u32 v26, v5, v6" % (64*3584))
    g("s_lshr_b32 s91, s80, 1\ns_mul_i32 s91, s91, 3584\ns_and_b32 s81, s80, 1\ns_mul_i32 s81, s81, 896\ns_add_u32 s91, s91, s81\ns_and_b32 s81, s%d, 1\ns_mul_i32 s81, s81, 1792\ns_add_u32 s91, s91, s81" % S_XCD)
    g("s_mul_i32 s93, s80, %d\ns_lshl_b32 s92, s2, 2\ns_add_u32 s92, s92, s%d\ns_mul_i32 s92, s92, %d" % (112*128, S_W, 14*128))
def lanes(lo, hi):
    m = ((1 << hi) - 1) & ~((1 << lo) - 1)
    return "s_mov_b32 exec_lo, 0x%x\ns_mov_b32 exec_hi, 0x%x" % (m & 0xffffffff, m >> 32)
def touch_w(s0, s1, r):
    return "%s\nbuffer_load_dword a%d, v26, %s, s91 offen\nbuffer_load_dword a%d, v26, %s, s91 offen\ns_mov_b64 exec, -1" % (lanes(7*s0, 7*s1), r, srd(S_WG), r+1, srd(S_WU))
def touch_glob():
    return "%s\nbuffer_load_dword a74, v30, %s, s92 offen\nbuffer_load_dword a75, v30, %s, s92 offen\ns_lshl_b32 s80, s2, 2\ns_add_u32 s80, s80, s%d\ns_lshl_b32 s80, s80, 11\n%s\nbuffer_load_dword a70, v30, %s, s80 offen\ns_mov_b64 exec, -1" % (lanes(0, 14), srd(S_WG), srd(S_WU), S_W, lanes(0, 16), srd(S_X))
def touch_x(): return "%s\nbuffer_load_dword a70, v30, %s, s90 offen\ns_mov_b64 exec, -1" % (lanes(0, 32), srd(S_X))
def touch_wd_global(): return "%s\nbuffer_load_dword a71, v30, %s, s92 offen\ns_mov_b64 exec, -1" % (lanes(0, 14), srd(S_WD))
def touch_wd_xcd(): return "%s\nbuffer_load_dword a72, v30, %s, s93 offen\ns_add_u32 s93, s93, %d\nbuffer_load_dword a73, v30, %s, s93 offen\ns_mov_b64 exec, -1" % (lanes(0, 56), srd(S_WD), 56*128, srd(S_WD))

WDS = 87040
def wdt_issue(g):
    g("v_lshrrev_b32 v5, 3, v0\nv_lshlrev_b32 v5, 10, v5\nv_bfe_u32 v6, v0, 4, 1\nv_lshlrev_b32 v6, 2, v6\nv_and_b32 v7, 7, v0\nv_xor_b32 v6, v6, v7\nv_lshlrev_b32 v6, 4, v6\nv_add_u32 v9, v5, v6")
    g("s_sub_u32 s82, s%d, 28\ns_mul_i32 s85, s82, %d\ns_lshl_b32 s80, s%d, 7\ns_add_u32 s85, s85, s80" % (S_IDX, 448*1024, S_XCD))
    g("s_mul_i32 s83, s%d, 3" % S_W)
    for j in range(3):
        g("s_add_u32 s84, s83, %d\ns_lshr_b32 s80, s84, %d\ns_add_u32 s80, s80, %s\ns_cmp_ge_u32 s80, 7\ns_cselect_b32 s81, 7, 0\ns_sub_u32 s80, s80, s81\ns_lshl_b32 s80, s80, 16\ns_and_b32 s84, s84, %d\ns_lshl_b32 s84, s84, 14\ns_add_u32 s80, s80, s84\ns_add_u32 s93, s80, s85" % (j, 1 if OPT["pord"] else 2, ("s%d" % S_XCD) if OPT["hrot"] else "0", 1 if OPT["pord"] else 3))
        g("buffer_load_dwordx4 v[%d:%d], v9, %s, s93 offen" % (128 + 8*j, 131 + 8*j, srd(S_WD)))
        g("s_add_u32 s93, s93, 8192\nbuffer_load_dwordx4 v[%d:%d], v9, %s, s93 offen" % (132 + 8*j, 135 + 8*j, srd(S_WD)))
def wdt_process(g):
    g("v_lshlrev_b32 v9, 4, v0\nv_add_u32 v8, s11, v9")
    for i in range(6): g("ds_write_b128 v8, v[%d:%d] offset:%d" % (128 + 4*i, 131 + 4*i, i*1024))
    g("v_lshrrev_b32 v7, 5, v0\nv_lshlrev_b32 v7, 2, v7\nv_bfe_u32 v10, v0, 2, 2\nv_add_u32 v7, v7, v10\nv_lshlrev_b32 v7, 7, v7")
    g("v_bfe_u32 v10, v0, 3, 1\nv_lshlrev_b32 v10, 6, v10\nv_add_u32 v7, v7, v10\nv_bfe_u32 v10, v0, 4, 1\nv_lshlrev_b32 v10, 5, v10\nv_add_u32 v7, v7, v10")
    g("v_and_b32 v10, 3, v0\nv_lshlrev_b32 v10, 3, v10\nv_add_u32 v7, v7, v10\nv_add_u32 v5, s11, v7\nv_xor_b32 v6, 64, v5")
    KS = 2048 if not OPT["wsp"] else 65536 + 2048
    g("s_sub_u32 s82, s%d, 28\ns_lshl_b32 s86, s%d, 2\ns_add_u32 s86, s86, s82\ns_lshl_b32 s83, s86, %d\ns_mul_i32 s80, s%d, %d\ns_add_u32 s83, s83, s80\ns_add_u32 s83, s83, 0x%x" % (S_IDX, S_XCD, 11 if OPT["wsp"] else 15, S_W, 3*KS, WDT_OFF))
    for k in range(3):
        for di in range(2):
            for h in range(2):
                b = 96 + 8*k + 4*di + 2*h
                g("ds_read_b64_tr_b16 v[%d:%d], v%d offset:%d" % (b, b+1, 5 + di, k*2048 + h*1024))
    for k in range(6):
        if k in (2, 4): g("s_add_u32 s83, s83, %d" % KS)
        g("buffer_store_dwordx4 v[%d:%d], v9, %s, s83 offen offset:%d sc1" % (96 + 4*k, 99 + 4*k, srd(S_WS), (k % 2)*1024))
    g("s_lshl_b32 s80, s86, 7\ns_lshl_b32 s81, s%d, 2\ns_add_u32 s80, s80, s81\ns_add_u32 s80, s80, 0x%x" % (S_W, FW_OFF))
def build_C():
    g = G(); g.nlab = 2000; g.role = 0; g.nst = 1; St.names[0] = "C:start"
    g("Lcompute:")
    def wpre(kk, di): return (48 + 8*kk + 4*di) if kk < 6 else (8*(kk - 6) + 4*di)
    def load_w(kk):
        q = []
        pre = "s_add_u32 s93, s94, %d\n" % (kk*(2048 if not OPT["wsp"] else 65536 + 2048))
        for di in range(2):
            q.append(pre + "buffer_load_dwordx4 a[%d:%d], v%d, %s, s93 offen sc1" % (wpre(kk, di), wpre(kk, di) + 3, 26 + di, srd(S_WS))); pre = ""
        return q
    def g2setup(g):
        chunk_ids(g)
        g("s_lshl_b32 s80, s%d, 1\ns_and_b32 s81, s%d, 1\ns_add_u32 s80, s80, s81\ns_lshl_b32 s80, s80, 9" % (S_MT, S_W))
        g("s_lshl_b32 s81, s%d, 1\ns_lshr_b32 s82, s%d, 1\ns_add_u32 s81, s81, s82\ns_mul_i32 s82, s81, 37\ns_lshr_b32 s82, s82, 8\ns_mul_i32 s82, s82, 100\ns_lshl_b32 s81, s81, 2\ns_add_u32 s80, s80, s81\ns_add_u32 s80, s80, s82\ns_add_u32 s87, s80, 0x%x\ns_add_u32 s86, s87, 0x8000" % (S_FT, S_W, FH_OFF))
        g("s_lshl_b32 s80, s%d, 2\ns_add_u32 s80, s80, %d\nv_mov_b32 v30, s80" % (S_W, SYW + 16))
        g("v_lshrrev_b32 v7, 5, v0\nv_lshlrev_b32 v7, 2, v7\nv_bfe_u32 v2, v0, 2, 2\nv_add_u32 v7, v7, v2\nv_lshlrev_b32 v7, 7, v7")
        g("v_bfe_u32 v2, v0, 3, 1\ns_lshr_b32 s80, s%d, 1\nv_xor_b32 v2, s80, v2\nv_lshlrev_b32 v2, 6, v2\nv_add_u32 v7, v7, v2\nv_bfe_u32 v2, v0, 4, 1\nv_lshlrev_b32 v2, 5, v2\nv_add_u32 v7, v7, v2" % S_W)
        g("v_and_b32 v2, 3, v0\nv_lshlrev_b32 v2, 3, v2\nv_add_u32 v7, v7, v2\nv_add_u32 v5, s95, v7\nv_xor_b32 v6, 64, v5")
        g("v_add_u32 v28, 0x%x, v5\nv_add_u32 v29, 0x%x, v6" % (WDB1 - WDA, WDB1 - WDA))
        g("v_lshlrev_b32 v1, 4, v0\ns_and_b32 s80, s%d, 1\ns_mul_i32 s81, s80, %d\ns_xor_b32 s80, s80, 1\ns_mul_i32 s80, s80, %d\nv_add_u32 v7, s80, v1\nv_add_u32 v1, s81, v1" % (S_W, 112*1024, 112*1024))
        g("s_mul_i32 s91, s%d, %d\ns_mul_i32 s80, s%d, %d\ns_add_u32 s91, s91, s80\ns_add_u32 s91, s91, 0x%x" % (S_TB2, 2*112*1024, S_W, 28*1024, H_OFF))
        g("s_lshl_b32 s80, s%d, 9\ns_lshl_b32 s81, s%d, 7\ns_add_u32 s80, s80, s81\ns_add_u32 s80, s80, 0x%x\ns_add_u32 s50, s48, s80\ns_addc_u32 s51, s49, 0" % (S_TB2, S_W, FH_OFF))
    def late_setup(g):
        g("v_lshlrev_b32 v26, 4, v0\ns_lshr_b32 s80, s%d, 1\ns_lshl_b32 s80, s80, 10\nv_add_u32 v26, s80, v26\nv_xor_b32 v27, 0x400, v26" % S_W)
        g("s_lshl_b32 s94, s%d, 2\ns_add_u32 s94, s94, s%d\ns_lshl_b32 s94, s94, %d\ns_add_u32 s94, s94, 0x%x" % (S_NB, S_W, 11 if OPT["wsp"] else 15, WDT_OFF))
        g2setup(g)
    g("s_waitcnt lgkmcnt(0)")
    g("global_load_ushort v39, v63, s[30:31]")
    for i in range(6): g("global_load_ushort v%d, v32, s[%d:%d]" % (33 + i, 18 + 2*i, 19 + 2*i))
    g("s_barrier")
    kgen_addr(g); kgen_compact_addr(g)
    gemm1_raddr(g)
    epoch_load(g); srds2(g)
    stamp(g, "C:pre")
    kgen_WE(g)
    g.wait(lg=0)
    stamp(g, "C:W done")
    g("v_mov_b32 v58, 1\ns_mov_b64 exec, 1\nds_add_u32 v57, v58\ns_mov_b64 exec, -1\ns_mov_b32 s%d, 0x100000" % S_SPIN)
    g("Lcs:")
    for l in ("ds_read_b32 v58, v57", "s_waitcnt lgkmcnt(0)", "v_readfirstlane_b32 s80, v58", "s_sub_u32 s%d, s%d, 1" % (S_SPIN, S_SPIN), "s_cbranch_scc1 Lcsd",
              "s_cmp_lt_u32 s80, 4", "s_cbranch_scc1 Lcs"): g.raw(l)
    g("Lcsd:"); g.lg_done = g.lg_seq
    tag_compute(g)
    stamp(g, "C:Bk")
    kgen_mfma(g); kgen_compact(g)
    g.wait(lg=0)
    stamp(g, "C:K done")
    g("s_cmp_ge_u32 s%d, 28\ns_cbranch_scc1 Lnog1" % S_IDX)
    ne = OPT["wearly"]
    side = {28: load_w(0) + load_w(1), 29: load_w(2) + load_w(3), 30: load_w(4) + load_w(5)} if ne else {}
    r2 = Rec2(); late_setup(r2)
    for i, t in enumerate(r2.q): side.setdefault(4 + 4*(i // 6) + (i % 6)//2, []).append(t)
    gemm1_main(g, side)
    stamp(g, "C:main1end")
    g("s_setprio %d" % OPT["cprio_epi"])
    hop = gemm1_epilogue(g, load_w)
    stamp(g, "C:epiend")
    g("v_mov_b32 v9, 1\nds_write_b32 v30, v9 offset:32")
    if OPT["half"]: g.raw("s_load_dwordx8 s[8:15], s[50:51], 0 glc")
    g.raw("s_waitcnt vmcnt(0)"); g.vm_done = g.vm_seq
    flag_store(g, 86, 8)
    g("s_branch Lg2")
    g("Lnog1:")
    g.raw("s_barrier")
    T_issue(g); wdt_issue(g); T_process(g); wdt_process(g); g("s_mov_b32 s14, s80")
    g.wait(vm=0); flag_store(g, 15, 8); flag_store(g, 14, 8)
    late_setup(g)
    for _ in range(8): g.raw("s_barrier")
    g("v_mov_b32 v9, 1\nds_write_b32 v30, v9 offset:32")
    g_idle(g)
    for kk in range(ne):
        for t in load_w(kk): g(t)
    if OPT["half"]: g.raw("s_load_dwordx8 s[8:15], s[50:51], 0 glc")
    g.raw("s_waitcnt vmcnt(0)"); g.vm_done = g.vm_seq
    g("Lg2:")
    g("s_setprio %d" % OPT["cprio2"])
    stamp(g, "C:flag0")
    if OPT["half"]: spoll(g, 7, 0, issued=True)
    else:
        for kk in range(ne, 12):
            for t in load_w(kk): g(t)
        spoll(g, 7, 0x8000)
    stamp(g, "C:polled")
    RING = 8
    assert OPT['la'] <= 8
    def hreg(kk, ti):
        i = kk % RING
        return ("v[%d:%d]" % (32 + 8*i + 4*ti, 32 + 8*i + 4*ti + 3)) if i < 8 else ("a[%d:%d]" % (16 + 8*(i-8) + 4*ti, 16 + 8*(i-8) + 4*ti + 3))
    def load_h(kk):
        q = []; p = kk >> 1
        pre = "s_lshl_b32 s90, s%d, 12\ns_add_u32 s90, s90, s91\n" % (18 + pm(p)[0]) if kk % 2 == 0 else ""
        for ti in range(2):
            q.append(pre + "buffer_load_dwordx4 %s, v%d, %s, s90 offen offset:%d sc1" % (hreg(kk, ti), (1, 7)[ti], srd(S_WS), pm(p)[1]*2048 + (kk & 1)*1024)); pre = ""
        return q
    PRE = OPT["pre"]
    for kk in range(PRE):
        for t in load_h(kk): g(t)
    wq = [load_w(kk) for kk in range(ne, 12)] if OPT["half"] else []
    g("s_lshr_b32 s80, s%d, 1\ns_mul_i32 s80, s80, 4224\ns_and_b32 s81, s%d, 1\ns_lshl_b32 s81, s81, 13\ns_add_u32 s80, s80, s81\nv_lshlrev_b32 v2, 4, v0\nv_xor_b32 v2, s80, v2\nv_add_u32 v2, s95, v2" % (S_W, S_W))
    LQ = OPT["lastq"]; K0 = 28 - LQ
    def wb(kk, di):
        if kk < 12: return "a", wpre(kk, di)
        if kk >= K0: return "a", 8*(kk - K0) + 4*di
        return "v", 10 + 8*(kk & 1) + 4*di
    def wreg(kk, di):
        t, b = wb(kk, di); return "%s[%d:%d]" % (t, b, b + 3)
    def reads(kk):
        c, s = divmod(kk, 4); q = []
        for di in range(2):
            va, off = {3: ((5, 6), 0), 4: ((5, 6), 8192), 5: ((28, 29), 0), 6: ((28, 29), 8192)}[c]
            t, b = wb(kk, di)
            for h in range(2):
                q.append("ds_read_b64_tr_b16 %s[%d:%d], v%d offset:%d" % (t, b + 2*h, b + 2*h + 1, va[di], off + s*2048 + h*1024))
        return q
    def mf(kk, di, ti):
        a = 96 + 32*di + 16*ti
        g("v_mfma_f32_32x32x16_bf16 v[%d:%d], %s, %s, %s" % (a, a+15, wreg(kk, di), hreg(kk, ti), "0" if kk == 0 else "v[%d:%d]" % (a, a+15)))
    nh = PRE
    fa = rec(fin_addr, 40)
    for kk in range(K0):
        if kk in (1, 4, 8, 12, 16, 20): stamp(g, "C:k%d" % kk)
        nx = reads(kk + 1) if 12 <= kk + 1 < K0 else []
        lq = []
        for _ in range(OPT["wrate"]):
            if wq: lq += wq.pop(0)
        if OPT["half"] and kk == 14 - OPT["la"] - 2: g.raw("s_load_dwordx8 s[8:15], s[50:51], 0x8000 glc")
        for _ in range(2):
            if nh < 28 and nh < kk + OPT["la"]:
                if nh == 14 and OPT["half"]: lq.append(lambda g: (spoll(g, 7, 0x8000, issued=True), stamp(g, "C:pB")))
                lq += load_h(nh); nh += 1
        if kk == K0 - 2: lq += sum([reads(k) for k in range(K0, K0 + LQ//2)], [])
        if kk == K0 - 1: lq += sum([reads(k) for k in range(K0 + LQ//2, 28)], [])
        n = 0
        for di, ti in ((0,0),(0,1),(1,0),(1,1)):
            mf(kk, di, ti)
            if n == 0:
                for KR, fo in ((12, 16), (20, 0)):
                    if kk + 2 == KR: g("ds_read_b32 v8, v30 offset:%d" % fo)
                    if kk + 1 == KR:
                        L, D = g.lab("Lr"), g.lab("Lrd")
                        g("v_readfirstlane_b32 s80, v8")
                        g("s_mov_b32 s%d, 0x100000\ns_cmp_lg_u32 s80, 0\ns_cbranch_scc1 %s" % (S_SPIN, D))
                        g(L + ":")
                        for l in ("ds_read_b32 v8, v30 offset:%d" % fo, "s_waitcnt lgkmcnt(0)", "v_readfirstlane_b32 s80, v8", "s_sub_u32 s%d, s%d, 1" % (S_SPIN, S_SPIN), "s_cbranch_scc1 %s" % D,
                                  "s_cmp_eq_u32 s80, 0", "s_cbranch_scc1 %s" % L): g.raw(l)
                        g(D + ":")
                for r in nx: g(r)
            else:
                for _ in range(3 if n < 3 else 99):
                    if lq: emit(g, lq.pop(0))
            n += 1
    assert nh == 28
    stamp(g, "C:k%d" % K0)
    FB = 10
    fa = rec(fin_addr, FB)
    pend = []
    cnt = [0]
    def pw(di, ti):
        q = []
        for j in range(4):
            t = 16 + (cnt[0] & 3); cnt[0] += 1
            a = 96 + 32*di + 16*ti + 4*j
            q.append("v_xor_b32 v%d, 0x%x, v2\nds_write_b128 v%d, v[%d:%d]" % (t, j*1056 ^ di*4224 ^ ti*8192, t, a, a + 3))
        return q
    quads = ((0,0),(0,1),(1,0),(1,1))
    for qi, (di, ti) in enumerate(quads):
        for kk in range(K0, 28):
            mf(kk, di, ti)
            if qi == 0 or (qi == 1 and kk < K0 + 2):
                for _ in range(6):
                    if fa: g(fa.pop(0))
            elif pend and (kk - K0 >= 2 or len(pend) > 4 or LQ < 4): g(pend.pop(0));
        pend += pw(di, ti)
    for l in fa: g(l)
    stamp(g, "C:main2end")
    for t in pend: g(t)
    g.wait(lg=0)
    stamp(g, "C:a13")
    g("s_barrier")
    stamp(g, "C:B13")
    fin(g, FB, 64, 44, 3)
    stamp(g, "C:stores")
    if STAMPS:
        g.wait(vm=0); stamp(g, "C:drained")
    stamp_store(g)
    if OPT.get("hold"):
        for l in ("Lhold:", "s_memrealtime s[6:7]", "s_waitcnt lgkmcnt(0)", "s_sub_u32 s6, s6, s4", "s_cmp_lt_u32 s6, %d" % OPT["hold"], "s_cbranch_scc1 Lhold"):
            g.lines.append(l)
    g("Lend:")
    g("s_endpgm")
    return g.text()

if __name__ == "__main__":
    if len(sys.argv) > 2 and sys.argv[2] != "-": STAMPS = sys.argv[2]
    for a in sys.argv[3:]:
        k, v = a.split("="); OPT[k] = int(v)
    h1, h2 = build_H(); body = h1 + build_C() + h2
    open(sys.argv[1], "w").write(build_file([(KN, 256, 512, 163840, body, 256, 100, 160)], single=True))
    if STAMPS:
        import json; json.dump(St.names, open("stnames.json", "w"))
```

```python
import sys, struct, math
from gen import *

def f2u(x): return struct.unpack("<I", struct.pack("<f", x))[0]
UT_OFF = 0x1400000; UT_STRIDE = 4224
AT_STRIDE = 4224
CU = 16640; CU_CH = 4352
H_OFF = 0x400000
AT_OFF = 0x1700000
G_OFF = 0xEA0000
FT_OFF = 0xE20000
FH_OFF = 0xE40000
FA_OFF = 0xE60000
EP_OFF = 0xE10000
FW_OFF = 0xE80000
WDT_OFF = 0x1A00000
DBG_OFF = 0x1000000
WS_BYTES = 268435456
BUF = [0, 49152, 98304]
TBLK = 147456
KT = 98304; KT_CH = 28672; KT_IM = 14336
KC = 160768; KC_CH = 1536
CSW = 160000
KF = 154624; KF_CH = 4608; KF_PL = 2304
UEE = [98304, 131840]; UEO = [115072, 128]
XCH = [16640, 20736, 24832, 148480]
WDA = 32768; WDB1 = 98304
RED_AT = 49152; RED_G = 57344
S_X, S_WG, S_WU, S_WD, S_WS, S_OUT = 52, 56, 60, 64, 68, 72
S_X1 = 36
S_XCD, S_IDX, S_W, S_CH = 76, 77, 78, 79
S_MT, S_FT = 88, 89
S_TAG, S_TB2, S_NB, S_SPIN = 96, 97, 98, 99
LOG2E = 1.4426950408889634
STAMPS = False
OPT = dict(hprio=0, cprio_epi=1, rot=1, pk=1, seq=1, pre=8, pfirst=0, psleep=1, b11first=0, l2t=0, wsleep=0, a5=0, wpos=1, spoll=1, nr7=8, cprio2=0, cpf=248, la=8, n1=0, mt=1, nr6=12, n9=16, asl=0, asl2=16, bprio=3, fai=1, bw=0, convp=2, wearly=6, w2=0, w3=5, gt=0, map=1, osc=1, fa=6, wrate=2, half=0, lastq=4, gow=1, nwa=8, pord=0, t3=9, te=0, hrot=0, wsp=0, nb3=1, r1=0, ksplit=0, mg=0, tp=0, mtp=0)
def srd(r): return "s[%d:%d]" % (r, r+3)
class St:
    names = {}
def stamp(g, name):
    if not STAMPS: return
    g.raw("%s s[6:7]" % STAMPS); g.smem_pending = True; g.wait(lg=0)
    g.raw("v_writelane_b32 v31, s6, %d" % g.nst)
    St.names[g.role*48 + g.nst] = name
    g.nst += 1
    assert g.nst <= 48
def stamp_store(g):
    if not STAMPS: return
    L = g.lab("Lst")
    g("s_cmp_lg_u32 s%d, 0\ns_cbranch_scc1 %s" % (S_W, L))
    g.raw("v_writelane_b32 v31, s4, 0")
    g.raw("s_getreg_b32 s6, hwreg(HW_REG_XCC_ID)"); g.raw("v_writelane_b32 v31, s6, 47")
    g.raw("s_mul_i32 s3, s2, 384"); g.raw("s_add_u32 s3, s3, 0x%x" % (DBG_OFF + g.role*192)); g.raw("v_lshlrev_b32 v1, 2, v0")
    g.raw("s_mov_b32 exec_hi, 0xffff")
    g.raw("buffer_store_dword v31, v1, %s, s3 offen" % srd(S_WS))
    if OPT.get("dbg") and g.role == 0:
        inv = {v: k for k, v in St.names.items()}
        sel = ["C:start", "C:Bk", "C:B0", "C:B1", "C:B2", "C:B4", "C:B6", "C:main1end", "C:epiend", "C:flag0", "C:polled", "C:k16", "C:main2end", "C:B13", "C:drained"]
        g.raw("s_cmp_ge_u32 s2, 224"); g.raw("s_cbranch_scc1 %s" % L)
        g.raw("s_not_b32 s6, s4"); g.raw("v_writelane_b32 v30, s6, 0")
        for i, n in enumerate(sel):
            g.raw("v_readlane_b32 s6, v31, %d" % inv[n]); g.raw("s_nop 3"); g.raw("v_writelane_b32 v30, s6, %d" % (i + 1))
        g.raw("s_mov_b64 exec, 0xffff")
        g.raw("global_atomic_umax v1, v30, s[46:47]")
    g.raw("s_mov_b64 exec, -1")
    g(L + ":")

def tag_compute(g):
    g("s_mul_i32 s%d, s%d, 0x9E3779B1\ns_add_u32 s%d, s%d, 0x7F4A7C15" % (S_TAG, S_TAG, S_TAG, S_TAG))
def poll(g, vaddr, soff, vtmp, width=1, sleep=1):
    L, D = g.lab("Lp"), g.lab("Lpd")
    g("s_mov_b32 s%d, 0x40000" % S_SPIN)
    g(L + ":")
    if width == 1: g.raw("buffer_load_dword v%d, v%d, %s, s%d offen sc1" % (vtmp, vaddr, srd(S_WS), soff))
    else: g.raw("buffer_load_dwordx2 v[%d:%d], v%d, %s, s%d offen sc1" % (vtmp, vtmp+1, vaddr, srd(S_WS), soff))
    g.raw("s_waitcnt vmcnt(0)"); g.vm_done = g.vm_seq
    g.raw("v_cmp_ne_u32 vcc, s%d, v%d" % (S_TAG, vtmp + width - 1))
    g.raw("s_nop 4")
    g.raw("s_cmp_eq_u64 vcc, 0")
    g.raw("s_cbranch_scc1 %s" % D)
    g.raw("s_sleep %d" % sleep)
    g.raw("s_sub_u32 s%d, s%d, 1" % (S_SPIN, S_SPIN))
    g.raw("s_cmp_lg_u32 s%d, 0" % S_SPIN)
    g.raw("s_cbranch_scc1 %s" % L)
    g(D + ":")
def spoll(g, n, off=0, issued=False):
    L, D, M = g.lab("Ls"), g.lab("Lsd"), g.lab("Lsm")
    g("s_mov_b32 s%d, 0x40000" % S_SPIN)
    if issued: g.raw("s_branch %s" % M)
    g(L + ":")
    g.raw("s_load_dwordx8 s[8:15], s[50:51], %d glc" % off)
    g(M + ":")
    g.raw("s_waitcnt lgkmcnt(0)"); g.lg_done = g.lg_seq
    for i in range(n): g.raw("s_xor_b32 s%d, s%d, s%d" % (8 + i, 8 + i, S_TAG))
    for i in range(1, n): g.raw("s_or_b32 s8, s8, s%d" % (8 + i))
    g.raw("s_cbranch_scc0 %s" % D)
    g.raw("s_sleep %d" % OPT["psleep"])
    g.raw("s_sub_u32 s%d, s%d, 1" % (S_SPIN, S_SPIN))
    g.raw("s_cbranch_scc0 %s" % L)
    g(D + ":")
def spoll_touch(g):
    g("v_lshrrev_b32 v8, 3, v0\nv_lshlrev_b32 v8, 12, v8\nv_and_b32 v9, 7, v0\nv_lshlrev_b32 v9, 7, v9\nv_add_u32 v8, v8, v9")
    g("s_and_b32 s80, s%d, 3\ns_lshl_b32 s80, s80, 10\ns_lshr_b32 s81, s%d, 2\ns_mul_i32 s81, s81, %d\ns_add_u32 s80, s80, s81\ns_add_u32 s82, s80, s91" % (S_NB, S_NB, 112*1024))
    g("s_mov_b64 s[28:29], 0\ns_mov_b32 s%d, 0x40000" % S_SPIN)
    g("Ltp:")
    g.raw("s_load_dwordx8 s[8:15], s[50:51], 0x8000 glc")
    g.raw("s_mov_b64 s[30:31], 0")
    g.raw("s_waitcnt lgkmcnt(0)"); g.lg_done = g.lg_seq
    for c in range(7):
        g.raw("s_cmp_eq_u32 s%d, s%d" % (8 + c, S_TAG)); g.raw("s_cselect_b32 s80, 0x%x, 0" % (0xff << (8*(c & 3)))); g.raw("s_or_b32 s%d, s%d, s80" % (30 + (c >> 2), 30 + (c >> 2)))
    for l in ("s_or_b32 s80, s31, 0xff000000", "s_and_b32 s80, s80, s30", "s_cmp_eq_u32 s80, -1", "s_cbranch_scc1 Ltd",
              "s_andn2_b64 s[28:29], s[30:31], s[28:29]", "s_cbranch_scc0 Ltn", "s_mov_b64 exec, s[28:29]",
              "buffer_load_dword v9, v8, %s, s82 offen sc1" % srd(S_WS), "s_mov_b64 exec, -1"): g.raw(l)
    g("Ltn:")
    for l in ("s_mov_b64 s[28:29], s[30:31]", "s_sub_u32 s%d, s%d, 1" % (S_SPIN, S_SPIN), "s_cbranch_scc0 Ltp"): g.raw(l)
    g("Ltd:")
def spoll4(g):
    L, D = g.lab("Ls"), g.lab("Lsd")
    R = [8, 32, 40, 56]
    g("s_mov_b32 s%d, 0x40000" % S_SPIN)
    g(L + ":")
    for j, r in enumerate(R): g.raw("s_load_dwordx8 s[%d:%d], s[50:51], %d glc" % (r, r + 7, 128*j))
    g.raw("s_mov_b32 s16, s%d" % S_TAG); g.raw("s_mov_b32 s17, s%d" % S_TAG)
    g.raw("s_waitcnt lgkmcnt(0)"); g.lg_done = g.lg_seq
    P = [r + 2*i for r in R for i in range(4)]
    for p in P: g.raw("s_xor_b64 s[%d:%d], s[%d:%d], s[16:17]" % (p, p+1, p, p+1))
    for p in P[1:]: g.raw("s_or_b64 s[8:9], s[8:9], s[%d:%d]" % (p, p+1))
    g.raw("s_cbranch_scc0 %s" % D)
    g.raw("s_sleep %d" % OPT["psleep"])
    g.raw("s_sub_u32 s%d, s%d, 1" % (S_SPIN, S_SPIN))
    g.raw("s_cbranch_scc0 %s" % L)
    g(D + ":")
def flag_store(g, soff, vt):
    g("v_mov_b32 v%d, s%d\nv_mov_b32 v%d, 0" % (vt, S_TAG, vt+1))
    g("s_mov_b64 exec, 1")
    g("buffer_store_dword v%d, v%d, %s, s%d offen sc1" % (vt, vt+1, srd(S_WS), soff))
    g("s_mov_b64 exec, -1")
class Rec:
    def __init__(self): self.q = []
    def __call__(self, t): self.q += [l for l in t.split("\n") if l.strip()]
def rec(f, *a):
    r = Rec(); f(r, *a); return r.q
def emit(g, f):
    return f(g) if callable(f) else g(f)
def weave(g, dmas, work):
    op = None; n = len(dmas); work = list(work)
    per = -(-len(work) // n) if n else 0
    for d in dmas:
        op = emit(g, d)
        for _ in range(per):
            if work: emit(g, work.pop(0))
    for w in work: emit(g, w)
    return op

def prologue(g):
    g("s_cmp_ge_u32 s2, 256")
    g("s_cbranch_scc1 Lend")
    if STAMPS or OPT.get("hold"): g.raw("%s s[4:5]" % (STAMPS or "s_memrealtime"))
    if OPT.get("badmap"): g("s_lshr_b32 s3, s2, 5\ns_and_b32 s2, s2, 31\ns_lshl_b32 s2, s2, 3\ns_or_b32 s2, s2, s3")
    g("v_lshrrev_b32 v1, 6, v0")
    g("s_load_dwordx16 s[16:31], s[0:1], 0")
    g("s_load_dwordx16 s[32:47], s[0:1], 64")
    g("s_load_dwordx2 s[48:49], s[0:1], 128")
    g("v_readfirstlane_b32 s3, v1")
    g("s_cmp_lt_u32 s3, 4")
    g("s_cbranch_scc1 Lcompute")
    if OPT["cpf"]:
        g("s_cmp_lt_u32 s2, %d\ns_cbranch_scc1 Lcp" % OPT["cpf"])
        for l in ("s_getpc_b64 s[8:9]", "Lpc:", "s_sub_u32 s8, s8, Lpc-%s" % KN, "s_subb_u32 s9, s9, 0", "v_and_b32 v5, 0xff, v0", "v_lshlrev_b32 v5, 7, v5",
                  "v_min_u32 v5, Lcodeend-%s-4, v5" % KN, "s_nop 0", "global_load_dword a94, v5, s[8:9]"): g.lines.append("    " + l if not l.endswith(":") else l)
        g("Lcp:")
    prologue2(g)
def prologue2(g):
    g("v_and_b32 v0, 63, v0")
    g("s_and_b32 s%d, s2, 7" % S_XCD)
    g("s_lshr_b32 s%d, s2, 3" % S_IDX)
    if OPT["map"]:
        g("s_lshr_b32 s80, s%d, 1\ns_mul_i32 s80, s80, 28\ns_add_u32 s80, s80, s%d\ns_lshr_b32 s%d, s80, 3\ns_and_b32 s80, s80, 7\ns_and_b32 s81, s%d, 1\ns_lshl_b32 s81, s81, 3\ns_add_u32 s%d, s80, s81" % (S_XCD, S_IDX, S_FT, S_XCD, S_MT))
    else:
        g("s_mul_i32 s80, s%d, 37\ns_lshr_b32 s80, s80, 8" % S_IDX)
        g("s_mul_i32 s81, s80, 7\ns_sub_u32 s81, s%d, s81" % S_IDX)
        g("s_lshr_b32 s%d, s%d, 1\ns_lshl_b32 s%d, s%d, 2\ns_add_u32 s%d, s%d, s80" % (S_MT, S_XCD, S_MT, S_MT, S_MT, S_MT))
        g("s_and_b32 s%d, s%d, 1\ns_mul_i32 s%d, s%d, 7\ns_add_u32 s%d, s%d, s81" % (S_FT, S_XCD, S_FT, S_FT, S_FT, S_FT))
    if OPT["nb3"]:
        g("s_mul_i32 s80, s%d, 37\ns_lshr_b32 s80, s80, 8\ns_mul_i32 s81, s80, 7\ns_sub_u32 s81, s%d, s81" % (S_IDX, S_IDX))
        g("s_cmp_ge_u32 s81, 3\ns_addc_u32 s%d, s81, 0" % S_NB)
        g("s_cmp_ge_u32 s%d, 28\ns_cselect_b32 s%d, 3, s%d\ns_cselect_b32 s80, s81, s80" % (S_IDX, S_NB, S_NB))
        g("s_lshl_b32 s%d, s%d, 2\ns_add_u32 s%d, s%d, s80" % (S_TB2, S_XCD, S_TB2, S_TB2))
    else:
        g("s_lshl_b32 s%d, s%d, 2\ns_lshr_b32 s80, s%d, 3\ns_add_u32 s%d, s%d, s80\ns_and_b32 s%d, s%d, 7" % (S_TB2, S_XCD, S_IDX, S_TB2, S_TB2, S_NB, S_IDX))
    g("s_and_b32 s%d, s3, 3" % S_W)
    g("s_lshl_b32 s80, s%d, 6\ns_lshl_b32 s81, s%d, 1\ns_add_u32 s80, s80, s81\ns_lshr_b32 s81, s%d, 1\ns_add_u32 s%d, s80, s81" % (S_XCD, S_IDX, S_W, S_CH))
    g("s_lshl_b32 s80, s%d, 8\ns_and_b32 s81, s%d, 1\ns_lshl_b32 s81, s81, 7\ns_add_u32 s80, s80, s81" % (S_CH, S_W))
    g("v_lshlrev_b32 v32, 1, v0\nv_add_u32 v32, s80, v32")
    g("s_lshl_b32 s80, s%d, 1\nv_mov_b32 v63, s80" % S_CH)
    g("s_lshr_b32 s80, s%d, 1\ns_mul_i32 s80, s80, %d\ns_and_b32 s81, s%d, 1\ns_mul_i32 s81, s81, %d\ns_add_u32 s80, s80, s81\ns_add_u32 s80, s80, %d" % (S_W, KT_CH, S_W, 64*112, KT))
    g("v_mul_u32_u24 v62, 112, v0\nv_add_u32 v62, s80, v62")
def epoch_load(g):
    g("s_add_u32 s50, s48, 0x%x\ns_addc_u32 s51, s49, 0" % EP_OFF)
    g("s_load_dword s%d, s[50:51], 0" % S_TAG)
def srds2(g):
    g.srd(S_X, 16, 2048*512*2)
    g.srd(S_WD, 40, 512*1792*2)
    g.srd(S_WS, 48, WS_BYTES)
    g.srd(S_OUT, 44, 2048*512*2)
def h_dma_addr(g):
    g("v_lshrrev_b32 v4, 3, v0\nv_lshlrev_b32 v4, 10, v4\nv_and_b32 v5, 7, v0\nv_lshrrev_b32 v6, 4, v0\nv_xor_b32 v7, v5, v6")
    g("v_lshlrev_b32 v7, 4, v7\nv_add_u32 v2, v4, v7\nv_xor_b32 v3, 64, v2")
    g("s_lshl_b32 s90, s%d, 17\ns_lshl_b32 s80, s%d, 15\ns_add_u32 s90, s90, s80" % (S_MT, S_W))
    g("v_and_b32 v5, 15, v0\nv_lshlrev_b32 v7, 2, v6\nv_xor_b32 v5, v5, v7\nv_lshlrev_b32 v5, 4, v5")
    g("v_mul_u32_u24 v6, 3584, v6\nv_add_u32 v4, v6, v5")
    g("s_lshl_b32 s91, s%d, 8\ns_mul_i32 s80, s%d, %d\ns_add_u32 s91, s91, s80" % (S_FT, S_W, 16*3584))
    g("s_lshl_b32 s92, s%d, 12" % S_W)

def kbase(A):
    A("v_lshlrev_b32 v39, 16, v39\nv_mul_f32 v39, 0x%x, v39\nv_exp_f32 v39, v39\nv_lshlrev_b32 v33, 16, v33\nv_lshlrev_b32 v34, 16, v34" % f2u(LOG2E))
    A("v_cvt_pk_bf16_f32 v39, v39, v39\nv_lshlrev_b32 v39, 16, v39")
    A("v_mul_f32 v33, v39, v33\nv_mul_f32 v34, v39, v34")
    A("v_mul_f32 v33, 0x%x, v33\nv_mul_f32 v34, 0x%x, v34" % (f2u(LOG2E), f2u(1/(2*math.pi))))
def kpower(A, e, d, t):
    if e == 1: A("v_exp_f32 v%d, v33\nv_fract_f32 v%d, v34" % (t, t+1))
    else:
        A("v_mul_f32 v%d, 0x%x, v33\nv_mul_f32 v%d, 0x%x, v34" % (t, f2u(e), t+1, f2u(e)))
        A("v_exp_f32 v%d, v%d\nv_fract_f32 v%d, v%d" % (t, t, t+1, t+1))
    A("v_cos_f32 v%d, v%d\nv_sin_f32 v%d, v%d" % (d, t+1, d+1, t+1))
    A("v_mul_f32 v%d, v%d, v%d\nv_mul_f32 v%d, v%d, v%d" % (d, t, d, d+1, t, d+1))
def cm1(d, x, y): return "v_pk_mul_f32 v[%d:%d], v[%d:%d], v[%d:%d] op_sel:[0,0] op_sel_hi:[0,1]" % (d, d+1, x, x+1, y, y+1)
def cm2(d, x, y): return "v_pk_fma_f32 v[%d:%d], v[%d:%d], v[%d:%d], v[%d:%d] op_sel:[1,1,0] op_sel_hi:[1,0,1] neg_lo:[1,0,0]" % (d, d+1, x, x+1, y, y+1, d, d+1)
def cmul2(A, a, b):
    A(cm1(*a)); A(cm1(*b)); A(cm2(*a)); A(cm2(*b))
def kgen_W(A):
    kbase(A)
    for r in range(35, 39): A("v_lshlrev_b32 v%d, 16, v%d" % (r, r))
    A("v_mul_f32 v35, v39, v35\nv_mul_f32 v36, v39, v36")
    R = lambda i: 88 + 2*i
    A("v_mul_f32 v88, v37, v35\nv_mul_f32 v89, v37, v36\nv_fma_f32 v88, -v38, v36, v88\nv_fma_f32 v89, v38, v35, v89")
    Z1, Z2, ZB = 40, 42, 44
    kpower(A, 1, Z1, 46); kpower(A, 2, Z2, 48); kpower(A, 256, ZB, 50)
    def pack(i):
        x, y = R(2*i), R(min(2*i+1, 20))
        A("v_cvt_pk_bf16_f32 v%d, v%d, v%d" % (64 + i, x, y)); A("v_cvt_pk_bf16_f32 v%d, -v%d, -v%d" % (76 + i, x+1, y+1))
    cmul2(A, (R(1), R(0), Z1), (R(2), R(0), Z2))
    cmul2(A, (R(8), R(0), ZB), (R(3), R(1), Z2)); pack(0)
    cmul2(A, (R(4), R(2), Z2), (R(12), R(8), ZB)); pack(1)
    cmul2(A, (R(5), R(3), Z2), (R(9), R(2), ZB))
    cmul2(A, (R(6), R(4), Z2), (R(14), R(12), ZB)); pack(2); pack(4)
    cmul2(A, (R(7), R(5), Z2), (R(10), R(4), ZB))
    cmul2(A, (R(16), R(14), ZB), (R(11), R(6), ZB)); pack(3)
    cmul2(A, (R(13), R(10), ZB), (R(17), R(16), ZB)); pack(5)
    cmul2(A, (R(15), R(13), ZB), (R(18), R(17), ZB)); pack(6); pack(8)
    A(cm1(R(19), R(18), ZB)); pack(7); A(cm2(R(19), R(18), ZB))
    A("ds_write_b128 v62, v[64:67]\nds_write_b128 v62, v[76:79] offset:%d" % KT_IM)
    A(cm1(R(20), R(19), ZB)); pack(9); A(cm2(R(20), R(19), ZB))
    A("ds_write_b128 v62, v[68:71] offset:16\nds_write_b128 v62, v[80:83] offset:%d" % (KT_IM + 16))
    pack(10)
    A("ds_write_b128 v62, v[72:75] offset:32\nds_write_b128 v62, v[84:87] offset:%d" % (KT_IM + 32))
def kgen_E(A):
    kbase(A)
    Z8, Z16 = 40, 42
    kpower(A, 8, Z8, 46); kpower(A, 16, Z16, 48)
    A("v_cvt_pk_bf16_f32 v64, 1.0, v%d\nv_cvt_pk_bf16_f32 v80, 0, v%d" % (Z8, Z8 + 1))
    ev, od = Z16, Z8
    A(cm1(50, od, Z16)); A(cm2(50, od, Z16)); od = 50
    for i in range(1, 16):
        ne, no = (52, 54) if i % 2 else (56, 58)
        if i < 15: A(cm1(ne, ev, Z16)); A(cm1(no, od, Z16))
        A("v_cvt_pk_bf16_f32 v%d, v%d, v%d" % (64 + i, ev, od)); A("v_cvt_pk_bf16_f32 v%d, v%d, v%d" % (80 + i, ev + 1, od + 1))
        if i < 15: A(cm2(ne, ev, Z16)); A(cm2(no, od, Z16))
        ev, od = ne, no
        if i % 4 == 3:
            j = i // 4
            A("ds_write_b128 v62, v[%d:%d] offset:%d" % (64 + 4*j, 67 + 4*j, 48 + 16*j))
            A("ds_write_b128 v62, v[%d:%d] offset:%d" % (80 + 4*j, 83 + 4*j, KT_IM + 48 + 16*j))
def kgen_WE(g):
    kbase(g)
    for r in range(35, 39): g("v_lshlrev_b32 v%d, 16, v%d" % (r, r))
    Z1, Z2, ZB, Z8, Z16 = 40, 42, 44, 148, 150
    kpower(g, 8, Z8, 46); kpower(g, 16, Z16, 48); kpower(g, 1, Z1, 50); kpower(g, 2, Z2, 46); kpower(g, 256, ZB, 48)
    g("v_mul_f32 v35, v39, v35\nv_mul_f32 v36, v39, v36")
    g("v_mul_f32 v88, v37, v35\nv_mul_f32 v89, v37, v36\nv_fma_f32 v88, -v38, v36, v88\nv_fma_f32 v89, v38, v35, v89")
    stamp(g, "C:pow")
    A = Rec()
    R = lambda i: 88 + 2*i
    def pack(i):
        x, y = R(2*i), R(min(2*i+1, 20))
        A("v_cvt_pk_bf16_f32 v%d, v%d, v%d" % (64 + i, x, y)); A("v_cvt_pk_bf16_f32 v%d, -v%d, -v%d" % (76 + i, x+1, y+1))
    cmul2(A, (R(1), R(0), Z1), (R(2), R(0), Z2))
    cmul2(A, (R(8), R(0), ZB), (R(3), R(1), Z2)); pack(0)
    cmul2(A, (R(4), R(2), Z2), (R(12), R(8), ZB)); pack(1)
    cmul2(A, (R(5), R(3), Z2), (R(9), R(2), ZB))
    cmul2(A, (R(6), R(4), Z2), (R(14), R(12), ZB)); pack(2); pack(4)
    cmul2(A, (R(7), R(5), Z2), (R(10), R(4), ZB))
    cmul2(A, (R(16), R(14), ZB), (R(11), R(6), ZB)); pack(3)
    A("ds_write_b128 v62, v[64:67]\nds_write_b128 v62, v[76:79] offset:%d" % KT_IM)
    cmul2(A, (R(13), R(10), ZB), (R(17), R(16), ZB)); pack(5)
    cmul2(A, (R(15), R(13), ZB), (R(18), R(17), ZB)); pack(6); pack(8)
    A(cm1(R(19), R(18), ZB)); pack(7); A(cm2(R(19), R(18), ZB))
    A("ds_write_b128 v62, v[68:71] offset:16\nds_write_b128 v62, v[80:83] offset:%d" % (KT_IM + 16))
    A(cm1(R(20), R(19), ZB)); pack(9); A(cm2(R(20), R(19), ZB))
    pack(10)
    A("ds_write_b128 v62, v[72:75] offset:32\nds_write_b128 v62, v[84:87] offset:%d" % (KT_IM + 32))
    B = Rec()
    TR = lambda i: 132 + 8*((i >> 2) & 1) + (i & 3)
    B("v_cvt_pk_bf16_f32 v%d, 1.0, v%d\nv_cvt_pk_bf16_f32 v%d, 0, v%d" % (TR(0), Z8, TR(0) + 4, Z8 + 1))
    ev, od = Z16, 158
    B(cm1(158, Z8, Z16)); B(cm2(158, Z8, Z16))
    for i in range(1, 16):
        ne, no = (152, 154) if i % 2 else (156, 158)
        if i < 15: B(cm1(ne, ev, Z16)); B(cm1(no, od, Z16))
        B("v_cvt_pk_bf16_f32 v%d, v%d, v%d" % (TR(i), ev, od)); B("v_cvt_pk_bf16_f32 v%d, v%d, v%d" % (TR(i) + 4, ev + 1, od + 1))
        if i < 15: B(cm2(ne, ev, Z16)); B(cm2(no, od, Z16))
        ev, od = ne, no
        if i % 4 == 3:
            j = i // 4; t = TR(i) - 3
            B("ds_write_b128 v62, v[%d:%d] offset:%d" % (t, t + 3, 48 + 16*j))
            B("ds_write_b128 v62, v[%d:%d] offset:%d" % (t + 4, t + 7, KT_IM + 48 + 16*j))
    qa, qb = A.q, B.q
    while qa or qb:
        for _ in range(3):
            if qb: g(qb.pop(0))
        for _ in range(2):
            if qa: g(qa.pop(0))
def kgen_addr(g):
    g("s_lshr_b32 s80, s%d, 1\ns_mul_i32 s80, s80, %d\ns_add_u32 s80, s80, %d" % (S_W, KT_CH, KT))
    g("v_lshrrev_b32 v52, 2, v0\nv_mul_u32_u24 v52, 112, v52\nv_and_b32 v53, 3, v0\nv_lshlrev_b32 v53, 3, v53\nv_add_u32 v52, v52, v53\nv_add_u32 v52, s80, v52")
    g("s_and_b32 s81, s%d, 1\ns_lshl_b32 s81, s81, 5\ns_add_u32 s81, s81, 48\nv_add_u32 v53, s81, v52" % S_W)
def kgen_mfma(g):
    def kmf(ks):
        b = 12 * ks
        c0 = "0" if ks == 0 else "v[32:35]"; c1 = "0" if ks == 0 else "v[36:39]"
        g("v_mfma_f32_16x16x32_bf16 v[32:35], a[%d:%d], a[%d:%d], %s" % (b, b+3, b+8, b+11, c0))
        g("v_mfma_f32_16x16x32_bf16 v[36:39], a[%d:%d], a[%d:%d], %s" % (b+4, b+7, b+8, b+11, c1))
    for ks in range(8):
        off = (ks >> 2) * KT_IM + (ks & 3) * 32 * 112
        b = 12 * ks
        for h in range(2):
            g("ds_read_b64_tr_b16 a[%d:%d], v52 offset:%d" % (b + 2*h, b + 2*h + 1, off + h*16*112))
            g("ds_read_b64_tr_b16 a[%d:%d], v52 offset:%d" % (b + 4 + 2*h, b + 4 + 2*h + 1, off + h*16*112 + 32))
            g("ds_read_b64_tr_b16 a[%d:%d], v53 offset:%d" % (b + 8 + 2*h, b + 8 + 2*h + 1, off + h*16*112))
        if ks >= 2: kmf(ks - 2)
    kmf(6); kmf(7)
def kgen_compact_addr(g):
    g("s_and_b32 s81, s%d, 1\ns_lshl_b32 s81, s81, 4" % S_W)
    g("v_and_b32 v152, 15, v0\nv_add_u32 v152, s81, v152")
    g("v_lshrrev_b32 v153, 4, v0")
    g("v_lshlrev_b32 v154, 3, v152\nv_lshlrev_b32 v155, 2, v153\nv_add_u32 v154, v154, v155")
    g("v_lshlrev_b32 v155, 2, v152\nv_add_u32 v155, 0x100, v155")
    g("v_lshlrev_b32 v156, 1, v152\nv_add_u32 v156, 0x180, v156")
    g("v_cmp_eq_u32 vcc, 2, v153\nv_cndmask_b32 v154, v154, v155, vcc")
    g("v_cmp_eq_u32 vcc, 3, v153\nv_cndmask_b32 v154, v154, v156, vcc")
    g("v_mov_b32 v155, 2\nv_mov_b32 v156, 64\nv_cndmask_b32 v155, v155, v156, vcc\nv_add_u32 v155, v154, v155")
    g("s_lshr_b32 s80, s%d, 1\ns_mul_i32 s80, s80, %d\ns_add_u32 s80, s80, %d" % (S_W, KC_CH, KC))
    g("v_lshlrev_b32 v154, 1, v154\nv_add_u32 v54, s80, v154")
    g("v_lshlrev_b32 v155, 1, v155\nv_add_u32 v55, s80, v155")
    g("v_min_u32 v156, 1, v153\nv_lshlrev_b32 v156, 7, v156\nv_add_u32 v156, v156, v152\nv_add_u32 v156, 0x200, v156")
    g("v_lshlrev_b32 v156, 1, v156\nv_add_u32 v56, s80, v156")
def kgen_compact(g):
    g("v_add_f32 v32, v32, v59")
    g("v_cvt_pk_bf16_f32 v32, v32, v33\nv_cvt_pk_bf16_f32 v33, v34, v35\nv_cvt_pk_bf16_f32 v34, v36, v37\nv_cvt_pk_bf16_f32 v35, v38, v39")
    g("ds_write_b32 v54, v32\nds_write_b32 v55, v33")
    g("s_mov_b32 exec_hi, 0\nds_write_b16 v56, v34\nds_write_b16_d16_hi v56, v34 offset:64\nds_write_b16 v56, v35 offset:128\nds_write_b16_d16_hi v56, v35 offset:192\ns_mov_b32 exec_hi, -1")
def kfull_addr(g):
    g("s_lshl_b32 s80, s%d, 9\nv_lshlrev_b32 v152, 3, v0\nv_add_u32 v152, s80, v152" % S_W)
    for e in range(8):
        g("v_add_u32 v153, %d, v152" % (7 - e))
        g("v_cvt_f32_u32 v154, v153\nv_cvt_pk_bf16_f32 v154, v154, v154\nv_and_b32 v154, 0xffff, v154")
        g("v_subrev_u32 v154, 0x%x, v154" % (0x4300 - 128))
        g("v_cmp_gt_u32 vcc, 0x80, v153\nv_cndmask_b32 v154, v154, v153, vcc\nv_lshlrev_b32 v154, 1, v154")
        g("v_add_u32 v%d, 0x%x, v154" % (144 + e, KC))
    g("v_lshrrev_b32 v153, 4, v152\nv_lshlrev_b32 v153, 4, v153")
    g("v_and_b32 v154, 1, v0\nv_mul_u32_u24 v154, %d, v154" % KF_PL)
    g("v_add_u32 v153, v153, v154\nv_add_u32 v26, 0x%x, v153" % (KF + 256))
    g("v_lshrrev_b32 v153, 4, v0\nv_mul_u32_u24 v153, %d, v153\nv_and_b32 v154, 15, v0\nv_lshlrev_b32 v154, 4, v154\nv_add_u32 v153, v153, v154\nv_add_u32 v27, 0x%x, v153" % (KF_PL, KF))
def kfull_read(g):
    for ch in range(2):
        for e in range(8):
            g("ds_read_u16 v%d, v%d offset:%d" % (64 + 8*ch + e, 144 + e, ch*KC_CH))
    for ch in range(2):
        for e in range(4):
            g("v_lshl_or_b32 v%d, v%d, 16, v%d" % (52 + 4*ch + e, 64 + 8*ch + 2*e + 1, 64 + 8*ch + 2*e))
    g("v_mov_b32 v64, 0\nv_mov_b32 v65, 0\nv_mov_b32 v66, 0\nv_mov_b32 v67, 0")
def kfull_write(g):
    g("ds_write_b128 v27, v[64:67]")
    for ch in range(2): g("ds_write_b128 v26, v[%d:%d] offset:%d" % (52 + 4*ch, 55 + 4*ch, ch*KF_CH))

def T_issue(g):
    g("s_sub_u32 s10, s%d, 28\ns_lshl_b32 s10, s10, 3\ns_add_u32 s10, s10, s3" % S_IDX)
    g("s_mul_i32 s11, s3, 10880\ns_cmp_ge_u32 s3, 3\ns_cselect_b32 s81, %d, 0\ns_add_u32 s11, s11, s81" % 0)
    g("s_lshl_b32 s80, s%d, 7\ns_add_u32 s8, s42, s80\ns_addc_u32 s9, s43, 0" % S_XCD)
    g("s_load_dwordx16 s[16:31], s[8:9], 0\ns_load_dwordx8 s[32:39], s[8:9], 64\ns_load_dwordx8 s[56:63], s[8:9], 96")
    g("v_lshrrev_b32 v5, 3, v0\nv_and_b32 v6, 7, v0\nv_lshlrev_b32 v6, 4, v6\nv_lshlrev_b32 v7, 10, v5\nv_add_u32 v8, v7, v6")
    g("s_lshl_b32 s12, s10, 16\ns_lshl_b32 s81, s%d, 7\ns_add_u32 s12, s12, s81" % S_XCD)
    for i in range(8):
        g.tl = g("s_add_u32 m0, s11, %d\ns_add_u32 s13, s12, %d\nbuffer_load_dwordx4 v8, %s, s13 offen lds" % (i*1056, i*8192, srd(S_X)))
def mall_touch(g):
    g("s_sub_u32 s80, s2, 224\ns_lshl_b32 s80, s80, 2\ns_add_u32 s80, s80, s%d\ns_mul_i32 s80, s80, %d\ns_add_u32 s81, s80, %d\nv_lshlrev_b32 v7, 7, v0" % (S_W, 112*128, 56*128))
    g("s_mov_b32 exec_hi, 0xffffff\nbuffer_load_dword v159, v7, %s, s80 offen\nbuffer_load_dword v158, v7, %s, s81 offen\ns_mov_b32 exec_hi, -1" % (srd(S_WD), srd(S_WD)))
def T_process(g):
    g("v_lshrrev_b32 v5, 3, v0\nv_and_b32 v6, 7, v0\nv_lshlrev_b32 v6, 4, v6")
    g("v_mul_u32_u24 v27, 160, v5\nv_add_u32 v27, v27, v6\ns_add_u32 s12, s11, 9504\nv_add_u32 v27, s12, v27")
    g("v_mul_u32_u24 v5, %d, v5\nv_add_u32 v30, v5, v6" % UT_STRIDE)
    g("v_and_b32 v26, 3, v0\nv_lshrrev_b32 v5, 5, v0\nv_lshlrev_b32 v5, 2, v5\nv_add_u32 v26, v26, v5\nv_mul_u32_u24 v26, 1056, v26")
    g("v_bfe_u32 v5, v0, 2, 2\nv_lshlrev_b32 v6, 7, v5\nv_add_u32 v26, v26, v6")
    g("v_bfe_u32 v6, v0, 4, 1\nv_lshlrev_b32 v6, 3, v6\nv_add_u32 v26, v26, v6\nv_add_u32 v26, s11, v26")
    g("v_bfe_u32 v5, v0, 4, 1\nv_lshlrev_b32 v5, 2, v5\nv_and_b32 v6, 3, v0\nv_add_u32 v5, v5, v6\nv_mul_u32_u24 v5, 160, v5")
    g("v_bfe_u32 v6, v0, 2, 2\nv_lshlrev_b32 v6, 4, v6\nv_add_u32 v5, v5, v6")
    g("v_lshrrev_b32 v6, 5, v0\nv_lshlrev_b32 v6, 6, v6\nv_add_u32 v28, v5, v6\nv_add_u32 v28, s12, v28")
    g("s_mul_i32 s12, s%d, %d\ns_lshl_b32 s81, s10, 7\ns_add_u32 s12, s12, s81\ns_add_u32 s12, s12, 0x%x" % (S_XCD, 64*UT_STRIDE, UT_OFF))
    g.wait(lg=0)
    g("v_lshrrev_b32 v5, 3, v0\nv_mul_u32_u24 v5, 1056, v5\nv_and_b32 v6, 7, v0\nv_lshlrev_b32 v6, 7, v6\nv_add_u32 v5, v5, v6\nv_add_u32 v22, s11, v5")
    g.wait_op(g.tl)
    if g.role == 1: stamp(g, "I:Tland")
    def rd(k):
        b = 64 + 4*k
        g("ds_read_b64_tr_b16 v[%d:%d], v26 offset:%d" % (b, b+1, 16*k))
        g("ds_read_b64_tr_b16 v[%d:%d], v26 offset:%d" % (b+2, b+3, 16*k + 512))
    def rl(k):
        g("ds_write_b128 v28, v[%d:%d]" % (64 + 4*k, 67 + 4*k)); g("ds_read_b128 a[%d:%d], v27" % (4*k, 4*k + 3))
    def st(k):
        g("s_add_u32 s13, s12, %d\nbuffer_store_dwordx4 a[%d:%d], v30, %s, s13 offen sc1" % (k*8*UT_STRIDE, 4*k, 4*k + 3, srd(S_WS)))
    for k in range(12):
        if k < 8: rd(k)
        if 2 <= k < 10: rl(k - 2)
        if k >= 4: st(k - 4)
    for i in range(8): g("ds_read_b128 v[%d:%d], v22 offset:%d" % (64 + 4*i, 67 + 4*i, 16*i))
    g("v_mov_b32 v24, 0\nv_mov_b32 v23, 0\nv_mov_b32 v25, s%d" % S_TAG)
    for i in range(32): g("v_dot2_f32_bf16 v%d, v%d, s%d, v%d" % (23 + (i & 1), 64 + i, 16 + i if i < 24 else 32 + i, 23 + (i & 1)))
    g("s_lshl_b32 s80, s%d, 14\ns_lshl_b32 s81, s10, 9\ns_add_u32 s80, s80, s81\ns_add_u32 s80, s80, 0x%x\nv_lshlrev_b32 v5, 3, v0" % (S_XCD, G_OFF))
    g("v_add_f32 v24, v23, v24")
    g("buffer_store_dwordx2 v[24:25], v5, %s, s80 offen sc1" % srd(S_WS))
    g("s_lshl_b32 s80, s%d, 9\ns_lshr_b32 s81, s10, 3\ns_lshl_b32 s81, s81, 7\ns_add_u32 s80, s80, s81\ns_lshl_b32 s81, s3, 2\ns_add_u32 s80, s80, s81\ns_add_u32 s15, s80, 0x%x" % (S_XCD, FT_OFF))

def g_idle(g):
    g("s_sub_u32 s82, s2, 224\ns_lshl_b32 s82, s82, 2\ns_add_u32 s82, s82, s%d\ns_lshl_b32 s83, s82, 14\nv_lshlrev_b32 v9, 4, v0" % S_W)
    g("global_load_dwordx4 v[12:15], v9, s[42:43]")
    for j in range(16):
        if j % 4 == 0 and j: g("s_add_u32 s83, s83, 4096")
        g("buffer_load_dwordx4 v[%d:%d], v9, %s, s83 offen offset:%d" % (32 + 4*j, 35 + 4*j, srd(S_X), (j % 4)*1024))
    R = list(range(96, 112))
    for r in R: g("v_mov_b32 v%d, 0" % r)
    for jb in range(0, 16, 4):
        for i in range(4):
            for j in range(jb, jb + 4): g("v_dot2_f32_bf16 v%d, v%d, v%d, v%d" % (96 + j, 32 + 4*j + i, 12 + i, 96 + j))
    g("s_nop 3")
    for mod in ("row_shr:1 row_mask:0xf bank_mask:0xf bound_ctrl:0", "row_shr:2 row_mask:0xf bank_mask:0xf bound_ctrl:0",
                "row_shr:4 row_mask:0xf bank_mask:0xf bound_ctrl:0", "row_shr:8 row_mask:0xf bank_mask:0xf bound_ctrl:0",
                "row_bcast:15 row_mask:0xa bank_mask:0xf", "row_bcast:31 row_mask:0xc bank_mask:0xf"):
        for r in R: g("v_add_f32_dpp v%d, v%d, v%d %s" % (r, r, r, mod))
    for jb in range(0, 16, 8):
        for j in range(8): g("v_readlane_b32 s%d, v%d, 63" % (8 + j, 96 + jb + j))
        for j in range(8): g("v_writelane_b32 v16, s%d, %d" % (8 + j, jb + j))
    for t in ("v_cvt_pk_bf16_f32 v16, v16, v16", "v_lshlrev_b32 v16, 16, v16", "v_mul_f32 v16, 0x%x, v16" % f2u(-LOG2E), "v_exp_f32 v16, v16",
              "v_add_f32 v16, 1.0, v16", "v_rcp_f32 v16, v16", "v_cvt_pk_bf16_f32 v16, v16, v16", "v_lshlrev_b32 v16, 16, v16"): g(t)
    g("v_mov_b32 v17, s%d\nv_lshlrev_b32 v9, 3, v0\ns_lshl_b32 s82, s82, 7\ns_add_u32 s82, s82, 0x%x" % (S_TAG, G_OFF))
    g("s_mov_b64 exec, 0xffff\nbuffer_store_dwordx2 v[16:17], v9, %s, s82 offen sc1\ns_mov_b64 exec, -1" % srd(S_WS))

def epoch_bump(g):
    L, P, D = g.lab("Leb"), g.lab("Lep"), g.lab("Led")
    g("s_cmp_lg_u32 s2, 255\ns_cbranch_scc1 %s" % L)
    g("s_cmp_lg_u32 s%d, 0\ns_cbranch_scc1 %s" % (S_W, L))
    for l in ("v_lshrrev_b32 v100, 3, v0", "v_lshlrev_b32 v100, 11, v100", "v_and_b32 v101, 7, v0", "v_lshlrev_b32 v101, 7, v101", "v_add_u32 v100, v100, v101",
              "s_mov_b32 s80, 0x%x" % FA_OFF, "s_mov_b32 s%d, 0x40000" % S_SPIN): g.raw(l)
    g(P + ":")
    for l in ("buffer_load_dwordx4 v[104:107], v100, %s, s80 offen sc1" % srd(S_WS), "buffer_load_dwordx4 v[108:111], v100, %s, s80 offen offset:16 sc1" % srd(S_WS), "s_waitcnt vmcnt(0)",
              "v_xor_b32 v104, s%d, v104" % S_TAG, "v_xor_b32 v106, s%d, v106" % S_TAG, "v_xor_b32 v108, s%d, v108" % S_TAG, "v_xor_b32 v110, s%d, v110" % S_TAG,
              "v_or_b32 v104, v104, v106", "v_or_b32 v108, v108, v110", "v_or_b32 v104, v104, v108", "v_cmp_ne_u32 vcc, 0, v104", "s_nop 4",
              "s_cmp_eq_u64 vcc, 0", "s_cbranch_scc1 %s" % D, "s_sleep 8", "s_sub_u32 s%d, s%d, 1" % (S_SPIN, S_SPIN), "s_cbranch_scc0 %s" % P): g.raw(l)
    g(D + ":")
    g.raw("s_mov_b32 s80, 0x%x" % EP_OFF)
    g.raw("v_mov_b32 v100, s%d" % S_TAG); g.raw("v_mov_b32 v101, 0"); g.raw("s_mov_b64 exec, 1")
    g.raw("buffer_store_dword v100, v101, %s, s80 offen sc1" % srd(S_WS))
    g.raw("s_mov_b64 exec, -1")
    g(L + ":")

def uexp_addr(g):
    g("s_mul_i32 s85, s%d, %d\ns_and_b32 s81, s%d, 1\ns_lshl_b32 s80, s81, 11\ns_add_u32 s85, s85, s80\ns_add_u32 s85, s85, 0x%x" % (S_CH, UT_STRIDE, S_W, UT_OFF))
    g("s_lshr_b32 s82, s%d, 1\ns_mul_i32 s83, s82, %d\ns_add_u32 s83, s83, %d\ns_add_u32 s86, s83, s80\ns_add_u32 s86, s86, 64" % (S_W, CU_CH, CU))
    g("v_lshlrev_b32 v28, 2, v0\nv_add_u32 v22, s83, v28\ns_lshl_b32 s80, s81, 8\ns_add_u32 s80, s80, s83\ns_add_u32 s80, s80, %d\nv_add_u32 v28, s80, v28" % (64 - 36))
    g("s_lshl_b32 s81, s81, 10\ns_mul_i32 s80, s82, %d\ns_add_u32 s80, s80, %d\ns_add_u32 s80, s80, s81\nv_lshlrev_b32 v20, 4, v0\nv_add_u32 v21, s80, v20" % (UEE[1] - UEE[0], UEE[0]))
    g("s_mul_i32 s80, s82, %d\ns_sub_u32 s80, %d, s80\ns_add_u32 s80, s80, s81\nv_add_u32 v20, s80, v20" % (UEO[0] - UEO[1], UEO[0]))
def u_load(g):
    for i in range(2):
        op = g("s_mov_b32 m0, s86\ns_nop 0\nbuffer_load_dwordx4 v10, %s, s85 offen offset:%d sc1 lds" % (srd(S_WS), i*1024))
    g("v_mov_b32 v23, 0\ns_mov_b64 exec, 0xffff\nds_write_b32 v22, v23\ns_mov_b64 exec, -1")
    return op
def u_build(g):
    def rd(i):
        b = 32 + 10*(i % 3)
        g("ds_read2_b32 v[%d:%d], v28 offset0:1 offset1:2\nds_read2_b32 v[%d:%d], v28 offset0:3 offset1:4\nds_read_b32 v%d, v28\nv_add_u32 v28, 0x200, v28" % (b, b+1, b+2, b+3, b+4))
    def wr(i):
        b = 32 + 10*(i % 3); e = b + 6
        g("v_alignbit_b32 v%d, v%d, v%d, 16" % (e, b, b+4))
        for k in (1, 2, 3): g("v_alignbit_b32 v%d, v%d, v%d, 16" % (e + k, b + k, b + k - 1))
        if i == 8: g("s_and_b32 s80, s%d, 1\ns_sub_u32 s80, s80, 1\ns_and_b32 exec_lo, s80, 0xff\ns_mov_b32 exec_hi, 0" % S_W)
        g("ds_write_b128 v20, v[%d:%d] offset:%d" % (b, b+3, i*2048))
        g("ds_write_b128 v21, v[%d:%d] offset:%d" % (e, e+3, i*2048))
        if i == 8: g("s_mov_b64 exec, -1")
    rd(0); rd(1)
    for i in range(9):
        if i + 2 < 9: rd(i + 2)
        wr(i)

class Rec2:
    def __init__(self): self.q = []
    def __call__(self, t): self.q.append(t)
def ub_items():
    r = Rec2(); u_build(r)
    q = r.q
    return q[:-4] + ["\n".join(q[-4:])]
def gemm1_dma(st):
    b = BUF[st % 3]; q = []
    p0 = "s_add_u32 s9, s14, %d\ns_and_b32 s9, s9, 7\n" % st
    if OPT["rot"] >= 3:
        p0 = ("s_mov_b32 s9, %d\n" % st) if st < 2 else ("s_add_u32 s9, s14, %d\ns_cmp_ge_u32 s9, 8\ns_cselect_b32 s8, 6, 0\ns_sub_u32 s9, s9, s8\n" % st)
    pre = p0 + "s_lshl_b32 s35, s9, 7\ns_add_u32 s35, s35, s90\ns_mul_i32 s8, s9, %d\ns_add_u32 s8, s8, s91\n" % (64*3584)
    for i in range(4):
        q.append((pre if i == 0 else "") + "s_add_u32 m0, s92, %d\ns_add_u32 s93, s35, %d\nbuffer_load_dwordx4 v%d, %s, s93 offen lds" % (b + i*1024, i*8192, 2 + (i & 1), srd(S_X)))
        q.append("s_add_u32 m0, s92, %d\ns_add_u32 s93, s8, %d\nbuffer_load_dwordx4 v4, %s, s93 offen lds" % (b + 16384 + i*1024, i*4*3584, srd(S_WG)))
        q.append("s_add_u32 m0, s92, %d\nbuffer_load_dwordx4 v4, %s, s93 offen lds" % (b + 32768 + i*1024, srd(S_WU)))
    return q

def cf(p, kind, i):
    if p == 0: return "a[%d:%d]" % ((0 if kind == "A" else 32) + 4*i, (0 if kind == "A" else 32) + 4*i + 3)
    return ("a[%d:%d]" % (64 + 4*i, 67 + 4*i)) if kind == "A" else ("v[%d:%d]" % (128 + 4*i, 131 + 4*i))
def sel(g, dst, c0, c1):
    g("s_cselect_b32 s%d, %d, %d" % (dst, c1, c0) if False else "s_mov_b32 s%d, %d" % (dst, c0))
def conv_addr(g):
    g("s_lshr_b32 s80, s%d, 1\ns_and_b32 s82, s%d, 1" % (S_W, S_W))
    g("s_mul_i32 s81, s80, %d\ns_add_u32 s81, s81, %d" % (UEE[1] - UEE[0], UEE[0]))
    g("s_mul_i32 s83, s80, %d\ns_sub_u32 s83, %d, s83" % (UEO[0] - UEO[1], UEO[0]))
    g("v_bfe_u32 v5, v0, 4, 1\nv_lshlrev_b32 v5, 1, v5\nv_lshrrev_b32 v6, 5, v0\nv_add_u32 v5, v5, v6")
    g("v_bfe_u32 v6, v0, 1, 3\nv_lshlrev_b32 v7, 2, v5\nv_sub_u32 v7, v6, v7\nv_add_u32 v7, 13, v7\nv_lshlrev_b32 v7, 4, v7")
    g("v_mov_b32 v8, s81\nv_mov_b32 v9, s83\nv_and_b32 v6, 1, v0\nv_cmp_eq_u32 vcc, 1, v6\nv_cndmask_b32 v8, v8, v9, vcc\nv_add_u32 v8, v8, v7")
    g("s_lshl_b32 s81, s82, 10\nv_add_u32 v8, s81, v8")
    g("v_and_b32 v6, 15, v0\nv_lshrrev_b32 v7, 5, v0\nv_mul_u32_u24 v7, %d, v7\nv_bfe_u32 v9, v0, 4, 1\nv_add_u32 v9, v9, v6\nv_lshlrev_b32 v9, 4, v9\nv_add_u32 v7, v7, v9" % KF_PL)
    g("s_mul_i32 s81, s80, %d\ns_lshl_b32 s83, s82, 7\ns_sub_u32 s83, s81, s83\ns_add_u32 s83, s83, %d" % (KF_CH, KF + 16*(16 - 7)))
    g("v_add_u32 v9, s83, v7")
    g("v_lshlrev_b32 v10, 4, v0")
    g("s_lshl_b32 s81, s%d, 12\ns_add_u32 s81, s81, %d\ns_cmp_eq_u32 s%d, 3\ns_cselect_b32 s81, %d, s81\nv_add_u32 v12, s81, v10" % (S_W, XCH[0], S_W, XCH[3]))
    g("s_xor_b32 s83, s%d, 1\ns_lshl_b32 s81, s83, 12\ns_add_u32 s81, s81, %d\ns_cmp_eq_u32 s83, 3\ns_cselect_b32 s81, %d, s81\nv_add_u32 v11, s81, v10" % (S_W, XCH[0], XCH[3]))
    g("v_and_b32 v15, 15, v0\nv_lshlrev_b32 v15, 5, v15\nv_lshrrev_b32 v14, 4, v0\nv_lshlrev_b32 v14, 3, v14\nv_add_u32 v15, v15, v14")
    g("s_lshl_b32 s81, s%d, 12\ns_add_u32 s81, s81, %d\nv_add_u32 v15, s81, v15\nv_add_u32 v14, s81, v10" % (S_W, STG))
def conv_main(g, side, hooks={}):
    def reads(i):
        p = i & 1; q = []
        for a in range(8):
            q.append("ds_read_b128 %s, v8 offset:%d" % (cf(p, "A", a), a*2048 + i*256))
            q.append("ds_read_b128 %s, v9 offset:%d" % (cf(p, "B", a), a*256 + (3 - i)*32))
        return q
    for r in reads(0): g(r)
    first = set()
    for i in range(4):
        p = i & 1
        nxt = reads(i + 1) if i < 3 else []
        pairs = sorted([(a, d) for a in range(8) for d in range(8) if a + d <= 7], key=lambda x: (max(x), x))
        for n, (a, d) in enumerate(pairs):
            c = a + d
            C = "v[%d:%d]" % (32 + 4*c, 35 + 4*c) if c in first else "0"
            first.add(c)
            g("v_mfma_f32_16x16x32_bf16 v[%d:%d], %s, %s, %s" % (32 + 4*c, 35 + 4*c, cf(p, "A", a), cf(p, "B", d), C))
            if n >= 12 and nxt: g(nxt.pop(0))
        assert not nxt
    L1, L2 = g.lab("Lx"), g.lab("Lx")
    g("s_and_b32 s82, s%d, 1\ns_mul_i32 s81, s%d, %d\ns_lshl_b32 s83, s82, 11\ns_add_u32 s81, s81, s83\ns_add_u32 s81, s81, 0x%x\ns_nop 1" % (S_W, S_CH, AT_STRIDE, AT_OFF))
    g("s_cmp_lg_u32 s82, 0\ns_cbranch_scc1 %s" % L1)
    for k in range(4): g.raw("ds_write_b128 v11, v[%d:%d] offset:%d" % (48 + 4*k, 51 + 4*k, k*1024))
    g("s_branch %s" % L2)
    g(L1 + ":")
    for k in range(4): g.raw("ds_write_b128 v11, v[%d:%d] offset:%d" % (32 + 4*k, 35 + 4*k, k*1024))
    g.nop(2)
    for r in range(8): g.raw("v_mov_b64 v[%d:%d], v[%d:%d]" % (32 + 2*r, 33 + 2*r, 48 + 2*r, 49 + 2*r))
    g(L2 + ":")
    g.lg_seq += 4
def conv_fin(g):
    for cc in range(4):
        for r in range(4): g("v_add_f32 v%d, v%d, v%d" % (32 + 4*cc + r, 32 + 4*cc + r, 128 + 4*cc + r))
        for r in range(2): g("v_cvt_pk_bf16_f32 v%d, v%d, v%d" % (48 + 2*cc + r, 32 + 4*cc + 2*r, 33 + 4*cc + 2*r))
        g("ds_write_b64 v15, v[%d:%d] offset:%d" % (48 + 2*cc, 49 + 2*cc, cc*512))
    for pr in range(2): g("ds_read_b128 v[%d:%d], v14 offset:%d" % (56 + 4*pr, 59 + 4*pr, pr*1024))
    for pr in range(2):
        g("buffer_store_dwordx4 v[%d:%d], v10, %s, s81 offen offset:%d sc1" % (56 + 4*pr, 59 + 4*pr, srd(S_WS), pr*1024))

def chunk_ids(g):
    for c in range(7):
        if OPT["hrot"]: g("s_add_u32 s%d, s%d, %d\ns_cmp_ge_u32 s%d, 7\ns_cselect_b32 s80, 7, 0\ns_sub_u32 s%d, s%d, s80" % (18 + c, S_NB, c, 18 + c, 18 + c, 18 + c))
        else: g("s_mov_b32 s%d, %d" % (18 + c, c))
    g("s_lshl_b32 s95, s%d, 14\ns_add_u32 s95, s95, %d\ns_lshl_b32 s25, s%d, 13" % (S_W, WDA, S_W))
def wd_setup(g, vreg):
    g("v_lshrrev_b32 v5, 3, v0\nv_lshlrev_b32 v5, 10, v5\nv_bfe_u32 v6, v0, 4, 1\nv_lshlrev_b32 v6, 2, v6\nv_and_b32 v7, 7, v0\nv_xor_b32 v6, v6, v7\nv_lshlrev_b32 v6, 4, v6\nv_add_u32 v%d, v5, v6" % vreg)
    g("s_mul_i32 s94, s%d, %d\ns_lshl_b32 s80, s%d, 7\ns_add_u32 s94, s94, s80" % (S_W, 448*1024, S_NB))
WSLOT = {3: (95, 0), 4: (95, 8192), 5: (95, WDB1 - WDA), 6: (95, WDB1 - WDA + 8192)}
def wd_dma(c, vreg):
    sb, off = WSLOT[c]
    q = []
    for i in range(8):
        pre = "s_lshl_b32 s93, s%d, 16\ns_add_u32 s93, s93, s94\n" % (18 + c) if i == 0 else "s_add_u32 s93, s93, 8192\n"
        q.append("s_add_u32 m0, s%d, %d\n%sbuffer_load_dwordx4 v%d, %s, s93 offen lds" % (sb, off + i*1024, pre, vreg, srd(S_WD)))
    return q

def l2t_addr(g):
    g("s_lshl_b32 s80, s%d, 2\ns_add_u32 s80, s80, s%d\ns_lshl_b32 s26, s80, 12\ns_add_u32 s26, s26, 0x%x" % (S_IDX, S_W, WDT_OFF))
    g("s_lshr_b32 s27, s80, 5\ns_mul_i32 s27, s27, %d\ns_and_b32 s80, s80, 31\ns_lshl_b32 s80, s80, 11\ns_add_u32 s27, s27, s80" % (448*1024))
    g("v_and_b32 v24, 7, v0\nv_bfe_u32 v25, v0, 3, 1\nv_lshlrev_b32 v25, 10, v25\nv_lshlrev_b32 v23, 7, v24\nv_add_u32 v25, v25, v23")
    g("v_lshrrev_b32 v21, 4, v0\nv_add_u32 v21, v21, v24\nv_add_u32 v21, 2, v21\nv_subrev_u32 v23, 7, v21\nv_min_u32 v21, v21, v23\nv_lshlrev_b32 v21, 16, v21\nv_add_u32 v21, v21, v25")
    g("v_add_u32 v22, 6, v24\nv_subrev_u32 v23, 7, v22\nv_min_u32 v22, v22, v23\nv_lshlrev_b32 v22, 16, v22\nv_add_u32 v22, v22, v25")
    g("v_lshlrev_b32 v23, 7, v0")
def l2t(g):
    g("s_mov_b32 exec_hi, 0\nbuffer_load_dword v24, v23, %s, s26 offen sc1\ns_mov_b32 exec_hi, -1" % srd(S_WS))
    g("buffer_load_dword v25, v21, %s, s27 offen" % srd(S_WD))
    g("s_mov_b64 exec, 0xffff\nbuffer_load_dword v21, v22, %s, s27 offen\ns_mov_b64 exec, -1" % srd(S_WD))
def pm(p): return (p % 7, p // 7) if OPT["pord"] else (p >> 1, p & 1)
def wd_reg(c):
    q = []
    for i in range(8):
        p = 2*c + (i >> 2)
        pre = "s_lshl_b32 s26, s%d, 16\ns_add_u32 s26, s26, s94\n%s" % (18 + pm(p)[0], "s_add_u32 s26, s26, 0x8000\n" if pm(p)[1] else "") if i % 4 == 0 else "s_add_u32 s26, s26, 8192\n"
        r = ("v[%d:%d]" % (64 + 32*(c - 5) + 4*i, 67 + 32*(c - 5) + 4*i)) if c >= 5 else ("a[%d:%d]" % (32*(c - 3) + 4*i, 32*(c - 3) + 4*i + 3))
        q.append("%sbuffer_load_dwordx4 %s, v30, %s, s26 offen" % (pre, r, srd(S_WD)))
    return q
def dose(g, k):
    if OPT["l2t"] != 3: return
    if k < 4: g("%s\nbuffer_load_dword v%d, v21, %s, s27 offen\ns_mov_b64 exec, -1" % (lanes(16*k, 16*k + 16), 96 + k, srd(S_WD)))
    elif k == 4: g("%s\nbuffer_load_dword v100, v22, %s, s27 offen\ns_mov_b64 exec, -1" % (lanes(0, 16), srd(S_WD)))
    else: g("%s\nbuffer_load_dword v%d, v23, %s, s26 offen sc1\ns_mov_b64 exec, -1" % (lanes(16*(k-5), 16*(k-5) + 16), 96 + k, srd(S_WS)))
def H_part1(g, idle):
    D = (lambda st: []) if idle else gemm1_dma
    st_ = (lambda g, n: None) if idle else stamp
    def W(op):
        if op is not None: g.wait_op(op)
    if OPT["ksplit"]:
        g("global_load_ushort v39, v63, s[30:31]")
        g("global_load_ushort v33, v32, s[18:19]")
        g("global_load_ushort v34, v32, s[20:21]")
    if not idle:
        g.srd(S_WG, 36, 512*1792*2); g.srd(S_WU, 38, 512*1792*2)
    g.srd(S_X, 16, 2048*512*2)
    d = {}
    d[0] = weave(g, D(0), [])
    st_(g, "H:d0 issued")
    if OPT["ksplit"]:
        kgen_E(g)
        g("v_mov_b32 v61, 1\ns_mov_b64 exec, 1\nds_add_u32 v60, v61\ns_mov_b64 exec, -1")
        st_(g, "H:E done")
    epoch_load(g)
    g.srd(S_WS, 48, WS_BYTES); g.srd(S_WD, 40, 512*1792*2); g.srd(S_OUT, 44, 2048*512*2)
    d[1] = weave(g, D(1), rec(kfull_addr))
    tag_compute(g)
    if idle:
        if OPT["te"]: T_issue(g)
        if OPT["mtp"] == 0: mall_touch(g)
    st_(g, "H:i0")
    W(d[0])
    g("s_barrier")
    if idle:
        stamp(g, "I:B0")
        if OPT["mtp"] == 2: mall_touch(g)
        if not OPT["te"]: T_issue(g)
        if OPT["mtp"] == 1: mall_touch(g)
        kfull_read(g)
        g("v_mov_b32 v20, v26\nv_mov_b32 v21, v27"); T_process(g); g("v_mov_b32 v26, v20\nv_mov_b32 v27, v21")
        stamp(g, "I:Tiss"); g.wait(vm=0); flag_store(g, 15, 8); stamp(g, "I:Tflag")
        g("v_mov_b32 v64, 0\nv_mov_b32 v65, 0\nv_mov_b32 v66, 0\nv_mov_b32 v67, 0")
        d[2] = None
    else: d[2] = weave(g, D(2), rec(kfull_read))
    st_(g, "H:i1")
    g.wait(lg=0); W(d[1])
    g("s_barrier")
    if idle: stamp(g, "I:B1")
    if idle:
        g("v_mov_b32 v16, %d\nv_lshlrev_b32 v17, 2, v0\nv_add_u32 v17, v16, v17\nv_mov_b32 v18, 0\nv_mov_b32 v19, 1" % SYW)
        g("ds_write_b32 v17, v18")
        g.wait(lg=0)
        g("s_barrier")
        kfull_write(g); uexp_addr(g); wd_setup(g, 30); chunk_ids(g); conv_addr(g)
        g("s_lshl_b32 s84, s%d, 9\ns_add_u32 s84, s84, 0x%x" % (S_XCD, FT_OFF))
        g("v_bfe_u32 v24, v0, 3, 2\nv_lshlrev_b32 v24, 7, v24\nv_and_b32 v25, 7, v0\nv_lshlrev_b32 v25, 2, v25\nv_add_u32 v24, v24, v25")
        stamp(g, "I:prepoll")
        poll(g, 24, 84, 25, sleep=8)
        stamp(g, "I:polled")
        u_load(g)
        g("s_barrier")
        g.wait(vm=0, lg=0)
        stamp(g, "I:a8")
        return
    q3 = D(3)
    d[3] = weave(g, q3[:OPT["t3"]], rec(kfull_write) + rec(uexp_addr))
    wd_setup(g, 30); chunk_ids(g)
    wr = [] if idle else wd_reg(5) + wd_reg(6) + wd_reg(3) + wd_reg(4)
    def WR(n):
        for _ in range(n):
            if wr: g(wr.pop(0))
    st_(g, "H:i2")
    W(d[2])
    g("s_barrier")
    if q3[OPT["t3"]:]: d[3] = weave(g, q3[OPT["t3"]:], [])
    d[4] = weave(g, D(4), [])
    WR(OPT["w2"])
    conv_addr(g)
    st_(g, "H:i3")
    W(d[3])
    g("s_barrier")
    d[5] = weave(g, D(5), [])
    WR(OPT["w3"])
    st_(g, "H:i4")
    W(d[4])
    g("s_barrier")
    d[6] = weave(g, D(6), [])
    WR(OPT["w3"])
    g("s_lshl_b32 s84, s%d, 9\ns_add_u32 s84, s84, 0x%x\ns_lshl_b32 s80, s%d, 9\ns_add_u32 s80, s80, 0x%x" % (S_XCD, FT_OFF, S_NB, FW_OFF))
    g("v_bfe_u32 v24, v0, 3, 2\nv_lshlrev_b32 v24, 7, v24\nv_and_b32 v25, 7, v0\nv_lshlrev_b32 v25, 2, v25\nv_add_u32 v24, v24, v25")
    g("v_and_b32 v25, 0x18c, v24\nv_add_u32 v25, s80, v25\nv_add_u32 v24, s84, v24\nv_cmp_lt_u32 vcc, 31, v0\nv_cndmask_b32 v24, v24, v25, vcc\ns_mov_b32 s84, 0")
    st_(g, "H:i5")
    g.wait(lg=0); W(d[5])
    g("s_barrier")
    d[7] = weave(g, D(7), [])
    WR(OPT["w3"])
    st_(g, "H:i6")
    W(d[6])
    g("s_barrier")
    L0 = g.lab("Lq")
    g("s_cmp_lg_u32 s%d, 0\ns_cbranch_scc1 %s" % (S_W, L0))
    g.raw("buffer_load_dword v25, v24, %s, s84 offen sc1" % srd(S_WS))
    g(L0 + ":")
    s0 = g.vm_seq
    WR(OPT["nr6"])
    nv = g.vm_seq - s0
    stamp(g, "I:prepoll" if idle else "H:prepoll")
    g.raw("s_waitcnt vmcnt(%d)" % nv); g.vm_done = max(g.vm_done, g.vm_seq - nv)
    Lok = g.lab("Lok")
    g("s_cmp_lg_u32 s%d, 0\ns_cbranch_scc1 %s" % (S_W, Lok))
    g("v_cmp_ne_u32 vcc, s%d, v25" % S_TAG)
    g.nop(4)
    g("s_cmp_eq_u64 vcc, 0\ns_cbranch_scc1 %s" % Lok)
    sv = g.vm_done
    poll(g, 24, 84, 25, sleep=8)
    g.vm_done = sv
    g(Lok + ":")
    if idle: stamp(g, "I:polled")
    st_(g, "H:a7")
    g("s_barrier")
    ul = u_load(g)
    WR(99)
    g("v_mov_b32 v16, %d\nv_lshlrev_b32 v17, 2, v0\nv_add_u32 v17, v16, v17\nv_mov_b32 v18, 0\nv_mov_b32 v19, 1" % SYW)
    g("ds_write_b32 v17, v18")
    g.wait(lg=0); g.ul = ul
    if idle: g.wait(vm=0); stamp(g, "I:a8")
    st_(g, "H:a8")

SYW = 28928
STG = 0
def hsync(g, target):
    L, D = g.lab("Lh"), g.lab("Lhd")
    g("s_mov_b64 exec, 1\nds_add_u32 v16, v19\ns_mov_b64 exec, -1")
    g("s_mov_b32 s%d, 0x100000" % S_SPIN)
    g(L + ":")
    for l in ("ds_read_b32 v18, v16", "s_waitcnt lgkmcnt(0)", "v_readfirstlane_b32 s80, v18", "s_sub_u32 s%d, s%d, 1" % (S_SPIN, S_SPIN), "s_cbranch_scc1 %s" % D,
              "s_cmp_lt_u32 s80, %d" % target, "s_cbranch_scc1 %s" % L): g.raw(l)
    g(D + ":")
    g.lg_done = g.lg_seq
def fin_addr(g, b):
    t = b + 4
    g("s_and_b32 s80, s3, 3\ns_lshl_b32 s80, s80, 3\nv_lshrrev_b32 v%d, 3, v0\nv_add_u32 v%d, s80, v%d" % (t, b+2, t))
    g("v_lshlrev_b32 v%d, 10, v%d\nv_and_b32 v%d, 7, v0\nv_lshlrev_b32 v%d, 4, v%d\nv_add_u32 v%d, v%d, v%d" % (b+3, t, t, b, t, b+3, b+3, b))
    g("v_mul_u32_u24 v%d, 0x420, v%d\nv_lshlrev_b32 v%d, 4, v%d\nv_xor_b32 v%d, v%d, v%d" % (b, t, b+1, b+2, b, b, b+1))
    g("s_lshr_b32 s81, s3, 2\ns_lshl_b32 s80, s81, 13\ns_add_u32 s80, s80, %d\nv_add_u32 v%d, s80, v%d" % (WDA, b, b))
    g("v_lshlrev_b32 v%d, 6, v%d\nv_and_b32 v%d, 3, v0\nv_lshlrev_b32 v%d, 4, v%d\nv_add_u32 v%d, v%d, v%d" % (b+1, b+2, t, t, t, b+1, b+1, t))
    g("v_bfe_u32 v%d, v0, 2, 1\nv_lshlrev_b32 v%d, 13, v%d\nv_add_u32 v%d, v%d, v%d" % (t, t, t, b+1, b+1, t))
    g("s_lshl_b32 s80, s81, 12\ns_add_u32 s80, s80, %d\nv_add_u32 v%d, s80, v%d\nv_lshlrev_b32 v%d, 2, v%d\nv_add_u32 v%d, s80, v%d" % (STG, b+1, b+1, b+2, b+2, b+2, b+2))
    g("s_lshl_b32 s87, s%d, 16\ns_lshl_b32 s81, s3, 13\ns_add_u32 s87, s87, s81\ns_lshl_b32 s81, s%d, 7\ns_add_u32 s87, s87, s81" % (S_TB2, S_NB))
def fin(g, b, P, GA, OMG):
    for j in range(2):
        for sw in range(4): g("ds_read_b128 v[%d:%d], v%d offset:%d" % (P + 8*sw + 4*j, P + 3 + 8*sw + 4*j, b, sw*16384 + j*512))
        if j == 0: g("ds_read_b32 v%d, v%d" % (OMG, b + 2))
    g("ds_read_b128 v[%d:%d], v%d offset:2048" % (GA, GA + 3, b + 1))
    fin_math(g, P, GA, OMG, b + 3)
def fin_math(g, P, GA, OMG, VO):
    for r in range(4):
        x = P + 2*r
        g("v_pk_add_f32 v[%d:%d], v[%d:%d], v[%d:%d]" % (x, x+1, x, x+1, x+8, x+9))
        g("v_pk_add_f32 v[%d:%d], v[%d:%d], v[%d:%d]" % (x+16, x+17, x+16, x+17, x+24, x+25))
    for r in range(4):
        x = P + 2*r
        g("v_pk_add_f32 v[%d:%d], v[%d:%d], v[%d:%d]" % (x, x+1, x, x+1, x+16, x+17))
    for r in range(4): g("v_lshlrev_b32 v%d, 16, v%d\nv_and_b32 v%d, 0xffff0000, v%d" % (P + 16 + 2*r, GA + r, P + 17 + 2*r, GA + r))
    for r in range(8): g("v_fmac_f32 v%d, v%d, v%d" % (P + 16 + r, OMG, P + r))
    for r in range(4): g("v_cvt_pk_bf16_f32 v%d, v%d, v%d" % (GA + r, P + 16 + 2*r, P + 17 + 2*r))
    g("buffer_store_dwordx4 v[%d:%d], v%d, %s, s87 offen %s" % (GA, GA + 3, VO, srd(S_OUT), {0: "", 1: "sc1", 2: "nt", 3: "sc0 sc1"}[OPT["osc"]]))

def build_H():
    g = G(); g.nlab = 1000; g.role = 1; g.nst = 1; St.names[48] = "H:start"
    prologue(g)
    g("s_setprio %d" % OPT["hprio"])
    h_dma_addr(g)
    if OPT["rot"] == 1: g("s_add_u32 s14, s%d, s%d\ns_and_b32 s14, s14, 3\ns_lshl_b32 s14, s14, 1\ns_add_u32 s14, s14, %d" % (S_MT, S_FT, OPT["r1"]))
    elif OPT["rot"] == 2: g("s_add_u32 s14, s%d, s%d\ns_and_b32 s14, s14, 1\ns_lshl_b32 s14, s14, 2" % (S_MT, S_FT))
    elif OPT["rot"] == 3: g("s_add_u32 s14, s%d, s%d\ns_and_b32 s14, s14, 1\ns_mul_i32 s14, s14, 3" % (S_MT, S_FT))
    else: g("s_mov_b32 s14, 0")
    g("s_waitcnt lgkmcnt(0)")
    g("s_cmp_ge_u32 s%d, 28\ns_cbranch_scc1 Lhidle" % S_IDX)
    H_part1(g, False)
    g("s_barrier")
    g("Lh8:")
    g("s_setprio %d" % OPT["bprio"])
    g.wait_op(g.ul)
    hsync(g, 4)
    u_build(g)
    stamp(g, "H:built")
    g("v_add_u32 v23, s95, v10\ns_lshl_b32 s81, s%d, 2\nv_add_u32 v17, s81, v16" % S_W)
    g("s_cmp_ge_u32 s%d, 28\ns_cbranch_scc1 Lsk1" % S_IDX)
    for i in range(16): g("ds_write_b128 v23, a[%d:%d] offset:%d" % (4*i, 4*i + 3, i*1024))
    g("Lsk1:")
    g("ds_write_b32 v17, v19 offset:32")
    g("s_setprio 0")
    g.wait(lg=0)
    stamp(g, "H:a9")
    hsync(g, 8)
    if OPT["gow"]:
        L, D = g.lab("Lw"), g.lab("Lwd")
        g(L + ":")
        for l in ("ds_read_b32 v18, v17 offset:48", "s_waitcnt lgkmcnt(0)", "v_readfirstlane_b32 s80, v18", "s_sub_u32 s%d, s%d, 1" % (S_SPIN, S_SPIN), "s_cbranch_scc1 %s" % D,
                  "s_cmp_lg_u32 s80, 0", "s_cbranch_scc1 %s" % D, "s_sleep 1", "s_branch %s" % L): g.raw(l)
        g(D + ":")
    stamp(g, "H:go")
    g("s_setprio %d" % OPT["convp"])
    conv_main(g, [])
    stamp(g, "H:convend")
    g("s_setprio 3")
    hsync(g, 12)
    for cc in range(4): g("ds_read_b128 v[%d:%d], v12 offset:%d" % (128 + 4*cc, 131 + 4*cc, cc*1024))
    conv_fin(g)
    aop = ("vm", g.vm_seq)
    stamp(g, "H:aiss")
    g("s_add_u32 s80, s95, %d\nv_add_u32 v11, s80, v10" % (WDB1 - WDA))
    g("s_and_b32 s82, s%d, 1\ns_lshl_b32 s80, s%d, 1\ns_add_u32 s80, s80, s82\ns_lshl_b32 s80, s80, 10\ns_and_b32 s81, s%d, 56\ns_lshl_b32 s81, s81, 4\ns_add_u32 s80, s80, s81\ns_and_b32 s81, s%d, 7\ns_lshl_b32 s81, s81, 2\ns_add_u32 s80, s80, s81\ns_add_u32 s80, s80, 0x%x" % (S_W, S_XCD, S_CH, S_CH, FA_OFF))
    g("s_cmp_ge_u32 s%d, 28\ns_cbranch_scc1 Lsk2" % S_IDX)
    for i in range(OPT["nwa"]): g("ds_write_b128 v11, v[%d:%d] offset:%d" % (64 + 4*i, 67 + 4*i, i*1024))
    g("Lsk2:")
    g.wait_op(aop); flag_store(g, 80, 8); stamp(g, "H:aflag")
    g("s_cmp_ge_u32 s%d, 28\ns_cbranch_scc1 Lsk3" % S_IDX)
    for i in range(OPT["nwa"], 16): g("ds_write_b128 v11, v[%d:%d] offset:%d" % (64 + 4*i, 67 + 4*i, i*1024))
    g("s_branch Lsk5")
    g("Lsk3:")
    for t in wd_dma(5, 30) + wd_dma(6, 30):
        for l in t.split("\n"): g.raw(l)
    g.raw("s_waitcnt vmcnt(0)")
    g("Lsk5:")
    g("ds_write_b32 v17, v19 offset:16")
    stamp(g, "H:wdland")
    g("v_and_b32 v5, 31, v0\nv_lshlrev_b32 v20, 3, v5")
    g("s_lshl_b32 s82, s%d, 1\ns_lshr_b32 s81, s%d, 4\ns_add_u32 s82, s82, s81\ns_lshl_b32 s82, s82, 10\ns_lshr_b32 s81, s%d, 1\ns_lshl_b32 s81, s81, 9\ns_add_u32 s82, s82, s81\ns_add_u32 s82, s82, 0x%x\ns_add_u32 s50, s48, s82\ns_addc_u32 s51, s49, 0" % (S_NB, S_TB2, S_W, FA_OFF))
    g("v_lshrrev_b32 v7, 2, v0\nv_mul_u32_u24 v8, 4224, v7\nv_and_b32 v9, 3, v0\nv_lshlrev_b32 v9, 4, v9\nv_add_u32 v8, v8, v9")
    g("s_mul_i32 s83, s%d, 270336\ns_lshr_b32 s81, s%d, 1\ns_mul_i32 s81, s81, 135168\ns_add_u32 s83, s83, s81\ns_lshl_b32 s81, s%d, 7\ns_add_u32 s83, s83, s81\ns_and_b32 s81, s%d, 1\ns_lshl_b32 s81, s81, 6\ns_add_u32 s83, s83, s81\ns_add_u32 s83, s83, 0x%x\ns_add_u32 s84, s83, 67584" % (S_NB, S_W, S_TB2, S_W, AT_OFF))
    g("s_lshl_b32 s85, s%d, 9\ns_and_b32 s81, s%d, 1\ns_lshl_b32 s81, s81, 8\ns_add_u32 s85, s85, s81\ns_add_u32 s85, s85, 0x%x" % (S_TB2, S_W, G_OFF))
    g("s_lshl_b32 s86, s%d, 12\ns_add_u32 s86, s86, %d\nv_add_u32 v21, s86, v10" % (S_W, STG))
    g("v_lshrrev_b32 v22, 5, v0\nv_lshlrev_b32 v22, 2, v22\nv_bfe_u32 v23, v0, 2, 2\nv_add_u32 v22, v22, v23\nv_lshlrev_b32 v22, 6, v22")
    g("v_bfe_u32 v23, v0, 4, 1\nv_lshlrev_b32 v23, 5, v23\nv_add_u32 v22, v22, v23\nv_and_b32 v23, 3, v0\nv_lshlrev_b32 v23, 3, v23\nv_add_u32 v22, v22, v23\nv_add_u32 v22, s86, v22")
    fin_addr(g, 24)
    g("v_and_b32 v29, 31, v0\nv_lshlrev_b32 v30, 2, v29\nv_add_u32 v30, s86, v30\nv_lshlrev_b32 v29, 6, v29\nv_lshrrev_b32 v23, 5, v0\nv_lshlrev_b32 v23, 3, v23\nv_add_u32 v29, v29, v23\nv_add_u32 v29, s86, v29")
    g("v_bfe_u32 v5, v0, 3, 2\nv_lshlrev_b32 v5, 7, v5\nv_and_b32 v6, 7, v0\nv_lshlrev_b32 v6, 2, v6\nv_add_u32 v5, v5, v6")
    g("v_lshrrev_b32 v6, 5, v0\nv_lshlrev_b32 v6, 16, v6\nv_add_u32 v20, v20, v6\ns_mov_b32 s%d, 0x40000" % S_SPIN)
    g("Lgp:")
    for j in range(4):
        g.raw("s_add_u32 s80, s85, %d" % (j*16384)); g.raw("buffer_load_dwordx2 v[%d:%d], v20, %s, s80 offen sc1" % (32 + 2*j, 33 + 2*j, srd(S_WS)))
    if OPT["mg"]: g.raw("buffer_load_dword v6, v5, %s, s82 offen sc1" % srd(S_WS))
    for l in ("s_waitcnt vmcnt(0)", "v_xor_b32 v33, s%d, v33" % S_TAG, "v_xor_b32 v35, s%d, v35" % S_TAG, "v_xor_b32 v37, s%d, v37" % S_TAG, "v_xor_b32 v39, s%d, v39" % S_TAG,
              "v_or_b32 v33, v33, v35", "v_or_b32 v37, v37, v39", "v_or_b32 v33, v33, v37", "v_cmp_ne_u32 vcc, 0, v33", "s_nop 4", "s_cmp_eq_u64 vcc, 0", "s_cbranch_scc1 Lgd",
              "s_sleep 8", "s_sub_u32 s%d, s%d, 1" % (S_SPIN, S_SPIN), "s_cbranch_scc0 Lgp"): g.raw(l)
    g("Lgd:"); g.vm_done = g.vm_seq
    if OPT["mg"]:
        g("v_cmp_ne_u32 vcc, s%d, v6\ns_nop 4\ns_cmp_eq_u64 vcc, 0\ns_cbranch_scc1 Lap" % S_TAG)
        poll(g, 5, 82, 6, sleep=OPT["asl2"])
        g("Lap:")
    else: poll(g, 5, 82, 6, sleep=OPT["asl2"])
    stamp(g, "H:apolled")
    g("buffer_load_dwordx4 v[12:15], v8, %s, s83 offen sc1" % srd(S_WS))
    g("buffer_load_dwordx4 v[16:19], v8, %s, s84 offen sc1" % srd(S_WS))
    g("v_add_f32 v32, v32, v34\nv_add_f32 v36, v36, v38\nv_add_f32 v2, v32, v36\nv_mov_b32 v3, v2")
    g("v_permlane32_swap_b32 v2, v3\nv_add_f32 v2, v2, v3")
    for t in ("v_cvt_pk_bf16_f32 v2, v2, v2", "v_lshlrev_b32 v2, 16, v2", "v_mul_f32 v2, 0x%x, v2" % f2u(-LOG2E), "v_exp_f32 v2, v2",
              "v_add_f32 v2, 1.0, v2", "v_rcp_f32 v2, v2", "v_cvt_pk_bf16_f32 v2, v2, v2", "v_lshlrev_b32 v2, 16, v2"): g(t)
    g("v_sub_f32 v3, 1.0, v2\nv_cvt_pk_bf16_f32 v3, v3, v3\nv_lshlrev_b32 v3, 16, v3")
    g("ds_write_b128 v21, v[12:15]")
    g("ds_write_b128 v21, v[16:19] offset:1024")
    for q in range(4): g("ds_read_b64_tr_b16 v[%d:%d], v22 offset:%d" % (32 + 2*q, 33 + 2*q, q*512))
    for r in range(8):
        y = 48 + 2*r
        g("v_lshlrev_b32 v%d, 16, v%d\nv_and_b32 v%d, 0xffff0000, v%d" % (y, 32 + r, y+1, 32 + r))
        g("v_mul_f32 v%d, v2, v%d\nv_mul_f32 v%d, v2, v%d" % (y, y, y+1, y+1))
        g("v_cvt_pk_bf16_f32 v%d, v%d, v%d" % (40 + r, y, y+1))
    for q in range(4): g("ds_write_b64 v29, v[%d:%d] offset:%d" % (40 + 2*q, 41 + 2*q, 2048 + 16*q))
    g("ds_write_b32 v30, v3")
    g.wait(lg=0)
    epoch_bump(g)
    stamp(g, "H:aTready")
    g("s_barrier")
    fin(g, 24, 64, 44, 3)
    stamp(g, "H:end")
    stamp_store(g)
    g("s_endpgm")
    g2 = G(); g2.nlab = 3000; g2.role = 1; g2.nst = 36
    g2("Lhidle:")
    H_part1(g2, True)
    g2("s_branch Lh8")
    g2("Lcodeend:")
    return g.text(), g2.text()

RADDR = [8, 14, 20]
def gemm1_raddr(g):
    g("v_and_b32 v5, 31, v0\nv_lshrrev_b32 v6, 5, v0\nv_bfe_u32 v7, v0, 1, 3\nv_xor_b32 v6, v6, v7\nv_lshlrev_b32 v6, 4, v6\nv_lshlrev_b32 v5, 7, v5\nv_add_u32 v5, v5, v6")
    g("s_and_b32 s80, s%d, 1\ns_lshl_b32 s80, s80, 13\nv_add_u32 v8, s80, v5" % S_W)
    for s in range(1, 4): g("v_xor_b32 v%d, %d, v8" % (8 + s, 32*s))
    g("v_lshrrev_b32 v5, 5, v0\nv_lshlrev_b32 v5, 3, v5\nv_bfe_u32 v6, v0, 2, 2\nv_add_u32 v5, v5, v6\nv_lshlrev_b32 v5, 8, v5")
    g("s_lshr_b32 s80, s%d, 1\ns_lshl_b32 s80, s80, 1\nv_xor_b32 v6, s80, v6\nv_lshlrev_b32 v6, 6, v6\nv_add_u32 v5, v5, v6" % S_W)
    g("v_bfe_u32 v6, v0, 4, 1\nv_lshlrev_b32 v6, 5, v6\nv_add_u32 v5, v5, v6\nv_and_b32 v6, 3, v0\nv_lshlrev_b32 v6, 3, v6\nv_add_u32 v5, v5, v6")
    g("v_add_u32 v12, 0x4000, v5\nv_xor_b32 v13, 64, v12")
    for i in range(6):
        g("v_add_u32 v%d, 0x%x, v%d" % (14 + i, BUF[1], 8 + i))
        g("v_add_u32 v%d, 0x%x, v%d" % (20 + i, BUF[2], 8 + i))
def frag(p, kind, i): return 24*p + {"x": 0, "g": 8, "u": 16}[kind] + 4*i
def gemm1_reads(kk):
    st, s = divmod(kk, 4); p = kk & 1; ra = RADDR[st % 3]
    q = []
    def W(kind, fi):
        for h in range(2):
            b = frag(p, kind, fi) + 2*h
            q.append("ds_read_b64_tr_b16 a[%d:%d], v%d offset:%d" % (b, b+1, ra + 4 + fi, s*4096 + h*1024 + (16384 if kind == "u" else 0)))
    def X(ti):
        b = frag(p, "x", ti)
        q.append("ds_read_b128 a[%d:%d], v%d offset:%d" % (b, b+3, ra + s, ti*4096))
    X(0); W("g", 0); W("u", 0); X(1); W("g", 1); W("u", 1)
    return q
def acc1(kind, fi, ti): return 32 + {"g": 0, "u": 64}[kind] + 32*fi + 16*ti
def gemm1_mfmas(kk):
    p = kk & 1; q = []
    for fi, ti in ((0,0),(0,1),(1,0),(1,1)):
        for kind in "gu":
            a = acc1(kind, fi, ti); w = frag(p, kind, fi); x = frag(p, "x", ti)
            c = "0" if kk == 0 else "v[%d:%d]" % (a, a+15)
            q.append("v_mfma_f32_32x32x16_bf16 v[%d:%d], a[%d:%d], a[%d:%d], %s" % (a, a+15, w, w+3, x, x+3, c))
    return q
def gemm1_main(g, side):
    g("s_barrier")
    stamp(g, "C:B0")
    for r in gemm1_reads(0): g(r)
    for kk in range(32):
        st, s = divmod(kk, 4)
        mf = gemm1_mfmas(kk); pre = 0
        if s == 3:
            g(mf[0]); g(mf[1]); pre = 2
            for t in side.get("pre%d" % (st + 1), []): g(t)
            g.wait(lg=0)
            stamp(g, "C:a%d" % (st + 1))
            g("s_barrier")
            stamp(g, "C:B%d" % (st + 1))
        fill = gemm1_reads(kk + 1) if kk + 1 < 32 else []
        fill += side.get(kk, [])
        for i in range(pre, 8):
            g(mf[i])
            for _ in range(2 if i < 7 else 99):
                if fill: emit(g, fill.pop(0))
def gemm1_epilogue(g, load_w):
    k1 = -2*0.7978845608028654*LOG2E; k2 = k1*0.044715
    g("s_mov_b32 s84, 0x%x\ns_mov_b32 s85, 0x%x" % (f2u(k2), f2u(k2)))
    g("v_mov_b32 v2, 0x%x\nv_mov_b32 v3, 0x%x" % (f2u(k1), f2u(k1)))
    g("v_lshlrev_b32 v4, 4, v0")
    g("s_lshl_b32 s80, s%d, 2\ns_and_b32 s81, s%d, 1\ns_lshl_b32 s81, s81, 1\ns_add_u32 s80, s80, s81\ns_mul_i32 s80, s80, 112" % (S_MT, S_W))
    g("s_lshl_b32 s81, s%d, 3\ns_add_u32 s80, s80, s81\ns_lshr_b32 s81, s%d, 1\ns_lshl_b32 s81, s81, 2\ns_add_u32 s80, s80, s81" % (S_FT, S_W))
    g("s_lshl_b32 s80, s80, 10\ns_add_u32 s80, s80, 0x%x\ns_add_u32 s81, s80, %d" % (H_OFF, 112*1024))
    cnt = 0
    for fi in range(2):
        for ti in range(2):
            for half in range(2):
                G0 = acc1("g", fi, ti) + 8*half; U0 = acc1("u", fi, ti) + 8*half
                T = 8; D = 16 + 4*(cnt & 1)
                P = [(G0 + 2*j, U0 + 2*j, T + 2*j) for j in range(4)]
                if OPT["pk"]:
                    for (x, u, t) in P: g("v_pk_mul_f32 v[%d:%d], v[%d:%d], v[%d:%d]" % (t, t+1, x, x+1, x, x+1))
                    for (x, u, t) in P: g("v_pk_fma_f32 v[%d:%d], v[%d:%d], s[84:85], v[2:3]" % (t, t+1, t, t+1))
                    for (x, u, t) in P: g("v_pk_mul_f32 v[%d:%d], v[%d:%d], v[%d:%d]" % (t, t+1, t, t+1, x, x+1))
                    for j in range(8): g("v_exp_f32 v%d, v%d" % (T + j, T + j))
                    for (x, u, t) in P: g("v_pk_mul_f32 v[%d:%d], v[%d:%d], v[%d:%d]" % (x, x+1, x, x+1, u, u+1))
                    for (x, u, t) in P: g("v_pk_add_f32 v[%d:%d], v[%d:%d], 1.0 op_sel_hi:[1,0]" % (t, t+1, t, t+1))
                    for j in range(8): g("v_rcp_f32 v%d, v%d" % (T + j, T + j))
                    for (x, u, t) in P: g("v_pk_mul_f32 v[%d:%d], v[%d:%d], v[%d:%d]" % (x, x+1, x, x+1, t, t+1))
                else:
                    E = [(G0 + j, U0 + j, T + j) for j in range(8)]
                    for (x, u, t) in E: g("v_mul_f32 v%d, v%d, v%d" % (t, x, x))
                    for (x, u, t) in E: g("v_fma_f32 v%d, v%d, s84, v2" % (t, t))
                    for (x, u, t) in E: g("v_mul_f32 v%d, v%d, v%d" % (t, t, x))
                    for (x, u, t) in E: g("v_exp_f32 v%d, v%d\nv_mul_f32 v%d, v%d, v%d" % (t, t, x, x, u))
                    for (x, u, t) in E: g("v_add_f32 v%d, 1.0, v%d" % (t, t))
                    for (x, u, t) in E: g("v_rcp_f32 v%d, v%d" % (t, t))
                    for (x, u, t) in E: g("v_mul_f32 v%d, v%d, v%d" % (x, x, t))
                for j, (x, u, t) in enumerate(P): g("v_cvt_pk_bf16_f32 v%d, v%d, v%d" % (D + j, x, x+1))
                op = g("buffer_store_dwordx4 v[%d:%d], v4, %s, s%d offen offset:%d sc1" % (D, D+3, srd(S_WS), 80 + ti, (2*fi + half)*1024))
                if cnt == 3: opA = op
                if cnt == OPT["fa"] and OPT["half"]: g.wait_op(opA); flag_store(g, 87, 24)
                cnt += 1
    return op

def touch_addr(g):
    g("s_lshl_b32 s80, s%d, 2\ns_add_u32 s80, s80, s%d" % (S_IDX, S_W))
    g("s_lshr_b32 s90, s%d, 1\ns_lshl_b32 s90, s90, 19\ns_lshl_b32 s81, s80, 12\ns_add_u32 s90, s90, s81" % S_XCD)
    g("v_lshlrev_b32 v30, 7, v0")
    g("v_mul_u32_u24 v5, 37, v0\nv_lshrrev_b32 v5, 8, v5\nv_mul_u32_u24 v6, 7, v5\nv_sub_u32 v6, v0, v6\nv_lshlrev_b32 v6, 7, v6")
    g("s_mov_b32 s81, %d\nv_mul_lo_u32 v5, v5, s81\nv_add_u32 v26, v5, v6" % (64*3584))
    g("s_lshr_b32 s91, s80, 1\ns_mul_i32 s91, s91, 3584\ns_and_b32 s81, s80, 1\ns_mul_i32 s81, s81, 896\ns_add_u32 s91, s91, s81\ns_and_b32 s81, s%d, 1\ns_mul_i32 s81, s81, 1792\ns_add_u32 s91, s91, s81" % S_XCD)
    g("s_mul_i32 s93, s80, %d\ns_lshl_b32 s92, s2, 2\ns_add_u32 s92, s92, s%d\ns_mul_i32 s92, s92, %d" % (112*128, S_W, 14*128))
def lanes(lo, hi):
    m = ((1 << hi) - 1) & ~((1 << lo) - 1)
    return "s_mov_b32 exec_lo, 0x%x\ns_mov_b32 exec_hi, 0x%x" % (m & 0xffffffff, m >> 32)
def touch_w(s0, s1, r):
    return "%s\nbuffer_load_dword a%d, v26, %s, s91 offen\nbuffer_load_dword a%d, v26, %s, s91 offen\ns_mov_b64 exec, -1" % (lanes(7*s0, 7*s1), r, srd(S_WG), r+1, srd(S_WU))
def touch_glob():
    return "%s\nbuffer_load_dword a74, v30, %s, s92 offen\nbuffer_load_dword a75, v30, %s, s92 offen\ns_lshl_b32 s80, s2, 2\ns_add_u32 s80, s80, s%d\ns_lshl_b32 s80, s80, 11\n%s\nbuffer_load_dword a70, v30, %s, s80 offen\ns_mov_b64 exec, -1" % (lanes(0, 14), srd(S_WG), srd(S_WU), S_W, lanes(0, 16), srd(S_X))
def touch_x(): return "%s\nbuffer_load_dword a70, v30, %s, s90 offen\ns_mov_b64 exec, -1" % (lanes(0, 32), srd(S_X))
def touch_wd_global(): return "%s\nbuffer_load_dword a71, v30, %s, s92 offen\ns_mov_b64 exec, -1" % (lanes(0, 14), srd(S_WD))
def touch_wd_xcd(): return "%s\nbuffer_load_dword a72, v30, %s, s93 offen\ns_add_u32 s93, s93, %d\nbuffer_load_dword a73, v30, %s, s93 offen\ns_mov_b64 exec, -1" % (lanes(0, 56), srd(S_WD), 56*128, srd(S_WD))

WDS = 87040
def wdt_issue(g):
    g("v_lshrrev_b32 v5, 3, v0\nv_lshlrev_b32 v5, 10, v5\nv_bfe_u32 v6, v0, 4, 1\nv_lshlrev_b32 v6, 2, v6\nv_and_b32 v7, 7, v0\nv_xor_b32 v6, v6, v7\nv_lshlrev_b32 v6, 4, v6\nv_add_u32 v9, v5, v6")
    g("s_sub_u32 s82, s%d, 28\ns_mul_i32 s85, s82, %d\ns_lshl_b32 s80, s%d, 7\ns_add_u32 s85, s85, s80" % (S_IDX, 448*1024, S_XCD))
    g("s_mul_i32 s83, s%d, 3" % S_W)
    for j in range(3):
        g("s_add_u32 s84, s83, %d\ns_lshr_b32 s80, s84, %d\ns_add_u32 s80, s80, %s\ns_cmp_ge_u32 s80, 7\ns_cselect_b32 s81, 7, 0\ns_sub_u32 s80, s80, s81\ns_lshl_b32 s80, s80, 16\ns_and_b32 s84, s84, %d\ns_lshl_b32 s84, s84, 14\ns_add_u32 s80, s80, s84\ns_add_u32 s93, s80, s85" % (j, 1 if OPT["pord"] else 2, ("s%d" % S_XCD) if OPT["hrot"] else "0", 1 if OPT["pord"] else 3))
        g("buffer_load_dwordx4 v[%d:%d], v9, %s, s93 offen" % (128 + 8*j, 131 + 8*j, srd(S_WD)))
        g("s_add_u32 s93, s93, 8192\nbuffer_load_dwordx4 v[%d:%d], v9, %s, s93 offen" % (132 + 8*j, 135 + 8*j, srd(S_WD)))
def wdt_process(g):
    g("v_lshlrev_b32 v9, 4, v0\nv_add_u32 v8, s11, v9")
    for i in range(6): g("ds_write_b128 v8, v[%d:%d] offset:%d" % (128 + 4*i, 131 + 4*i, i*1024))
    g("v_lshrrev_b32 v7, 5, v0\nv_lshlrev_b32 v7, 2, v7\nv_bfe_u32 v10, v0, 2, 2\nv_add_u32 v7, v7, v10\nv_lshlrev_b32 v7, 7, v7")
    g("v_bfe_u32 v10, v0, 3, 1\nv_lshlrev_b32 v10, 6, v10\nv_add_u32 v7, v7, v10\nv_bfe_u32 v10, v0, 4, 1\nv_lshlrev_b32 v10, 5, v10\nv_add_u32 v7, v7, v10")
    g("v_and_b32 v10, 3, v0\nv_lshlrev_b32 v10, 3, v10\nv_add_u32 v7, v7, v10\nv_add_u32 v5, s11, v7\nv_xor_b32 v6, 64, v5")
    KS = 2048 if not OPT["wsp"] else 65536 + 2048
    g("s_sub_u32 s82, s%d, 28\ns_lshl_b32 s86, s%d, 2\ns_add_u32 s86, s86, s82\ns_lshl_b32 s83, s86, %d\ns_mul_i32 s80, s%d, %d\ns_add_u32 s83, s83, s80\ns_add_u32 s83, s83, 0x%x" % (S_IDX, S_XCD, 11 if OPT["wsp"] else 15, S_W, 3*KS, WDT_OFF))
    for k in range(3):
        for di in range(2):
            for h in range(2):
                b = 96 + 8*k + 4*di + 2*h
                g("ds_read_b64_tr_b16 v[%d:%d], v%d offset:%d" % (b, b+1, 5 + di, k*2048 + h*1024))
    for k in range(6):
        if k in (2, 4): g("s_add_u32 s83, s83, %d" % KS)
        g("buffer_store_dwordx4 v[%d:%d], v9, %s, s83 offen offset:%d sc1" % (96 + 4*k, 99 + 4*k, srd(S_WS), (k % 2)*1024))
    g("s_lshl_b32 s80, s86, 7\ns_lshl_b32 s81, s%d, 2\ns_add_u32 s80, s80, s81\ns_add_u32 s80, s80, 0x%x" % (S_W, FW_OFF))
def build_C():
    g = G(); g.nlab = 2000; g.role = 0; g.nst = 1; St.names[0] = "C:start"
    g("Lcompute:")
    prologue2(g)
    def wpre(kk, di): return (48 + 8*kk + 4*di) if kk < 6 else (8*(kk - 6) + 4*di)
    def load_w(kk):
        q = []
        pre = "s_add_u32 s93, s94, %d\n" % (kk*(2048 if not OPT["wsp"] else 65536 + 2048))
        for di in range(2):
            q.append(pre + "buffer_load_dwordx4 a[%d:%d], v%d, %s, s93 offen sc1" % (wpre(kk, di), wpre(kk, di) + 3, 26 + di, srd(S_WS))); pre = ""
        return q
    def g2setup(g):
        chunk_ids(g)
        g("s_lshl_b32 s80, s%d, 1\ns_and_b32 s81, s%d, 1\ns_add_u32 s80, s80, s81\ns_lshl_b32 s80, s80, 9" % (S_MT, S_W))
        g("s_lshl_b32 s81, s%d, 1\ns_lshr_b32 s82, s%d, 1\ns_add_u32 s81, s81, s82\ns_mul_i32 s82, s81, 37\ns_lshr_b32 s82, s82, 8\ns_mul_i32 s82, s82, 100\ns_lshl_b32 s81, s81, 2\ns_add_u32 s80, s80, s81\ns_add_u32 s80, s80, s82\ns_add_u32 s87, s80, 0x%x\ns_add_u32 s86, s87, 0x8000" % (S_FT, S_W, FH_OFF))
        g("s_lshl_b32 s80, s%d, 2\ns_add_u32 s80, s80, %d\nv_mov_b32 v30, s80" % (S_W, SYW + 16))
        g("v_lshrrev_b32 v7, 5, v0\nv_lshlrev_b32 v7, 2, v7\nv_bfe_u32 v2, v0, 2, 2\nv_add_u32 v7, v7, v2\nv_lshlrev_b32 v7, 7, v7")
        g("v_bfe_u32 v2, v0, 3, 1\ns_lshr_b32 s80, s%d, 1\nv_xor_b32 v2, s80, v2\nv_lshlrev_b32 v2, 6, v2\nv_add_u32 v7, v7, v2\nv_bfe_u32 v2, v0, 4, 1\nv_lshlrev_b32 v2, 5, v2\nv_add_u32 v7, v7, v2" % S_W)
        g("v_and_b32 v2, 3, v0\nv_lshlrev_b32 v2, 3, v2\nv_add_u32 v7, v7, v2\nv_add_u32 v5, s95, v7\nv_xor_b32 v6, 64, v5")
        g("v_add_u32 v28, 0x%x, v5\nv_add_u32 v29, 0x%x, v6" % (WDB1 - WDA, WDB1 - WDA))
        g("v_lshlrev_b32 v1, 4, v0\ns_and_b32 s80, s%d, 1\ns_mul_i32 s81, s80, %d\ns_xor_b32 s80, s80, 1\ns_mul_i32 s80, s80, %d\nv_add_u32 v7, s80, v1\nv_add_u32 v1, s81, v1" % (S_W, 112*1024, 112*1024))
        g("s_mul_i32 s91, s%d, %d\ns_mul_i32 s80, s%d, %d\ns_add_u32 s91, s91, s80\ns_add_u32 s91, s91, 0x%x" % (S_TB2, 2*112*1024, S_W, 28*1024, H_OFF))
        g("s_lshl_b32 s80, s%d, 9\ns_lshl_b32 s81, s%d, 7\ns_add_u32 s80, s80, s81\ns_add_u32 s80, s80, 0x%x\ns_add_u32 s50, s48, s80\ns_addc_u32 s51, s49, 0" % (S_TB2, S_W, FH_OFF))
    def late_setup(g):
        g("v_lshlrev_b32 v26, 4, v0\ns_lshr_b32 s80, s%d, 1\ns_lshl_b32 s80, s80, 10\nv_add_u32 v26, s80, v26\nv_xor_b32 v27, 0x400, v26" % S_W)
        g("s_lshl_b32 s94, s%d, 2\ns_add_u32 s94, s94, s%d\ns_lshl_b32 s94, s94, %d\ns_add_u32 s94, s94, 0x%x" % (S_NB, S_W, 11 if OPT["wsp"] else 15, WDT_OFF))
        g2setup(g)
    g("s_waitcnt lgkmcnt(0)")
    g("global_load_ushort v39, v63, s[30:31]")
    for i in range(6): g("global_load_ushort v%d, v32, s[%d:%d]" % (33 + i, 18 + 2*i, 19 + 2*i))
    g("global_load_ushort v59, v63, s[32:33]")
    epoch_load(g); srds2(g)
    kgen_addr(g); kgen_compact_addr(g)
    gemm1_raddr(g)
    stamp(g, "C:pre")
    if STAMPS: g.wait(vm=0)
    stamp(g, "C:par")
    tag_compute(g)
    kgen_W(g) if OPT["ksplit"] else kgen_WE(g)
    g("s_lshl_b32 s80, s%d, 2\ns_add_u32 s80, s80, %d\nv_mov_b32 v60, s80\nv_mov_b32 v61, s%d\nds_write_b32 v60, v61\nv_xor_b32 v60, 4, v60\ns_mov_b32 s%d, 0x100000" % (S_W, CSW, S_TAG, S_SPIN))
    g("s_and_b32 s80, s%d, 1\nv_or_b32 v58, s80, v0\nv_lshlrev_b32 v59, 16, v59\nv_cmp_eq_u32 vcc, 0, v58\nv_cndmask_b32 v59, 0, v59, vcc" % S_W)
    stamp(g, "C:W done")
    g("Lcs:")
    for l in ("ds_read_b32 v61, v60", "s_waitcnt lgkmcnt(0)", "v_readfirstlane_b32 s80, v61", "s_sub_u32 s%d, s%d, 1" % (S_SPIN, S_SPIN), "s_cbranch_scc1 Lcsd",
              "s_cmp_lg_u32 s80, s%d" % S_TAG, "s_cbranch_scc1 Lcs"): g.raw(l)
    g("Lcsd:"); g.lg_done = g.lg_seq
    stamp(g, "C:Bk")
    kgen_mfma(g); kgen_compact(g)
    g.wait(lg=0)
    stamp(g, "C:K done")
    g("s_cmp_ge_u32 s%d, 28\ns_cbranch_scc1 Lnog1" % S_IDX)
    ne = OPT["wearly"]
    side = {28: load_w(0) + load_w(1), 29: load_w(2) + load_w(3), 30: load_w(4) + load_w(5)} if ne else {}
    r2 = Rec2(); late_setup(r2)
    for i, t in enumerate(r2.q): side.setdefault(4 + 4*(i // 6) + (i % 6)//2, []).append(t)
    gemm1_main(g, side)
    stamp(g, "C:main1end")
    g("s_setprio %d" % OPT["cprio_epi"])
    hop = gemm1_epilogue(g, load_w)
    stamp(g, "C:epiend")
    g("v_mov_b32 v9, 1\nds_write_b32 v30, v9 offset:32")
    if OPT["half"]: g.raw("s_load_dwordx8 s[8:15], s[50:51], 0 glc")
    g.raw("s_waitcnt vmcnt(0)"); g.vm_done = g.vm_seq
    flag_store(g, 86, 8)
    g("s_branch Lg2")
    g("Lnog1:")
    g.raw("s_barrier")
    T_issue(g); wdt_issue(g); T_process(g); wdt_process(g); g("s_mov_b32 s14, s80")
    g.wait(vm=0); flag_store(g, 15, 8); flag_store(g, 14, 8)
    late_setup(g)
    g.raw("s_barrier"); g.raw("s_barrier")
    g("v_mov_b32 v9, 1\nds_write_b32 v30, v9 offset:32")
    assert not OPT["pord"]
    g.raw("s_barrier")
    g("s_lshl_b32 s80, s%d, 2\ns_add_u32 s80, s80, s%d\ns_lshl_b32 s80, s80, 7\ns_add_u32 s80, s80, 0x%x\nv_and_b32 v8, 3, v0\nv_lshlrev_b32 v8, 2, v8" % (S_NB, S_W, FW_OFF))
    poll(g, 8, 80, 9, sleep=8)
    for kk in range(12):
        for t in load_w(kk): g(t)
    g("v_mov_b32 v20, v5\nv_mov_b32 v21, v6\nv_mov_b32 v22, v7")
    wd_setup(g, 23)
    for t in wd_dma(3, 23) + wd_dma(4, 23): g(t)
    g("v_mov_b32 v5, v20\nv_mov_b32 v6, v21\nv_mov_b32 v7, v22\nv_lshlrev_b32 v8, 10, v0")
    for c in (5, 6): g("s_lshl_b32 s80, s%d, 16\ns_add_u32 s80, s80, s94\nbuffer_load_dword v%d, v8, %s, s80 offen" % (18 + c, 19 + c, srd(S_WD)))
    if OPT["half"]: g.raw("s_load_dwordx8 s[8:15], s[50:51], 0 glc")
    g.raw("s_waitcnt vmcnt(0)"); g.vm_done = g.vm_seq
    g("Lg2:")
    g("s_setprio %d" % OPT["cprio2"])
    stamp(g, "C:flag0")
    if OPT["half"]: spoll(g, 7, 0, issued=True)
    else:
        g("s_cmp_ge_u32 s%d, 28\ns_cbranch_scc1 Lsk4" % S_IDX)
        for kk in range(ne, 12):
            for t in load_w(kk): g(t)
        g("Lsk4:")
        if OPT["tp"]: spoll_touch(g)
        else: spoll(g, 7, 0x8000)
    stamp(g, "C:polled")
    RING = 8
    assert OPT['la'] <= 8
    def hreg(kk, ti):
        i = kk % RING
        return ("v[%d:%d]" % (32 + 8*i + 4*ti, 32 + 8*i + 4*ti + 3)) if i < 8 else ("a[%d:%d]" % (16 + 8*(i-8) + 4*ti, 16 + 8*(i-8) + 4*ti + 3))
    def load_h(kk):
        q = []; p = kk >> 1
        pre = "s_lshl_b32 s90, s%d, 12\ns_add_u32 s90, s90, s91\n" % (18 + pm(p)[0]) if kk % 2 == 0 else ""
        for ti in range(2):
            q.append(pre + "buffer_load_dwordx4 %s, v%d, %s, s90 offen offset:%d sc1" % (hreg(kk, ti), (1, 7)[ti], srd(S_WS), pm(p)[1]*2048 + (kk & 1)*1024)); pre = ""
        return q
    PRE = OPT["pre"]
    for kk in range(PRE):
        for t in load_h(kk): g(t)
    wq = [load_w(kk) for kk in range(ne, 12)] if OPT["half"] else []
    g("s_lshr_b32 s80, s%d, 1\ns_mul_i32 s80, s80, 4224\ns_and_b32 s81, s%d, 1\ns_lshl_b32 s81, s81, 13\ns_add_u32 s80, s80, s81\nv_lshlrev_b32 v2, 4, v0\nv_xor_b32 v2, s80, v2\nv_add_u32 v2, s95, v2" % (S_W, S_W))
    LQ = OPT["lastq"]; K0 = 28 - LQ
    def wb(kk, di):
        if kk < 12: return "a", wpre(kk, di)
        if kk >= K0: return "a", 8*(kk - K0) + 4*di
        return "v", 10 + 8*(kk & 1) + 4*di
    def wreg(kk, di):
        t, b = wb(kk, di); return "%s[%d:%d]" % (t, b, b + 3)
    def reads(kk):
        c, s = divmod(kk, 4); q = []
        for di in range(2):
            va, off = {3: ((5, 6), 0), 4: ((5, 6), 8192), 5: ((28, 29), 0), 6: ((28, 29), 8192)}[c]
            t, b = wb(kk, di)
            for h in range(2):
                q.append("ds_read_b64_tr_b16 %s[%d:%d], v%d offset:%d" % (t, b + 2*h, b + 2*h + 1, va[di], off + s*2048 + h*1024))
        return q
    def mf(kk, di, ti):
        a = 96 + 32*di + 16*ti
        g("v_mfma_f32_32x32x16_bf16 v[%d:%d], %s, %s, %s" % (a, a+15, wreg(kk, di), hreg(kk, ti), "0" if kk == 0 else "v[%d:%d]" % (a, a+15)))
    nh = PRE
    fa = rec(fin_addr, 40)
    for kk in range(K0):
        if kk in (1, 4, 8, 12, 16, 20): stamp(g, "C:k%d" % kk)
        nx = reads(kk + 1) if 12 <= kk + 1 < K0 else []
        lq = []
        for _ in range(OPT["wrate"]):
            if wq: lq += wq.pop(0)
        if OPT["half"] and kk == 14 - OPT["la"] - 2: g.raw("s_load_dwordx8 s[8:15], s[50:51], 0x8000 glc")
        for _ in range(2):
            if nh < 28 and nh < kk + OPT["la"]:
                if nh == 14 and OPT["half"]: lq.append(lambda g: (spoll(g, 7, 0x8000, issued=True), stamp(g, "C:pB")))
                lq += load_h(nh); nh += 1
        if kk == K0 - 2: lq += sum([reads(k) for k in range(K0, K0 + LQ//2)], [])
        if kk == K0 - 1: lq += sum([reads(k) for k in range(K0 + LQ//2, 28)], [])
        n = 0
        for di, ti in ((0,0),(0,1),(1,0),(1,1)):
            mf(kk, di, ti)
            if n == 0:
                for KR, fo in ((12, 16), (20, 0)):
                    if kk + 2 == KR: g("ds_read_b32 v8, v30 offset:%d" % fo)
                    if kk + 1 == KR:
                        L, D = g.lab("Lr"), g.lab("Lrd")
                        g("v_readfirstlane_b32 s80, v8")
                        g("s_mov_b32 s%d, 0x100000\ns_cmp_lg_u32 s80, 0\ns_cbranch_scc1 %s" % (S_SPIN, D))
                        g(L + ":")
                        for l in ("ds_read_b32 v8, v30 offset:%d" % fo, "s_waitcnt lgkmcnt(0)", "v_readfirstlane_b32 s80, v8", "s_sub_u32 s%d, s%d, 1" % (S_SPIN, S_SPIN), "s_cbranch_scc1 %s" % D,
                                  "s_cmp_eq_u32 s80, 0", "s_cbranch_scc1 %s" % L): g.raw(l)
                        g(D + ":")
                for r in nx: g(r)
            else:
                for _ in range(3 if n < 3 else 99):
                    if lq: emit(g, lq.pop(0))
            n += 1
    assert nh == 28
    stamp(g, "C:k%d" % K0)
    FB = 10
    fa = rec(fin_addr, FB)
    pend = []
    cnt = [0]
    def pw(di, ti):
        q = []
        for j in range(4):
            t = 16 + (cnt[0] & 3); cnt[0] += 1
            a = 96 + 32*di + 16*ti + 4*j
            q.append("v_xor_b32 v%d, 0x%x, v2\nds_write_b128 v%d, v[%d:%d]" % (t, j*1056 ^ di*4224 ^ ti*8192, t, a, a + 3))
        return q
    quads = ((0,0),(0,1),(1,0),(1,1))
    for qi, (di, ti) in enumerate(quads):
        for kk in range(K0, 28):
            mf(kk, di, ti)
            if qi == 0 or (qi == 1 and kk < K0 + 2):
                for _ in range(6):
                    if fa: g(fa.pop(0))
            elif pend and (kk - K0 >= 2 or len(pend) > 4 or LQ < 4): g(pend.pop(0));
        pend += pw(di, ti)
    for l in fa: g(l)
    stamp(g, "C:main2end")
    for t in pend: g(t)
    g.wait(lg=0)
    stamp(g, "C:a13")
    g("s_barrier")
    stamp(g, "C:B13")
    fin(g, FB, 64, 44, 3)
    stamp(g, "C:stores")
    if STAMPS:
        g.wait(vm=0); stamp(g, "C:drained")
    stamp_store(g)
    if OPT.get("hold"):
        for l in ("Lhold:", "s_memrealtime s[6:7]", "s_waitcnt lgkmcnt(0)", "s_sub_u32 s6, s6, s4", "s_cmp_lt_u32 s6, %d" % OPT["hold"], "s_cbranch_scc1 Lhold"):
            g.lines.append(l)
    g("Lend:")
    g("s_endpgm")
    return g.text()

if __name__ == "__main__":
    if len(sys.argv) > 2 and sys.argv[2] != "-": STAMPS = sys.argv[2]
    for a in sys.argv[3:]:
        k, v = a.split("="); OPT[k] = int(v)
    h1, h2 = build_H(); body = h1 + build_C() + h2
    open(sys.argv[1], "w").write(build_file([(KN, 256, 512, 163840, body, 256, 100, 160)], single=True))
    if STAMPS:
        import json; json.dump(St.names, open("stnames.json", "w"))
```

```python
import sys, struct, math
from gen import *

def f2u(x): return struct.unpack("<I", struct.pack("<f", x))[0]
UT_OFF = 0x1400000; UT_STRIDE = 4224
AT_STRIDE = 4224
CU = 16640; CU_CH = 4352
H_OFF = 0x400000
AT_OFF = 0x1700000
G_OFF = 0xEA0000
FT_OFF = 0xE20000
FH_OFF = 0xE40000
FA_OFF = 0xE60000
EP_OFF = 0xE10000
FW_OFF = 0xE80000
WDT_OFF = 0x1A00000
DBG_OFF = 0x1000000
WS_BYTES = 268435456
BUF = [0, 49152, 98304]
TBLK = 147456
KT = 98304; KT_CH = 28672; KT_IM = 14336
KC = 160768; KC_CH = 1536
CSW = 160000
KF = 154624; KF_CH = 4608; KF_PL = 2304
UEE = [98304, 131840]; UEO = [115072, 128]
XCH = [16640, 20736, 24832, 148480]
WDA = 32768; WDB1 = 98304
RED_AT = 49152; RED_G = 57344
S_X, S_WG, S_WU, S_WD, S_WS, S_OUT = 52, 56, 60, 64, 68, 72
S_X1 = 36
S_XCD, S_IDX, S_W, S_CH = 76, 77, 78, 79
S_MT, S_FT = 88, 89
S_TAG, S_TB2, S_NB, S_SPIN = 96, 97, 98, 99
LOG2E = 1.4426950408889634
STAMPS = False
OPT = dict(hprio=0, cprio_epi=1, rot=1, pk=1, seq=1, pre=8, pfirst=0, psleep=3, b11first=0, l2t=0, wsleep=0, a5=0, wpos=1, spoll=1, nr7=8, cprio2=0, cpf=248, la=8, n1=0, mt=1, nr6=12, n9=16, asl=0, asl2=16, bprio=3, fai=1, bw=0, convp=2, wearly=6, w2=0, w3=5, gt=0, map=1, osc=1, fa=6, wrate=2, half=0, lastq=4, gow=1, nwa=8, pord=0, t3=9, te=0, hrot=0, wsp=0, nb3=1, r1=0, ksplit=0, mg=0, tp=0, mtp=5, bpos=8, ls=1, hp2=0, hp1=3, gopos=8, mo=0, t2=12)
def srd(r): return "s[%d:%d]" % (r, r+3)
class St:
    names = {}
def stamp(g, name):
    if not STAMPS: return
    if OPT.get("few") and name not in ("C:B0", "C:B2", "C:B7", "C:main1end", "C:epiend", "C:flag0", "C:polled", "C:main2end", "C:B13", "C:drained", "H:built", "H:a9", "H:convend", "H:aflag", "H:aTready"): return
    g.raw("%s s[6:7]" % STAMPS); g.smem_pending = True; g.wait(lg=0)
    g.raw("v_writelane_b32 v31, s6, %d" % g.nst)
    St.names[g.role*48 + g.nst] = name
    g.nst += 1
    assert g.nst <= 48
def stamp_store(g):
    if not STAMPS: return
    L = g.lab("Lst")
    g("s_cmp_lg_u32 s%d, 0\ns_cbranch_scc1 %s" % (S_W, L))
    g.raw("v_writelane_b32 v31, s4, 0")
    g.raw("s_getreg_b32 s6, hwreg(HW_REG_XCC_ID)"); g.raw("v_writelane_b32 v31, s6, 47")
    g.raw("s_mul_i32 s3, s2, 384"); g.raw("s_add_u32 s3, s3, 0x%x" % (DBG_OFF + g.role*192)); g.raw("v_lshlrev_b32 v1, 2, v0")
    g.raw("s_mov_b32 exec_hi, 0xffff")
    g.raw("buffer_store_dword v31, v1, %s, s3 offen" % srd(S_WS))
    if OPT.get("dbg") and g.role == 0:
        inv = {v: k for k, v in St.names.items()}
        sel = ["C:start", "C:Bk", "C:B0", "C:B1", "C:B2", "C:B4", "C:B6", "C:main1end", "C:epiend", "C:flag0", "C:polled", "C:k16", "C:main2end", "C:B13", "C:drained"]
        g.raw("s_cmp_ge_u32 s2, 224"); g.raw("s_cbranch_scc1 %s" % L)
        g.raw("s_not_b32 s6, s4"); g.raw("v_writelane_b32 v30, s6, 0")
        for i, n in enumerate(sel):
            g.raw("v_readlane_b32 s6, v31, %d" % inv[n]); g.raw("s_nop 3"); g.raw("v_writelane_b32 v30, s6, %d" % (i + 1))
        g.raw("s_mov_b64 exec, 0xffff")
        g.raw("global_atomic_umax v1, v30, s[46:47]")
    g.raw("s_mov_b64 exec, -1")
    g(L + ":")

def tag_compute(g):
    g("s_mul_i32 s%d, s%d, 0x9E3779B1\ns_add_u32 s%d, s%d, 0x7F4A7C15" % (S_TAG, S_TAG, S_TAG, S_TAG))
def poll(g, vaddr, soff, vtmp, width=1, sleep=1):
    L, D = g.lab("Lp"), g.lab("Lpd")
    g("s_mov_b32 s%d, 0x40000" % S_SPIN)
    g(L + ":")
    if width == 1: g.raw("buffer_load_dword v%d, v%d, %s, s%d offen sc1" % (vtmp, vaddr, srd(S_WS), soff))
    else: g.raw("buffer_load_dwordx2 v[%d:%d], v%d, %s, s%d offen sc1" % (vtmp, vtmp+1, vaddr, srd(S_WS), soff))
    g.raw("s_waitcnt vmcnt(0)"); g.vm_done = g.vm_seq
    g.raw("v_cmp_ne_u32 vcc, s%d, v%d" % (S_TAG, vtmp + width - 1))
    g.raw("s_nop 4")
    g.raw("s_cmp_eq_u64 vcc, 0")
    g.raw("s_cbranch_scc1 %s" % D)
    g.raw("s_sleep %d" % sleep)
    g.raw("s_sub_u32 s%d, s%d, 1" % (S_SPIN, S_SPIN))
    g.raw("s_cmp_lg_u32 s%d, 0" % S_SPIN)
    g.raw("s_cbranch_scc1 %s" % L)
    g(D + ":")
def spoll(g, n, off=0, issued=False):
    L, D, M = g.lab("Ls"), g.lab("Lsd"), g.lab("Lsm")
    g("s_mov_b32 s%d, 0x40000" % S_SPIN)
    if issued: g.raw("s_branch %s" % M)
    g(L + ":")
    g.raw("s_load_dwordx8 s[8:15], s[50:51], %d glc" % off)
    g(M + ":")
    g.raw("s_waitcnt lgkmcnt(0)"); g.lg_done = g.lg_seq
    for i in range(n): g.raw("s_xor_b32 s%d, s%d, s%d" % (8 + i, 8 + i, S_TAG))
    for i in range(1, n): g.raw("s_or_b32 s8, s8, s%d" % (8 + i))
    g.raw("s_cbranch_scc0 %s" % D)
    g.raw("s_sleep %d" % OPT["psleep"])
    g.raw("s_sub_u32 s%d, s%d, 1" % (S_SPIN, S_SPIN))
    g.raw("s_cbranch_scc0 %s" % L)
    g(D + ":")
def spoll_touch(g):
    g("v_lshrrev_b32 v8, 3, v0\nv_lshlrev_b32 v8, 12, v8\nv_and_b32 v9, 7, v0\nv_lshlrev_b32 v9, 7, v9\nv_add_u32 v8, v8, v9")
    g("s_and_b32 s80, s%d, 3\ns_lshl_b32 s80, s80, 10\ns_lshr_b32 s81, s%d, 2\ns_mul_i32 s81, s81, %d\ns_add_u32 s80, s80, s81\ns_add_u32 s82, s80, s91" % (S_NB, S_NB, 112*1024))
    g("s_mov_b64 s[28:29], 0\ns_mov_b32 s%d, 0x40000" % S_SPIN)
    g("Ltp:")
    g.raw("s_load_dwordx8 s[8:15], s[50:51], 0x8000 glc")
    g.raw("s_mov_b64 s[30:31], 0")
    g.raw("s_waitcnt lgkmcnt(0)"); g.lg_done = g.lg_seq
    for c in range(7):
        g.raw("s_cmp_eq_u32 s%d, s%d" % (8 + c, S_TAG)); g.raw("s_cselect_b32 s80, 0x%x, 0" % (0xff << (8*(c & 3)))); g.raw("s_or_b32 s%d, s%d, s80" % (30 + (c >> 2), 30 + (c >> 2)))
    for l in ("s_or_b32 s80, s31, 0xff000000", "s_and_b32 s80, s80, s30", "s_cmp_eq_u32 s80, -1", "s_cbranch_scc1 Ltd",
              "s_andn2_b64 s[28:29], s[30:31], s[28:29]", "s_cbranch_scc0 Ltn", "s_mov_b64 exec, s[28:29]",
              "buffer_load_dword v9, v8, %s, s82 offen sc1" % srd(S_WS), "s_mov_b64 exec, -1"): g.raw(l)
    g("Ltn:")
    for l in ("s_mov_b64 s[28:29], s[30:31]", "s_sub_u32 s%d, s%d, 1" % (S_SPIN, S_SPIN), "s_cbranch_scc0 Ltp"): g.raw(l)
    g("Ltd:")
def spoll4(g):
    L, D = g.lab("Ls"), g.lab("Lsd")
    R = [8, 32, 40, 56]
    g("s_mov_b32 s%d, 0x40000" % S_SPIN)
    g(L + ":")
    for j, r in enumerate(R): g.raw("s_load_dwordx8 s[%d:%d], s[50:51], %d glc" % (r, r + 7, 128*j))
    g.raw("s_mov_b32 s16, s%d" % S_TAG); g.raw("s_mov_b32 s17, s%d" % S_TAG)
    g.raw("s_waitcnt lgkmcnt(0)"); g.lg_done = g.lg_seq
    P = [r + 2*i for r in R for i in range(4)]
    for p in P: g.raw("s_xor_b64 s[%d:%d], s[%d:%d], s[16:17]" % (p, p+1, p, p+1))
    for p in P[1:]: g.raw("s_or_b64 s[8:9], s[8:9], s[%d:%d]" % (p, p+1))
    g.raw("s_cbranch_scc0 %s" % D)
    g.raw("s_sleep %d" % OPT["psleep"])
    g.raw("s_sub_u32 s%d, s%d, 1" % (S_SPIN, S_SPIN))
    g.raw("s_cbranch_scc0 %s" % L)
    g(D + ":")
def flag_store(g, soff, vt):
    g("v_mov_b32 v%d, s%d\nv_mov_b32 v%d, 0" % (vt, S_TAG, vt+1))
    g("s_mov_b64 exec, 1")
    g("buffer_store_dword v%d, v%d, %s, s%d offen sc1" % (vt, vt+1, srd(S_WS), soff))
    g("s_mov_b64 exec, -1")
class Rec:
    def __init__(self): self.q = []
    def __call__(self, t): self.q += [l for l in t.split("\n") if l.strip()]
def rec(f, *a):
    r = Rec(); f(r, *a); return r.q
def emit(g, f):
    return f(g) if callable(f) else g(f)
def weave(g, dmas, work):
    op = None; n = len(dmas); work = list(work)
    per = -(-len(work) // n) if n else 0
    for d in dmas:
        op = emit(g, d)
        for _ in range(per):
            if work: emit(g, work.pop(0))
    for w in work: emit(g, w)
    return op

def prologue(g):
    g("s_cmp_ge_u32 s2, 256")
    g("s_cbranch_scc1 Lend")
    if STAMPS or OPT.get("hold"): g.raw("%s s[4:5]" % (STAMPS or "s_memrealtime"))
    if OPT.get("badmap"): g("s_lshr_b32 s3, s2, 5\ns_and_b32 s2, s2, 31\ns_lshl_b32 s2, s2, 3\ns_or_b32 s2, s2, s3")
    g("v_lshrrev_b32 v1, 6, v0")
    g("s_load_dwordx16 s[16:31], s[0:1], 0")
    g("s_load_dwordx16 s[32:47], s[0:1], 64")
    g("s_load_dwordx2 s[48:49], s[0:1], 128")
    g("v_readfirstlane_b32 s3, v1")
    g("s_cmp_lt_u32 s3, 4")
    g("s_cbranch_scc1 Lcompute")
    if OPT["cpf"]:
        g("s_cmp_lt_u32 s2, %d\ns_cbranch_scc1 Lcp" % OPT["cpf"])
        for l in ("s_getpc_b64 s[8:9]", "Lpc:", "s_sub_u32 s8, s8, Lpc-%s" % KN, "s_subb_u32 s9, s9, 0", "v_and_b32 v5, 0xff, v0", "v_lshlrev_b32 v5, 7, v5",
                  "v_min_u32 v5, Lcodeend-%s-4, v5" % KN, "s_nop 0", "global_load_dword a94, v5, s[8:9]"): g.lines.append("    " + l if not l.endswith(":") else l)
        g("Lcp:")
    prologue2(g)
def prologue2(g):
    g("v_and_b32 v0, 63, v0")
    g("s_and_b32 s%d, s2, 7" % S_XCD)
    g("s_lshr_b32 s%d, s2, 3" % S_IDX)
    if OPT["map"]:
        g("s_lshr_b32 s80, s%d, 1\ns_mul_i32 s80, s80, 28\ns_add_u32 s80, s80, s%d\ns_lshr_b32 s%d, s80, 3\ns_and_b32 s80, s80, 7\ns_and_b32 s81, s%d, 1\ns_lshl_b32 s81, s81, 3\ns_add_u32 s%d, s80, s81" % (S_XCD, S_IDX, S_FT, S_XCD, S_MT))
    else:
        g("s_mul_i32 s80, s%d, 37\ns_lshr_b32 s80, s80, 8" % S_IDX)
        g("s_mul_i32 s81, s80, 7\ns_sub_u32 s81, s%d, s81" % S_IDX)
        g("s_lshr_b32 s%d, s%d, 1\ns_lshl_b32 s%d, s%d, 2\ns_add_u32 s%d, s%d, s80" % (S_MT, S_XCD, S_MT, S_MT, S_MT, S_MT))
        g("s_and_b32 s%d, s%d, 1\ns_mul_i32 s%d, s%d, 7\ns_add_u32 s%d, s%d, s81" % (S_FT, S_XCD, S_FT, S_FT, S_FT, S_FT))
    if OPT["nb3"]:
        g("s_mul_i32 s80, s%d, 37\ns_lshr_b32 s80, s80, 8\ns_mul_i32 s81, s80, 7\ns_sub_u32 s81, s%d, s81" % (S_IDX, S_IDX))
        g("s_cmp_ge_u32 s81, 3\ns_addc_u32 s%d, s81, 0" % S_NB)
        g("s_cmp_ge_u32 s%d, 28\ns_cselect_b32 s%d, 3, s%d\ns_cselect_b32 s80, s81, s80" % (S_IDX, S_NB, S_NB))
        g("s_lshl_b32 s%d, s%d, 2\ns_add_u32 s%d, s%d, s80" % (S_TB2, S_XCD, S_TB2, S_TB2))
    else:
        g("s_lshl_b32 s%d, s%d, 2\ns_lshr_b32 s80, s%d, 3\ns_add_u32 s%d, s%d, s80\ns_and_b32 s%d, s%d, 7" % (S_TB2, S_XCD, S_IDX, S_TB2, S_TB2, S_NB, S_IDX))
    g("s_and_b32 s%d, s3, 3" % S_W)
    g("s_lshl_b32 s80, s%d, 6\ns_lshl_b32 s81, s%d, 1\ns_add_u32 s80, s80, s81\ns_lshr_b32 s81, s%d, 1\ns_add_u32 s%d, s80, s81" % (S_XCD, S_IDX, S_W, S_CH))
    g("s_lshl_b32 s80, s%d, 8\ns_and_b32 s81, s%d, 1\ns_lshl_b32 s81, s81, 7\ns_add_u32 s80, s80, s81" % (S_CH, S_W))
    g("v_lshlrev_b32 v32, 1, v0\nv_add_u32 v32, s80, v32")
    g("s_lshl_b32 s80, s%d, 1\nv_mov_b32 v63, s80" % S_CH)
    g("s_lshr_b32 s80, s%d, 1\ns_mul_i32 s80, s80, %d\ns_and_b32 s81, s%d, 1\ns_mul_i32 s81, s81, %d\ns_add_u32 s80, s80, s81\ns_add_u32 s80, s80, %d" % (S_W, KT_CH, S_W, 64*112, KT))
    g("v_mul_u32_u24 v62, 112, v0\nv_add_u32 v62, s80, v62")
def epoch_load(g):
    g("s_add_u32 s50, s48, 0x%x\ns_addc_u32 s51, s49, 0" % EP_OFF)
    g("s_load_dword s%d, s[50:51], 0" % S_TAG)
def srds2(g):
    g.srd(S_X, 16, 2048*512*2)
    g.srd(S_WD, 40, 512*1792*2)
    g.srd(S_WS, 48, WS_BYTES)
    g.srd(S_OUT, 44, 2048*512*2)
def h_dma_addr(g):
    g("v_lshrrev_b32 v4, 3, v0\nv_lshlrev_b32 v4, 10, v4\nv_and_b32 v5, 7, v0\nv_lshrrev_b32 v6, 4, v0\nv_xor_b32 v7, v5, v6")
    g("v_lshlrev_b32 v7, 4, v7\nv_add_u32 v2, v4, v7\nv_xor_b32 v3, 64, v2")
    g("s_lshl_b32 s90, s%d, 17\ns_lshl_b32 s80, s%d, 15\ns_add_u32 s90, s90, s80" % (S_MT, S_W))
    g("v_and_b32 v5, 15, v0\nv_lshlrev_b32 v7, 2, v6\nv_xor_b32 v5, v5, v7\nv_lshlrev_b32 v5, 4, v5")
    g("v_mul_u32_u24 v6, 3584, v6\nv_add_u32 v4, v6, v5\nv_xor_b32 v29, 32, v4")
    g("s_lshl_b32 s91, s%d, 8\ns_mul_i32 s80, s%d, %d\ns_add_u32 s91, s91, s80" % (S_FT, S_W, 16*3584))
    g("s_lshl_b32 s92, s%d, 12" % S_W)

def kbase(A):
    A("v_lshlrev_b32 v39, 16, v39\nv_mul_f32 v39, 0x%x, v39\nv_exp_f32 v39, v39\nv_lshlrev_b32 v33, 16, v33\nv_lshlrev_b32 v34, 16, v34" % f2u(LOG2E))
    A("v_cvt_pk_bf16_f32 v39, v39, v39\nv_lshlrev_b32 v39, 16, v39")
    A("v_mul_f32 v33, v39, v33\nv_mul_f32 v34, v39, v34")
    A("v_mul_f32 v33, 0x%x, v33\nv_mul_f32 v34, 0x%x, v34" % (f2u(LOG2E), f2u(1/(2*math.pi))))
def kpower(A, e, d, t):
    if e == 1: A("v_exp_f32 v%d, v33\nv_fract_f32 v%d, v34" % (t, t+1))
    else:
        A("v_mul_f32 v%d, 0x%x, v33\nv_mul_f32 v%d, 0x%x, v34" % (t, f2u(e), t+1, f2u(e)))
        A("v_exp_f32 v%d, v%d\nv_fract_f32 v%d, v%d" % (t, t, t+1, t+1))
    A("v_cos_f32 v%d, v%d\nv_sin_f32 v%d, v%d" % (d, t+1, d+1, t+1))
    A("v_mul_f32 v%d, v%d, v%d\nv_mul_f32 v%d, v%d, v%d" % (d, t, d, d+1, t, d+1))
def cm1(d, x, y): return "v_pk_mul_f32 v[%d:%d], v[%d:%d], v[%d:%d] op_sel:[0,0] op_sel_hi:[0,1]" % (d, d+1, x, x+1, y, y+1)
def cm2(d, x, y): return "v_pk_fma_f32 v[%d:%d], v[%d:%d], v[%d:%d], v[%d:%d] op_sel:[1,1,0] op_sel_hi:[1,0,1] neg_lo:[1,0,0]" % (d, d+1, x, x+1, y, y+1, d, d+1)
def cmul2(A, a, b):
    A(cm1(*a)); A(cm1(*b)); A(cm2(*a)); A(cm2(*b))
def kgen_W(A):
    kbase(A)
    for r in range(35, 39): A("v_lshlrev_b32 v%d, 16, v%d" % (r, r))
    A("v_mul_f32 v35, v39, v35\nv_mul_f32 v36, v39, v36")
    R = lambda i: 88 + 2*i
    A("v_mul_f32 v88, v37, v35\nv_mul_f32 v89, v37, v36\nv_fma_f32 v88, -v38, v36, v88\nv_fma_f32 v89, v38, v35, v89")
    Z1, Z2, ZB = 40, 42, 44
    kpower(A, 1, Z1, 46); kpower(A, 2, Z2, 48); kpower(A, 256, ZB, 50)
    def pack(i):
        x, y = R(2*i), R(min(2*i+1, 20))
        A("v_cvt_pk_bf16_f32 v%d, v%d, v%d" % (64 + i, x, y)); A("v_cvt_pk_bf16_f32 v%d, -v%d, -v%d" % (76 + i, x+1, y+1))
    cmul2(A, (R(1), R(0), Z1), (R(2), R(0), Z2))
    cmul2(A, (R(8), R(0), ZB), (R(3), R(1), Z2)); pack(0)
    cmul2(A, (R(4), R(2), Z2), (R(12), R(8), ZB)); pack(1)
    cmul2(A, (R(5), R(3), Z2), (R(9), R(2), ZB))
    cmul2(A, (R(6), R(4), Z2), (R(14), R(12), ZB)); pack(2); pack(4)
    cmul2(A, (R(7), R(5), Z2), (R(10), R(4), ZB))
    cmul2(A, (R(16), R(14), ZB), (R(11), R(6), ZB)); pack(3)
    cmul2(A, (R(13), R(10), ZB), (R(17), R(16), ZB)); pack(5)
    cmul2(A, (R(15), R(13), ZB), (R(18), R(17), ZB)); pack(6); pack(8)
    A(cm1(R(19), R(18), ZB)); pack(7); A(cm2(R(19), R(18), ZB))
    A("ds_write_b128 v62, v[64:67]\nds_write_b128 v62, v[76:79] offset:%d" % KT_IM)
    A(cm1(R(20), R(19), ZB)); pack(9); A(cm2(R(20), R(19), ZB))
    A("ds_write_b128 v62, v[68:71] offset:16\nds_write_b128 v62, v[80:83] offset:%d" % (KT_IM + 16))
    pack(10)
    A("ds_write_b128 v62, v[72:75] offset:32\nds_write_b128 v62, v[84:87] offset:%d" % (KT_IM + 32))
def kgen_E(A):
    kbase(A)
    Z8, Z16 = 40, 42
    kpower(A, 8, Z8, 46); kpower(A, 16, Z16, 48)
    A("v_cvt_pk_bf16_f32 v64, 1.0, v%d\nv_cvt_pk_bf16_f32 v80, 0, v%d" % (Z8, Z8 + 1))
    ev, od = Z16, Z8
    A(cm1(50, od, Z16)); A(cm2(50, od, Z16)); od = 50
    for i in range(1, 16):
        ne, no = (52, 54) if i % 2 else (56, 58)
        if i < 15: A(cm1(ne, ev, Z16)); A(cm1(no, od, Z16))
        A("v_cvt_pk_bf16_f32 v%d, v%d, v%d" % (64 + i, ev, od)); A("v_cvt_pk_bf16_f32 v%d, v%d, v%d" % (80 + i, ev + 1, od + 1))
        if i < 15: A(cm2(ne, ev, Z16)); A(cm2(no, od, Z16))
        ev, od = ne, no
        if i % 4 == 3:
            j = i // 4
            A("ds_write_b128 v62, v[%d:%d] offset:%d" % (64 + 4*j, 67 + 4*j, 48 + 16*j))
            A("ds_write_b128 v62, v[%d:%d] offset:%d" % (80 + 4*j, 83 + 4*j, KT_IM + 48 + 16*j))
def kgen_WE(g):
    kbase(g)
    for r in range(35, 39): g("v_lshlrev_b32 v%d, 16, v%d" % (r, r))
    Z1, Z2, ZB, Z8, Z16 = 40, 42, 44, 148, 150
    kpower(g, 8, Z8, 46); kpower(g, 16, Z16, 48); kpower(g, 1, Z1, 50); kpower(g, 2, Z2, 46); kpower(g, 256, ZB, 48)
    g("v_mul_f32 v35, v39, v35\nv_mul_f32 v36, v39, v36")
    g("v_mul_f32 v88, v37, v35\nv_mul_f32 v89, v37, v36\nv_fma_f32 v88, -v38, v36, v88\nv_fma_f32 v89, v38, v35, v89")
    stamp(g, "C:pow")
    A = Rec()
    R = lambda i: 88 + 2*i
    def pack(i):
        x, y = R(2*i), R(min(2*i+1, 20))
        A("v_cvt_pk_bf16_f32 v%d, v%d, v%d" % (64 + i, x, y)); A("v_cvt_pk_bf16_f32 v%d, -v%d, -v%d" % (76 + i, x+1, y+1))
    cmul2(A, (R(1), R(0), Z1), (R(2), R(0), Z2))
    cmul2(A, (R(8), R(0), ZB), (R(3), R(1), Z2)); pack(0)
    cmul2(A, (R(4), R(2), Z2), (R(12), R(8), ZB)); pack(1)
    cmul2(A, (R(5), R(3), Z2), (R(9), R(2), ZB))
    cmul2(A, (R(6), R(4), Z2), (R(14), R(12), ZB)); pack(2); pack(4)
    cmul2(A, (R(7), R(5), Z2), (R(10), R(4), ZB))
    cmul2(A, (R(16), R(14), ZB), (R(11), R(6), ZB)); pack(3)
    A("ds_write_b128 v62, v[64:67]\nds_write_b128 v62, v[76:79] offset:%d" % KT_IM)
    cmul2(A, (R(13), R(10), ZB), (R(17), R(16), ZB)); pack(5)
    cmul2(A, (R(15), R(13), ZB), (R(18), R(17), ZB)); pack(6); pack(8)
    A(cm1(R(19), R(18), ZB)); pack(7); A(cm2(R(19), R(18), ZB))
    A("ds_write_b128 v62, v[68:71] offset:16\nds_write_b128 v62, v[80:83] offset:%d" % (KT_IM + 16))
    A(cm1(R(20), R(19), ZB)); pack(9); A(cm2(R(20), R(19), ZB))
    pack(10)
    A("ds_write_b128 v62, v[72:75] offset:32\nds_write_b128 v62, v[84:87] offset:%d" % (KT_IM + 32))
    B = Rec()
    TR = lambda i: 132 + 8*((i >> 2) & 1) + (i & 3)
    B("v_cvt_pk_bf16_f32 v%d, 1.0, v%d\nv_cvt_pk_bf16_f32 v%d, 0, v%d" % (TR(0), Z8, TR(0) + 4, Z8 + 1))
    ev, od = Z16, 158
    B(cm1(158, Z8, Z16)); B(cm2(158, Z8, Z16))
    for i in range(1, 16):
        ne, no = (152, 154) if i % 2 else (156, 158)
        if i < 15: B(cm1(ne, ev, Z16)); B(cm1(no, od, Z16))
        B("v_cvt_pk_bf16_f32 v%d, v%d, v%d" % (TR(i), ev, od)); B("v_cvt_pk_bf16_f32 v%d, v%d, v%d" % (TR(i) + 4, ev + 1, od + 1))
        if i < 15: B(cm2(ne, ev, Z16)); B(cm2(no, od, Z16))
        ev, od = ne, no
        if i % 4 == 3:
            j = i // 4; t = TR(i) - 3
            B("ds_write_b128 v62, v[%d:%d] offset:%d" % (t, t + 3, 48 + 16*j))
            B("ds_write_b128 v62, v[%d:%d] offset:%d" % (t + 4, t + 7, KT_IM + 48 + 16*j))
    qa, qb = A.q, B.q
    while qa or qb:
        for _ in range(3):
            if qb: g(qb.pop(0))
        for _ in range(2):
            if qa: g(qa.pop(0))
def kgen_addr(g):
    g("s_lshr_b32 s80, s%d, 1\ns_mul_i32 s80, s80, %d\ns_add_u32 s80, s80, %d" % (S_W, KT_CH, KT))
    g("v_lshrrev_b32 v52, 2, v0\nv_mul_u32_u24 v52, 112, v52\nv_and_b32 v53, 3, v0\nv_lshlrev_b32 v53, 3, v53\nv_add_u32 v52, v52, v53\nv_add_u32 v52, s80, v52")
    g("s_and_b32 s81, s%d, 1\ns_lshl_b32 s81, s81, 5\ns_add_u32 s81, s81, 48\nv_add_u32 v53, s81, v52" % S_W)
def kgen_mfma(g):
    def kmf(ks):
        b = 12 * ks
        c0 = "0" if ks == 0 else "v[32:35]"; c1 = "0" if ks == 0 else "v[36:39]"
        g("v_mfma_f32_16x16x32_bf16 v[32:35], a[%d:%d], a[%d:%d], %s" % (b, b+3, b+8, b+11, c0))
        g("v_mfma_f32_16x16x32_bf16 v[36:39], a[%d:%d], a[%d:%d], %s" % (b+4, b+7, b+8, b+11, c1))
    for ks in range(8):
        off = (ks >> 2) * KT_IM + (ks & 3) * 32 * 112
        b = 12 * ks
        for h in range(2):
            g("ds_read_b64_tr_b16 a[%d:%d], v52 offset:%d" % (b + 2*h, b + 2*h + 1, off + h*16*112))
            g("ds_read_b64_tr_b16 a[%d:%d], v52 offset:%d" % (b + 4 + 2*h, b + 4 + 2*h + 1, off + h*16*112 + 32))
            g("ds_read_b64_tr_b16 a[%d:%d], v53 offset:%d" % (b + 8 + 2*h, b + 8 + 2*h + 1, off + h*16*112))
        if ks >= 2: kmf(ks - 2)
    kmf(6); kmf(7)
def kgen_compact_addr(g):
    g("s_and_b32 s81, s%d, 1\ns_lshl_b32 s81, s81, 4" % S_W)
    g("v_and_b32 v152, 15, v0\nv_add_u32 v152, s81, v152")
    g("v_lshrrev_b32 v153, 4, v0")
    g("v_lshlrev_b32 v154, 3, v152\nv_lshlrev_b32 v155, 2, v153\nv_add_u32 v154, v154, v155")
    g("v_lshlrev_b32 v155, 2, v152\nv_add_u32 v155, 0x100, v155")
    g("v_lshlrev_b32 v156, 1, v152\nv_add_u32 v156, 0x180, v156")
    g("v_cmp_eq_u32 vcc, 2, v153\nv_cndmask_b32 v154, v154, v155, vcc")
    g("v_cmp_eq_u32 vcc, 3, v153\nv_cndmask_b32 v154, v154, v156, vcc")
    g("v_mov_b32 v155, 2\nv_mov_b32 v156, 64\nv_cndmask_b32 v155, v155, v156, vcc\nv_add_u32 v155, v154, v155")
    g("s_lshr_b32 s80, s%d, 1\ns_mul_i32 s80, s80, %d\ns_add_u32 s80, s80, %d" % (S_W, KC_CH, KC))
    g("v_lshlrev_b32 v154, 1, v154\nv_add_u32 v54, s80, v154")
    g("v_lshlrev_b32 v155, 1, v155\nv_add_u32 v55, s80, v155")
    g("v_min_u32 v156, 1, v153\nv_lshlrev_b32 v156, 7, v156\nv_add_u32 v156, v156, v152\nv_add_u32 v156, 0x200, v156")
    g("v_lshlrev_b32 v156, 1, v156\nv_add_u32 v56, s80, v156")
def kgen_compact(g):
    g("v_add_f32 v32, v32, v59")
    g("v_cvt_pk_bf16_f32 v32, v32, v33\nv_cvt_pk_bf16_f32 v33, v34, v35\nv_cvt_pk_bf16_f32 v34, v36, v37\nv_cvt_pk_bf16_f32 v35, v38, v39")
    g("ds_write_b32 v54, v32\nds_write_b32 v55, v33")
    g("s_mov_b32 exec_hi, 0\nds_write_b16 v56, v34\nds_write_b16_d16_hi v56, v34 offset:64\nds_write_b16 v56, v35 offset:128\nds_write_b16_d16_hi v56, v35 offset:192\ns_mov_b32 exec_hi, -1")
def kfull_addr(g):
    g("s_lshl_b32 s80, s%d, 9\nv_lshlrev_b32 v152, 3, v0\nv_add_u32 v152, s80, v152" % S_W)
    for e in range(8):
        g("v_add_u32 v153, %d, v152" % (7 - e))
        g("v_cvt_f32_u32 v154, v153\nv_cvt_pk_bf16_f32 v154, v154, v154\nv_and_b32 v154, 0xffff, v154")
        g("v_subrev_u32 v154, 0x%x, v154" % (0x4300 - 128))
        g("v_cmp_gt_u32 vcc, 0x80, v153\nv_cndmask_b32 v154, v154, v153, vcc\nv_lshlrev_b32 v154, 1, v154")
        g("v_add_u32 v%d, 0x%x, v154" % (144 + e, KC))
    g("v_lshrrev_b32 v153, 4, v152\nv_lshlrev_b32 v153, 4, v153")
    g("v_and_b32 v154, 1, v0\nv_mul_u32_u24 v154, %d, v154" % KF_PL)
    g("v_add_u32 v153, v153, v154\nv_add_u32 v26, 0x%x, v153" % (KF + 256))
    g("v_lshrrev_b32 v153, 4, v0\nv_mul_u32_u24 v153, %d, v153\nv_and_b32 v154, 15, v0\nv_lshlrev_b32 v154, 4, v154\nv_add_u32 v153, v153, v154\nv_add_u32 v27, 0x%x, v153" % (KF_PL, KF))
def kfull_read(g):
    for ch in range(2):
        for e in range(8):
            g("ds_read_u16 v%d, v%d offset:%d" % (64 + 8*ch + e, 144 + e, ch*KC_CH))
    for ch in range(2):
        for e in range(4):
            g("v_lshl_or_b32 v%d, v%d, 16, v%d" % (52 + 4*ch + e, 64 + 8*ch + 2*e + 1, 64 + 8*ch + 2*e))
    g("v_mov_b32 v64, 0\nv_mov_b32 v65, 0\nv_mov_b32 v66, 0\nv_mov_b32 v67, 0")
def kfull_write(g):
    g("ds_write_b128 v27, v[64:67]")
    for ch in range(2): g("ds_write_b128 v26, v[%d:%d] offset:%d" % (52 + 4*ch, 55 + 4*ch, ch*KF_CH))

def T_issue(g):
    g("s_sub_u32 s10, s%d, 28\ns_lshl_b32 s10, s10, 3\ns_add_u32 s10, s10, s3" % S_IDX)
    g("s_mul_i32 s11, s3, 10880\ns_cmp_ge_u32 s3, 3\ns_cselect_b32 s81, %d, 0\ns_add_u32 s11, s11, s81" % 0)
    g("s_lshl_b32 s80, s%d, 7\ns_add_u32 s8, s42, s80\ns_addc_u32 s9, s43, 0" % S_XCD)
    g("s_load_dwordx16 s[16:31], s[8:9], 0\ns_load_dwordx8 s[32:39], s[8:9], 64\ns_load_dwordx8 s[56:63], s[8:9], 96")
    g("v_lshrrev_b32 v5, 3, v0\nv_and_b32 v6, 7, v0\nv_lshlrev_b32 v6, 4, v6\nv_lshlrev_b32 v7, 10, v5\nv_add_u32 v8, v7, v6")
    g("s_lshl_b32 s12, s10, 16\ns_lshl_b32 s81, s%d, 7\ns_add_u32 s12, s12, s81" % S_XCD)
    for i in range(8):
        g.tl = g("s_add_u32 m0, s11, %d\ns_add_u32 s13, s12, %d\nbuffer_load_dwordx4 v8, %s, s13 offen lds" % (i*1056, i*8192, srd(S_X)))
def mall_touch(g):
    g("s_sub_u32 s80, s2, 224\ns_lshl_b32 s80, s80, 2\ns_add_u32 s80, s80, s%d\ns_mul_i32 s80, s80, %d\ns_add_u32 s81, s80, %d\nv_lshlrev_b32 v7, 7, v0" % (S_W, 112*128, 56*128))
    g("s_mov_b32 exec_hi, 0xffffff\nbuffer_load_dword v159, v7, %s, s80 offen\nbuffer_load_dword v158, v7, %s, s81 offen\ns_mov_b32 exec_hi, -1" % (srd(S_WD), srd(S_WD)))
def T_process(g):
    g("v_lshrrev_b32 v5, 3, v0\nv_and_b32 v6, 7, v0\nv_lshlrev_b32 v6, 4, v6")
    g("v_mul_u32_u24 v27, 160, v5\nv_add_u32 v27, v27, v6\ns_add_u32 s12, s11, 9504\nv_add_u32 v27, s12, v27")
    g("v_mul_u32_u24 v5, %d, v5\nv_add_u32 v30, v5, v6" % UT_STRIDE)
    g("v_and_b32 v26, 3, v0\nv_lshrrev_b32 v5, 5, v0\nv_lshlrev_b32 v5, 2, v5\nv_add_u32 v26, v26, v5\nv_mul_u32_u24 v26, 1056, v26")
    g("v_bfe_u32 v5, v0, 2, 2\nv_lshlrev_b32 v6, 7, v5\nv_add_u32 v26, v26, v6")
    g("v_bfe_u32 v6, v0, 4, 1\nv_lshlrev_b32 v6, 3, v6\nv_add_u32 v26, v26, v6\nv_add_u32 v26, s11, v26")
    g("v_bfe_u32 v5, v0, 4, 1\nv_lshlrev_b32 v5, 2, v5\nv_and_b32 v6, 3, v0\nv_add_u32 v5, v5, v6\nv_mul_u32_u24 v5, 160, v5")
    g("v_bfe_u32 v6, v0, 2, 2\nv_lshlrev_b32 v6, 4, v6\nv_add_u32 v5, v5, v6")
    g("v_lshrrev_b32 v6, 5, v0\nv_lshlrev_b32 v6, 6, v6\nv_add_u32 v28, v5, v6\nv_add_u32 v28, s12, v28")
    g("s_mul_i32 s12, s%d, %d\ns_lshl_b32 s81, s10, 7\ns_add_u32 s12, s12, s81\ns_add_u32 s12, s12, 0x%x" % (S_XCD, 64*UT_STRIDE, UT_OFF))
    g.wait(lg=0)
    g("v_lshrrev_b32 v5, 3, v0\nv_mul_u32_u24 v5, 1056, v5\nv_and_b32 v6, 7, v0\nv_lshlrev_b32 v6, 7, v6\nv_add_u32 v5, v5, v6\nv_add_u32 v22, s11, v5")
    g.wait_op(g.tl)
    if g.role == 1: stamp(g, "I:Tland")
    def rd(k):
        b = 64 + 4*k
        g("ds_read_b64_tr_b16 v[%d:%d], v26 offset:%d" % (b, b+1, 16*k))
        g("ds_read_b64_tr_b16 v[%d:%d], v26 offset:%d" % (b+2, b+3, 16*k + 512))
    def rl(k):
        g("ds_write_b128 v28, v[%d:%d]" % (64 + 4*k, 67 + 4*k)); g("ds_read_b128 a[%d:%d], v27" % (4*k, 4*k + 3))
    def st(k):
        g("s_add_u32 s13, s12, %d\nbuffer_store_dwordx4 a[%d:%d], v30, %s, s13 offen sc1" % (k*8*UT_STRIDE, 4*k, 4*k + 3, srd(S_WS)))
    for k in range(12):
        if k < 8: rd(k)
        if 2 <= k < 10: rl(k - 2)
        if k >= 4: st(k - 4)
    for i in range(8): g("ds_read_b128 v[%d:%d], v22 offset:%d" % (64 + 4*i, 67 + 4*i, 16*i))
    g("v_mov_b32 v24, 0\nv_mov_b32 v23, 0\nv_mov_b32 v25, s%d" % S_TAG)
    for i in range(32): g("v_dot2_f32_bf16 v%d, v%d, s%d, v%d" % (23 + (i & 1), 64 + i, 16 + i if i < 24 else 32 + i, 23 + (i & 1)))
    g("s_lshl_b32 s80, s%d, 14\ns_lshl_b32 s81, s10, 9\ns_add_u32 s80, s80, s81\ns_add_u32 s80, s80, 0x%x\nv_lshlrev_b32 v5, 3, v0" % (S_XCD, G_OFF))
    g("v_add_f32 v24, v23, v24")
    g("buffer_store_dwordx2 v[24:25], v5, %s, s80 offen sc1" % srd(S_WS))
    g("s_lshl_b32 s80, s%d, 9\ns_lshr_b32 s81, s10, 3\ns_lshl_b32 s81, s81, 7\ns_add_u32 s80, s80, s81\ns_lshl_b32 s81, s3, 2\ns_add_u32 s80, s80, s81\ns_add_u32 s15, s80, 0x%x" % (S_XCD, FT_OFF))

def g_idle(g):
    g("s_sub_u32 s82, s2, 224\ns_lshl_b32 s82, s82, 2\ns_add_u32 s82, s82, s%d\ns_lshl_b32 s83, s82, 14\nv_lshlrev_b32 v9, 4, v0" % S_W)
    g("global_load_dwordx4 v[12:15], v9, s[42:43]")
    for j in range(16):
        if j % 4 == 0 and j: g("s_add_u32 s83, s83, 4096")
        g("buffer_load_dwordx4 v[%d:%d], v9, %s, s83 offen offset:%d" % (32 + 4*j, 35 + 4*j, srd(S_X), (j % 4)*1024))
    R = list(range(96, 112))
    for r in R: g("v_mov_b32 v%d, 0" % r)
    for jb in range(0, 16, 4):
        for i in range(4):
            for j in range(jb, jb + 4): g("v_dot2_f32_bf16 v%d, v%d, v%d, v%d" % (96 + j, 32 + 4*j + i, 12 + i, 96 + j))
    g("s_nop 3")
    for mod in ("row_shr:1 row_mask:0xf bank_mask:0xf bound_ctrl:0", "row_shr:2 row_mask:0xf bank_mask:0xf bound_ctrl:0",
                "row_shr:4 row_mask:0xf bank_mask:0xf bound_ctrl:0", "row_shr:8 row_mask:0xf bank_mask:0xf bound_ctrl:0",
                "row_bcast:15 row_mask:0xa bank_mask:0xf", "row_bcast:31 row_mask:0xc bank_mask:0xf"):
        for r in R: g("v_add_f32_dpp v%d, v%d, v%d %s" % (r, r, r, mod))
    for jb in range(0, 16, 8):
        for j in range(8): g("v_readlane_b32 s%d, v%d, 63" % (8 + j, 96 + jb + j))
        for j in range(8): g("v_writelane_b32 v16, s%d, %d" % (8 + j, jb + j))
    for t in ("v_cvt_pk_bf16_f32 v16, v16, v16", "v_lshlrev_b32 v16, 16, v16", "v_mul_f32 v16, 0x%x, v16" % f2u(-LOG2E), "v_exp_f32 v16, v16",
              "v_add_f32 v16, 1.0, v16", "v_rcp_f32 v16, v16", "v_cvt_pk_bf16_f32 v16, v16, v16", "v_lshlrev_b32 v16, 16, v16"): g(t)
    g("v_mov_b32 v17, s%d\nv_lshlrev_b32 v9, 3, v0\ns_lshl_b32 s82, s82, 7\ns_add_u32 s82, s82, 0x%x" % (S_TAG, G_OFF))
    g("s_mov_b64 exec, 0xffff\nbuffer_store_dwordx2 v[16:17], v9, %s, s82 offen sc1\ns_mov_b64 exec, -1" % srd(S_WS))

def epoch_bump(g):
    L, P, D = g.lab("Leb"), g.lab("Lep"), g.lab("Led")
    g("s_cmp_lg_u32 s2, 255\ns_cbranch_scc1 %s" % L)
    g("s_cmp_lg_u32 s%d, 0\ns_cbranch_scc1 %s" % (S_W, L))
    for l in ("v_lshrrev_b32 v100, 3, v0", "v_lshlrev_b32 v100, 11, v100", "v_and_b32 v101, 7, v0", "v_lshlrev_b32 v101, 7, v101", "v_add_u32 v100, v100, v101",
              "s_mov_b32 s80, 0x%x" % FA_OFF, "s_mov_b32 s%d, 0x40000" % S_SPIN): g.raw(l)
    g(P + ":")
    for l in ("buffer_load_dwordx4 v[104:107], v100, %s, s80 offen sc1" % srd(S_WS), "buffer_load_dwordx4 v[108:111], v100, %s, s80 offen offset:16 sc1" % srd(S_WS), "s_waitcnt vmcnt(0)",
              "v_xor_b32 v104, s%d, v104" % S_TAG, "v_xor_b32 v106, s%d, v106" % S_TAG, "v_xor_b32 v108, s%d, v108" % S_TAG, "v_xor_b32 v110, s%d, v110" % S_TAG,
              "v_or_b32 v104, v104, v106", "v_or_b32 v108, v108, v110", "v_or_b32 v104, v104, v108", "v_cmp_ne_u32 vcc, 0, v104", "s_nop 4",
              "s_cmp_eq_u64 vcc, 0", "s_cbranch_scc1 %s" % D, "s_sleep 8", "s_sub_u32 s%d, s%d, 1" % (S_SPIN, S_SPIN), "s_cbranch_scc0 %s" % P): g.raw(l)
    g(D + ":")
    g.raw("s_mov_b32 s80, 0x%x" % EP_OFF)
    g.raw("v_mov_b32 v100, s%d" % S_TAG); g.raw("v_mov_b32 v101, 0"); g.raw("s_mov_b64 exec, 1")
    g.raw("buffer_store_dword v100, v101, %s, s80 offen sc1" % srd(S_WS))
    g.raw("s_mov_b64 exec, -1")
    g(L + ":")

def uexp_addr(g):
    g("s_mul_i32 s85, s%d, %d\ns_and_b32 s81, s%d, 1\ns_lshl_b32 s80, s81, 11\ns_add_u32 s85, s85, s80\ns_add_u32 s85, s85, 0x%x" % (S_CH, UT_STRIDE, S_W, UT_OFF))
    g("s_lshr_b32 s82, s%d, 1\ns_mul_i32 s83, s82, %d\ns_add_u32 s83, s83, %d\ns_add_u32 s86, s83, s80\ns_add_u32 s86, s86, 64" % (S_W, CU_CH, CU))
    g("v_lshlrev_b32 v28, 2, v0\nv_add_u32 v22, s83, v28\ns_lshl_b32 s80, s81, 8\ns_add_u32 s80, s80, s83\ns_add_u32 s80, s80, %d\nv_add_u32 v28, s80, v28" % (64 - 36))
    g("s_lshl_b32 s81, s81, 10\ns_mul_i32 s80, s82, %d\ns_add_u32 s80, s80, %d\ns_add_u32 s80, s80, s81\nv_lshlrev_b32 v20, 4, v0\nv_add_u32 v21, s80, v20" % (UEE[1] - UEE[0], UEE[0]))
    g("s_mul_i32 s80, s82, %d\ns_sub_u32 s80, %d, s80\ns_add_u32 s80, s80, s81\nv_add_u32 v20, s80, v20" % (UEO[0] - UEO[1], UEO[0]))
def u_load(g):
    for i in range(2):
        op = g("s_mov_b32 m0, s86\ns_nop 0\nbuffer_load_dwordx4 v10, %s, s85 offen offset:%d sc1 lds" % (srd(S_WS), i*1024))
    g("v_mov_b32 v23, 0\ns_mov_b64 exec, 0xffff\nds_write_b32 v22, v23\ns_mov_b64 exec, -1")
    return op
def u_build(g):
    def rd(i):
        b = 32 + 10*(i % 3)
        g("ds_read2_b32 v[%d:%d], v28 offset0:1 offset1:2\nds_read2_b32 v[%d:%d], v28 offset0:3 offset1:4\nds_read_b32 v%d, v28\nv_add_u32 v28, 0x200, v28" % (b, b+1, b+2, b+3, b+4))
    def wr(i):
        b = 32 + 10*(i % 3); e = b + 6
        g("v_alignbit_b32 v%d, v%d, v%d, 16" % (e, b, b+4))
        for k in (1, 2, 3): g("v_alignbit_b32 v%d, v%d, v%d, 16" % (e + k, b + k, b + k - 1))
        if i == 8: g("s_and_b32 s80, s%d, 1\ns_sub_u32 s80, s80, 1\ns_and_b32 exec_lo, s80, 0xff\ns_mov_b32 exec_hi, 0" % S_W)
        g("ds_write_b128 v20, v[%d:%d] offset:%d" % (b, b+3, i*2048))
        g("ds_write_b128 v21, v[%d:%d] offset:%d" % (e, e+3, i*2048))
        if i == 8: g("s_mov_b64 exec, -1")
    rd(0); rd(1)
    for i in range(9):
        if i + 2 < 9: rd(i + 2)
        wr(i)

class Rec2:
    def __init__(self): self.q = []
    def __call__(self, t): self.q.append(t)
def ub_items():
    r = Rec2(); u_build(r)
    q = r.q
    return q[:-4] + ["\n".join(q[-4:])]
def gemm1_dma(st):
    b = BUF[st % 3]; q = []
    p0 = "s_add_u32 s9, s14, %d\ns_and_b32 s9, s9, 7\n" % st
    if OPT["rot"] >= 3:
        p0 = ("s_mov_b32 s9, %d\n" % st) if st < 2 else ("s_add_u32 s9, s14, %d\ns_cmp_ge_u32 s9, 8\ns_cselect_b32 s8, 6, 0\ns_sub_u32 s9, s9, s8\n" % st)
    pre = p0 + "s_lshl_b32 s35, s9, 7\ns_add_u32 s35, s35, s90\ns_mul_i32 s8, s9, %d\ns_add_u32 s8, s8, s91\n" % (64*3584)
    for i in range(4):
        q.append((pre if i == 0 else "") + "s_add_u32 m0, s92, %d\ns_add_u32 s93, s35, %d\nbuffer_load_dwordx4 v%d, %s, s93 offen lds" % (b + i*1024, i*8192, 2 + (i & 1), srd(S_X)))
        q.append("s_add_u32 m0, s92, %d\ns_add_u32 s93, s8, %d\nbuffer_load_dwordx4 v%d, %s, s93 offen lds" % (b + 16384 + i*1024, i*4*3584, (4, 29)[i >> 1], srd(S_WG)))
        q.append("s_add_u32 m0, s92, %d\nbuffer_load_dwordx4 v%d, %s, s93 offen lds" % (b + 32768 + i*1024, (4, 29)[i >> 1], srd(S_WU)))
    return q

def cf(p, kind, i):
    if p == 0: return "a[%d:%d]" % ((0 if kind == "A" else 32) + 4*i, (0 if kind == "A" else 32) + 4*i + 3)
    return ("a[%d:%d]" % (64 + 4*i, 67 + 4*i)) if kind == "A" else ("v[%d:%d]" % (128 + 4*i, 131 + 4*i))
def sel(g, dst, c0, c1):
    g("s_cselect_b32 s%d, %d, %d" % (dst, c1, c0) if False else "s_mov_b32 s%d, %d" % (dst, c0))
def conv_addr(g):
    g("s_lshr_b32 s80, s%d, 1\ns_and_b32 s82, s%d, 1" % (S_W, S_W))
    g("s_mul_i32 s81, s80, %d\ns_add_u32 s81, s81, %d" % (UEE[1] - UEE[0], UEE[0]))
    g("s_mul_i32 s83, s80, %d\ns_sub_u32 s83, %d, s83" % (UEO[0] - UEO[1], UEO[0]))
    g("v_bfe_u32 v5, v0, 4, 1\nv_lshlrev_b32 v5, 1, v5\nv_lshrrev_b32 v6, 5, v0\nv_add_u32 v5, v5, v6")
    g("v_bfe_u32 v6, v0, 1, 3\nv_lshlrev_b32 v7, 2, v5\nv_sub_u32 v7, v6, v7\nv_add_u32 v7, 13, v7\nv_lshlrev_b32 v7, 4, v7")
    g("v_mov_b32 v8, s81\nv_mov_b32 v9, s83\nv_and_b32 v6, 1, v0\nv_cmp_eq_u32 vcc, 1, v6\nv_cndmask_b32 v8, v8, v9, vcc\nv_add_u32 v8, v8, v7")
    g("s_lshl_b32 s81, s82, 10\nv_add_u32 v8, s81, v8")
    g("v_and_b32 v6, 15, v0\nv_lshrrev_b32 v7, 5, v0\nv_mul_u32_u24 v7, %d, v7\nv_bfe_u32 v9, v0, 4, 1\nv_add_u32 v9, v9, v6\nv_lshlrev_b32 v9, 4, v9\nv_add_u32 v7, v7, v9" % KF_PL)
    g("s_mul_i32 s81, s80, %d\ns_lshl_b32 s83, s82, 7\ns_sub_u32 s83, s81, s83\ns_add_u32 s83, s83, %d" % (KF_CH, KF + 16*(16 - 7)))
    g("v_add_u32 v9, s83, v7")
    g("v_lshlrev_b32 v10, 4, v0")
    g("s_lshl_b32 s81, s%d, 12\ns_add_u32 s81, s81, %d\ns_cmp_eq_u32 s%d, 3\ns_cselect_b32 s81, %d, s81\nv_add_u32 v12, s81, v10" % (S_W, XCH[0], S_W, XCH[3]))
    g("s_xor_b32 s83, s%d, 1\ns_lshl_b32 s81, s83, 12\ns_add_u32 s81, s81, %d\ns_cmp_eq_u32 s83, 3\ns_cselect_b32 s81, %d, s81\nv_add_u32 v11, s81, v10" % (S_W, XCH[0], XCH[3]))
    g("v_and_b32 v15, 15, v0\nv_lshlrev_b32 v15, 5, v15\nv_lshrrev_b32 v14, 4, v0\nv_lshlrev_b32 v14, 3, v14\nv_add_u32 v15, v15, v14")
    g("s_lshl_b32 s81, s%d, 12\ns_add_u32 s81, s81, %d\nv_add_u32 v15, s81, v15\nv_add_u32 v14, s81, v10" % (S_W, STG))
def conv_main(g, side, hooks={}):
    def reads(i):
        p = i & 1; q = []
        for a in range(8):
            q.append("ds_read_b128 %s, v8 offset:%d" % (cf(p, "A", a), a*2048 + i*256))
            q.append("ds_read_b128 %s, v9 offset:%d" % (cf(p, "B", a), a*256 + (3 - i)*32))
        return q
    for r in reads(0): g(r)
    first = set()
    for i in range(4):
        p = i & 1
        nxt = reads(i + 1) if i < 3 else []
        pairs = sorted([(a, d) for a in range(8) for d in range(8) if a + d <= 7], key=lambda x: (max(x), x))
        for n, (a, d) in enumerate(pairs):
            c = a + d
            C = "v[%d:%d]" % (32 + 4*c, 35 + 4*c) if c in first else "0"
            first.add(c)
            g("v_mfma_f32_16x16x32_bf16 v[%d:%d], %s, %s, %s" % (32 + 4*c, 35 + 4*c, cf(p, "A", a), cf(p, "B", d), C))
            if n >= 12 and nxt: g(nxt.pop(0))
        assert not nxt
    L1, L2 = g.lab("Lx"), g.lab("Lx")
    g("s_and_b32 s82, s%d, 1\ns_mul_i32 s81, s%d, %d\ns_lshl_b32 s83, s82, 11\ns_add_u32 s81, s81, s83\ns_add_u32 s81, s81, 0x%x\ns_nop 1" % (S_W, S_CH, AT_STRIDE, AT_OFF))
    g("s_cmp_lg_u32 s82, 0\ns_cbranch_scc1 %s" % L1)
    for k in range(4): g.raw("ds_write_b128 v11, v[%d:%d] offset:%d" % (48 + 4*k, 51 + 4*k, k*1024))
    g("s_branch %s" % L2)
    g(L1 + ":")
    for k in range(4): g.raw("ds_write_b128 v11, v[%d:%d] offset:%d" % (32 + 4*k, 35 + 4*k, k*1024))
    g.nop(2)
    for r in range(8): g.raw("v_mov_b64 v[%d:%d], v[%d:%d]" % (32 + 2*r, 33 + 2*r, 48 + 2*r, 49 + 2*r))
    g(L2 + ":")
    g.lg_seq += 4
def conv_fin(g):
    for cc in range(4):
        for r in range(4): g("v_add_f32 v%d, v%d, v%d" % (32 + 4*cc + r, 32 + 4*cc + r, 128 + 4*cc + r))
        for r in range(2): g("v_cvt_pk_bf16_f32 v%d, v%d, v%d" % (48 + 2*cc + r, 32 + 4*cc + 2*r, 33 + 4*cc + 2*r))
        g("ds_write_b64 v15, v[%d:%d] offset:%d" % (48 + 2*cc, 49 + 2*cc, cc*512))
    for pr in range(2): g("ds_read_b128 v[%d:%d], v14 offset:%d" % (56 + 4*pr, 59 + 4*pr, pr*1024))
    for pr in range(2):
        g("buffer_store_dwordx4 v[%d:%d], v10, %s, s81 offen offset:%d sc1" % (56 + 4*pr, 59 + 4*pr, srd(S_WS), pr*1024))

def rot_of(g, dst, nb):
    m = OPT["hrot"]
    if m == 0: g("s_mov_b32 s%d, 0" % dst)
    elif m == 1: g("s_mov_b32 s%d, s%d" % (dst, nb))
    elif m == 2: g("s_and_b32 s%d, s%d, 1\ns_mul_i32 s%d, s%d, 3" % (dst, nb, dst, dst))
    elif m == 3: g("s_and_b32 s%d, s%d, 3\ns_lshl_b32 s%d, s%d, 1" % (dst, nb, dst, dst))
def chunk_ids(g):
    if OPT["hrot"]: rot_of(g, 81, S_NB)
    for c in range(7):
        if OPT["hrot"]: g("s_add_u32 s%d, s%d, %d\ns_cmp_ge_u32 s%d, 7\ns_cselect_b32 s80, 7, 0\ns_sub_u32 s%d, s%d, s80" % (18 + c, 81, c, 18 + c, 18 + c, 18 + c))
        else: g("s_mov_b32 s%d, %d" % (18 + c, c))
    g("s_lshl_b32 s95, s%d, 14\ns_add_u32 s95, s95, %d\ns_lshl_b32 s25, s%d, 13" % (S_W, WDA, S_W))
def wd_setup(g, vreg):
    g("v_lshrrev_b32 v5, 3, v0\nv_lshlrev_b32 v5, 10, v5\nv_bfe_u32 v6, v0, 4, 1\nv_lshlrev_b32 v6, 2, v6\nv_and_b32 v7, 7, v0\nv_xor_b32 v6, v6, v7\nv_lshlrev_b32 v6, 4, v6\nv_add_u32 v%d, v5, v6" % vreg)
    g("s_mul_i32 s94, s%d, %d\ns_lshl_b32 s80, s%d, 7\ns_add_u32 s94, s94, s80" % (S_W, 448*1024, S_NB))
WSLOT = {3: (95, 0), 4: (95, 8192), 5: (95, WDB1 - WDA), 6: (95, WDB1 - WDA + 8192)}
def wd_dma(c, vreg):
    sb, off = WSLOT[c]
    q = []
    for i in range(8):
        pre = "s_lshl_b32 s93, s%d, 16\ns_add_u32 s93, s93, s94\n" % (18 + c) if i == 0 else ("s_add_u32 s93, s93, %d\n" % ((roff(i) - roff(i-1)) & 0xffffffff))
        q.append("s_add_u32 m0, s%d, %d\n%sbuffer_load_dwordx4 v%d, %s, s93 offen lds" % (sb, off + i*1024, pre, vreg, srd(S_WD)))
    return q

def l2t_addr(g):
    g("s_lshl_b32 s80, s%d, 2\ns_add_u32 s80, s80, s%d\ns_lshl_b32 s26, s80, 12\ns_add_u32 s26, s26, 0x%x" % (S_IDX, S_W, WDT_OFF))
    g("s_lshr_b32 s27, s80, 5\ns_mul_i32 s27, s27, %d\ns_and_b32 s80, s80, 31\ns_lshl_b32 s80, s80, 11\ns_add_u32 s27, s27, s80" % (448*1024))
    g("v_and_b32 v24, 7, v0\nv_bfe_u32 v25, v0, 3, 1\nv_lshlrev_b32 v25, 10, v25\nv_lshlrev_b32 v23, 7, v24\nv_add_u32 v25, v25, v23")
    g("v_lshrrev_b32 v21, 4, v0\nv_add_u32 v21, v21, v24\nv_add_u32 v21, 2, v21\nv_subrev_u32 v23, 7, v21\nv_min_u32 v21, v21, v23\nv_lshlrev_b32 v21, 16, v21\nv_add_u32 v21, v21, v25")
    g("v_add_u32 v22, 6, v24\nv_subrev_u32 v23, 7, v22\nv_min_u32 v22, v22, v23\nv_lshlrev_b32 v22, 16, v22\nv_add_u32 v22, v22, v25")
    g("v_lshlrev_b32 v23, 7, v0")
def l2t(g):
    g("s_mov_b32 exec_hi, 0\nbuffer_load_dword v24, v23, %s, s26 offen sc1\ns_mov_b32 exec_hi, -1" % srd(S_WS))
    g("buffer_load_dword v25, v21, %s, s27 offen" % srd(S_WD))
    g("s_mov_b64 exec, 0xffff\nbuffer_load_dword v21, v22, %s, s27 offen\ns_mov_b64 exec, -1" % srd(S_WD))
def roff(i): return (32*(i >> 2) + 16*(i & 1) + 8*((i >> 1) & 1))*1024
def pm(p): return (p % 7, p // 7) if OPT["pord"] else (p >> 1, p & 1)
def wd_reg(c):
    q = []
    for i in range(8):
        p = 2*c + (i >> 2)
        pre = "s_lshl_b32 s26, s%d, 16\ns_add_u32 s26, s26, s94\n%s" % (18 + pm(p)[0], "s_add_u32 s26, s26, 0x8000\n" if pm(p)[1] else "") if i % 4 == 0 else ("s_add_u32 s26, s26, %d\n" % ((roff(i) - roff(i-1)) & 0xffffffff))
        r = ("v[%d:%d]" % (64 + 32*(c - 5) + 4*i, 67 + 32*(c - 5) + 4*i)) if c >= 5 else ("a[%d:%d]" % (32*(c - 3) + 4*i, 32*(c - 3) + 4*i + 3))
        q.append("%sbuffer_load_dwordx4 %s, v30, %s, s26 offen" % (pre, r, srd(S_WD)))
    return q
def dose(g, k):
    if OPT["l2t"] != 3: return
    if k < 4: g("%s\nbuffer_load_dword v%d, v21, %s, s27 offen\ns_mov_b64 exec, -1" % (lanes(16*k, 16*k + 16), 96 + k, srd(S_WD)))
    elif k == 4: g("%s\nbuffer_load_dword v100, v22, %s, s27 offen\ns_mov_b64 exec, -1" % (lanes(0, 16), srd(S_WD)))
    else: g("%s\nbuffer_load_dword v%d, v23, %s, s26 offen sc1\ns_mov_b64 exec, -1" % (lanes(16*(k-5), 16*(k-5) + 16), 96 + k, srd(S_WS)))
def H_part1(g, idle):
    D = (lambda st: []) if idle else gemm1_dma
    st_ = (lambda g, n: None) if idle else stamp
    def W(op):
        if op is not None: g.wait_op(op)
    if OPT["ksplit"]:
        g("global_load_ushort v39, v63, s[30:31]")
        g("global_load_ushort v33, v32, s[18:19]")
        g("global_load_ushort v34, v32, s[20:21]")
    if not idle:
        g.srd(S_WG, 36, 512*1792*2); g.srd(S_WU, 38, 512*1792*2)
    g.srd(S_X, 16, 2048*512*2)
    d = {}
    d[0] = weave(g, D(0), [])
    st_(g, "H:d0 issued")
    if OPT["ksplit"]:
        kgen_E(g)
        g("v_mov_b32 v61, 1\ns_mov_b64 exec, 1\nds_add_u32 v60, v61\ns_mov_b64 exec, -1")
        st_(g, "H:E done")
    epoch_load(g)
    g.srd(S_WS, 48, WS_BYTES); g.srd(S_WD, 40, 512*1792*2); g.srd(S_OUT, 44, 2048*512*2)
    def btouch():
        g("s_lshl_b32 s80, s2, 2\ns_add_u32 s80, s80, s%d\ns_lshl_b32 s80, s80, 11\nv_lshlrev_b32 v7, 7, v0\ns_mov_b64 exec, 0xffff\nbuffer_load_dword v159, v7, %s, s80 offen\ns_mov_b64 exec, -1" % (S_W, srd(S_WD)))
    d[1] = weave(g, D(1), rec(kfull_addr))
    if OPT["mtp"] == 5 and not idle: btouch()
    tag_compute(g)
    if idle:
        if OPT["te"]: T_issue(g)
        if OPT["mtp"] == 0: mall_touch(g)
    st_(g, "H:i0")
    W(d[0])
    g("s_barrier")
    if idle:
        stamp(g, "I:B0")
        if OPT["mtp"] == 2: mall_touch(g)
        if not OPT["te"]: T_issue(g)
        if OPT["mtp"] == 1: mall_touch(g)
        kfull_read(g)
        g("v_mov_b32 v20, v26\nv_mov_b32 v21, v27"); T_process(g); g("v_mov_b32 v26, v20\nv_mov_b32 v27, v21")
        stamp(g, "I:Tiss"); g.wait(vm=0); flag_store(g, 15, 8); stamp(g, "I:Tflag")
        g("v_mov_b32 v64, 0\nv_mov_b32 v65, 0\nv_mov_b32 v66, 0\nv_mov_b32 v67, 0")
        d[2] = None
    else:
        q2 = D(2)
        d[2] = weave(g, q2[:OPT["t2"]], rec(kfull_read))
    st_(g, "H:i1")
    g.wait(lg=0); W(d[1])
    g("s_barrier")
    if idle: stamp(g, "I:B1")
    if idle:
        g("v_mov_b32 v16, %d\nv_lshlrev_b32 v17, 2, v0\nv_add_u32 v17, v16, v17\nv_mov_b32 v18, 0\nv_mov_b32 v19, 1" % SYW)
        g("ds_write_b32 v17, v18")
        g.wait(lg=0)
        g("s_barrier")
        kfull_write(g); uexp_addr(g); wd_setup(g, 30); chunk_ids(g); conv_addr(g)
        g("s_lshl_b32 s84, s%d, 9\ns_add_u32 s84, s84, 0x%x" % (S_XCD, FT_OFF))
        g("v_bfe_u32 v24, v0, 3, 2\nv_lshlrev_b32 v24, 7, v24\nv_and_b32 v25, 7, v0\nv_lshlrev_b32 v25, 2, v25\nv_add_u32 v24, v24, v25")
        stamp(g, "I:prepoll")
        poll(g, 24, 84, 25, sleep=8)
        stamp(g, "I:polled")
        u_load(g)
        g("s_barrier")
        g.wait(vm=0, lg=0)
        stamp(g, "I:a8")
        return
    if q2[OPT["t2"]:]: d[2] = weave(g, q2[OPT["t2"]:], [])
    if OPT["mtp"] == 4: btouch()
    q3 = D(3)
    d[3] = weave(g, q3[:OPT["t3"]], rec(kfull_write) + rec(uexp_addr))
    wd_setup(g, 30); chunk_ids(g)
    wr = [] if idle else wd_reg(5) + wd_reg(6) + wd_reg(3) + wd_reg(4)
    def WR(n):
        for _ in range(n):
            if wr: g(wr.pop(0))
    st_(g, "H:i2")
    W(d[2])
    g("s_barrier")
    if q3[OPT["t3"]:]: d[3] = weave(g, q3[OPT["t3"]:], [])
    d[4] = weave(g, D(4), [])
    WR(OPT["w2"])
    conv_addr(g)
    st_(g, "H:i3")
    W(d[3])
    g("s_barrier")
    d[5] = weave(g, D(5), [])
    WR(OPT["w3"])
    st_(g, "H:i4")
    W(d[4])
    g("s_barrier")
    d[6] = weave(g, D(6), [])
    WR(OPT["w3"])
    g("s_lshl_b32 s84, s%d, 9\ns_add_u32 s84, s84, 0x%x\ns_lshl_b32 s80, s%d, 9\ns_add_u32 s80, s80, 0x%x" % (S_XCD, FT_OFF, S_NB, FW_OFF))
    g("v_bfe_u32 v24, v0, 3, 2\nv_lshlrev_b32 v24, 7, v24\nv_and_b32 v25, 7, v0\nv_lshlrev_b32 v25, 2, v25\nv_add_u32 v24, v24, v25")
    g("v_and_b32 v25, 0x18c, v24\nv_add_u32 v25, s80, v25\nv_add_u32 v24, s84, v24\nv_cmp_lt_u32 vcc, 31, v0\nv_cndmask_b32 v24, v24, v25, vcc\ns_mov_b32 s84, 0")
    st_(g, "H:i5")
    g.wait(lg=0); W(d[5])
    g("s_barrier")
    d[7] = weave(g, D(7), [])
    WR(OPT["w3"])
    st_(g, "H:i6")
    W(d[6])
    g("s_barrier")
    L0 = g.lab("Lq")
    g("s_cmp_lg_u32 s%d, 0\ns_cbranch_scc1 %s" % (S_W, L0))
    g.raw("buffer_load_dword v25, v24, %s, s84 offen sc1" % srd(S_WS))
    g(L0 + ":")
    s0 = g.vm_seq
    WR(OPT["nr6"])
    nv = g.vm_seq - s0
    stamp(g, "I:prepoll" if idle else "H:prepoll")
    g.raw("s_waitcnt vmcnt(%d)" % nv); g.vm_done = max(g.vm_done, g.vm_seq - nv)
    Lok = g.lab("Lok")
    g("s_cmp_lg_u32 s%d, 0\ns_cbranch_scc1 %s" % (S_W, Lok))
    g("v_cmp_ne_u32 vcc, s%d, v25" % S_TAG)
    g.nop(4)
    g("s_cmp_eq_u64 vcc, 0\ns_cbranch_scc1 %s" % Lok)
    sv = g.vm_done
    poll(g, 24, 84, 25, sleep=8)
    g.vm_done = sv
    g(Lok + ":")
    if idle: stamp(g, "I:polled")
    st_(g, "H:a7")
    g("s_barrier")
    ul = u_load(g)
    WR(99)
    g("v_mov_b32 v16, %d\nv_lshlrev_b32 v17, 2, v0\nv_add_u32 v17, v16, v17\nv_mov_b32 v18, 0\nv_mov_b32 v19, 1" % SYW)
    g("ds_write_b32 v17, v18")
    g.wait(lg=0); g.ul = ul
    if idle: g.wait(vm=0); stamp(g, "I:a8")
    st_(g, "H:a8")

SYW = 28928
STG = 0
def hsync(g, target):
    L, D = g.lab("Lh"), g.lab("Lhd")
    g("s_mov_b64 exec, 1\nds_add_u32 v16, v19\ns_mov_b64 exec, -1")
    g("s_mov_b32 s%d, 0x100000" % S_SPIN)
    g(L + ":")
    for l in ("ds_read_b32 v18, v16", "s_waitcnt lgkmcnt(0)", "v_readfirstlane_b32 s80, v18", "s_sub_u32 s%d, s%d, 1" % (S_SPIN, S_SPIN), "s_cbranch_scc1 %s" % D,
              "s_cmp_lt_u32 s80, %d" % target, "s_cbranch_scc1 %s" % L): g.raw(l)
    g(D + ":")
    g.lg_done = g.lg_seq
def fin_addr(g, b):
    t = b + 4
    g("s_and_b32 s80, s3, 3\ns_lshl_b32 s80, s80, 3\nv_lshrrev_b32 v%d, 3, v0\nv_add_u32 v%d, s80, v%d" % (t, b+2, t))
    g("v_lshlrev_b32 v%d, 10, v%d\nv_and_b32 v%d, 7, v0\nv_lshlrev_b32 v%d, 4, v%d\nv_add_u32 v%d, v%d, v%d" % (b+3, t, t, b, t, b+3, b+3, b))
    g("v_mul_u32_u24 v%d, 0x420, v%d\nv_lshlrev_b32 v%d, 4, v%d\nv_xor_b32 v%d, v%d, v%d" % (b, t, b+1, b+2, b, b, b+1))
    g("s_lshr_b32 s81, s3, 2\ns_lshl_b32 s80, s81, 13\ns_add_u32 s80, s80, %d\nv_add_u32 v%d, s80, v%d" % (WDA, b, b))
    g("v_lshlrev_b32 v%d, 6, v%d\nv_and_b32 v%d, 3, v0\nv_lshlrev_b32 v%d, 4, v%d\nv_add_u32 v%d, v%d, v%d" % (b+1, b+2, t, t, t, b+1, b+1, t))
    g("v_bfe_u32 v%d, v0, 2, 1\nv_lshlrev_b32 v%d, 13, v%d\nv_add_u32 v%d, v%d, v%d" % (t, t, t, b+1, b+1, t))
    g("s_lshl_b32 s80, s81, 12\ns_add_u32 s80, s80, %d\nv_add_u32 v%d, s80, v%d\nv_lshlrev_b32 v%d, 2, v%d\nv_add_u32 v%d, s80, v%d" % (STG, b+1, b+1, b+2, b+2, b+2, b+2))
    g("s_lshl_b32 s87, s%d, 16\ns_lshl_b32 s81, s3, 13\ns_add_u32 s87, s87, s81\ns_lshl_b32 s81, s%d, 7\ns_add_u32 s87, s87, s81" % (S_TB2, S_NB))
def fin(g, b, P, GA, OMG):
    for j in range(2):
        for sw in range(4): g("ds_read_b128 v[%d:%d], v%d offset:%d" % (P + 8*sw + 4*j, P + 3 + 8*sw + 4*j, b, sw*16384 + j*512))
        if j == 0: g("ds_read_b32 v%d, v%d" % (OMG, b + 2))
    g("ds_read_b128 v[%d:%d], v%d offset:2048" % (GA, GA + 3, b + 1))
    fin_math(g, P, GA, OMG, b + 3)
def fin_math(g, P, GA, OMG, VO):
    for r in range(4):
        x = P + 2*r
        g("v_pk_add_f32 v[%d:%d], v[%d:%d], v[%d:%d]" % (x, x+1, x, x+1, x+8, x+9))
        g("v_pk_add_f32 v[%d:%d], v[%d:%d], v[%d:%d]" % (x+16, x+17, x+16, x+17, x+24, x+25))
    for r in range(4):
        x = P + 2*r
        g("v_pk_add_f32 v[%d:%d], v[%d:%d], v[%d:%d]" % (x, x+1, x, x+1, x+16, x+17))
    for r in range(4): g("v_lshlrev_b32 v%d, 16, v%d\nv_and_b32 v%d, 0xffff0000, v%d" % (P + 16 + 2*r, GA + r, P + 17 + 2*r, GA + r))
    for r in range(8): g("v_fmac_f32 v%d, v%d, v%d" % (P + 16 + r, OMG, P + r))
    for r in range(4): g("v_cvt_pk_bf16_f32 v%d, v%d, v%d" % (GA + r, P + 16 + 2*r, P + 17 + 2*r))
    g("buffer_store_dwordx4 v[%d:%d], v%d, %s, s87 offen %s" % (GA, GA + 3, VO, srd(S_OUT), {0: "", 1: "sc1", 2: "nt", 3: "sc0 sc1"}[OPT["osc"]]))

def build_H():
    g = G(); g.nlab = 1000; g.role = 1; g.nst = 1; St.names[48] = "H:start"
    prologue(g)
    g("s_setprio %d" % OPT["hprio"])
    h_dma_addr(g)
    if OPT["rot"] == 1: g("s_add_u32 s14, s%d, s%d\ns_and_b32 s14, s14, 3\ns_lshl_b32 s14, s14, 1\ns_add_u32 s14, s14, %d" % (S_MT, S_FT, OPT["r1"]))
    elif OPT["rot"] == 2: g("s_add_u32 s14, s%d, s%d\ns_and_b32 s14, s14, 1\ns_lshl_b32 s14, s14, 2" % (S_MT, S_FT))
    elif OPT["rot"] == 3: g("s_add_u32 s14, s%d, s%d\ns_and_b32 s14, s14, 1\ns_mul_i32 s14, s14, 3" % (S_MT, S_FT))
    else: g("s_mov_b32 s14, 0")
    g("s_waitcnt lgkmcnt(0)")
    g("s_cmp_ge_u32 s%d, 28\ns_cbranch_scc1 Lhidle" % S_IDX)
    H_part1(g, False)
    g("s_barrier")
    g("Lh8:")
    g("s_setprio %d" % OPT["bprio"])
    g.wait_op(g.ul)
    hsync(g, 4)
    u_build(g)
    stamp(g, "H:built")
    g("v_add_u32 v23, s95, v10\ns_lshl_b32 s81, s%d, 2\nv_add_u32 v17, s81, v16" % S_W)
    g("s_cmp_ge_u32 s%d, 28\ns_cbranch_scc1 Lsk1" % S_IDX)
    for i in range(16): g("ds_write_b128 v23, a[%d:%d] offset:%d" % (4*i, 4*i + 3, i*1024))
    g("Lsk1:")
    g("ds_write_b32 v17, v19 offset:32")
    g("s_setprio 0")
    g.wait(lg=0)
    stamp(g, "H:a9")
    hsync(g, 8)
    if OPT["gow"]:
        L, D = g.lab("Lw"), g.lab("Lwd")
        g(L + ":")
        for l in ("ds_read_b32 v18, v17 offset:48", "s_waitcnt lgkmcnt(0)", "v_readfirstlane_b32 s80, v18", "s_sub_u32 s%d, s%d, 1" % (S_SPIN, S_SPIN), "s_cbranch_scc1 %s" % D,
                  "s_cmp_lg_u32 s80, 0", "s_cbranch_scc1 %s" % D, "s_sleep 1", "s_branch %s" % L): g.raw(l)
        g(D + ":")
    stamp(g, "H:go")
    g("s_setprio %d" % OPT["convp"])
    conv_main(g, [])
    stamp(g, "H:convend")
    g("s_setprio %d" % OPT["hp1"])
    hsync(g, 12)
    for cc in range(4): g("ds_read_b128 v[%d:%d], v12 offset:%d" % (128 + 4*cc, 131 + 4*cc, cc*1024))
    conv_fin(g)
    aop = ("vm", g.vm_seq)
    stamp(g, "H:aiss")
    g("s_add_u32 s80, s95, %d\nv_add_u32 v11, s80, v10" % (WDB1 - WDA))
    g("s_and_b32 s82, s%d, 1\ns_lshl_b32 s80, s%d, 1\ns_add_u32 s80, s80, s82\ns_lshl_b32 s80, s80, 10\ns_and_b32 s81, s%d, 56\ns_lshl_b32 s81, s81, 4\ns_add_u32 s80, s80, s81\ns_and_b32 s81, s%d, 7\ns_lshl_b32 s81, s81, 2\ns_add_u32 s80, s80, s81\ns_add_u32 s80, s80, 0x%x" % (S_W, S_XCD, S_CH, S_CH, FA_OFF))
    g("s_cmp_ge_u32 s%d, 28\ns_cbranch_scc1 Lsk2" % S_IDX)
    for i in range(OPT["nwa"]): g("ds_write_b128 v11, v[%d:%d] offset:%d" % (64 + 4*i, 67 + 4*i, i*1024))
    g("Lsk2:")
    g.wait_op(aop); flag_store(g, 80, 8); stamp(g, "H:aflag")
    g("s_cmp_ge_u32 s%d, 28\ns_cbranch_scc1 Lsk3" % S_IDX)
    for i in range(OPT["nwa"], 16): g("ds_write_b128 v11, v[%d:%d] offset:%d" % (64 + 4*i, 67 + 4*i, i*1024))
    g("s_branch Lsk5")
    g("Lsk3:")
    for t in wd_dma(5, 30) + wd_dma(6, 30):
        for l in t.split("\n"): g.raw(l)
    g.raw("s_waitcnt vmcnt(0)")
    g("Lsk5:")
    g("ds_write_b32 v17, v19 offset:16")
    g("s_setprio %d" % OPT["hp2"])
    stamp(g, "H:wdland")
    g("v_and_b32 v5, 31, v0\nv_lshlrev_b32 v20, 3, v5")
    g("s_lshl_b32 s82, s%d, 1\ns_lshr_b32 s81, s%d, 4\ns_add_u32 s82, s82, s81\ns_lshl_b32 s82, s82, 10\ns_lshr_b32 s81, s%d, 1\ns_lshl_b32 s81, s81, 9\ns_add_u32 s82, s82, s81\ns_add_u32 s82, s82, 0x%x\ns_add_u32 s50, s48, s82\ns_addc_u32 s51, s49, 0" % (S_NB, S_TB2, S_W, FA_OFF))
    g("v_lshrrev_b32 v7, 2, v0\nv_mul_u32_u24 v8, 4224, v7\nv_and_b32 v9, 3, v0\nv_lshlrev_b32 v9, 4, v9\nv_add_u32 v8, v8, v9")
    g("s_mul_i32 s83, s%d, 270336\ns_lshr_b32 s81, s%d, 1\ns_mul_i32 s81, s81, 135168\ns_add_u32 s83, s83, s81\ns_lshl_b32 s81, s%d, 7\ns_add_u32 s83, s83, s81\ns_and_b32 s81, s%d, 1\ns_lshl_b32 s81, s81, 6\ns_add_u32 s83, s83, s81\ns_add_u32 s83, s83, 0x%x\ns_add_u32 s84, s83, 67584" % (S_NB, S_W, S_TB2, S_W, AT_OFF))
    g("s_lshl_b32 s85, s%d, 9\ns_and_b32 s81, s%d, 1\ns_lshl_b32 s81, s81, 8\ns_add_u32 s85, s85, s81\ns_add_u32 s85, s85, 0x%x" % (S_TB2, S_W, G_OFF))
    g("s_lshl_b32 s86, s%d, 12\ns_add_u32 s86, s86, %d\nv_add_u32 v21, s86, v10" % (S_W, STG))
    g("v_lshrrev_b32 v22, 5, v0\nv_lshlrev_b32 v22, 2, v22\nv_bfe_u32 v23, v0, 2, 2\nv_add_u32 v22, v22, v23\nv_lshlrev_b32 v22, 6, v22")
    g("v_bfe_u32 v23, v0, 4, 1\nv_lshlrev_b32 v23, 5, v23\nv_add_u32 v22, v22, v23\nv_and_b32 v23, 3, v0\nv_lshlrev_b32 v23, 3, v23\nv_add_u32 v22, v22, v23\nv_add_u32 v22, s86, v22")
    fin_addr(g, 24)
    g("v_and_b32 v29, 31, v0\nv_lshlrev_b32 v30, 2, v29\nv_add_u32 v30, s86, v30\nv_lshlrev_b32 v29, 6, v29\nv_lshrrev_b32 v23, 5, v0\nv_lshlrev_b32 v23, 3, v23\nv_add_u32 v29, v29, v23\nv_add_u32 v29, s86, v29")
    g("v_bfe_u32 v5, v0, 3, 2\nv_lshlrev_b32 v5, 7, v5\nv_and_b32 v6, 7, v0\nv_lshlrev_b32 v6, 2, v6\nv_add_u32 v5, v5, v6")
    g("v_lshrrev_b32 v6, 5, v0\nv_lshlrev_b32 v6, 16, v6\nv_add_u32 v20, v20, v6\ns_mov_b32 s%d, 0x40000" % S_SPIN)
    g("Lgp:")
    for j in range(4):
        g.raw("s_add_u32 s80, s85, %d" % (j*16384)); g.raw("buffer_load_dwordx2 v[%d:%d], v20, %s, s80 offen sc1" % (32 + 2*j, 33 + 2*j, srd(S_WS)))
    if OPT["mg"]: g.raw("buffer_load_dword v6, v5, %s, s82 offen sc1" % srd(S_WS))
    for l in ("s_waitcnt vmcnt(0)", "v_xor_b32 v33, s%d, v33" % S_TAG, "v_xor_b32 v35, s%d, v35" % S_TAG, "v_xor_b32 v37, s%d, v37" % S_TAG, "v_xor_b32 v39, s%d, v39" % S_TAG,
              "v_or_b32 v33, v33, v35", "v_or_b32 v37, v37, v39", "v_or_b32 v33, v33, v37", "v_cmp_ne_u32 vcc, 0, v33", "s_nop 4", "s_cmp_eq_u64 vcc, 0", "s_cbranch_scc1 Lgd",
              "s_sleep 8", "s_sub_u32 s%d, s%d, 1" % (S_SPIN, S_SPIN), "s_cbranch_scc0 Lgp"): g.raw(l)
    g("Lgd:"); g.vm_done = g.vm_seq
    if OPT["mg"]:
        g("v_cmp_ne_u32 vcc, s%d, v6\ns_nop 4\ns_cmp_eq_u64 vcc, 0\ns_cbranch_scc1 Lap" % S_TAG)
        poll(g, 5, 82, 6, sleep=OPT["asl2"])
        g("Lap:")
    else: poll(g, 5, 82, 6, sleep=OPT["asl2"])
    stamp(g, "H:apolled")
    g("buffer_load_dwordx4 v[12:15], v8, %s, s83 offen sc1" % srd(S_WS))
    g("buffer_load_dwordx4 v[16:19], v8, %s, s84 offen sc1" % srd(S_WS))
    g("v_add_f32 v32, v32, v34\nv_add_f32 v36, v36, v38\nv_add_f32 v2, v32, v36\nv_mov_b32 v3, v2")
    g("v_permlane32_swap_b32 v2, v3\nv_add_f32 v2, v2, v3")
    for t in ("v_cvt_pk_bf16_f32 v2, v2, v2", "v_lshlrev_b32 v2, 16, v2", "v_mul_f32 v2, 0x%x, v2" % f2u(-LOG2E), "v_exp_f32 v2, v2",
              "v_add_f32 v2, 1.0, v2", "v_rcp_f32 v2, v2", "v_cvt_pk_bf16_f32 v2, v2, v2", "v_lshlrev_b32 v2, 16, v2"): g(t)
    g("v_sub_f32 v3, 1.0, v2\nv_cvt_pk_bf16_f32 v3, v3, v3\nv_lshlrev_b32 v3, 16, v3")
    g("ds_write_b128 v21, v[12:15]")
    g("ds_write_b128 v21, v[16:19] offset:1024")
    for q in range(4): g("ds_read_b64_tr_b16 v[%d:%d], v22 offset:%d" % (32 + 2*q, 33 + 2*q, q*512))
    for r in range(8):
        y = 48 + 2*r
        g("v_lshlrev_b32 v%d, 16, v%d\nv_and_b32 v%d, 0xffff0000, v%d" % (y, 32 + r, y+1, 32 + r))
        g("v_mul_f32 v%d, v2, v%d\nv_mul_f32 v%d, v2, v%d" % (y, y, y+1, y+1))
        g("v_cvt_pk_bf16_f32 v%d, v%d, v%d" % (40 + r, y, y+1))
    for q in range(4): g("ds_write_b64 v29, v[%d:%d] offset:%d" % (40 + 2*q, 41 + 2*q, 2048 + 16*q))
    g("ds_write_b32 v30, v3")
    g.wait(lg=0)
    epoch_bump(g)
    stamp(g, "H:aTready")
    g("s_barrier")
    fin(g, 24, 64, 44, 3)
    stamp(g, "H:end")
    stamp_store(g)
    g("s_endpgm")
    g2 = G(); g2.nlab = 3000; g2.role = 1; g2.nst = 36
    g2("Lhidle:")
    H_part1(g2, True)
    g2("s_branch Lh8")
    g2("Lcodeend:")
    return g.text(), g2.text()

RADDR = [8, 14, 20]
def gemm1_raddr(g):
    g("v_and_b32 v5, 15, v0\nv_lshrrev_b32 v6, 4, v0\nv_bfe_u32 v7, v0, 1, 3\nv_xor_b32 v7, v6, v7\nv_lshlrev_b32 v7, 4, v7\nv_lshlrev_b32 v5, 7, v5\nv_add_u32 v5, v5, v7")
    g("s_and_b32 s80, s%d, 1\ns_lshl_b32 s80, s80, 13\nv_add_u32 v8, s80, v5\nv_xor_b32 v9, 64, v8" % S_W)
    g("v_lshlrev_b32 v5, 3, v6\nv_bfe_u32 v7, v0, 2, 2\nv_add_u32 v5, v5, v7\nv_lshlrev_b32 v5, 8, v5")
    g("v_lshlrev_b32 v7, 1, v7\nv_and_b32 v6, 1, v6\nv_or_b32 v6, v6, v7\ns_lshr_b32 s80, s%d, 1\ns_lshl_b32 s80, s80, 2\nv_xor_b32 v6, s80, v6\nv_lshlrev_b32 v6, 5, v6\nv_add_u32 v5, v5, v6" % S_W)
    g("v_and_b32 v6, 3, v0\nv_lshlrev_b32 v6, 3, v6\nv_add_u32 v5, v5, v6\nv_add_u32 v10, 0x4000, v5")
    for j in (1, 2, 3): g("v_xor_b32 v%d, %d, v10" % (10 + j, 32*j))
    for i in range(6):
        g("v_add_u32 v%d, 0x%x, v%d" % (14 + i, BUF[1], 8 + i))
        g("v_add_u32 v%d, 0x%x, v%d" % (20 + i, BUF[2], 8 + i))
def frag(p, kind, i): return 48*p + {"x": 0, "g": 16, "u": 32}[kind] + 4*i
def gemm1_reads(kk):
    st, h2 = divmod(kk, 2); p = kk & 1; ra = RADDR[st % 3]
    q = []
    def W(kind, fj):
        for h in range(2):
            b = frag(p, kind, fj) + 2*h
            q.append("ds_read_b64_tr_b16 a[%d:%d], v%d offset:%d" % (b, b+1, ra + 2 + fj, h2*8192 + h*1024 + (16384 if kind == "u" else 0)))
    def X(tj):
        b = frag(p, "x", tj)
        q.append("ds_read_b128 a[%d:%d], v%d offset:%d" % (b, b+3, ra + h2, tj*2048))
    if OPT["mo"] == 1:
        X(0)
        for fj in range(4): W("g", fj); W("u", fj)
        X(1); X(2); X(3)
        return q
    W("g", 0); X(0); X(1); X(2); X(3); W("u", 0)
    for fj in (1, 2, 3): W("g", fj); W("u", fj)
    return q
def acc1(kind, fj, tj): return 32 + {"g": 0, "u": 64}[kind] + 16*fj + 4*tj
def gemm1_mfmas(kk):
    p = kk & 1; q = []
    order = [(fj, kind, tj) for fj in range(4) for kind in "gu" for tj in range(4)]
    if OPT["mo"] == 1: order = [(fj, kind, tj) for tj in range(4) for fj in range(4) for kind in "gu"]
    if OPT["mo"] == 2: order = [(fj, kind, (tj if (2*fj + (kind == "u")) % 2 == 0 else 3 - tj)) for fj in range(4) for kind in "gu" for tj in range(4)]
    if True:
        if True:
            for fj, kind, tj in order:
                a = acc1(kind, fj, tj); w = frag(p, kind, fj); x = frag(p, "x", tj)
                c = "0" if kk == 0 else "v[%d:%d]" % (a, a+3)
                q.append("v_mfma_f32_16x16x32_bf16 v[%d:%d], a[%d:%d], a[%d:%d], %s" % (a, a+3, w, w+3, x, x+3, c))
    return q
def gemm1_main(g, side):
    g("s_barrier")
    stamp(g, "C:B0")
    for r in gemm1_reads(0): g(r)
    for kk in range(16):
        st, h2 = divmod(kk, 2)
        mf = gemm1_mfmas(kk); pre = 0
        sd = list(side.get(kk, []))
        if h2 == 1:
            pre = OPT["bpos"]
            for i in range(pre):
                g(mf[i])
                if sd and i % 2 == 1: emit(g, sd.pop(0))
            g.wait(lg=0)
            stamp(g, "C:a%d" % (st + 1))
            g("s_barrier")
            stamp(g, "C:B%d" % (st + 1))
        fill = (gemm1_reads(kk + 1) if kk + 1 < 16 else []) + sd
        for i in range(pre, 32):
            g(mf[i])
            for _ in range(1 if i < 31 else 99):
                if fill and (kk < 15 or i % 2 == 1 or i == 31): emit(g, fill.pop(0))
def gemm1_epilogue(g, load_w):
    k1 = -2*0.7978845608028654*LOG2E; k2 = k1*0.044715
    g("s_mov_b32 s84, 0x%x\ns_mov_b32 s85, 0x%x" % (f2u(k2), f2u(k2)))
    g("v_mov_b32 v2, 0x%x\nv_mov_b32 v3, 0x%x" % (f2u(k1), f2u(k1)))
    g("v_lshrrev_b32 v4, 4, v0\nv_lshlrev_b32 v4, 9, v4\nv_and_b32 v8, 15, v0\nv_lshlrev_b32 v8, 4, v8\nv_add_u32 v4, v4, v8")
    g("s_lshl_b32 s80, s%d, 2\ns_and_b32 s81, s%d, 1\ns_lshl_b32 s81, s81, 1\ns_add_u32 s80, s80, s81\ns_mul_i32 s80, s80, 112" % (S_MT, S_W))
    g("s_lshl_b32 s81, s%d, 3\ns_add_u32 s80, s80, s81\ns_lshr_b32 s81, s%d, 1\ns_lshl_b32 s81, s81, 2\ns_add_u32 s80, s80, s81" % (S_FT, S_W))
    g("s_lshl_b32 s80, s80, 10\ns_add_u32 s80, s80, 0x%x\ns_add_u32 s81, s80, %d" % (H_OFF, 112*1024))
    cnt = 0
    for fp in range(2):
        for tj in range(4):
            T = 8; D = 16 + 4*(cnt & 1)
            P = [(acc1("g", 2*fp + (j >> 1), tj) + 2*(j & 1), acc1("u", 2*fp + (j >> 1), tj) + 2*(j & 1), T + 2*j) for j in range(4)]
            for (x, u, t) in P: g("v_pk_mul_f32 v[%d:%d], v[%d:%d], v[%d:%d]" % (t, t+1, x, x+1, x, x+1))
            for (x, u, t) in P: g("v_pk_fma_f32 v[%d:%d], v[%d:%d], s[84:85], v[2:3]" % (t, t+1, t, t+1))
            for (x, u, t) in P: g("v_pk_mul_f32 v[%d:%d], v[%d:%d], v[%d:%d]" % (t, t+1, t, t+1, x, x+1))
            for j in range(8): g("v_exp_f32 v%d, v%d" % (T + j, T + j))
            for (x, u, t) in P: g("v_pk_mul_f32 v[%d:%d], v[%d:%d], v[%d:%d]" % (x, x+1, x, x+1, u, u+1))
            for (x, u, t) in P: g("v_pk_add_f32 v[%d:%d], v[%d:%d], 1.0 op_sel_hi:[1,0]" % (t, t+1, t, t+1))
            for j in range(8): g("v_rcp_f32 v%d, v%d" % (T + j, T + j))
            for (x, u, t) in P: g("v_pk_mul_f32 v[%d:%d], v[%d:%d], v[%d:%d]" % (x, x+1, x, x+1, t, t+1))
            for j, (x, u, t) in enumerate(P): g("v_cvt_pk_bf16_f32 v%d, v%d, v%d" % (D + j, x, x+1))
            op = g("buffer_store_dwordx4 v[%d:%d], v4, %s, s%d offen offset:%d sc1" % (D, D+3, srd(S_WS), 80 + (tj >> 1), fp*2048 + (tj & 1)*256))
            cnt += 1
            if cnt == OPT["gopos"]: g("v_mov_b32 v24, 1\nds_write_b32 v30, v24 offset:32")
    return op

def touch_addr(g):
    g("s_lshl_b32 s80, s%d, 2\ns_add_u32 s80, s80, s%d" % (S_IDX, S_W))
    g("s_lshr_b32 s90, s%d, 1\ns_lshl_b32 s90, s90, 19\ns_lshl_b32 s81, s80, 12\ns_add_u32 s90, s90, s81" % S_XCD)
    g("v_lshlrev_b32 v30, 7, v0")
    g("v_mul_u32_u24 v5, 37, v0\nv_lshrrev_b32 v5, 8, v5\nv_mul_u32_u24 v6, 7, v5\nv_sub_u32 v6, v0, v6\nv_lshlrev_b32 v6, 7, v6")
    g("s_mov_b32 s81, %d\nv_mul_lo_u32 v5, v5, s81\nv_add_u32 v26, v5, v6" % (64*3584))
    g("s_lshr_b32 s91, s80, 1\ns_mul_i32 s91, s91, 3584\ns_and_b32 s81, s80, 1\ns_mul_i32 s81, s81, 896\ns_add_u32 s91, s91, s81\ns_and_b32 s81, s%d, 1\ns_mul_i32 s81, s81, 1792\ns_add_u32 s91, s91, s81" % S_XCD)
    g("s_mul_i32 s93, s80, %d\ns_lshl_b32 s92, s2, 2\ns_add_u32 s92, s92, s%d\ns_mul_i32 s92, s92, %d" % (112*128, S_W, 14*128))
def lanes(lo, hi):
    m = ((1 << hi) - 1) & ~((1 << lo) - 1)
    return "s_mov_b32 exec_lo, 0x%x\ns_mov_b32 exec_hi, 0x%x" % (m & 0xffffffff, m >> 32)
def touch_w(s0, s1, r):
    return "%s\nbuffer_load_dword a%d, v26, %s, s91 offen\nbuffer_load_dword a%d, v26, %s, s91 offen\ns_mov_b64 exec, -1" % (lanes(7*s0, 7*s1), r, srd(S_WG), r+1, srd(S_WU))
def touch_glob():
    return "%s\nbuffer_load_dword a74, v30, %s, s92 offen\nbuffer_load_dword a75, v30, %s, s92 offen\ns_lshl_b32 s80, s2, 2\ns_add_u32 s80, s80, s%d\ns_lshl_b32 s80, s80, 11\n%s\nbuffer_load_dword a70, v30, %s, s80 offen\ns_mov_b64 exec, -1" % (lanes(0, 14), srd(S_WG), srd(S_WU), S_W, lanes(0, 16), srd(S_X))
def touch_x(): return "%s\nbuffer_load_dword a70, v30, %s, s90 offen\ns_mov_b64 exec, -1" % (lanes(0, 32), srd(S_X))
def touch_wd_global(): return "%s\nbuffer_load_dword a71, v30, %s, s92 offen\ns_mov_b64 exec, -1" % (lanes(0, 14), srd(S_WD))
def touch_wd_xcd(): return "%s\nbuffer_load_dword a72, v30, %s, s93 offen\ns_add_u32 s93, s93, %d\nbuffer_load_dword a73, v30, %s, s93 offen\ns_mov_b64 exec, -1" % (lanes(0, 56), srd(S_WD), 56*128, srd(S_WD))

WDS = 87040
def wdt_issue(g):
    g("v_lshrrev_b32 v5, 3, v0\nv_lshlrev_b32 v5, 10, v5\nv_bfe_u32 v6, v0, 4, 1\nv_lshlrev_b32 v6, 2, v6\nv_and_b32 v7, 7, v0\nv_xor_b32 v6, v6, v7\nv_lshlrev_b32 v6, 4, v6\nv_add_u32 v9, v5, v6")
    g("s_sub_u32 s82, s%d, 28\ns_mul_i32 s85, s82, %d\ns_lshl_b32 s80, s%d, 7\ns_add_u32 s85, s85, s80" % (S_IDX, 448*1024, S_XCD))
    g("s_mul_i32 s83, s%d, 3" % S_W)
    for j in range(3):
        rot_of(g, 86, S_XCD)
        g("s_add_u32 s84, s83, %d\ns_lshr_b32 s80, s84, 1\ns_lshl_b32 s86, s86, 1\ns_add_u32 s80, s80, s86\ns_cmp_ge_u32 s80, 14\ns_cselect_b32 s81, 14, 0\ns_sub_u32 s80, s80, s81\ns_lshl_b32 s80, s80, 15\ns_and_b32 s84, s84, 1\ns_lshl_b32 s84, s84, 13\ns_add_u32 s80, s80, s84\ns_add_u32 s93, s80, s85" % j)
        g("buffer_load_dwordx4 v[%d:%d], v9, %s, s93 offen" % (128 + 8*j, 131 + 8*j, srd(S_WD)))
        g("s_add_u32 s93, s93, 16384\nbuffer_load_dwordx4 v[%d:%d], v9, %s, s93 offen" % (132 + 8*j, 135 + 8*j, srd(S_WD)))
def wdt_process(g):
    g("v_lshlrev_b32 v9, 4, v0\nv_add_u32 v8, s11, v9")
    for i in range(6): g("ds_write_b128 v8, v[%d:%d] offset:%d" % (128 + 4*i, 131 + 4*i, i*1024))
    g("v_lshrrev_b32 v7, 5, v0\nv_lshlrev_b32 v7, 2, v7\nv_bfe_u32 v10, v0, 2, 2\nv_add_u32 v7, v7, v10\nv_lshlrev_b32 v7, 7, v7")
    g("v_bfe_u32 v10, v0, 3, 1\nv_lshlrev_b32 v10, 6, v10\nv_add_u32 v7, v7, v10\nv_bfe_u32 v10, v0, 4, 1\nv_lshlrev_b32 v10, 5, v10\nv_add_u32 v7, v7, v10")
    g("v_and_b32 v10, 3, v0\nv_lshlrev_b32 v10, 3, v10\nv_add_u32 v7, v7, v10\nv_add_u32 v5, s11, v7\nv_xor_b32 v6, 64, v5")
    KS = 2048 if not OPT["wsp"] else 65536 + 2048
    g("s_sub_u32 s82, s%d, 28\ns_lshl_b32 s86, s%d, 2\ns_add_u32 s86, s86, s82\ns_lshl_b32 s83, s86, %d\ns_mul_i32 s80, s%d, %d\ns_add_u32 s83, s83, s80\ns_add_u32 s83, s83, 0x%x" % (S_IDX, S_XCD, 11 if OPT["wsp"] else 15, S_W, 3*KS, WDT_OFF))
    for k in range(3):
        for di in range(2):
            for h in range(2):
                b = 96 + 8*k + 4*di + 2*h
                g("ds_read_b64_tr_b16 v[%d:%d], v%d offset:%d" % (b, b+1, 5 + di, k*2048 + h*1024))
    for k in range(6):
        if k in (2, 4): g("s_add_u32 s83, s83, %d" % KS)
        g("buffer_store_dwordx4 v[%d:%d], v9, %s, s83 offen offset:%d sc1" % (96 + 4*k, 99 + 4*k, srd(S_WS), (k % 2)*1024))
    g("s_lshl_b32 s80, s86, 7\ns_lshl_b32 s81, s%d, 2\ns_add_u32 s80, s80, s81\ns_add_u32 s80, s80, 0x%x" % (S_W, FW_OFF))
def build_C():
    g = G(); g.nlab = 2000; g.role = 0; g.nst = 1; St.names[0] = "C:start"
    g("Lcompute:")
    prologue2(g)
    def wpre(kk, di): return 8*kk + 4*di
    def load_w(kk):
        q = []
        pre = "s_add_u32 s93, s94, %d\n" % (kk*(2048 if not OPT["wsp"] else 65536 + 2048))
        for di in range(2):
            q.append(pre + "buffer_load_dwordx4 a[%d:%d], v%d, %s, s93 offen sc1" % (wpre(kk, di), wpre(kk, di) + 3, 26 + di, srd(S_WS))); pre = ""
        return q
    def g2setup(g):
        chunk_ids(g)
        g("s_lshl_b32 s80, s%d, 1\ns_and_b32 s81, s%d, 1\ns_add_u32 s80, s80, s81\ns_lshl_b32 s80, s80, 9" % (S_MT, S_W))
        g("s_lshl_b32 s81, s%d, 1\ns_lshr_b32 s82, s%d, 1\ns_add_u32 s81, s81, s82\ns_mul_i32 s82, s81, 37\ns_lshr_b32 s82, s82, 8\ns_mul_i32 s82, s82, 100\ns_lshl_b32 s81, s81, 2\ns_add_u32 s80, s80, s81\ns_add_u32 s80, s80, s82\ns_add_u32 s87, s80, 0x%x\ns_add_u32 s86, s87, 0x8000" % (S_FT, S_W, FH_OFF))
        g("s_lshl_b32 s80, s%d, 2\ns_add_u32 s80, s80, %d\nv_mov_b32 v30, s80" % (S_W, SYW + 16))
        g("v_lshrrev_b32 v7, 5, v0\nv_lshlrev_b32 v7, 2, v7\nv_bfe_u32 v2, v0, 2, 2\nv_add_u32 v7, v7, v2\nv_lshlrev_b32 v7, 7, v7")
        g("v_bfe_u32 v2, v0, 3, 1\ns_lshr_b32 s80, s%d, 1\nv_xor_b32 v2, s80, v2\nv_lshlrev_b32 v2, 6, v2\nv_add_u32 v7, v7, v2\nv_bfe_u32 v2, v0, 4, 1\nv_lshlrev_b32 v2, 5, v2\nv_add_u32 v7, v7, v2" % S_W)
        g("v_and_b32 v2, 3, v0\nv_lshlrev_b32 v2, 3, v2\nv_add_u32 v7, v7, v2\nv_add_u32 v5, s95, v7\nv_xor_b32 v6, 64, v5")
        g("v_add_u32 v28, 0x%x, v5\nv_add_u32 v29, 0x%x, v6" % (WDB1 - WDA, WDB1 - WDA))
        g("v_lshlrev_b32 v1, 4, v0\ns_and_b32 s80, s%d, 1\ns_mul_i32 s81, s80, %d\ns_xor_b32 s80, s80, 1\ns_mul_i32 s80, s80, %d\nv_add_u32 v7, s80, v1\nv_add_u32 v1, s81, v1" % (S_W, 112*1024, 112*1024))
        g("s_mul_i32 s91, s%d, %d\ns_mul_i32 s80, s%d, %d\ns_add_u32 s91, s91, s80\ns_add_u32 s91, s91, 0x%x" % (S_TB2, 2*112*1024, S_W, 28*1024, H_OFF))
        g("s_lshl_b32 s80, s%d, 9\ns_lshl_b32 s81, s%d, 7\ns_add_u32 s80, s80, s81\ns_add_u32 s80, s80, 0x%x\ns_add_u32 s50, s48, s80\ns_addc_u32 s51, s49, 0" % (S_TB2, S_W, FH_OFF))
    def late_setup(g):
        g("v_lshlrev_b32 v26, 4, v0\ns_lshr_b32 s80, s%d, 1\ns_lshl_b32 s80, s80, 10\nv_add_u32 v26, s80, v26\nv_xor_b32 v27, 0x400, v26" % S_W)
        g("s_lshl_b32 s94, s%d, 2\ns_add_u32 s94, s94, s%d\ns_lshl_b32 s94, s94, %d\ns_add_u32 s94, s94, 0x%x" % (S_NB, S_W, 11 if OPT["wsp"] else 15, WDT_OFF))
        g2setup(g)
    g("s_waitcnt lgkmcnt(0)")
    g("global_load_ushort v39, v63, s[30:31]")
    for i in range(6): g("global_load_ushort v%d, v32, s[%d:%d]" % (33 + i, 18 + 2*i, 19 + 2*i))
    g("global_load_ushort v59, v63, s[32:33]")
    epoch_load(g); srds2(g)
    kgen_addr(g); kgen_compact_addr(g)
    gemm1_raddr(g)
    if OPT["ls"]: late_setup(g)
    stamp(g, "C:pre")
    if STAMPS: g.wait(vm=0)
    stamp(g, "C:par")
    tag_compute(g)
    kgen_W(g) if OPT["ksplit"] else kgen_WE(g)
    g("s_lshl_b32 s80, s%d, 2\ns_add_u32 s80, s80, %d\nv_mov_b32 v60, s80\nv_mov_b32 v61, s%d\nds_write_b32 v60, v61\nv_xor_b32 v60, 4, v60\ns_mov_b32 s%d, 0x100000" % (S_W, CSW, S_TAG, S_SPIN))
    g("s_and_b32 s80, s%d, 1\nv_or_b32 v58, s80, v0\nv_lshlrev_b32 v59, 16, v59\nv_cmp_eq_u32 vcc, 0, v58\nv_cndmask_b32 v59, 0, v59, vcc" % S_W)
    stamp(g, "C:W done")
    g("Lcs:")
    for l in ("ds_read_b32 v61, v60", "s_waitcnt lgkmcnt(0)", "v_readfirstlane_b32 s80, v61", "s_sub_u32 s%d, s%d, 1" % (S_SPIN, S_SPIN), "s_cbranch_scc1 Lcsd",
              "s_cmp_lg_u32 s80, s%d" % S_TAG, "s_cbranch_scc1 Lcs"): g.raw(l)
    g("Lcsd:"); g.lg_done = g.lg_seq
    stamp(g, "C:Bk")
    kgen_mfma(g); kgen_compact(g)
    g.wait(lg=0)
    stamp(g, "C:K done")
    g("s_cmp_ge_u32 s%d, 28\ns_cbranch_scc1 Lnog1" % S_IDX)
    ne = OPT["wearly"]
    side = {15: sum([load_w(k) for k in range(6)], [])} if ne else {}
    r2 = Rec2(); late_setup(r2)
    for i, t in enumerate([] if OPT["ls"] else r2.q): side.setdefault(2 + 2*(i // 5), []).append(t)
    gemm1_main(g, side)
    stamp(g, "C:main1end")
    g("s_setprio %d" % OPT["cprio_epi"])
    hop = gemm1_epilogue(g, load_w)
    stamp(g, "C:epiend")
    if OPT["half"]: g.raw("s_load_dwordx8 s[8:15], s[50:51], 0 glc")
    g.raw("s_waitcnt vmcnt(0)"); g.vm_done = g.vm_seq
    flag_store(g, 86, 8)
    g("s_branch Lg2")
    g("Lnog1:")
    g.raw("s_barrier")
    T_issue(g); wdt_issue(g); T_process(g); wdt_process(g); g("s_mov_b32 s14, s80")
    g.wait(vm=0); flag_store(g, 15, 8); flag_store(g, 14, 8)
    late_setup(g)
    g.raw("s_barrier"); g.raw("s_barrier")
    g("v_mov_b32 v9, 1\nds_write_b32 v30, v9 offset:32")
    assert not OPT["pord"]
    g.raw("s_barrier")
    g("s_lshl_b32 s80, s%d, 2\ns_add_u32 s80, s80, s%d\ns_lshl_b32 s80, s80, 7\ns_add_u32 s80, s80, 0x%x\nv_and_b32 v8, 3, v0\nv_lshlrev_b32 v8, 2, v8" % (S_NB, S_W, FW_OFF))
    poll(g, 8, 80, 9, sleep=8)
    for kk in range(12):
        for t in load_w(kk): g(t)
    g("v_mov_b32 v20, v5\nv_mov_b32 v21, v6\nv_mov_b32 v22, v7")
    wd_setup(g, 23)
    for t in wd_dma(3, 23) + wd_dma(4, 23): g(t)
    g("v_mov_b32 v5, v20\nv_mov_b32 v6, v21\nv_mov_b32 v7, v22\nv_lshlrev_b32 v8, 10, v0")
    for c in (5, 6): g("s_lshl_b32 s80, s%d, 16\ns_add_u32 s80, s80, s94\nbuffer_load_dword v%d, v8, %s, s80 offen" % (18 + c, 19 + c, srd(S_WD)))
    if OPT["half"]: g.raw("s_load_dwordx8 s[8:15], s[50:51], 0 glc")
    g.raw("s_waitcnt vmcnt(0)"); g.vm_done = g.vm_seq
    g("Lg2:")
    g("s_setprio %d" % OPT["cprio2"])
    stamp(g, "C:flag0")
    if OPT["half"]: spoll(g, 7, 0, issued=True)
    else:
        g("s_cmp_ge_u32 s%d, 28\ns_cbranch_scc1 Lsk4" % S_IDX)
        for kk in range(ne, 12):
            for t in load_w(kk): g(t)
        g("Lsk4:")
        if OPT["tp"]: spoll_touch(g)
        else: spoll(g, 7, 0x8000)
    stamp(g, "C:polled")
    RING = 8
    assert OPT['la'] <= 8
    def hreg(kk, ti):
        i = kk % RING
        return ("v[%d:%d]" % (32 + 8*i + 4*ti, 32 + 8*i + 4*ti + 3)) if i < 8 else ("a[%d:%d]" % (16 + 8*(i-8) + 4*ti, 16 + 8*(i-8) + 4*ti + 3))
    def load_h(kk):
        q = []; p = kk >> 1
        pre = "s_lshl_b32 s90, s%d, 12\ns_add_u32 s90, s90, s91\n" % (18 + pm(p)[0]) if kk % 2 == 0 else ""
        for ti in range(2):
            q.append(pre + "buffer_load_dwordx4 %s, v%d, %s, s90 offen offset:%d sc1" % (hreg(kk, ti), (1, 7)[ti], srd(S_WS), pm(p)[1]*2048 + (kk & 1)*1024)); pre = ""
        return q
    if OPT.get("dummy"):
        for kk in range(28):
            for t in load_h(kk): g(t)
        g.wait(vm=0)
        stamp(g, "C:dummy")
    PRE = OPT["pre"]
    for kk in range(PRE):
        for t in load_h(kk): g(t)
    wq = [load_w(kk) for kk in range(ne, 12)] if OPT["half"] else []
    g("s_lshr_b32 s80, s%d, 1\ns_mul_i32 s80, s80, 4224\ns_and_b32 s81, s%d, 1\ns_lshl_b32 s81, s81, 13\ns_add_u32 s80, s80, s81\nv_lshlrev_b32 v2, 4, v0\nv_xor_b32 v2, s80, v2\nv_add_u32 v2, s95, v2" % (S_W, S_W))
    LQ = OPT["lastq"]; K0 = 28 - LQ
    def wb(kk, di):
        if kk < 12: return "a", wpre(kk, di)
        if kk >= K0: return "a", 8*(kk - K0) + 4*di
        return "v", 10 + 8*(kk & 1) + 4*di
    def wreg(kk, di):
        t, b = wb(kk, di); return "%s[%d:%d]" % (t, b, b + 3)
    def reads(kk):
        c, s = divmod(kk, 4); q = []
        for di in range(2):
            va, off = {3: ((5, 6), 0), 4: ((5, 6), 8192), 5: ((28, 29), 0), 6: ((28, 29), 8192)}[c]
            t, b = wb(kk, di)
            for h in range(2):
                q.append("ds_read_b64_tr_b16 %s[%d:%d], v%d offset:%d" % (t, b + 2*h, b + 2*h + 1, va[di], off + s*2048 + h*1024))
        return q
    def mf(kk, di, ti):
        a = 96 + 32*di + 16*ti
        g("v_mfma_f32_32x32x16_bf16 v[%d:%d], %s, %s, %s" % (a, a+15, wreg(kk, di), hreg(kk, ti), "0" if kk == 0 else "v[%d:%d]" % (a, a+15)))
    nh = PRE
    fa = rec(fin_addr, 40)
    for kk in range(K0):
        if kk in (1, 4, 8, 12, 16, 20): stamp(g, "C:k%d" % kk)
        nx = reads(kk + 1) if 12 <= kk + 1 < K0 else []
        lq = []
        for _ in range(OPT["wrate"]):
            if wq: lq += wq.pop(0)
        if OPT["half"] and kk == 14 - OPT["la"] - 2: g.raw("s_load_dwordx8 s[8:15], s[50:51], 0x8000 glc")
        for _ in range(2):
            if nh < 28 and nh < kk + OPT["la"]:
                if nh == 14 and OPT["half"]: lq.append(lambda g: (spoll(g, 7, 0x8000, issued=True), stamp(g, "C:pB")))
                lq += load_h(nh); nh += 1
        if kk == K0 - 2: lq += sum([reads(k) for k in range(K0, K0 + LQ//2)], [])
        if kk == K0 - 1: lq += sum([reads(k) for k in range(K0 + LQ//2, 28)], [])
        n = 0
        for di, ti in ((0,0),(0,1),(1,0),(1,1)):
            mf(kk, di, ti)
            if n == 0:
                for KR, fo in ((12, 16), (20, 0)):
                    if kk + 2 == KR: g("ds_read_b32 v8, v30 offset:%d" % fo)
                    if kk + 1 == KR:
                        L, D = g.lab("Lr"), g.lab("Lrd")
                        g("v_readfirstlane_b32 s80, v8")
                        g("s_mov_b32 s%d, 0x100000\ns_cmp_lg_u32 s80, 0\ns_cbranch_scc1 %s" % (S_SPIN, D))
                        g(L + ":")
                        for l in ("ds_read_b32 v8, v30 offset:%d" % fo, "s_waitcnt lgkmcnt(0)", "v_readfirstlane_b32 s80, v8", "s_sub_u32 s%d, s%d, 1" % (S_SPIN, S_SPIN), "s_cbranch_scc1 %s" % D,
                                  "s_cmp_eq_u32 s80, 0", "s_cbranch_scc1 %s" % L): g.raw(l)
                        g(D + ":")
                for r in nx: g(r)
            else:
                for _ in range(3 if n < 3 else 99):
                    if lq: emit(g, lq.pop(0))
            n += 1
    assert nh == 28
    stamp(g, "C:k%d" % K0)
    FB = 10
    fa = rec(fin_addr, FB)
    pend = []
    cnt = [0]
    def pw(di, ti):
        q = []
        for j in range(4):
            t = 16 + (cnt[0] & 3); cnt[0] += 1
            a = 96 + 32*di + 16*ti + 4*j
            q.append("v_xor_b32 v%d, 0x%x, v2\nds_write_b128 v%d, v[%d:%d]" % (t, j*1056 ^ di*4224 ^ ti*8192, t, a, a + 3))
        return q
    quads = ((0,0),(0,1),(1,0),(1,1))
    for qi, (di, ti) in enumerate(quads):
        for kk in range(K0, 28):
            mf(kk, di, ti)
            if qi == 0 or (qi == 1 and kk < K0 + 2):
                for _ in range(6):
                    if fa: g(fa.pop(0))
            elif pend and (kk - K0 >= 2 or len(pend) > 4 or LQ < 4): g(pend.pop(0));
        pend += pw(di, ti)
    for l in fa: g(l)
    stamp(g, "C:main2end")
    for t in pend: g(t)
    g.wait(lg=0)
    stamp(g, "C:a13")
    g("s_barrier")
    stamp(g, "C:B13")
    fin(g, FB, 64, 44, 3)
    stamp(g, "C:stores")
    if STAMPS:
        g.wait(vm=0); stamp(g, "C:drained")
    stamp_store(g)
    if OPT.get("hold"):
        for l in ("Lhold:", "s_memrealtime s[6:7]", "s_waitcnt lgkmcnt(0)", "s_sub_u32 s6, s6, s4", "s_cmp_lt_u32 s6, %d" % OPT["hold"], "s_cbranch_scc1 Lhold"):
            g.lines.append(l)
    g("Lend:")
    g("s_endpgm")
    return g.text()

if __name__ == "__main__":
    if len(sys.argv) > 2 and sys.argv[2] != "-": STAMPS = sys.argv[2]
    for a in sys.argv[3:]:
        k, v = a.split("="); OPT[k] = int(v)
    h1, h2 = build_H(); body = h1 + build_C() + h2
    open(sys.argv[1], "w").write(build_file([(KN, 256, 512, 163840, body, 256, 100, 160)], single=True))
    if STAMPS:
        import json; json.dump(St.names, open("stnames.json", "w"))
```

```python
import sys, struct, math
from gen import *
import k31 as O
from k31 import f2u, srd, St, Rec, Rec2, rec, emit, weave, tag_compute, poll, flag_store, epoch_load, lanes, LOG2E
from k31 import S_X, S_WG, S_WU, S_WD, S_WS, S_OUT, S_XCD, S_IDX, S_W, S_CH, S_MT, S_FT, S_TAG, S_TB2, S_NB, S_SPIN
from k31 import H_OFF, WS_BYTES, FH_OFF, FT_OFF, FA_OFF, G_OFF, AT_OFF, AT_STRIDE, EP_OFF
UT_OFF = 0x1400000; UT_STRIDE = 4224
OPT = O.OPT
OPT.update(epg=3, epg3=4, krot=1, brot=1, la=8, pre=6, lastq=4, kprio=0, cvp=2, bsplit=5, wr=(6, 10), fs=6, f3=0, cs=5, n1=4, n3=8, m20=17, uel=0, wrn=4, tch=1, te=1)
stamp, stamp_store = O.stamp, O.stamp_store
SL = [0, 32768, 65536, 98304, 131072]

def prologue(g):
    g("s_cmp_ge_u32 s2, 256")
    g("s_cbranch_scc1 Lend")
    if O.STAMPS: g.raw("%s s[4:5]" % O.STAMPS)
    g("v_lshrrev_b32 v1, 6, v0")
    g("s_load_dwordx16 s[16:31], s[0:1], 0")
    g("s_load_dwordx16 s[32:47], s[0:1], 64")
    g("s_load_dwordx2 s[48:49], s[0:1], 128")
    g("v_readfirstlane_b32 s3, v1")
    g("s_cmp_lt_u32 s3, 4")
    g("s_cbranch_scc1 Lcompute")
    g("s_cmp_lt_u32 s2, %d\ns_cbranch_scc1 Lcp" % OPT["cpf"])
    for l in ("s_getpc_b64 s[8:9]", "Lpc:", "s_sub_u32 s8, s8, Lpc-%s" % KN, "s_subb_u32 s9, s9, 0", "v_and_b32 v5, 0xff, v0", "v_lshlrev_b32 v5, 7, v5",
              "v_min_u32 v5, Lcodeend-%s-4, v5" % KN, "s_nop 0", "global_load_dword v127, v5, s[8:9]"): g.lines.append("    " + l if not l.endswith(":") else l)
    g("Lcp:")
    prologue2(g)
def prologue2(g):
    g("v_and_b32 v0, 63, v0")
    g("s_and_b32 s%d, s2, 7\ns_lshr_b32 s%d, s2, 3" % (S_XCD, S_IDX))
    g("s_mul_i32 s80, s%d, 37\ns_lshr_b32 s80, s80, 8\ns_mul_i32 s81, s80, 7\ns_sub_u32 s81, s%d, s81" % (S_IDX, S_IDX))
    g("s_and_b32 s%d, s%d, 4\ns_add_u32 s%d, s%d, s80" % (S_MT, S_XCD, S_MT, S_MT))
    g("s_and_b32 s%d, s%d, 3\ns_mul_i32 s%d, s%d, 7\ns_add_u32 s%d, s%d, s81" % (S_FT, S_XCD, S_FT, S_FT, S_FT, S_FT))
    g("s_cmp_ge_u32 s81, 3\ns_addc_u32 s%d, s81, 0" % S_NB)
    g("s_cmp_ge_u32 s%d, 28\ns_cselect_b32 s%d, 3, s%d\ns_cselect_b32 s80, s81, s80" % (S_IDX, S_NB, S_NB))
    g("s_lshl_b32 s%d, s%d, 2\ns_add_u32 s%d, s%d, s80" % (S_TB2, S_XCD, S_TB2, S_TB2))
    g("s_and_b32 s%d, s3, 3" % S_W)
    g("s_and_b32 s15, s%d, 3\ns_lshl_b32 s12, s81, 2" % S_FT)
    g("s_lshl_b32 s80, s%d, 6\ns_lshl_b32 s81, s%d, 1\ns_add_u32 s80, s80, s81\ns_lshr_b32 s81, s%d, 1\ns_add_u32 s%d, s80, s81" % (S_XCD, S_IDX, S_W, S_CH))

def h_dma_addr(g):
    g("s_and_b32 s14, s%d, %d" % (S_MT, 3 if OPT["krot"] else 0))
    g("v_lshrrev_b32 v5, 5, v0\nv_and_b32 v6, 15, v0\nv_xor_b32 v6, v6, v5\nv_lshlrev_b32 v6, 4, v6\nv_lshlrev_b32 v5, 10, v5\nv_add_u32 v5, v5, v6")
    g("v_bfe_u32 v6, v0, 4, 1\nv_add_u32 v7, s14, v6\nv_and_b32 v7, 3, v7\nv_lshlrev_b32 v7, 8, v7\nv_add_u32 v2, v5, v7")
    g("v_lshlrev_b32 v6, 1, v6\nv_and_b32 v7, 7, v0\nv_xor_b32 v6, v6, v7\nv_lshlrev_b32 v6, 4, v6\nv_lshrrev_b32 v5, 3, v0\nv_mul_u32_u24 v5, 3584, v5\nv_add_u32 v3, v5, v6\nv_xor_b32 v4, 64, v3")
    g("s_lshl_b32 s90, s%d, 18\ns_lshl_b32 s80, s%d, 14\ns_add_u32 s90, s90, s80" % (S_MT, S_W))
    g("s_lshl_b32 s91, s%d, 7\ns_mul_i32 s80, s%d, %d\ns_add_u32 s91, s91, s80" % (S_FT, S_W, 32*3584))
    g("s_lshl_b32 s92, s%d, 13\ns_lshl_b32 s13, s%d, 12" % (S_W, S_W))
def x_dma(u):
    b, hf = divmod(u, 2); q = []
    pre = "s_add_u32 s35, s15, %d\ns_and_b32 s35, s35, 3\ns_lshl_b32 s35, s35, 16\ns_add_u32 s35, s35, s90\n" % b
    for i in range(8):
        q.append((pre if i == 0 else "") + "v_xor_b32 v5, 0x%x, v2\ns_add_u32 m0, s92, %d\ns_add_u32 s93, s35, %d\nbuffer_load_dwordx4 v5, %s, s93 offen lds" % (32*i ^ 512*hf, SL[u & 1] + i*1024, i*2048, srd(S_X)))
    return q
WQ = [2, 3, 4, 2]
def w_dma(qq):
    q = []
    pre = "s_add_u32 s34, s14, %d\ns_and_b32 s34, s34, 3\ns_mul_i32 s34, s34, %d\ns_add_u32 s34, s34, s91\n" % (qq, 128*3584)
    for i in range(4):
        q.append((pre if i == 0 else "") + "s_add_u32 m0, s13, %d\ns_add_u32 s93, s34, %d\nbuffer_load_dwordx4 v3, %s, s93 offen lds" % (SL[WQ[qq]] + i*1024, i*8*3584, srd(S_WG)))
        q.append("s_add_u32 m0, s13, %d\ns_nop 0\nbuffer_load_dwordx4 v4, %s, s93 offen lds" % (SL[WQ[qq]] + 16384 + i*1024, srd(S_WU)))
    return q

def c_addr(g):
    g("v_and_b32 v5, 31, v0\nv_lshrrev_b32 v6, 5, v0\nv_and_b32 v7, 15, v0\nv_xor_b32 v7, v7, v6\nv_lshlrev_b32 v7, 4, v7\nv_lshlrev_b32 v5, 9, v5\nv_add_u32 v8, v5, v7")
    for s in range(1, 8): g("v_xor_b32 v%d, 0x%x, v8" % (8 + s, 32*s))
    g("v_lshlrev_b32 v5, 3, v6\nv_bfe_u32 v6, v0, 2, 2\nv_add_u32 v5, v5, v6\nv_lshlrev_b32 v5, 7, v5")
    g("v_bfe_u32 v6, v0, 3, 2\nv_xor_b32 v6, s%d, v6\nv_lshlrev_b32 v6, 5, v6\nv_add_u32 v5, v5, v6" % S_W)
    g("v_bfe_u32 v6, v0, 4, 1\nv_lshlrev_b32 v6, 14, v6\nv_add_u32 v5, v5, v6\nv_and_b32 v6, 3, v0\nv_lshlrev_b32 v6, 3, v6\nv_add_u32 v5, v5, v6")
    g("v_add_u32 v16, 0x%x, v5\nv_add_u32 v17, 0x%x, v5" % (SL[2], SL[4]))
    k1 = -2*0.7978845608028654*LOG2E; k2 = k1*0.044715
    g("s_mov_b32 s84, 0x%x\ns_mov_b32 s85, 0x%x\nv_mov_b32 v2, 0x%x\nv_mov_b32 v3, 0x%x\nv_lshlrev_b32 v30, 4, v0" % (f2u(k2), f2u(k2), f2u(k1), f2u(k1)))
    g("s_mul_i32 s83, s%d, %d\ns_lshl_b32 s80, s%d, 2\ns_add_u32 s80, s80, s%d\ns_lshl_b32 s80, s80, 10\ns_add_u32 s83, s83, s80\ns_add_u32 s83, s83, 0x%x" % (S_MT, 8*112*1024, S_FT, S_W, H_OFF))
def rd1(m):
    u, su = divmod(m, 16); q = []
    for ti in range(2):
        b = 32 + 8*(m & 3) + 4*ti
        q.append("ds_read_b128 v[%d:%d], v%d offset:%d" % (b, b+3, 8 + (su & 7), SL[u & 1] + ti*16384 + (su >> 3)*256))
    if m < 32:
        qq, s = divmod(m, 8); sl = WQ[qq]
        for h in range(2):
            q.insert(2*h, "ds_read_b64_tr_b16 a[%d:%d], v%d offset:%d" % (4*m + 2*h, 4*m + 2*h + 1, 17 if sl == 4 else 16, (32768 if sl == 3 else 0) + s*2048 + h*512))
    return q
def epi(b, pk):
    A = 64 + 32*(b & 1); q = []
    q.append("s_add_u32 s82, s15, %d\ns_and_b32 s82, s82, 3\ns_mul_i32 s82, s82, %d\ns_add_u32 s82, s82, s83" % (b, 2*112*1024))
    for ti in range(2):
        G0 = A + 16*ti; U0 = G0 + 8; T = 18; D = 26
        if pk:
            P = [(G0 + 2*j, U0 + 2*j, T + 2*j) for j in range(4)]
            for (x, u, t) in P: q.append("v_pk_mul_f32 v[%d:%d], v[%d:%d], v[%d:%d]" % (t, t+1, x, x+1, x, x+1))
            for (x, u, t) in P: q.append("v_pk_fma_f32 v[%d:%d], v[%d:%d], s[84:85], v[2:3]" % (t, t+1, t, t+1))
            for (x, u, t) in P: q.append("v_pk_mul_f32 v[%d:%d], v[%d:%d], v[%d:%d]" % (t, t+1, t, t+1, x, x+1))
            for j in range(8): q.append("v_exp_f32 v%d, v%d" % (T + j, T + j))
            for (x, u, t) in P: q.append("v_pk_mul_f32 v[%d:%d], v[%d:%d], v[%d:%d]" % (x, x+1, x, x+1, u, u+1))
            for (x, u, t) in P: q.append("v_pk_add_f32 v[%d:%d], v[%d:%d], 1.0 op_sel_hi:[1,0]" % (t, t+1, t, t+1))
            for j in range(8): q.append("v_rcp_f32 v%d, v%d" % (T + j, T + j))
            for (x, u, t) in P: q.append("v_pk_mul_f32 v[%d:%d], v[%d:%d], v[%d:%d]" % (x, x+1, x, x+1, t, t+1))
        else:
            st = [lambda x,u,t: "v_mul_f32 v%d, v%d, v%d" % (t, x, x), lambda x,u,t: "v_fma_f32 v%d, v%d, s84, v2" % (t, t), lambda x,u,t: "v_mul_f32 v%d, v%d, v%d" % (t, t, x),
                  lambda x,u,t: "v_exp_f32 v%d, v%d" % (t, t), lambda x,u,t: "v_mul_f32 v%d, v%d, v%d" % (x, x, u), lambda x,u,t: "v_add_f32 v%d, 1.0, v%d" % (t, t),
                  lambda x,u,t: "v_rcp_f32 v%d, v%d" % (t, t), lambda x,u,t: "v_mul_f32 v%d, v%d, v%d" % (x, x, t)]
            for k in range(15):
                for j in range(8):
                    if 0 <= k - j < 8: q.append(st[k - j](G0 + j, U0 + j, T + j))
        for j in range(4): q.append("v_cvt_pk_bf16_f32 v%d, v%d, v%d" % (D + j, G0 + 2*j, G0 + 2*j + 1))
        q.append(("s_add_u32 s82, s82, %d\n" % (112*1024) if ti else "") + "buffer_store_dwordx4 v[%d:%d], v30, %s, s82 offen sc1" % (D, D+3, srd(S_WS)))
    return q
ORD = []
for e in range(4):
    ORD.append([c for p in range(4) for c in range(7) if (e - c) & 3 == p])
def hflag(g, b):
    tab = sum(ORD[(b + c) & 3].index(c) << (4*c) for c in range(7))
    g("s_lshr_b32 s80, 0x%x, s12\ns_and_b32 s80, s80, 15\ns_lshl_b32 s80, s80, 4\ns_add_u32 s81, s15, %d\ns_and_b32 s81, s81, 3\ns_lshl_b32 s81, s81, 9\ns_add_u32 s80, s80, s81\ns_add_u32 s80, s80, s86" % (tab, b))
    g("s_mov_b64 exec, 1\nbuffer_store_dword v4, v5, %s, s80 offen sc1\ns_mov_b64 exec, -1" % srd(S_WS))
BND = [8, 16, 24, 32, 48, 64, 80, 96, 112, 128]
def gemm1(g, side={}):
    g("s_barrier"); stamp(g, "C:Q0")
    for m in range(4):
        for r in rd1(m): g(r)
    nr = 4; eq = []; g.lastst = {}
    for n in range(128):
        b = n >> 5
        if n & 31 == 0 and b: eq = epi(b - 1, False)
        if n + 3 in BND:
            g.wait(lg=0)
            pass
            if n + 3 >= 32: stamp(g, "C:a%d" % (n + 3))
            g("s_barrier")
            stamp(g, "C:B%d" % (n + 3))
        lim = n + 4 if (n + 4) not in BND else n + 3
        pre = []; post = []
        while nr <= min(lim, 127):
            (post if nr == n + 4 else pre).extend([rd1(nr)]); nr += 1
        pre = sum(pre, []); post = post[0] if post else []
        h = len(post)//2
        for ti in range(2):
            A = 64 + 32*(b & 1) + 16*ti; x = 32 + 8*(n & 3) + 4*ti
            g("v_mfma_f32_32x32x16_bf16 v[%d:%d], a[%d:%d], v[%d:%d], %s" % (A, A+15, 4*(n & 31), 4*(n & 31) + 3, x, x+3, "0" if n & 31 == 0 else "v[%d:%d]" % (A, A+15)))
            if ti == 0:
                for r in pre: g(r)
            for r in post[ti*h:(ti+1)*h]: g(r)
            if n & 31 >= 1:
                for _ in range(OPT["epg"] if b < 3 else OPT["epg3"]):
                    if eq:
                        o = g(eq.pop(0))
                        if o and o[0] == "vm": g.lastst[b - 1] = o
            for t in side.get((n, ti), []): emit(g, t)
            if ti == 1 and n in (64 + OPT["fs"], 96 + OPT["fs"]): g.wait_op(g.lastst[b - 2]); hflag(g, b - 2)
        if n & 31 == 31: assert not eq


KT = 32768; KT_CH = 98304; KT_IM = 14336
CSW = 65280
UE0 = 65536; UPL = 16768
KF = 132608; KF_CH = 4608; KF_PL = 2304
XC = 141824; CU_CH = 4352
SYW = 158208
KC = 61440; KC_CH = 1536
WSL = [SL[2], SL[3], SL[4], SL[0], SL[1], SL[2], SL[3]]
STG = SL[4]
from k31 import kbase, kpower, cm1, cm2, cmul2
def kparams(g):
    g("s_lshl_b32 s80, s%d, 8\ns_and_b32 s81, s%d, 1\ns_lshl_b32 s81, s81, 7\ns_add_u32 s80, s80, s81" % (S_CH, S_W))
    g("v_lshlrev_b32 v32, 1, v0\nv_add_u32 v32, s80, v32\ns_lshl_b32 s80, s%d, 1\nv_mov_b32 v63, s80" % S_CH)
def kloads(g):
    g("global_load_ushort v39, v63, s[30:31]")
    for i in range(6): g("global_load_ushort v%d, v32, s[%d:%d]" % (33 + i, 18 + 2*i, 19 + 2*i))
    g("global_load_ushort v126, v63, s[32:33]")
def kmath(A):
    tw = lambda r, off: A("ds_write_b128 v120, v[%d:%d] offset:%d" % (r, r + 3, off))
    kbase(A)
    for r in range(35, 39): A("v_lshlrev_b32 v%d, 16, v%d" % (r, r))
    A("v_mul_f32 v35, v39, v35\nv_mul_f32 v36, v39, v36")
    A("v_mul_f32 v40, v37, v35\nv_mul_f32 v41, v37, v36\nv_fma_f32 v40, -v38, v36, v40\nv_fma_f32 v41, v38, v35, v41")
    Z1, Z2, ZB = 42, 44, 46
    kpower(A, 1, Z1, 36); kpower(A, 2, Z2, 38); kpower(A, 256, ZB, 36)
    def pk(i, x, y):
        A("v_cvt_pk_bf16_f32 v%d, v%d, v%d" % (64 + i, x, y)); A("v_cvt_pk_bf16_f32 v%d, -v%d, -v%d" % (76 + i, x+1, y+1))
    cmul2(A, (48, 40, Z1), (50, 40, Z2)); pk(0, 40, 48)
    cmul2(A, (52, 48, Z2), (54, 50, Z2)); pk(1, 50, 52)
    cmul2(A, (48, 52, Z2), (56, 54, Z2)); pk(2, 54, 48)
    cmul2(A, (52, 48, Z2), (58, 40, ZB)); pk(3, 56, 52)
    tw(64, 0); tw(76, KT_IM)
    cmul2(A, (48, 50, ZB), (60, 54, ZB)); pk(4, 58, 48)
    cmul2(A, (52, 56, ZB), (40, 58, ZB)); pk(5, 60, 52)
    cmul2(A, (48, 60, ZB), (50, 40, ZB)); pk(6, 40, 48)
    cmul2(A, (52, 48, ZB), (54, 50, ZB)); pk(7, 50, 52)
    tw(68, 16); tw(80, KT_IM + 16)
    Z8, Z16 = 42, 44
    A(cm1(56, 54, ZB)); kpower(A, 8, Z8, 36); A(cm2(56, 54, ZB)); pk(8, 54, 56)
    A(cm1(58, 56, ZB)); kpower(A, 16, Z16, 38); A(cm2(58, 56, ZB))
    cmul2(A, (60, 58, ZB), (54, Z8, Z16)); pk(9, 58, 60)
    A(cm1(40, 60, ZB)); A("v_cvt_pk_bf16_f32 v88, 1.0, v%d\nv_cvt_pk_bf16_f32 v104, 0, v%d" % (Z8, Z8 + 1)); A(cm2(40, 60, ZB)); pk(10, 40, 40)
    tw(72, 32); tw(84, KT_IM + 32)
    ev, od = Z16, 54
    for i in range(1, 16):
        ne, no = (48, 50) if i % 2 else (52, 54)
        if i < 15: A(cm1(ne, ev, Z16)); A(cm1(no, od, Z16))
        A("v_cvt_pk_bf16_f32 v%d, v%d, v%d" % (88 + i, ev, od)); A("v_cvt_pk_bf16_f32 v%d, v%d, v%d" % (104 + i, ev + 1, od + 1))
        if i < 15: A(cm2(ne, ev, Z16)); A(cm2(no, od, Z16))
        ev, od = ne, no
        if i % 4 == 3: tw(88 + i - 3, 48 + 4*(i - 3)); tw(104 + i - 3, KT_IM + 48 + 4*(i - 3))
def kaddr(g):
    g("s_lshr_b32 s80, s%d, 1\ns_mul_i32 s80, s80, %d\ns_add_u32 s80, s80, %d\ns_and_b32 s81, s%d, 1\ns_mul_i32 s82, s81, %d\ns_add_u32 s82, s82, s80" % (S_W, KT_CH, KT, S_W, 64*112))
    g("v_mul_u32_u24 v120, 112, v0\nv_add_u32 v120, s82, v120")
    g("v_lshrrev_b32 v121, 2, v0\nv_mul_u32_u24 v121, 112, v121\nv_and_b32 v122, 3, v0\nv_lshlrev_b32 v122, 3, v122\nv_add_u32 v121, v121, v122\nv_add_u32 v121, s80, v121")
    g("s_lshl_b32 s82, s81, 5\ns_add_u32 s82, s82, 48\nv_add_u32 v122, s82, v121")
    g("s_lshl_b32 s81, s81, 4\nv_and_b32 v20, 15, v0\nv_add_u32 v20, s81, v20\nv_lshrrev_b32 v21, 4, v0")
    g("v_lshlrev_b32 v22, 3, v20\nv_lshlrev_b32 v23, 2, v21\nv_add_u32 v22, v22, v23")
    g("v_lshlrev_b32 v23, 2, v20\nv_add_u32 v23, 0x100, v23\nv_lshlrev_b32 v6, 1, v20\nv_add_u32 v6, 0x180, v6")
    g("v_cmp_eq_u32 vcc, 2, v21\nv_cndmask_b32 v22, v22, v23, vcc\nv_cmp_eq_u32 vcc, 3, v21\nv_cndmask_b32 v22, v22, v6, vcc")
    g("v_mov_b32 v23, 2\nv_mov_b32 v6, 64\nv_cndmask_b32 v23, v23, v6, vcc\nv_add_u32 v23, v22, v23")
    g("s_lshr_b32 s80, s%d, 1\ns_mul_i32 s80, s80, %d\ns_add_u32 s80, s80, %d" % (S_W, KC_CH, KC))
    g("v_lshlrev_b32 v22, 1, v22\nv_add_u32 v123, s80, v22\nv_lshlrev_b32 v23, 1, v23\nv_add_u32 v124, s80, v23")
    g("v_min_u32 v6, 1, v21\nv_lshlrev_b32 v6, 7, v6\nv_add_u32 v6, v6, v20\nv_add_u32 v6, 0x200, v6\nv_lshlrev_b32 v6, 1, v6\nv_add_u32 v125, s80, v6")
def ktab(g):
    for i in range(3):
        g("ds_write_b128 v120, v[%d:%d] offset:%d" % (64 + 4*i, 67 + 4*i, 16*i)); g("ds_write_b128 v120, v[%d:%d] offset:%d" % (76 + 4*i, 79 + 4*i, KT_IM + 16*i))
    for i in range(4):
        g("ds_write_b128 v120, v[%d:%d] offset:%d" % (88 + 4*i, 91 + 4*i, 48 + 16*i)); g("ds_write_b128 v120, v[%d:%d] offset:%d" % (104 + 4*i, 107 + 4*i, KT_IM + 48 + 16*i))
def kmfma(g):
    def kmf(ks):
        b = 12 * ks
        g("v_mfma_f32_16x16x32_bf16 v[32:35], a[%d:%d], a[%d:%d], %s" % (b, b+3, b+8, b+11, "0" if ks == 0 else "v[32:35]"))
        g("v_mfma_f32_16x16x32_bf16 v[36:39], a[%d:%d], a[%d:%d], %s" % (b+4, b+7, b+8, b+11, "0" if ks == 0 else "v[36:39]"))
    for ks in range(8):
        off = (ks >> 2) * KT_IM + (ks & 3) * 32 * 112; b = 12 * ks
        for h in range(2):
            g("ds_read_b64_tr_b16 a[%d:%d], v121 offset:%d" % (b + 2*h, b + 2*h + 1, off + h*16*112))
            g("ds_read_b64_tr_b16 a[%d:%d], v121 offset:%d" % (b + 4 + 2*h, b + 4 + 2*h + 1, off + h*16*112 + 32))
            g("ds_read_b64_tr_b16 a[%d:%d], v122 offset:%d" % (b + 8 + 2*h, b + 8 + 2*h + 1, off + h*16*112))
        if ks >= 2: kmf(ks - 2)
    kmf(6); kmf(7)
    g("v_add_f32 v32, v32, v126")
    g("v_cvt_pk_bf16_f32 v32, v32, v33\nv_cvt_pk_bf16_f32 v33, v34, v35\nv_cvt_pk_bf16_f32 v34, v36, v37\nv_cvt_pk_bf16_f32 v35, v38, v39")
    g("ds_write_b32 v123, v32\nds_write_b32 v124, v33")
    g("s_mov_b32 exec_hi, 0\nds_write_b16 v125, v34\nds_write_b16_d16_hi v125, v34 offset:64\nds_write_b16 v125, v35 offset:128\nds_write_b16_d16_hi v125, v35 offset:192\ns_mov_b32 exec_hi, -1")
def kfull_addr(g):
    g("s_lshl_b32 s80, s%d, 9\nv_lshlrev_b32 v48, 3, v0\nv_add_u32 v48, s80, v48\nv_cmp_gt_u32 vcc, 0x80, v48" % S_W)
    for e in range(0, 8, 2):
        g("v_add_u32 v%d, %d, v48\nv_add_u32 v%d, %d, v48\nv_cvt_f32_u32 v49, v%d\nv_cvt_f32_u32 v50, v%d\nv_cvt_pk_bf16_f32 v49, v49, v50" % (40 + e, 7 - e, 41 + e, 6 - e, 40 + e, 41 + e))
        g("v_lshrrev_b32 v50, 16, v49\nv_and_b32 v49, 0xffff, v49\nv_subrev_u32 v49, 0x%x, v49\nv_subrev_u32 v50, 0x%x, v50" % (0x4300 - 128, 0x4300 - 128))
        g("v_cndmask_b32 v49, v49, v%d, vcc\nv_cndmask_b32 v50, v50, v%d, vcc\nv_lshl_add_u32 v%d, v49, 1, s9\nv_lshl_add_u32 v%d, v50, 1, s9" % (40 + e, 41 + e, 40 + e, 41 + e))
    g("v_lshrrev_b32 v49, 4, v48\nv_lshlrev_b32 v49, 4, v49\nv_and_b32 v50, 1, v0\nv_mul_u32_u24 v50, %d, v50\nv_add_u32 v49, v49, v50\nv_add_u32 v26, 0x%x, v49" % (KF_PL, KF + 256))
    g("v_lshrrev_b32 v49, 4, v0\nv_mul_u32_u24 v49, %d, v49\nv_and_b32 v50, 15, v0\nv_lshlrev_b32 v50, 4, v50\nv_add_u32 v49, v49, v50\nv_add_u32 v27, 0x%x, v49" % (KF_PL, KF))
def kfull_read(g):
    for ch in range(2):
        for e in range(8): g("ds_read_u16 v%d, v%d offset:%d" % (64 + 8*ch + e, 40 + e, ch*KC_CH))
    for ch in range(2):
        for e in range(4): g("v_lshl_or_b32 v%d, v%d, 16, v%d" % (52 + 4*ch + e, 64 + 8*ch + 2*e + 1, 64 + 8*ch + 2*e))
def kfull_write(g):
    g("v_mov_b32 v60, 0\nv_mov_b32 v61, 0\nv_mov_b32 v62, 0\nv_mov_b32 v63, 0\nds_write_b128 v27, v[60:63]")
    for ch in range(2): g("ds_write_b128 v26, v[%d:%d] offset:%d" % (52 + 4*ch, 55 + 4*ch, ch*KF_CH))
def kchain(g, sfx):
    kmath(g)
    g("s_lshl_b32 s80, s%d, 2\ns_add_u32 s80, s80, %d\nv_mov_b32 v60, s80\nv_mov_b32 v61, s%d\nds_write_b32 v60, v61\nv_xor_b32 v60, 4, v60\ns_mov_b32 s%d, 0x100000" % (S_W, CSW, S_TAG, S_SPIN))
    g("s_and_b32 s80, s%d, 1\nv_or_b32 v62, s80, v0\nv_lshlrev_b32 v126, 16, v126\nv_cmp_eq_u32 vcc, 0, v62\nv_cndmask_b32 v126, 0, v126, vcc" % S_W)
    g("Lcs%s:" % sfx)
    for l in ("ds_read_b32 v61, v60", "s_waitcnt lgkmcnt(0)", "v_readfirstlane_b32 s80, v61", "s_sub_u32 s%d, s%d, 1" % (S_SPIN, S_SPIN), "s_cbranch_scc1 Lcsd%s" % sfx,
              "s_cmp_lg_u32 s80, s%d" % S_TAG, "s_cbranch_scc1 Lcs%s" % sfx): g.raw(l)
    g("Lcsd%s:" % sfx); g.lg_done = g.lg_seq
    kmfma(g)
    g("s_mov_b32 s%d, 0x40000" % S_SPIN)
    g.wait(lg=0)
def ue_dma():
    q = ["s_add_u32 m0, s86, %d\ns_add_u32 s93, s85, %d\nbuffer_load_dwordx4 v28, %s, s93 offen sc1 lds" % (i*1024, i*256, srd(S_WS)) for i in range(16)]
    q.append("s_mov_b64 exec, 0xff\ns_add_u32 m0, s86, 16384\ns_add_u32 s93, s85, 4096\nbuffer_load_dwordx4 v28, %s, s93 offen sc1 lds\ns_mov_b64 exec, -1" % srd(S_WS))
    return q
def conv_addr(g):
    g("s_lshr_b32 s80, s%d, 1\ns_and_b32 s82, s%d, 1\ns_mul_i32 s81, s80, %d\ns_add_u32 s81, s81, %d\ns_lshl_b32 s83, s82, 10\ns_add_u32 s81, s81, s83" % (S_W, S_W, 2*UPL, UE0))
    g("v_lshlrev_b32 v10, 4, v0\nv_add_u32 v21, s81, v10\nv_add_u32 v20, %d, v21" % UPL)
    g("v_bfe_u32 v6, v0, 4, 1\nv_lshlrev_b32 v6, 1, v6\nv_lshrrev_b32 v7, 5, v0\nv_add_u32 v6, v6, v7\nv_lshlrev_b32 v6, 2, v6")
    g("v_bfe_u32 v7, v0, 1, 3\nv_sub_u32 v7, v7, v6\nv_add_u32 v7, 13, v7\nv_lshlrev_b32 v7, 4, v7\nv_and_b32 v6, 1, v0\nv_mul_u32_u24 v6, %d, v6\nv_add_u32 v7, v7, v6\nv_add_u32 v8, s81, v7" % UPL)
    g("v_and_b32 v6, 15, v0\nv_lshrrev_b32 v7, 5, v0\nv_mul_u32_u24 v7, %d, v7\nv_bfe_u32 v9, v0, 4, 1\nv_add_u32 v9, v9, v6\nv_lshlrev_b32 v9, 4, v9\nv_add_u32 v7, v7, v9" % KF_PL)
    g("s_mul_i32 s81, s80, %d\ns_lshl_b32 s83, s82, 7\ns_sub_u32 s83, s81, s83\ns_add_u32 s83, s83, %d\nv_add_u32 v9, s83, v7" % (KF_CH, KF + 16*(16 - 7)))
    g("s_add_u32 s81, s13, %d\nv_add_u32 v12, s81, v10\ns_xor_b32 s83, s13, 0x1000\ns_add_u32 s83, s83, %d\nv_add_u32 v11, s83, v10" % (XC, XC))
    g("v_lshlrev_b32 v15, 5, v6\nv_lshrrev_b32 v14, 4, v0\nv_lshlrev_b32 v14, 3, v14\nv_add_u32 v15, v15, v14\nv_add_u32 v15, s81, v15")
    g("s_mul_i32 s85, s%d, %d\ns_lshl_b32 s81, s82, 11\ns_add_u32 s85, s85, s81\ns_add_u32 s85, s85, 0x%x" % (S_CH, UT_STRIDE, UT_OFF))
    g("s_mul_i32 s83, s80, %d\ns_add_u32 s83, s83, %d\ns_add_u32 s86, s83, s81\ns_add_u32 s86, s86, 64" % (CU_CH, XC))
    g("v_lshlrev_b32 v28, 2, v0\nv_add_u32 v22, s83, v28\ns_lshl_b32 s81, s82, 8\ns_add_u32 s81, s81, s83\ns_add_u32 s81, s81, 28\nv_add_u32 v28, s81, v28")
    g("s_lshl_b32 s84, s%d, 9\ns_add_u32 s84, s84, 0x%x" % (S_XCD, FT_OFF))
    g("v_bfe_u32 v24, v0, 3, 2\nv_lshlrev_b32 v24, 7, v24\nv_and_b32 v25, 7, v0\nv_lshlrev_b32 v25, 2, v25\nv_add_u32 v24, v24, v25")
    g("v_mov_b32 v16, %d\nv_mov_b32 v18, 0\nv_mov_b32 v19, 1" % SYW)
def u_build(g, lo, hi):
    def rd(i):
        b = 32 + 10*(i % 3)
        g("ds_read2_b32 v[%d:%d], v28 offset0:1 offset1:2\nds_read2_b32 v[%d:%d], v28 offset0:3 offset1:4\nds_read_b32 v%d, v28\nv_add_u32 v28, 0x200, v28" % (b, b+1, b+2, b+3, b+4))
    def wr(i):
        b = 32 + 10*(i % 3); e = b + 6
        g("v_alignbit_b32 v%d, v%d, v%d, 16" % (e, b, b+4))
        for k in (1, 2, 3): g("v_alignbit_b32 v%d, v%d, v%d, 16" % (e + k, b + k, b + k - 1))
        if i == 8: g("s_and_b32 s80, s%d, 1\ns_sub_u32 s80, s80, 1\ns_and_b32 exec_lo, s80, 0xff\ns_mov_b32 exec_hi, 0" % S_W)
        g("ds_write_b128 v20, v[%d:%d] offset:%d" % (b, b+3, i*2048))
        g("ds_write_b128 v21, v[%d:%d] offset:%d" % (e, e+3, i*2048))
        if i == 8: g("s_mov_b64 exec, -1")
    if lo == 0: rd(0); rd(1)
    for i in range(lo, hi):
        if i + 2 < 9: rd(i + 2)
        wr(i)
def conv(g):
    F = lambda p, k, i: "a[%d:%d]" % (64*p + 32*k + 4*i, 64*p + 32*k + 4*i + 3)
    def reads(i):
        q = []
        for a in range(8):
            q.append("ds_read_b128 %s, v8 offset:%d" % (F(i & 1, 0, a), a*2048 + i*256))
            q.append("ds_read_b128 %s, v9 offset:%d" % (F(i & 1, 1, a), a*256 + (3 - i)*32))
        return q
    for r in reads(0): g(r)
    first = set()
    for i in range(4):
        nxt = reads(i + 1) if i < 3 else []
        pairs = sorted([(a, d) for a in range(8) for d in range(8) if a + d <= 7], key=lambda x: (max(x), x))
        for n, (a, d) in enumerate(pairs):
            c = a + d
            C = "v[%d:%d]" % (32 + 4*c, 35 + 4*c) if c in first else "0"
            first.add(c)
            g("v_mfma_f32_16x16x32_bf16 v[%d:%d], %s, %s, %s" % (32 + 4*c, 35 + 4*c, F(i & 1, 0, a), F(i & 1, 1, d), C))
            if n >= 12 and nxt: g(nxt.pop(0))
    L1, L2 = g.lab("Lx"), g.lab("Lx")
    g("s_and_b32 s82, s%d, 1\ns_mul_i32 s87, s%d, %d\ns_lshl_b32 s83, s82, 11\ns_add_u32 s87, s87, s83\ns_add_u32 s87, s87, 0x%x\ns_nop 1" % (S_W, S_CH, AT_STRIDE, AT_OFF))
    g("s_cmp_lg_u32 s82, 0\ns_cbranch_scc1 %s" % L1)
    for k in range(4): g.raw("ds_write_b128 v11, v[%d:%d] offset:%d" % (48 + 4*k, 51 + 4*k, k*1024))
    g("s_branch %s" % L2)
    g(L1 + ":")
    for k in range(4): g.raw("ds_write_b128 v11, v[%d:%d] offset:%d" % (32 + 4*k, 35 + 4*k, k*1024))
    g.nop(2)
    for r in range(8): g.raw("v_mov_b64 v[%d:%d], v[%d:%d]" % (32 + 2*r, 33 + 2*r, 48 + 2*r, 49 + 2*r))
    g(L2 + ":")
    g.lg_seq += 4
def conv_fin(g):
    for cc in range(4): g("ds_read_b128 v[%d:%d], v12 offset:%d" % (48 + 4*cc, 51 + 4*cc, cc*1024))
    for r in range(16): g("v_add_f32 v%d, v%d, v%d" % (32 + r, 32 + r, 48 + r))
    for cc in range(4):
        for r in range(2): g("v_cvt_pk_bf16_f32 v%d, v%d, v%d" % (48 + 2*cc + r, 32 + 4*cc + 2*r, 33 + 4*cc + 2*r))
        g("ds_write_b64 v15, v[%d:%d] offset:%d" % (48 + 2*cc, 49 + 2*cc, cc*512))
    for pr in range(2): g("ds_read_b128 v[%d:%d], v12 offset:%d" % (56 + 4*pr, 59 + 4*pr, pr*1024))
    for pr in range(2): op = g("buffer_store_dwordx4 v[%d:%d], v10, %s, s87 offen offset:%d sc1" % (56 + 4*pr, 59 + 4*pr, srd(S_WS), pr*1024))
    return op
def chunk_ids(g):
    tabs = [sum(c << (4*i) for i, c in enumerate(ORD[e])) for e in range(4)]
    g("s_add_u32 s80, s%d, s%d\ns_mov_b32 s81, 0x%x\ns_mov_b32 s82, 0x%x\ns_bitcmp1_b32 s80, 0\ns_cselect_b32 s81, 0x%x, s81\ns_cselect_b32 s82, 0x%x, s82\ns_bitcmp1_b32 s80, 1\ns_cselect_b32 s81, s82, s81" % (S_TB2, S_W, tabs[0], tabs[2], tabs[1], tabs[3]))
    for c in range(7): g("s_bfe_u32 s%d, s81, 0x%x" % (18 + c, (4 << 16) | (4*c)))
def wd_setup(g):
    g("v_lshrrev_b32 v30, 3, v0\nv_lshlrev_b32 v30, 10, v30\nv_bfe_u32 v6, v0, 4, 1\nv_lshlrev_b32 v6, 2, v6\nv_and_b32 v7, 7, v0\nv_xor_b32 v6, v6, v7\nv_lshlrev_b32 v6, 4, v6\nv_add_u32 v30, v30, v6")
    g("s_mul_i32 s94, s%d, %d\ns_lshl_b32 s80, s%d, 7\ns_add_u32 s94, s94, s80" % (S_W, 448*1024, S_NB))
def wd_ld(c):
    q = []
    for i in range(8):
        pre = "s_lshl_b32 s26, s%d, 16\ns_add_u32 s26, s26, s94\n" % (18 + c) if i == 0 else "s_add_u32 s26, s26, 8192\n"
        if c < 5: q.append("s_add_u32 m0, s92, %d\n%sbuffer_load_dwordx4 v30, %s, s26 offen lds" % (WSL[c] + i*1024, pre, srd(S_WD)))
        else: q.append("%sbuffer_load_dwordx4 v[%d:%d], v30, %s, s26 offen" % (pre, 64 + 32*(c-5) + 4*i, 67 + 32*(c-5) + 4*i, srd(S_WD)))
    return q
def fin_addr(g, b):
    t = b + 4
    g("s_and_b32 s80, s3, 3\ns_lshl_b32 s80, s80, 3\nv_lshrrev_b32 v%d, 3, v0\nv_add_u32 v%d, s80, v%d" % (t, b+2, t))
    g("v_lshlrev_b32 v%d, 10, v%d\nv_and_b32 v%d, 7, v0\nv_lshlrev_b32 v%d, 4, v%d\nv_add_u32 v%d, v%d, v%d" % (b+3, t, t, b, t, b+3, b+3, b))
    g("v_mul_u32_u24 v%d, 0x420, v%d\nv_lshlrev_b32 v%d, 4, v%d\nv_xor_b32 v%d, v%d, v%d" % (b, t, b+1, b+2, b, b, b+1))
    g("s_lshr_b32 s81, s3, 2\ns_lshl_b32 s80, s81, 15\nv_add_u32 v%d, s80, v%d" % (b, b))
    g("v_lshlrev_b32 v%d, 6, v%d\nv_and_b32 v%d, 3, v0\nv_lshlrev_b32 v%d, 4, v%d\nv_add_u32 v%d, v%d, v%d" % (b+1, b+2, t, t, t, b+1, b+1, t))
    g("v_bfe_u32 v%d, v0, 2, 1\nv_lshlrev_b32 v%d, 13, v%d\nv_add_u32 v%d, v%d, v%d" % (t, t, t, b+1, b+1, t))
    g("s_lshl_b32 s80, s81, 12\ns_add_u32 s80, s80, %d\nv_add_u32 v%d, s80, v%d\nv_lshlrev_b32 v%d, 2, v%d\nv_add_u32 v%d, s80, v%d" % (STG, b+1, b+1, b+2, b+2, b+2, b+2))
    g("s_lshl_b32 s87, s%d, 16\ns_lshl_b32 s81, s3, 13\ns_add_u32 s87, s87, s81\ns_lshl_b32 s81, s%d, 7\ns_add_u32 s87, s87, s81" % (S_TB2, S_NB))
def fin(g, b, P, GA, OMG):
    for j in range(2):
        for sw in range(4): g("ds_read_b128 v[%d:%d], v%d offset:%d" % (P + 8*sw + 4*j, P + 3 + 8*sw + 4*j, b, sw*8192 + j*512))
        if j == 0: g("ds_read_b32 v%d, v%d" % (OMG, b + 2))
    g("ds_read_b128 v[%d:%d], v%d offset:2048" % (GA, GA + 3, b + 1))
    O.fin_math(g, P, GA, OMG, b + 3)

def T_all(g):
    g("s_sub_u32 s10, s2, 224\ns_mul_i32 s11, s3, 10880")
    g("v_lshrrev_b32 v5, 3, v0\nv_and_b32 v6, 7, v0\nv_lshlrev_b32 v6, 4, v6\nv_lshlrev_b32 v7, 10, v5\nv_add_u32 v8, v7, v6")
    g("s_lshl_b32 s82, s10, 16\ns_lshl_b32 s81, s3, 7\ns_add_u32 s82, s82, s81")
    for i in range(8):
        tl = g("s_add_u32 m0, s11, %d\ns_add_u32 s83, s82, %d\nbuffer_load_dwordx4 v8, %s, s83 offen lds" % (i*1056, i*8192, srd(S_X)))
    g("v_mov_b32 v9, s81")
    g("v_mul_u32_u24 v27, 160, v5\nv_add_u32 v27, v27, v6\ns_add_u32 s82, s11, 9504\nv_add_u32 v27, s82, v27")
    g("v_mul_u32_u24 v22, 1056, v5\nv_lshlrev_b32 v7, 3, v6\nv_add_u32 v22, v22, v7\nv_add_u32 v22, s11, v22")
    g("v_mul_u32_u24 v5, %d, v5\nv_add_u32 v29, v5, v6" % UT_STRIDE)
    g("v_and_b32 v26, 3, v0\nv_lshrrev_b32 v5, 5, v0\nv_lshlrev_b32 v5, 2, v5\nv_add_u32 v26, v26, v5\nv_mul_u32_u24 v26, 1056, v26")
    g("v_bfe_u32 v5, v0, 2, 2\nv_lshlrev_b32 v6, 7, v5\nv_add_u32 v26, v26, v6")
    g("v_bfe_u32 v6, v0, 4, 1\nv_lshlrev_b32 v6, 3, v6\nv_add_u32 v26, v26, v6\nv_add_u32 v26, s11, v26")
    g("v_bfe_u32 v5, v0, 4, 1\nv_lshlrev_b32 v5, 2, v5\nv_and_b32 v6, 3, v0\nv_add_u32 v5, v5, v6\nv_mul_u32_u24 v5, 160, v5")
    g("v_bfe_u32 v6, v0, 2, 2\nv_lshlrev_b32 v6, 4, v6\nv_add_u32 v5, v5, v6")
    g("v_lshrrev_b32 v6, 5, v0\nv_lshlrev_b32 v6, 6, v6\nv_add_u32 v28, v5, v6\nv_add_u32 v28, s82, v28")
    g("s_mul_i32 s82, s3, %d\ns_lshl_b32 s81, s10, 7\ns_add_u32 s82, s82, s81\ns_add_u32 s82, s82, 0x%x" % (64*UT_STRIDE, UT_OFF))
    tag_compute(g)
    g.wait_op(tl)
    if g.role == 1: stamp(g, "I:Tland")
    for k in range(12):
        b = 64 + 4*k
        if k < 8: g("ds_read_b64_tr_b16 v[%d:%d], v26 offset:%d\nds_read_b64_tr_b16 v[%d:%d], v26 offset:%d" % (b, b+1, 16*k, b+2, b+3, 16*k + 512))
        if 2 <= k < 10: g("ds_write_b128 v28, v[%d:%d]\nds_read_b128 a[%d:%d], v27" % (b - 8, b - 5, 4*(k-2), 4*(k-2) + 3))
        if k >= 4: g("s_add_u32 s83, s82, %d\nbuffer_store_dwordx4 a[%d:%d], v29, %s, s83 offen sc1" % ((k-4)*8*UT_STRIDE, 4*(k-4), 4*(k-4) + 3, srd(S_WS)))
    ts = ("vm", g.vm_seq)
    for i in range(8): g("global_load_dwordx4 v[%d:%d], v9, s[42:43] offset:%d" % (96 + 4*i, 99 + 4*i, 16*i))
    g("s_lshl_b32 s80, s3, 9\ns_lshr_b32 s81, s10, 3\ns_lshl_b32 s81, s81, 7\ns_add_u32 s80, s80, s81\ns_and_b32 s81, s10, 7\ns_lshl_b32 s81, s81, 2\ns_add_u32 s80, s80, s81\ns_add_u32 s80, s80, 0x%x" % FT_OFF)
    g.wait_op(ts); flag_store(g, 80, 10)
    if g.role == 1: stamp(g, "I:Tflag")
    for i in range(8): g("ds_read_b128 v[%d:%d], v22 offset:%d" % (64 + 4*i, 67 + 4*i, 16*i))
    g("v_mov_b32 v24, 0\nv_mov_b32 v23, 0\nv_mov_b32 v25, s%d" % S_TAG)
    for i in range(32): g("v_dot2_f32_bf16 v%d, v%d, v%d, v%d" % (23 + (i & 1), 64 + i, 96 + i, 23 + (i & 1)))
    g("s_lshl_b32 s80, s3, 14\ns_lshl_b32 s81, s10, 9\ns_add_u32 s80, s80, s81\ns_add_u32 s80, s80, 0x%x\nv_lshlrev_b32 v5, 3, v0" % G_OFF)
    g("v_add_f32 v24, v23, v24")
    g("buffer_store_dwordx2 v[24:25], v5, %s, s80 offen sc1" % srd(S_WS))

def H_part1(g, idle):
    X = (lambda u: []) if idle else x_dma
    Wq = (lambda u: []) if idle else w_dma
    st_ = (lambda g, n: None) if idle else stamp
    def W(op):
        if op is not None: g.wait_op(op)
    def B(): g("s_barrier")
    if idle:
        g.srd(S_X, 16, 2048*512*2); epoch_load(g); g.srd(S_WS, 48, WS_BYTES); T_all(g); g.wait(lg=0); B()
    else: g.srd(S_WG, 36, 512*1792*2); g.srd(S_WU, 38, 512*1792*2); g.srd(S_X, 16, 2048*512*2)
    w = {}; x = {}
    w[0] = weave(g, Wq(0), [])
    g.srd(S_WS, 48, WS_BYTES); g.srd(S_WD, 40, 512*1792*2); g.srd(S_OUT, 44, 2048*512*2)
    if not idle: epoch_load(g)
    g("s_mov_b32 s9, %d" % KC)
    x[0] = weave(g, X(0), rec(kfull_addr))
    w[1] = weave(g, Wq(1), rec(conv_addr) + rec(wd_setup))
    chunk_ids(g)
    if not idle: tag_compute(g)
    st_(g, "H:i0")
    W(x[0]); B()
    w[2] = weave(g, Wq(2), rec(kfull_read)); weave(g, X(1)[:4], [])
    st_(g, "H:i8")
    g.wait(lg=0); W(w[1]); B()
    x[1] = weave(g, X(1)[4:], []); w[3] = weave(g, Wq(3), [])
    if not idle and OPT["tch"] == 0: g("s_lshl_b32 s80, s2, 2\ns_add_u32 s80, s80, s%d\ns_lshl_b32 s80, s80, 11\nv_lshlrev_b32 v7, 7, v0\ns_mov_b64 exec, 0xffff\nbuffer_load_dword v127, v7, %s, s80 offen\ns_mov_b64 exec, -1" % (S_W, srd(S_WD)))
    st_(g, "H:i16")
    W(x[1]); B()
    x[2] = weave(g, X(2), [])
    if not idle and OPT["tch"] == 1: g("s_lshl_b32 s80, s2, 2\ns_add_u32 s80, s80, s%d\ns_lshl_b32 s80, s80, 11\nv_lshlrev_b32 v7, 7, v0\ns_mov_b64 exec, 0xffff\nbuffer_load_dword v127, v7, %s, s80 offen\ns_mov_b64 exec, -1" % (S_W, srd(S_WD)))
    st_(g, "H:i24")
    W(w[3]); B()
    kfull_write(g)
    W(x[2]); st_(g, "H:a32"); B()
    wr = wd_ld(5) + wd_ld(6)
    def tpoll():
        Lok = g.lab("Lok")
        g("v_cmp_ne_u32 vcc, s%d, v25\ns_nop 4\ns_cmp_eq_u64 vcc, 0\ns_cbranch_scc1 %s" % (S_TAG, Lok))
        sv = g.vm_done; poll(g, 24, 84, 25, sleep=8); g.vm_done = sv
        g(Lok + ":")
        st_(g, "H:Tp")
    def WR(n):
        for _ in range(n):
            if wr: g(wr.pop(0))
    x[3] = weave(g, X(3), [])
    g("buffer_load_dword v25, v24, %s, s84 offen sc1" % srd(S_WS))
    if OPT["te"]:
        tpoll(); ul = O.u_load(g); g.wait(lg=0); g.wait_op(ul)
    W(x[3]); st_(g, "H:a48"); B()
    x[4] = weave(g, X(4), [])
    if OPT["te"]:
        WR(OPT["wrn"]); g("s_setprio %d" % OPT["kprio"]); u_build(g, 0, OPT["bsplit"])
    else:
        tpoll(); ul = O.u_load(g); WR(OPT["wrn"]); g.wait(lg=0); g.wait_op(ul)
    W(x[4]); st_(g, "H:a64"); B()
    x[5] = weave(g, X(5), [])
    WR(OPT["wrn"]); g("s_setprio %d" % OPT["kprio"])
    u_build(g, OPT["bsplit"] if OPT["te"] else 0, 9)
    g.wait(lg=0); W(x[5]); st_(g, "H:a80"); B()
    x[6] = weave(g, X(6), [])
    WR(99)
    g("s_setprio %d" % OPT["cvp"]); conv(g)
    g.wait(lg=0); W(x[6]); st_(g, "H:a96"); B()
    x[7] = weave(g, X(7), [])
    g("s_setprio %d" % OPT["kprio"])
    for t in wd_ld(0)[:4]: g(t)
    aop = conv_fin(g); g("s_setprio 0")
    for t in wd_ld(0)[4:] + wd_ld(1)[:OPT["n1"]]: g(t)
    g("s_lshl_b32 s80, s%d, 9\ns_lshl_b32 s81, s%d, 7\ns_add_u32 s80, s80, s81\ns_add_u32 s80, s80, 0x%x\ns_add_u32 s50, s48, s80\ns_addc_u32 s51, s49, 0" % (S_TB2, S_W, FH_OFF))
    hpoll(g, 0, 4)
    W(x[7]); st_(g, "H:a112"); B()
    for t in wd_ld(1)[OPT["n1"]:] + wd_ld(2): g.w2 = g(t)
    g("s_and_b32 s82, s%d, 1\ns_lshl_b32 s80, s%d, 1\ns_add_u32 s80, s80, s82\ns_lshl_b32 s80, s80, 10\ns_and_b32 s81, s%d, 56\ns_lshl_b32 s81, s81, 4\ns_add_u32 s80, s80, s81\ns_and_b32 s81, s%d, 7\ns_lshl_b32 s81, s81, 2\ns_add_u32 s80, s80, s81\ns_add_u32 s80, s80, 0x%x" % (S_W, S_XCD, S_CH, S_CH, FA_OFF))
    g.wait_op(aop); flag_store(g, 80, 6)
    hpoll(g, 16)
    st_(g, "H:a128")

def hpoll(g, off, n=8):
    L, D = g.lab("Ls"), g.lab("Lsd")
    g("s_mov_b32 s%d, 0x40000" % S_SPIN)
    g(L + ":")
    g.raw("s_load_dwordx8 s[56:63], s[50:51], %d glc" % off)
    g.raw("s_waitcnt lgkmcnt(0)"); g.lg_done = g.lg_seq
    for i in range(n): g.raw("s_xor_b32 s%d, s%d, s%d" % (56 + i, 56 + i, S_TAG))
    for i in range(1, n): g.raw("s_or_b32 s56, s56, s%d" % (56 + i))
    g.raw("s_cbranch_scc0 %s" % D)
    g.raw("s_sleep 2")
    g.raw("s_sub_u32 s%d, s%d, 1" % (S_SPIN, S_SPIN))
    g.raw("s_cbranch_scc0 %s" % L)
    g(D + ":")
def build_H():
    g = G(); g.nlab = 1000; g.role = 1; g.nst = 1; St.names[48] = "H:start"
    prologue(g)
    h_dma_addr(g)
    g("s_waitcnt lgkmcnt(0)")
    g("s_cmp_ge_u32 s%d, 28\ns_cbranch_scc1 Lhidle" % S_IDX)
    H_part1(g, False)
    g("Lhj:")
    g("s_barrier")
    q34 = wd_ld(3) + wd_ld(4)
    for t in q34[:OPT["n3"]]: g(t)
    g.wait_op(g.w2); stamp(g, "H:aM0")
    g("s_barrier")
    for t in q34[OPT["n3"]:]: w4 = g(t)
    hpoll(g, 48); stamp(g, "H:aM4")
    g("s_barrier")
    g("v_and_b32 v5, 31, v0\nv_lshlrev_b32 v20, 3, v5")
    g("s_lshl_b32 s82, s%d, 1\ns_lshr_b32 s81, s%d, 4\ns_add_u32 s82, s82, s81\ns_lshl_b32 s82, s82, 10\ns_lshr_b32 s81, s%d, 1\ns_lshl_b32 s81, s81, 9\ns_add_u32 s82, s82, s81\ns_add_u32 s82, s82, 0x%x" % (S_NB, S_TB2, S_W, FA_OFF))
    g("s_lshl_b32 s85, s%d, 9\ns_and_b32 s81, s%d, 1\ns_lshl_b32 s81, s81, 8\ns_add_u32 s85, s85, s81\ns_add_u32 s85, s85, 0x%x" % (S_TB2, S_W, G_OFF))
    g("v_lshrrev_b32 v6, 5, v0\nv_lshlrev_b32 v6, 16, v6\nv_add_u32 v20, v20, v6")
    for j in range(4): g("s_add_u32 s80, s85, %d\nbuffer_load_dwordx2 v[%d:%d], v20, %s, s80 offen sc1" % (j*16384, 32 + 2*j, 33 + 2*j, srd(S_WS)))
    g("buffer_load_dword v25, v24, %s, s82 offen sc1" % srd(S_WS))
    g("v_lshrrev_b32 v7, 2, v0\nv_mul_u32_u24 v8, %d, v7\nv_and_b32 v9, 3, v0\nv_lshlrev_b32 v9, 4, v9\nv_add_u32 v8, v8, v9" % AT_STRIDE)
    g("s_mul_i32 s83, s%d, %d\ns_lshr_b32 s81, s%d, 1\ns_mul_i32 s81, s81, %d\ns_add_u32 s83, s83, s81\ns_lshl_b32 s81, s%d, 7\ns_add_u32 s83, s83, s81\ns_and_b32 s81, s%d, 1\ns_lshl_b32 s81, s81, 6\ns_add_u32 s83, s83, s81\ns_add_u32 s83, s83, 0x%x\ns_add_u32 s84, s83, %d" % (S_NB, 64*AT_STRIDE, S_W, 32*AT_STRIDE, S_TB2, S_W, AT_OFF, 16*AT_STRIDE))
    g("s_add_u32 s86, s13, %d\nv_add_u32 v21, s86, v10\ns_add_u32 s80, s92, %d\nv_add_u32 v11, s80, v10" % (STG, SL[2]))
    g("v_lshrrev_b32 v22, 5, v0\nv_lshlrev_b32 v22, 2, v22\nv_bfe_u32 v23, v0, 2, 2\nv_add_u32 v22, v22, v23\nv_lshlrev_b32 v22, 6, v22")
    g("v_bfe_u32 v23, v0, 4, 1\nv_lshlrev_b32 v23, 5, v23\nv_add_u32 v22, v22, v23\nv_and_b32 v23, 3, v0\nv_lshlrev_b32 v23, 3, v23\nv_add_u32 v22, v22, v23\nv_add_u32 v22, s86, v22")
    g("v_lshlrev_b32 v4, 2, v5\nv_add_u32 v4, s86, v4\nv_lshlrev_b32 v5, 6, v5\nv_lshrrev_b32 v23, 5, v0\nv_lshlrev_b32 v23, 3, v23\nv_add_u32 v5, v5, v23\nv_add_u32 v5, s86, v5")
    fin_addr(g, 26)
    hpoll(g, 80)
    g.wait_op(w4)
    stamp(g, "H:aM8")
    g("s_barrier")
    g("v_cmp_ne_u32 vcc, s%d, v25\ns_nop 4\ns_cmp_eq_u64 vcc, 0\ns_cselect_b32 s27, 1, 0\ns_cbranch_scc0 Lna" % S_TAG)
    g.raw("buffer_load_dwordx4 v[12:15], v8, %s, s83 offen sc1" % srd(S_WS)); g.raw("buffer_load_dwordx4 v[16:19], v8, %s, s84 offen sc1" % srd(S_WS))
    g("Lna:")
    g("s_setprio 2")
    for i in range(16): g("ds_write_b128 v11, v[%d:%d] offset:%d" % (64 + 4*i, 67 + 4*i, (i >> 3)*32768 + (i & 7)*1024))
    g.wait(lg=0); stamp(g, "H:aM16")
    g("s_barrier")
    g("s_cmp_lg_u32 s27, 0\ns_cbranch_scc1 Lok2")
    poll(g, 24, 82, 25, sleep=8)
    g.raw("buffer_load_dwordx4 v[12:15], v8, %s, s83 offen sc1" % srd(S_WS)); g.raw("buffer_load_dwordx4 v[16:19], v8, %s, s84 offen sc1" % srd(S_WS))
    g("Lok2:")
    g("s_mov_b32 s%d, 0x40000\ns_branch Lgm" % S_SPIN)
    g("Lgp:")
    for j in range(4):
        g.raw("s_add_u32 s80, s85, %d" % (j*16384)); g.raw("buffer_load_dwordx2 v[%d:%d], v20, %s, s80 offen sc1" % (32 + 2*j, 33 + 2*j, srd(S_WS)))
    g("Lgm:")
    for l in ("s_waitcnt vmcnt(0)", "v_xor_b32 v33, s%d, v33" % S_TAG, "v_xor_b32 v35, s%d, v35" % S_TAG, "v_xor_b32 v37, s%d, v37" % S_TAG, "v_xor_b32 v39, s%d, v39" % S_TAG,
              "v_or3_b32 v33, v33, v35, v37", "v_or_b32 v33, v33, v39", "v_cmp_ne_u32 vcc, 0, v33", "s_nop 4", "s_cmp_eq_u64 vcc, 0", "s_cbranch_scc1 Lgd",
              "s_sleep 8", "s_sub_u32 s%d, s%d, 1" % (S_SPIN, S_SPIN), "s_cbranch_scc0 Lgp"): g.raw(l)
    g("Lgd:"); g.vm_done = g.vm_seq
    g("ds_write_b128 v21, v[12:15]\nds_write_b128 v21, v[16:19] offset:1024")
    g("v_add_f32 v32, v32, v34\nv_add_f32 v36, v36, v38\nv_add_f32 v2, v32, v36\nv_mov_b32 v3, v2")
    for q in range(4): g("ds_read_b64_tr_b16 v[%d:%d], v22 offset:%d" % (32 + 2*q, 33 + 2*q, q*512))
    g("v_permlane32_swap_b32 v2, v3\nv_add_f32 v2, v2, v3")
    for t in ("v_cvt_pk_bf16_f32 v2, v2, v2", "v_lshlrev_b32 v2, 16, v2", "v_mul_f32 v2, 0x%x, v2" % f2u(-LOG2E), "v_exp_f32 v2, v2",
              "v_add_f32 v2, 1.0, v2", "v_rcp_f32 v2, v2", "v_cvt_pk_bf16_f32 v2, v2, v2", "v_lshlrev_b32 v2, 16, v2"): g(t)
    g("v_sub_f32 v3, 1.0, v2\nv_cvt_pk_bf16_f32 v3, v3, v3\nv_lshlrev_b32 v3, 16, v3")
    for r in range(8):
        y = 48 + 2*r
        g("v_lshlrev_b32 v%d, 16, v%d\nv_and_b32 v%d, 0xffff0000, v%d" % (y, 32 + r, y+1, 32 + r))
        g("v_mul_f32 v%d, v2, v%d\nv_mul_f32 v%d, v2, v%d" % (y, y, y+1, y+1))
        g("v_cvt_pk_bf16_f32 v%d, v%d, v%d" % (40 + r, y, y+1))
    for q in range(4): g("ds_write_b64 v5, v[%d:%d] offset:%d" % (40 + 2*q, 41 + 2*q, 2048 + 16*q))
    g("ds_write_b32 v4, v3")
    g.wait(lg=0)
    O.epoch_bump(g)
    stamp(g, "H:aTready")
    g("s_barrier")
    fin(g, 26, 64, 44, 3)
    stamp(g, "H:end")
    stamp_store(g)
    g("s_endpgm")
    g2 = G(); g2.nlab = 3000; g2.role = 1; g2.nst = 36
    g2("Lhidle:")
    H_part1(g2, True)
    g2("s_branch Lhj")
    g2("Lcodeend:")
    return g.text(), g2.text()

def cpoll(g, lo, hi, first=False):
    L, D = g.lab("Lc"), g.lab("Lcd")
    reg = lambda i: (32 + i) if i < 16 else (52 + i - 16)
    if first: g.raw("s_waitcnt lgkmcnt(0)")
    g(L + ":")
    g.raw("s_xor_b64 s[80:81], s[%d:%d], s[16:17]" % (reg(lo), reg(lo) + 1))
    for i in range(lo + 2, hi, 2):
        g.raw("s_xor_b64 s[8:9], s[%d:%d], s[16:17]" % (reg(i), reg(i) + 1)); g.raw("s_or_b64 s[80:81], s[80:81], s[8:9]")
    g.raw("s_cbranch_scc0 %s" % D)
    g.raw("s_sub_u32 s%d, s%d, 1" % (S_SPIN, S_SPIN))
    g.raw("s_cbranch_scc1 %s" % D)
    fload(g)
    g.raw("s_waitcnt lgkmcnt(0)")
    g.raw("s_branch %s" % L)
    g(D + ":")
def fload(g):
    g.raw("s_load_dwordx16 s[32:47], s[50:51], 0 glc")

def build_C():
    g = G(); g.nlab = 2000; g.role = 0; g.nst = 1; St.names[0] = "C:start"
    g("Lcompute:")
    prologue2(g); kparams(g)
    g("s_waitcnt lgkmcnt(0)")
    g("s_cmp_ge_u32 s%d, 28\ns_cbranch_scc1 Lnog1" % S_IDX)
    kloads(g)
    epoch_load(g)
    g.srd(S_X, 16, 2048*512*2); g.srd(S_WS, 48, WS_BYTES); g.srd(S_OUT, 44, 2048*512*2)
    def setup2(g):
        chunk_ids(g)
        g("s_lshl_b32 s86, s%d, 11\ns_and_b32 s80, s%d, 3\ns_lshl_b32 s80, s80, 7\ns_add_u32 s86, s86, s80\ns_lshl_b32 s80, s%d, 2\ns_add_u32 s86, s86, s80\ns_add_u32 s86, s86, 0x%x" % (S_MT, S_XCD, S_W, FH_OFF))
        g("s_lshl_b32 s80, s%d, 9\ns_lshl_b32 s81, s%d, 7\ns_add_u32 s80, s80, s81\ns_add_u32 s80, s80, 0x%x\ns_add_u32 s50, s48, s80\ns_addc_u32 s51, s49, 0" % (S_TB2, S_W, FH_OFF))
        g("s_mul_i32 s91, s%d, %d\ns_mul_i32 s80, s%d, %d\ns_add_u32 s91, s91, s80\ns_add_u32 s91, s91, 0x%x" % (S_TB2, 2*112*1024, S_W, 28*1024, H_OFF))
        g("s_mov_b32 s16, s%d\ns_mov_b32 s17, s%d\ns_mov_b32 s%d, 0x40000\ns_lshl_b32 s92, s%d, 13" % (S_TAG, S_TAG, S_SPIN, S_W))
        g("v_mov_b32 v4, s%d\nv_mov_b32 v5, 0\nv_lshlrev_b32 v30, 4, v0\nv_add_u32 v1, 0x%x, v30" % (S_TAG, 112*1024))
        g("v_lshrrev_b32 v6, 5, v0\nv_lshlrev_b32 v6, 2, v6\nv_bfe_u32 v7, v0, 2, 2\nv_add_u32 v6, v6, v7\nv_lshlrev_b32 v6, 7, v6")
        g("v_bfe_u32 v7, v0, 3, 1\nv_lshlrev_b32 v7, 6, v7\nv_add_u32 v6, v6, v7\nv_bfe_u32 v7, v0, 4, 1\nv_lshlrev_b32 v7, 5, v7\nv_add_u32 v6, v6, v7")
        g("v_and_b32 v7, 3, v0\nv_lshlrev_b32 v7, 3, v7\nv_add_u32 v6, v6, v7\nv_add_u32 v6, s92, v6")
    kaddr(g); c_addr(g); tag_compute(g); setup2(g)
    kchain(g, "a")
    stamp(g, "C:K")
    def hreg(kk, ti): return "a[%d:%d]" % (8*(kk % 12) + 4*ti, 8*(kk % 12) + 4*ti + 3)
    def load_h(kk):
        pre = "s_lshl_b32 s90, s%d, 12\ns_add_u32 s90, s90, s91\n" % (18 + kk//4) if kk % 4 == 0 else ""
        return [(pre if ti == 0 else "") + "buffer_load_dwordx4 %s, v%d, %s, s90 offen offset:%d sc1" % (hreg(kk, ti), (30, 1)[ti], srd(S_WS), (kk % 4)*1024) for ti in range(2)]
    PRE = 8
    side = {}
    for kk in range(4):
        for ti, t in enumerate(load_h(kk)): side[(118 + kk, ti)] = [t]
    gemm1(g, side)
    stamp(g, "C:main1end")
    e3 = epi(3, True); hq = sum([load_h(kk) for kk in range(4, PRE)], [])
    for t in e3[:20]: g(t)
    g.wait_op(g.lastst[2]); hflag(g, 2)
    for t in e3[20:]: st3 = g(t)
    for t in hq: g(t)
    stamp(g, "C:epiend")
    g3 = G(); g3.nlab = 4000; g3.role = 0; g3.nst = 46
    g3("Lnog1:")
    epoch_load(g3)
    g3.srd(S_X, 16, 2048*512*2); g3.srd(S_WS, 48, WS_BYTES); g3.srd(S_OUT, 44, 2048*512*2)
    T_all(g3); kloads(g3); g3.wait(lg=0); g3("s_barrier")
    kaddr(g3); setup2(g3); kchain(g3, "b")
    for _ in range(11): g3("s_barrier")
    for kk in range(PRE):
        for t in load_h(kk): g3(t)
    g3("s_waitcnt vmcnt(0)\ns_branch Lg2")
    g("Lg2:")
    for i, off in enumerate((0, 65536, 131072)):
        g("v_add_u32 v%d, 0x%x, v6\nv_xor_b32 v%d, 64, v%d" % (8 + 2*i, off, 9 + 2*i, 8 + 2*i))
    g("v_add_u32 v2, s92, v30")
    g("s_barrier")
    stamp(g, "C:M0")
    LQ = OPT["lastq"]; K0 = 28 - LQ
    def wb(kk, di): return ("a", 96 + 8*(kk - K0) + 4*di) if kk >= K0 else ("v", 32 + 8*(kk % 3) + 4*di)
    def reads(kk):
        c, s = divmod(kk, 4); q = []; sl = WSL[c]
        for di in range(2):
            t, b = wb(kk, di)
            for h in range(2): q.append("ds_read_b64_tr_b16 %s[%d:%d], v%d offset:%d" % (t, b + 2*h, b + 2*h + 1, 8 + 2*(sl >> 16) + di, (sl & 65535) + s*2048 + h*1024))
        return q
    def mf(kk, di, ti):
        a = 64 + 32*di + 16*ti; t, b = wb(kk, di)
        g("v_mfma_f32_32x32x16_bf16 v[%d:%d], %s[%d:%d], %s, %s" % (a, a+15, t, b, b+3, hreg(kk, ti), "0" if kk == 0 else "v[%d:%d]" % (a, a+15)))
    for r in reads(0): g(r)
    def flag3(g):
        L = g.lab("Lf")
        g.wait_op(st3)
        g("s_cmp_ge_u32 s%d, 28\ns_cbranch_scc1 %s" % (S_IDX, L))
        sq = g.vm_seq; hflag(g, 3); g.vm_seq = sq
        g(L + ":")
    nh = PRE
    for kk in range(K0):
        if kk in (1, 4, 8, 12, 16, 20): stamp(g, "C:k%d" % kk)
        nx = reads(kk + 1) if kk + 1 < K0 else []
        lq = []
        if kk == OPT["f3"]: lq.append(flag3)
        for _ in range(2):
            if nh < 28 and nh < kk + OPT["la"]:
                assert not (nh >= 12 and kk < 4) and not (nh >= 20 and kk < 11)
                lq += load_h(nh); nh += 1
        if kk == K0 - 2: lq += sum([reads(k) for k in range(K0, K0 + LQ//2)], [])
        if kk == K0 - 1: lq += sum([reads(k) for k in range(K0 + LQ//2, 28)], [])
        for n, (di, ti) in enumerate(((0,0),(0,1),(1,0),(1,1))):
            mf(kk, di, ti)
            if n == 0:
                if kk in (4, OPT["m20"]): g("s_barrier")
                if kk == 11: g.wait(lg=0); g("s_barrier")
                for r in nx: g(r)
            else:
                for _ in range(3 if n < 3 else 99):
                    if lq: emit(g, lq.pop(0))
    assert nh == 28
    stamp(g, "C:k%d" % K0)
    FB = 14
    fa = rec(fin_addr, FB); pend = []; cnt = [0]
    def pw(di, ti):
        q = []
        for j in range(4):
            t = 20 + (cnt[0] & 3); cnt[0] += 1; a = 64 + 32*di + 16*ti + 4*j
            q.append("v_xor_b32 v%d, 0x%x, v2\nds_write_b128 v%d, v[%d:%d] offset:%d" % (t, j*1056 ^ di*4224, t, a, a + 3, ti*32768))
        return q
    for qi, (di, ti) in enumerate(((0,0),(0,1),(1,0),(1,1))):
        for kk in range(K0, 28):
            mf(kk, di, ti)
            if qi == 0 or (qi == 1 and kk < K0 + 2):
                for _ in range(6):
                    if fa: g(fa.pop(0))
            elif pend and (kk - K0 >= 2 or len(pend) > 4): g(pend.pop(0))
        pend += pw(di, ti)
    for l in fa: g(l)
    stamp(g, "C:main2end")
    for t in pend: g(t)
    g.wait(lg=0)
    stamp(g, "C:a13")
    g("s_barrier")
    stamp(g, "C:B13")
    fin(g, FB, 64, 44, 3)
    stamp(g, "C:stores")
    if O.STAMPS: g.wait(vm=0); stamp(g, "C:drained")
    stamp_store(g)
    g("Lend:")
    g("s_endpgm")
    return g.text() + g3.text()
if __name__ == "__main__":
    if len(sys.argv) > 2 and sys.argv[2] != "-": O.STAMPS = sys.argv[2]
    for a in sys.argv[3:]:
        k, v = a.split("="); OPT[k] = eval(v)
    h1, h2 = build_H(); body = h1 + build_C() + h2
    open(sys.argv[1], "w").write(build_file([(KN, 256, 512, 163840, body, 256, 100, 128)], single=True))
    if O.STAMPS:
        import json; json.dump(St.names, open("stnames.json", "w"))
```
